```python
import torch

def _softmax(x, axis=-1):
    return torch.softmax(x, dim=axis)
def _gelu(x):
    return torch.nn.functional.gelu(x, approximate="tanh")
def _silu(x):
    return torch.nn.functional.silu(x)
def _sigmoid(x):
    return torch.sigmoid(x)
def _layernorm(x, axis=-1, eps=1e-5):
    m = x.mean(dim=axis, keepdim=True)
    v = x.var(dim=axis, keepdim=True, unbiased=False)
    return (x - m) / torch.sqrt(v + eps)
def _scatter_add(tgt, idx, src, axis=0):
    return tgt.clone().index_add_(axis, idx, src)
def _segment_sum(src, seg, n):
    out = torch.zeros((n,) + src.shape[1:], dtype=src.dtype)
    return out.index_add_(0, seg, src)
def _pad(x, pw):
    flat = tuple(v for pair in reversed(pw) for v in pair)
    return torch.nn.functional.pad(x, flat)

kernel_name = 'sequential_preLN__sliding_local_dilated__mixer_s_mlp__prompt'

def setup_inputs():

    _w = (lambda a: (lambda t: t.to(torch.bfloat16) if t.is_floating_point() else t)(torch.as_tensor(a)))
    def _A_setup():
        B, S, D = 1, 2048, 640
        return {
            "x": _w((lambda *s: torch.randn(*s, dtype=torch.bfloat16) * 0.05)(B, S, D)),
            "wqkv": _w((lambda *s: torch.randn(*s, dtype=torch.bfloat16) * 0.05)(D, 3 * D)),
            "wo": _w((lambda *s: torch.randn(*s, dtype=torch.bfloat16) * 0.05)(D, D)),
        }
    _A_in = _A_setup()

    def _B_setup():
        B, S, D, F = 1, 2048, 640, 1536
        return {
            "x":  _w((lambda *s: torch.randn(*s, dtype=torch.bfloat16) * 0.05)(B, S, D)),
            "w1": _w((lambda *s: torch.randn(*s, dtype=torch.bfloat16) * 3.2)(D, D) * (D ** -0.5)),
            "w2": _w((lambda *s: torch.randn(*s, dtype=torch.bfloat16) * 3.2)(D, D) * (D ** -0.5)),
            "w3": _w((lambda *s: torch.randn(*s, dtype=torch.bfloat16) * 3.2)(D, F) * (D ** -0.5)),
            "w4": _w((lambda *s: torch.randn(*s, dtype=torch.bfloat16) * 3.2)(F, D) * (F ** -0.5)),
        }
    _B_in = _B_setup()

    return {
        "A_x": _A_in["x"],
        "A_wqkv": _A_in["wqkv"],
        "A_wo": _A_in["wo"],
        "B_x": _B_in["x"],
        "B_w1": _B_in["w1"],
        "B_w2": _B_in["w2"],
        "B_w3": _B_in["w3"],
        "B_w4": _B_in["w4"],
    }

def reference(A_x, A_wqkv, A_wo, B_x, B_w1, B_w2, B_w3, B_w4):
    def _A_ref(x, wqkv, wo):
        B, S, D = x.shape
        H = 32; Dh = D // H
        W, dil = 8, 2
        qkv = (lambda x, *d: x.permute(*d))((x @ wqkv).reshape(B, S, 3, H, Dh), 2, 0, 3, 1, 4)
        q, k, v = qkv[0], qkv[1], qkv[2]
        scale = Dh ** -0.5
        pos = torch.arange(S)
        off = torch.arange(W) * dil
        idx = pos[:, None] - off[None, :]
        mask = idx >= 0
        idx_c = torch.where(mask, idx, 0).reshape(-1)
        kg = k[:, :, idx_c, :].reshape(B, H, S, W, Dh)
        vg = v[:, :, idx_c, :].reshape(B, H, S, W, Dh)
        logits = torch.einsum("bhsd,bhswd->bhsw", q, kg) * scale
        logits = torch.where(mask[None, None, :, :], logits, -1e9)
        attn = _softmax(logits, axis=-1)
        o = torch.einsum("bhsw,bhswd->bhsd", attn, vg)
        return (lambda x, *d: x.permute(*d))(o, 0, 2, 1, 3).reshape(B, S, D) @ wo

    def _B_ref(x, w1, w2, w3, w4):
        B, S, D = x.shape
        h = _gelu(_layernorm(x, axis=-1) @ w1)
        c = D // 4
        g0 = _pad(h[:, :, 0*c:1*c], ((0, 0), (1, 0), (0, 0)))[:, :S, :]
        g1 = _pad(h[:, :, 1*c:2*c], ((0, 0), (0, 1), (0, 0)))[:, 1:, :]
        g2 = _pad(h[:, :, 2*c:3*c], ((0, 0), (2, 0), (0, 0)))[:, :S, :]
        g3 = _pad(h[:, :, 3*c:   ], ((0, 0), (0, 2), (0, 0)))[:, 2:, :]
        hs = torch.concatenate([g0, g1, g2, g3], axis=-1) @ w2
        x1 = x + hs
        h2 = _gelu(_layernorm(x1, axis=-1) @ w3) @ w4
        return x1 + h2

    x = A_x
    h = x + _A_ref(_layernorm(x, axis=-1), A_wqkv, A_wo)
    h2 = h + _B_ref(_layernorm(h, axis=-1), B_w1, B_w2, B_w3, B_w4)
    return h2
```

```python
import re

TRANS = ("v_exp_f32", "v_log_f32", "v_rcp_f32", "v_rsq_f32", "v_sqrt_f32", "v_sin_f32", "v_cos_f32")
REG_RE = re.compile(r"\b([vs])\[(\d+):(\d+)\]|\b([vs])(\d+)\b|\b(vcc|exec|m0)\b")

def regs_of(tok):
    out = set()
    for m in REG_RE.finditer(tok):
        if m.group(1):
            out |= {(m.group(1), i) for i in range(int(m.group(2)), int(m.group(3)) + 1)}
        elif m.group(4):
            out.add((m.group(4), int(m.group(5))))
        else:
            out.add((m.group(6), 0))
    return out

def split_ops(s):
    ops, depth, cur = [], 0, ""
    for ch in s:
        if ch in "[(": depth += 1
        if ch in "])": depth -= 1
        if ch == "," and depth == 0:
            ops.append(cur.strip()); cur = ""
        else:
            cur += ch
    if cur.strip(): ops.append(cur.strip())
    return ops

class Ins:
    __slots__ = ("text", "op", "kind", "w", "r", "ra", "rb", "rc", "dpp", "wide_data", "states")

def parse(text):
    t = text.strip()
    parts = t.split(None, 1)
    op = parts[0]
    rest = parts[1] if len(parts) > 1 else ""
    ops = split_ops(rest)
    I = Ins(); I.text = t; I.op = op; I.w = set(); I.r = set(); I.ra = I.rb = I.rc = set()
    I.dpp = False; I.wide_data = set(); I.states = 1
    def R(i): return regs_of(ops[i].split(" ")[0] if False else ops[i]) if i < len(ops) else set()
    allr = lambda a: set().union(*[R(i) for i in range(a, len(ops))]) if len(ops) > a else set()
    if op.startswith("v_mfma"):
        I.kind = "mfma"; I.w = R(0); I.ra = R(1); I.rb = R(2); I.rc = R(3); I.r = I.ra | I.rb | I.rc
    elif op.startswith("v_"):
        I.kind = "valu"
        I.w = R(0); I.r = allr(1)
        if op.startswith("v_permlane"):
            I.w = R(0) | R(1); I.r = R(0) | R(1)
        if op.startswith("v_dot2c") or op.startswith("v_fmac"):
            I.r = I.r | R(0)
        if "_dpp" in op or "quad_perm" in t or "row_" in t:
            I.dpp = True
            I.r = I.r | R(0)
    elif op.startswith("ds_"):
        I.kind = "ds"
        if op.startswith("ds_read"):
            I.w = R(0); I.r = allr(1)
        else:
            I.r = allr(0)
    elif op.startswith("buffer_") or op.startswith("global_"):
        I.kind = "vmem"
        if "load" in op and not re.search(r"\blds\b", t) and "_lds_" not in op:
            I.w = R(0); I.r = allr(1)
        else:
            I.r = allr(0)
            if re.search(r"\blds\b", t) or "_lds_" in op: I.r = I.r | {("m0", 0)}
            if "store_dwordx4" in op or "store_dwordx3" in op:
                I.wide_data = R(0) if op.startswith("buffer_") else R(1)
    elif op.startswith("s_"):
        I.kind = "salu"
        if op == "s_nop":
            I.states = int(ops[0]) + 1
        elif op.startswith(("s_cmp", "s_cbranch", "s_branch", "s_waitcnt", "s_barrier", "s_sleep", "s_setprio", "s_endpgm", "s_bitcmp")):
            I.r = allr(0)
        else:
            I.w = R(0); I.r = allr(1)
    else:
        raise ValueError("unknown instr " + t)
    return I

def vonly(s): return {x for x in s if x[0] == "v"}
def sonly(s): return {x for x in s if x[0] in ("s", "vcc")}

def required(p, c):
    need = 0
    if p.kind == "valu":
        pw = vonly(p.w); ps = sonly(p.w)
        if c.kind == "mfma" and pw & c.r: need = max(need, 2)
        if c.kind == "valu":
            if c.op.startswith(("v_readfirstlane", "v_readlane")) and pw & c.r: need = max(need, 1)
            if c.dpp and pw & c.r: need = max(need, 2)
            if c.op.startswith("v_permlane") and pw & c.r: need = max(need, 2)
            if p.op.startswith(TRANS) and not c.op.startswith(TRANS) and pw & c.r: need = max(need, 1)
            if ps & c.r: need = max(need, 2)
        if c.kind == "vmem" and ps & c.r: need = max(need, 5)
        if p.op.startswith("v_dot2"):
            if c.op == p.op and c.kind == "valu":
                srcab = c.r - vonly(c.w) if c.op.startswith("v_dot2c") else c.r
                if pw & srcab: need = max(need, 3)
            elif pw & (c.r | c.w): need = max(need, 3)
    if p.kind == "mfma":
        if c.kind == "mfma":
            if p.w & (c.ra | c.rb): need = max(need, 8)
            if p.w & c.rc and not (p.w == c.rc and p.op == c.op): need = max(need, 6)
            if p.w & c.w and not (p.w == c.w): need = max(need, 6)
        elif c.kind in ("valu", "vmem", "ds"):
            if p.w & (c.r | c.w): need = max(need, 8)
            if c.kind == "valu" and p.rc & c.w: need = max(need, 3)
    if p.kind == "salu" and ("m0", 0) in p.w and c.kind == "vmem" and ("m0", 0) in c.r:
        need = max(need, 1)
    if p.kind == "vmem" and p.wide_data and (p.wide_data & c.w):
        need = max(need, 2 if c.kind in ("valu", "mfma") else 1)
    return need

class Asm:
    def __init__(self):
        self.lines = []
        self.hist = []
        self.vm = []
        self.ds = []
        self.tail = []
        self.nlabel = 0
        self.nops = 0
    def raw(self, s): self.lines.append(s)
    def comment(self, s): self.lines.append("    ; " + s)
    def label(self, name):
        self.lines.append(name + ":")
    def newlabel(self, base="L"):
        self.nlabel += 1
        return f"{base}_{self.nlabel}"
    def reset_hist(self):
        self.hist = []
    def reset_cnt(self):
        self.vm = []; self.ds = []
    def __call__(self, text, tag=None):
        for t in text.split("\n"):
            t = t.strip()
            if t: self.emit(t, tag)
    def emit(self, text, tag=None):
        I = parse(text)
        dist = 0; need = 0
        for p in reversed(self.hist):
            rq = required(p, I)
            if rq - dist > need: need = rq - dist
            dist += p.states
            if dist >= 9: break
        if need > 0:
            n = parse(f"s_nop {need-1}")
            self.lines.append("    " + n.text); self.hist.append(n); self.nops += 1
        self.lines.append("    " + I.text)
        self.hist.append(I)
        if len(self.hist) > 16: self.hist = self.hist[-16:]
        if I.kind == "vmem": self.vm.append(tag)
        if I.kind == "ds": self.ds.append(tag)
        if I.op == "s_waitcnt":
            m = re.search(r"vmcnt\((\d+)\)", I.text)
            if m:
                n = int(m.group(1)); self.vm = self.vm[len(self.vm) - n:] if n < len(self.vm) else self.vm
                if n == 0: self.vm = []
            m = re.search(r"lgkmcnt\((\d+)\)", I.text)
            if m:
                n = int(m.group(1)); self.ds = self.ds[len(self.ds) - n:] if n < len(self.ds) else self.ds
                if n == 0: self.ds = []
    def _cnt(self, q, tag):
        idx = None
        for i, t in enumerate(q):
            if t == tag: idx = i
        if idx is None: return None
        return len(q) - 1 - idx
    def wait(self, vm=None, ds=None):
        parts = []
        if vm is not None:
            n = self._cnt(self.vm, vm)
            if n is not None: parts.append(f"vmcnt({min(n, 63)})")
        if ds is not None:
            n = self._cnt(self.ds, ds)
            if n is not None: parts.append(f"lgkmcnt({min(n, 15)})")
        if parts: self.emit("s_waitcnt " + " ".join(parts))
    def text(self):
        return "\n".join(self.lines) + "\n"
```

```python
import sys, math, struct
from asmlib import Asm

KNAME = "sequential_preLN__sliding_local_dilated__mixer_s_mlp__prompt_kernel"

def f2u(x): return struct.unpack("<I", struct.pack("<f", x))[0]

WS_EPOCH = 0
WS_XT = 0x1000
WS_PF = 0x2000
WS_CS1 = 0x8000
WS_CS3 = 0x18000
WS_WP = 0x40000
WP_OFF = [0, 819200, 1638400, 2457600, 4423680]
WS_TILE = 0x680000
TS = 115712
BUFA, BUFB, BUFG, SHAD, FLG = 0, 20480, 40960, 90112, 110592
F1, F3, FH, G0, S2, S4 = FLG, FLG + 128, FLG + 256, FLG + 384, FLG + 1024, FLG + 3072
WS_STAMP = WS_TILE + 128 * TS
WS_SIZE = WS_STAMP + 2048 * 128
OOB = 0x40000000

RING = 153600
P1TMP = 128000
STAGE = 143360
L_CNT = 153600
L_LANDED = L_CNT + 32
L_MODE = L_CNT + 36
L_CSRDY = L_CNT + 40
L_XR = L_CNT + 64
L_TAG = L_CNT + 128
L_CS1 = L_CNT + 256
L_CS3 = L_CS1 + 320
L_PSCR = L_CNT + 2048
LDS_SIZE = 163840

def plan_units():
    units = []
    for ps in range(3):
        for i in range(4): units.append((25600, "raw", (ps, i)))
    units.append((0, "pseudo", None))
    for wid in range(3):
        for i in range(4): units.append((25600, "pk", (wid, 0, i)))
    for wid in (3, 4):
        for ch in range(3):
            for i in range(4): units.append((20480, "pk", (wid, ch, i)))
    placed = []
    addr = {}; need = {}
    placed.append((P1TMP, 25600, 12))
    for u, (size, kind, arg) in enumerate(units):
        if kind == "pseudo": continue
        if kind == "raw": cands = [25600 * k for k in range(5)]
        elif size == 25600: cands = [25600 * k for k in range(6)]
        else: cands = [20480 * k for k in range(7)]
        best = None
        for a in cands:
            nd = 0
            for (pa, psz, pi) in placed:
                if pa < a + size and a < pa + psz: nd = max(nd, pi + 1)
            if best is None or nd < best[0]: best = (nd, a)
        need[u], addr[u] = best
        placed.append((best[1], size, u))
    return units, addr, need
UNITS, UADDR, UNEED = plan_units()

vLane, vL16, vL8, vZ, vWA, vWB, vLC, vCV, vPA, vPB = 1, 2, 3, 4, 5, 6, 7, 8, 9, 10
vM = 12
KOWN, VFR = 28, 44
AF, WW, ACC, HP, X1P, TT = 64, 144, 176, 208, 218, 228
WN = 8
sWS, sIN, sOUT = 28, 32, 36
sWave, sX, sQ, sJ, sC, sT, sBud, sEp = 40, 41, 42, 43, 44, 45, 46, 47
sTag = 48
sMode = 50
sRot = 51
sTile = 55
sTJ = 56
sA, sB, sCc, sD, sE = 57, 58, 59, 60, 61
sPI = 62
sMa, sMb, sPar = 64, 66, 68
sSh = 70
sOnes = 72
sRho = 73
sSt = 76
sMk = 26

def v(a, n=1): return f"v{a}" if n == 1 else f"v[{a}:{a+n-1}]"
def s(a, n=1): return f"s{a}" if n == 1 else f"s[{a}:{a+n-1}]"

class Gen:
    def __init__(self, stamps=False, force_sc1=False, budget=1 << 17):
        self.a = Asm(); self.t = Asm()
        self.stamps = stamps; self.force_sc1 = force_sc1; self.budget = budget
        self.nst = 0
        self.t.nlabel = 100000

    def stamp(self):
        if self.stamps and self.nst < 12:
            self.a(f"s_memrealtime {s(sSt + 2 * self.nst, 2)}"); self.nst += 1

    def srd(self, a, d, lo, size):
        a(f"s_mov_b32 {s(d)}, {s(lo)}\ns_mov_b32 {s(d+1)}, {s(lo+1)}\ns_mov_b32 {s(d+2)}, {size}\ns_mov_b32 {s(d+3)}, 0x20000")

    def spin_tail(self, a, Lretry, Lok):
        a(f"s_cmp_eq_u32 {s(sBud)}, 0\ns_cbranch_scc1 {Lok}\ns_sub_u32 {s(sBud)}, {s(sBud)}, 1\ns_branch {Lretry}")

    def lds_spin(self, a, addr_v, off, need, tmp, sleep=0):
        L = a.newlabel("Lsp"); Lok = L + "_ok"
        a.label(L)
        a(f"ds_read_b32 {v(tmp)}, {v(addr_v)} offset:{off}\ns_waitcnt lgkmcnt(0)\nv_cmp_gt_u32 vcc, {need}, {v(tmp)}\ns_cbranch_vccz {Lok}")
        if sleep: a(f"s_sleep {sleep}")
        self.spin_tail(a, L, Lok)
        a.label(Lok)

    def allreduce2(self, a, x, y, t, op="v_add_f32"):
        a(f"v_permlane32_swap_b32 {v(x)}, {v(y)}")
        a(f"{op} {v(x)}, {v(x)}, {v(y)}")
        a(f"v_mov_b32 {v(y)}, {v(x)}")
        a(f"v_permlane16_swap_b32 {v(x)}, {v(y)}")
        a(f"{op} {v(x)}, {v(x)}, {v(y)}")
        a(f"v_mov_b32 {v(y)}, {v(x)}")
        a(f"v_permlane32_swap_b32 {v(x)}, {v(y)}")

    def rscatter4(self, a, m, op):
        a(f"v_permlane32_swap_b32 {v(m[0])}, {v(m[2])}")
        a(f"v_permlane32_swap_b32 {v(m[1])}, {v(m[3])}")
        a(f"{op} {v(m[0])}, {v(m[0])}, {v(m[2])}")
        a(f"{op} {v(m[1])}, {v(m[1])}, {v(m[3])}")
        a(f"v_permlane16_swap_b32 {v(m[0])}, {v(m[1])}")
        a(f"{op} {v(m[0])}, {v(m[0])}, {v(m[1])}")

    def allgather4(self, a, m):
        a(f"v_mov_b32 {v(m[1])}, {v(m[0])}")
        a(f"v_permlane16_swap_b32 {v(m[0])}, {v(m[1])}")
        a(f"v_mov_b32 {v(m[2])}, {v(m[0])}")
        a(f"v_mov_b32 {v(m[3])}, {v(m[1])}")
        a(f"v_permlane32_swap_b32 {v(m[0])}, {v(m[2])}")
        a(f"v_permlane32_swap_b32 {v(m[1])}, {v(m[3])}")

    def moded(self, lines):
        a, t = self.a, self.t
        L = a.newlabel("Lm"); Lb = L + "_b"
        a(f"s_cmp_lg_u32 {s(sMode)}, 1\ns_cbranch_scc1 {L}")
        for ln in lines: a(ln)
        a.label(Lb)
        t.label(L); t.reset_hist()
        for ln in lines: t(ln + (" sc1" if ln.startswith("buffer_store") else ""))
        t(f"s_branch {Lb}")

    def handoff_store(self, r, buf):
        a = self.a
        a(f"s_add_u32 {s(sA)}, {s(sTJ)}, {buf}")
        self.moded([f"buffer_store_dwordx4 {v(r,4)}, {v(vL16)}, {s(sWS,4)}, {s(sA)} offen",
                    f"buffer_store_dwordx4 {v(r+4,4)}, {v(vL16)}, {s(sWS,4)}, {s(sA)} offen offset:1024",
                    f"buffer_store_dwordx2 {v(r+8,2)}, {v(vL8)}, {s(sWS,4)}, {s(sA)} offen offset:2048"])

    def flag_store(self, off):
        a = self.a
        a(f"s_lshl_b32 {s(sA)}, {s(sJ)}, 3\ns_add_u32 {s(sA)}, {s(sA)}, {s(sTile)}\ns_add_u32 {s(sA)}, {s(sA)}, {off}")
        a("s_mov_b64 exec, 1")
        self.moded([f"buffer_store_dwordx2 {v(self.vTag,2)}, {v(self.vZero)}, {s(sWS,4)}, {s(sA)} offen"])
        a("s_mov_b64 exec, -1")

    def poll8(self, a, voff, soff, tmp, imm=0):
        L = a.newlabel("Lp"); Lok = L + "_ok"
        a.label(L)
        a(f"buffer_load_dwordx2 {v(tmp,2)}, {v(voff)}, {s(sWS,4)}, {soff} offen offset:{imm} sc1")
        a(f"s_waitcnt vmcnt(0)\nv_cmp_ne_u64 vcc, {s(sTag,2)}, {v(tmp,2)}\ns_cbranch_vccz {Lok}")
        self.spin_tail(a, L, Lok)
        a.label(Lok)

    def stream_init(self, frags):
        self.fr = frags; self.rp = 0; self.cur_unit = None; self.chk_issued = set()

    def stream_read(self, sync_check=False):
        a = self.a
        if self.rp >= len(self.fr): return
        f = self.rp; u, off, kind = self.fr[f]
        if u != self.cur_unit:
            if self.cur_unit is not None:
                self.publish(self.cur_unit + 1)
            if u in self.chk_issued:
                L = a.newlabel("Lw"); Lok = L + "_ok"
                a.wait(ds=("chk", u))
                a(f"v_cmp_gt_u32 vcc, {u+1}, {v(vLC)}\ns_cbranch_vccnz {L}")
                a.label(Lok)
                t = self.t
                t.label(L); t.reset_hist()
                t(f"ds_read_b32 {v(vLC)}, {v(vZ)} offset:{L_LANDED - L_CNT}\ns_waitcnt lgkmcnt(0)\nv_cmp_gt_u32 vcc, {u+1}, {v(vLC)}\ns_cbranch_vccz {Lok}")
                self.spin_tail(t, L, Lok)
            else:
                self.lds_spin(a, vZ, L_LANDED - L_CNT, u + 1, vLC)
            if kind == "pk":
                a(f"v_add_u32 {v(vWA)}, {UADDR[u]}, {v(vL16)}")
            else:
                a(f"v_add_u32 {v(vWA)}, {UADDR[u]}, {v(vPA)}\nv_add_u32 {v(vWB)}, {UADDR[u]}, {v(vPB)}")
            self.cur_unit = u
        r = WW + 4 * (f % WN)
        if kind == "pk":
            a(f"ds_read_b128 {v(r,4)}, {v(vWA)} offset:{off}", tag=("w", f))
        else:
            base = vWA if kind == "trA" else vWB
            a(f"ds_read_b64_tr_b16 {v(r,2)}, {v(base)} offset:{off}")
            a(f"ds_read_b64_tr_b16 {v(r+2,2)}, {v(base)} offset:{off+1280}", tag=("w", f))
        self.rp += 1
        LA = 4
        if f + LA < len(self.fr):
            nu = self.fr[f + LA][0]
            if nu != u and nu not in self.chk_issued:
                a(f"ds_read_b32 {v(vLC)}, {v(vZ)} offset:{L_LANDED - L_CNT}", tag=("chk", nu))
                self.chk_issued.add(nu)
        if self.rp == len(self.fr):
            self.publish(u + 1)

    def publish(self, val):
        self.a(f"v_mov_b32 {v(vCV)}, {val}\nds_write_b32 {v(self.vCnt)}, {v(vCV)}")

    def prime(self):
        for _ in range(WN): self.stream_read()

    def mfma_w(self, f, acc, af, first=False, swap=False):
        a = self.a
        a.wait(ds=("w", f))
        r = WW + 4 * (f % WN)
        c = "0" if first else v(acc, 4)
        if swap: a(f"v_mfma_f32_16x16x32_bf16 {v(acc,4)}, {v(af,4)}, {v(r,4)}, {c}")
        else: a(f"v_mfma_f32_16x16x32_bf16 {v(acc,4)}, {v(r,4)}, {v(af,4)}, {c}")
        self.stream_read()

    def prologue(self):
        a = self.a
        a("s_cmp_ge_u32 s2, 256\ns_cbranch_scc1 L_end")
        a("s_load_dwordx16 s[4:19], s[0:1], 0\ns_load_dwordx4 s[20:23], s[0:1], 64\ns_load_dwordx2 s[24:25], s[0:1], 80")
        self.stamp()
        a(f"v_and_b32 {v(vLane)}, 63, v0\nv_lshrrev_b32 v0, 6, v0")
        a(f"v_readfirstlane_b32 {s(sWave)}, v0")
        a(f"s_and_b32 {s(sX)}, s2, 7\ns_lshr_b32 {s(sA)}, s2, 3\ns_lshr_b32 {s(sQ)}, {s(sA)}, 3\ns_and_b32 {s(sJ)}, {s(sA)}, 7")
        a(f"s_lshl_b32 {s(sC)}, {s(sX)}, 2\ns_add_u32 {s(sC)}, {s(sC)}, {s(sQ)}")
        a(f"v_lshlrev_b32 {v(vL16)}, 4, {v(vLane)}\nv_lshlrev_b32 {v(vL8)}, 3, {v(vLane)}\nv_mov_b32 {v(vZ)}, {L_CNT}")
        a(f"s_mov_b32 {s(sBud)}, {self.budget}")
        for i in range(4):
            a(f"s_add_u32 {s(sRot+i)}, {s(sQ)}, {i}\ns_and_b32 {s(sRot+i)}, {s(sRot+i)}, 3")
        a(f"s_mul_i32 {s(sRho)}, {s(sQ)}, 5\ns_lshr_b32 {s(sRho)}, {s(sRho)}, 1")
        a(f"s_mov_b32 {s(sOnes)}, 0x3f803f80")
        a("s_waitcnt lgkmcnt(0)")
        self.srd(a, sWS, 24, WS_SIZE)
        a(f"s_cmp_eq_u32 {s(sWave)}, 4\ns_cbranch_scc1 L_loader")
        a(f"s_cmp_ge_u32 {s(sWave)}, 6\ns_cbranch_scc1 L_packer")

    def tag_and_barrier(self, a, tmp=0):
        a("s_waitcnt lgkmcnt(0)\ns_barrier")
        a(f"ds_read_b32 {v(tmp)}, {v(vZ)} offset:{L_TAG-L_CNT}\ns_waitcnt lgkmcnt(0)\nv_readfirstlane_b32 {s(sTag)}, {v(tmp)}")
        a(f"s_mul_i32 {s(sTag+1)}, {s(sTag)}, 0x9E3779B1\ns_xor_b32 {s(sTag+1)}, {s(sTag+1)}, 0x7F4A7C15")

    def compute(self):
        a = self.a
        m = vM
        self.vTag = m; self.vZero = m + 2; self.vCnt = m + 3
        vG, vR = m + 4, m + 5
        a(f"s_add_u32 {s(sPI)}, {s(sWave)}, 1\ns_cmp_eq_u32 {s(sWave)}, 5\ns_cselect_b32 {s(sPI)}, 0, {s(sPI)}")
        a(f"s_lshl_b32 {s(sT)}, {s(sC)}, 2\ns_add_u32 {s(sT)}, {s(sT)}, {s(sPI)}\ns_sub_u32 {s(sT)}, {s(sT)}, 1")
        self.srd(a, sIN, 4, 2048 * 1280)
        t0, t1, x0, x1 = TT, TT + 1, TT + 2, TT + 3
        a(f"s_mul_i32 {s(sA)}, {s(sT)}, {16*1280}\ns_cmp_lt_i32 {s(sT)}, 0\ns_cselect_b32 {s(sA)}, {OOB}, {s(sA)}")
        a(f"v_lshrrev_b32 {v(t0)}, 3, {v(vLane)}\nv_and_b32 {v(t1)}, 7, {v(vLane)}")
        a(f"v_mul_u32_u24 {v(x0)}, 1280, {v(t0)}\nv_lshl_add_u32 {v(x0)}, {v(t1)}, 4, {v(x0)}\nv_add_u32 {v(x0)}, {s(sA)}, {v(x0)}")
        a(f"v_add_u32 {v(x1)}, {8*1280}, {v(x0)}")
        a(f"s_lshl_b32 {s(sB)}, {s(sRho)}, 7")
        for ln in range(10):
            for rh in range(2):
                a(f"buffer_load_dwordx4 {v(AF+8*ln+4*rh,4)}, {v(x0+rh)}, {s(sIN,4)}, {s(sB)} offen", tag=("x", ln))
            if ln < 9:
                a(f"s_add_u32 {s(sB)}, {s(sB)}, 128\ns_cmp_ge_u32 {s(sB)}, 1280\ns_cselect_b32 {s(sB)}, 0, {s(sB)}")
        a(f"v_lshrrev_b32 {v(vG)}, 4, {v(vLane)}\nv_and_b32 {v(vR)}, 15, {v(vLane)}\nv_mov_b32 {v(self.vZero)}, 0")
        a(f"s_min_u32 {s(sB)}, {s(sWave)}, 4\ns_lshl_b32 {s(sB)}, {s(sB)}, 2\ns_add_u32 {s(sB)}, {s(sB)}, {L_CNT}\nv_mov_b32 {v(self.vCnt)}, {s(sB)}")
        a(f"s_mul_i32 {s(sTile)}, {s(sT)}, {TS}\ns_add_u32 {s(sTile)}, {s(sTile)}, {WS_TILE}")
        a(f"s_mul_i32 {s(sTJ)}, {s(sJ)}, 2560\ns_add_u32 {s(sTJ)}, {s(sTJ)}, {s(sTile)}")
        sScr = sE
        a(f"s_mul_i32 {s(sScr)}, {s(sPI)}, 5120\ns_add_u32 {s(sScr)}, {s(sScr)}, {P1TMP}")
        wa0, wa1, ra0, ra1 = m + 6, m + 7, m + 8, m + 9
        a(f"v_lshrrev_b32 {v(wa0)}, 1, {v(t0)}\nv_xor_b32 {v(wa0)}, {v(wa0)}, {v(t1)}\nv_xor_b32 {v(wa1)}, 4, {v(wa0)}")
        a(f"v_lshlrev_b32 {v(wa0)}, 4, {v(wa0)}\nv_lshlrev_b32 {v(wa1)}, 4, {v(wa1)}")
        a(f"v_lshl_add_u32 {v(wa0)}, {v(t0)}, 7, {v(wa0)}\nv_lshl_add_u32 {v(wa1)}, {v(t0)}, 7, {v(wa1)}")
        a(f"v_add_u32 {v(wa0)}, {s(sScr)}, {v(wa0)}\nv_add_u32 {v(wa1)}, {s(sScr)}, {v(wa1)}\nv_add_u32 {v(wa1)}, 1024, {v(wa1)}")
        a(f"v_lshrrev_b32 {v(ra0)}, 1, {v(vR)}\nv_xor_b32 {v(ra0)}, {v(ra0)}, {v(vG)}\nv_xor_b32 {v(ra1)}, 4, {v(ra0)}")
        a(f"v_lshlrev_b32 {v(ra0)}, 4, {v(ra0)}\nv_lshlrev_b32 {v(ra1)}, 4, {v(ra1)}")
        a(f"v_lshl_add_u32 {v(ra0)}, {v(vR)}, 7, {v(ra0)}\nv_lshl_add_u32 {v(ra1)}, {v(vR)}, 7, {v(ra1)}")
        a(f"v_add_u32 {v(ra0)}, {s(sScr)}, {v(ra0)}\nv_add_u32 {v(ra1)}, {s(sScr)}, {v(ra1)}")
        p0, p1 = TT + 4, TT + 5
        a(f"v_lshrrev_b32 {v(p0)}, 1, {v(vG)}\nv_lshlrev_b32 {v(p0)}, 4, {v(p0)}\nv_and_b32 {v(p1)}, 1, {v(vG)}\nv_lshl_add_u32 {v(p0)}, {v(p1)}, 2, {v(p0)}")
        a(f"v_lshrrev_b32 {v(p1)}, 2, {v(vR)}\nv_add_u32 {v(p0)}, {v(p0)}, {v(p1)}\nv_mul_u32_u24 {v(p0)}, 160, {v(p0)}")
        a(f"v_and_b32 {v(p1)}, 3, {v(vLane)}\nv_lshl_add_u32 {v(vPA)}, {v(p1)}, 3, {v(p0)}\nv_mul_u32_u24 {v(p1)}, 40, {v(p1)}\nv_add_u32 {v(vPB)}, {v(p0)}, {v(p1)}")
        xr = m + 10
        a(f"s_mul_i32 {s(sB)}, {s(sJ)}, 160\ns_and_b32 {s(sCc)}, {s(sB)}, 127\ns_sub_u32 {s(sB)}, {s(sB)}, {s(sCc)}\ns_add_u32 {s(sB)}, {s(sB)}, {s(sA)}")
        a(f"v_mul_u32_u24 {v(xr)}, 1280, {v(vG)}\nv_lshl_add_u32 {v(xr)}, {v(vR)}, 4, {v(xr)}\nv_add_u32 {v(xr)}, {s(sB)}, {v(xr)}")
        xq = m + 11
        a(f"s_add_u32 {s(sCc)}, {s(sCc)}, {s(sScr)}\nv_lshlrev_b32 {v(xq)}, 8, {v(vR)}\nv_lshl_add_u32 {v(xq)}, {v(vG)}, 3, {v(xq)}\nv_add_u32 {v(xq)}, {s(sCc)}, {v(xq)}")
        xo = m + 12
        a(f"v_add_u32 {v(xo)}, {s(sScr)}, {v(vL8)}")
        self.tag_and_barrier(a)
        a(f"v_mov_b32 {v(self.vTag)}, {s(sTag)}\nv_mov_b32 {v(self.vTag+1)}, {s(sTag+1)}")
        sm = [TT + 8, TT + 9, TT + 10, TT + 11]
        for r_ in sm: a(f"v_mov_b32 {v(r_)}, 0")
        for ln in range(10):
            a.wait(vm=("x", ln))
            for k in range(4):
                for rh in range(2):
                    r_ = AF + 8 * ln + 4 * rh + k
                    a(f"v_dot2c_f32_bf16 {v(sm[2*rh])}, {s(sOnes)}, {v(r_)}")
                    a(f"v_dot2c_f32_bf16 {v(sm[2*rh+1])}, {v(r_)}, {v(r_)}")
        self.stamp()
        for dpp in ("quad_perm:[1,0,3,2]", "quad_perm:[2,3,0,1]", "row_half_mirror"):
            for r_ in sm:
                a(f"v_add_f32_dpp {v(r_)}, {v(r_)}, {v(r_)} {dpp} row_mask:0xf bank_mask:0xf")
        rs = [TT + 12, TT + 14]
        inv = f2u(1.0 / 640)
        for rh in range(2):
            mu, sq = sm[2 * rh], sm[2 * rh + 1]
            a(f"v_mul_f32 {v(mu)}, {inv:#x}, {v(mu)}\nv_mul_f32 {v(sq)}, {inv:#x}, {v(sq)}")
            a(f"v_fma_f32 {v(sq)}, -{v(mu)}, {v(mu)}, {v(sq)}\nv_max_f32 {v(sq)}, 0, {v(sq)}\nv_add_f32 {v(sq)}, {f2u(1e-5):#x}, {v(sq)}")
            a(f"v_rsq_f32 {v(rs[rh])}, {v(sq)}")
            a(f"v_mul_f32 {v(rs[rh]+1)}, -{v(mu)}, {v(rs[rh])}".replace("v_mul_f32", "v_mul_f32_e64"))
        tp = [TT + 16, TT + 18, TT + 20, TT + 22]
        for ln in range(10):
            for rh in range(2):
                for k in range(4):
                    r_ = AF + 8 * ln + 4 * rh + k
                    a(f"v_lshlrev_b32 {v(tp[k])}, 16, {v(r_)}\nv_and_b32 {v(tp[k]+1)}, 0xffff0000, {v(r_)}")
                for k in range(4):
                    a(f"v_pk_fma_f32 {v(tp[k],2)}, {v(tp[k],2)}, {v(rs[rh],2)}, {v(rs[rh],2)} op_sel:[0,0,1] op_sel_hi:[1,0,1]")
                for k in range(4):
                    r_ = AF + 8 * ln + 4 * rh + k
                    a(f"v_cvt_pk_bf16_f32 {v(r_)}, {v(tp[k])}, {v(tp[k]+1)}")
                a(f"ds_write_b128 {v(wa0+rh)}, {v(AF+8*ln+4*rh,4)} offset:{(ln&1)*2048}")
            for vv in range(2):
                a(f"ds_read_b128 {v(AF+8*ln+4*vv,4)}, {v(ra0+vv)} offset:{(ln&1)*2048}")
        a("s_waitcnt lgkmcnt(0)")
        for mm in range(4):
            a(f"s_add_u32 m0, {s(sScr)}, {mm*1024}\ns_mov_b32 {s(sB)}, {mm*4*1280}")
            a(f"buffer_load_dwordx4 {v(xr)}, {s(sIN,4)}, {s(sB)} offen lds", tag="xres")
        self.stamp()
        fr = []
        for ps in range(3):
            for st in range(20):
                for t in range(5):
                    u = 4 * ps + st // 5
                    if t < 4: fr.append((u, (st % 5) * 5120 + 40 * t, "trA"))
                    else: fr.append((u, (st % 5) * 5120 + 32, "trB"))
        self.stream_init(fr); self.prime()
        accs = [ACC, TT, ACC]
        def pack5(acc, dst):
            for t in range(5):
                a(f"v_cvt_pk_bf16_f32 {v(dst(t))}, {v(acc+4*t)}, {v(acc+4*t+1)}\nv_cvt_pk_bf16_f32 {v(dst(t)+1)}, {v(acc+4*t+2)}, {v(acc+4*t+3)}")
        VM = ACC + 20
        KPREV = TT
        for ps in range(3):
            for st in range(20):
                for t in range(5):
                    f = ps * 100 + st * 5 + t
                    self.mfma_w(f, accs[ps] + 4 * t, AF + 4 * st, first=(st == 0), swap=(ps == 1))
                if ps == 1 and st == 1:
                    a.wait(vm="xres")
                    for t in range(5): a(f"ds_read_b64 {v(X1P+2*t,2)}, {v(xq)} offset:{32*t}")
                    pack5(ACC, lambda t: KOWN + 4 * t if t < 4 else KOWN + 2)
                    for h in range(1, 4): a(f"v_mov_b32 {v(KOWN+4*h+2)}, {v(KOWN+2)}\nv_mov_b32 {v(KOWN+4*h+3)}, {v(KOWN+3)}")
                    for t in range(5):
                        a(f"ds_write_b64 {v(xo)}, {v(KOWN+4*t if t < 4 else KOWN+2, 2)} offset:{512*t}")
                if ps == 2 and st == 2:
                    a(f"s_lshl_b32 {s(sB)}, {s(sPI)}, 2\ns_add_u32 {s(sB)}, {s(sB)}, {L_XR-4}\nv_mov_b32 {v(m+13)}, {s(sB)}")
                    self.lds_spin(a, m + 13, 0, 1, m + 14)
                    a(f"v_subrev_u32 {v(m+13)}, 5120, {v(xo)}")
                    for h in range(4):
                        a(f"ds_read_b64 {v(KPREV+4*h,2)}, {v(m+13)} offset:{512*h}\nds_read_b64 {v(KPREV+4*h+2,2)}, {v(m+13)} offset:{512*4}")
                    for t in range(5):
                        a(f"ds_read_b64 {v(VFR+4*t+2,2)}, {v(m+13)} offset:{2560+512*t}", tag="kvprev")
                if ps == 2 and st == 6:
                    a.wait(ds="kvprev")
                    a(f"v_lshrrev_b32 {v(m+14)}, 2, {v(vR)}")
                    for h in range(4):
                        a(f"v_cmp_eq_u32 vcc, {h}, {v(m+14)}")
                        for k in range(4): a(f"v_cndmask_b32 {v(VM+4*h+k)}, 0, {v(VFR+16+k)}, vcc")
                if ps == 2 and st == 8:
                    k0, k1, k2, k3 = TT + 16, TT + 17, TT + 18, TT + 19
                    tq = m + 14
                    a(f"v_and_b32 {v(tq)}, 1, {v(vR)}\nv_cmp_eq_u32 {s(sPar,2)}, 1, {v(tq)}")
                    a(f"v_lshl_add_u32 {v(tq)}, {v(vG)}, 2, {v(tq)}\nv_cmp_le_u32 {s(sMa,2)}, {v(tq)}, {v(vR)}")
                    a(f"v_add_u32 {v(tq)}, 2, {v(tq)}\nv_cmp_le_u32 {s(sMb,2)}, {v(tq)}, {v(vR)}")
                    a(f"v_mov_b32 {v(tq)}, 0xffff\nv_mov_b32 {v(m+13)}, 0xffff0000\nv_cndmask_b32 {v(tq)}, {v(tq)}, {v(m+13)}, {s(sPar,2)}")
                    a(f"v_cndmask_b32 {v(k0)}, 0, {v(tq)}, {s(sMa,2)}\nv_cndmask_b32 {v(k1)}, 0, {v(tq)}, {s(sMb,2)}")
                    a(f"v_xor_b32 {v(k2)}, {v(k0)}, {v(tq)}\nv_xor_b32 {v(k3)}, {v(k1)}, {v(tq)}")
                    a(f"s_cmp_eq_u32 {s(sT)}, 0\ns_cselect_b32 {s(sB)}, {f2u(-1e30):#x}, 0")
                    for k in range(4): a(f"v_mov_b32 {v(TT+20+k)}, {s(sB)}")
            if ps == 1:
                pack5(TT, lambda t: VFR + 4 * t)
                for t in range(5): a(f"ds_write_b64 {v(xo)}, {v(VFR+4*t,2)} offset:{2560+512*t}")
                a(f"s_lshl_b32 {s(sB)}, {s(sPI)}, 2\ns_add_u32 {s(sB)}, {s(sB)}, {L_XR}\nv_mov_b32 {v(m+13)}, {s(sB)}\nv_mov_b32 {v(m+14)}, 1")
                a(f"ds_write_b32 {v(m+13)}, {v(m+14)}")
                a(f"s_cmp_eq_u32 {s(sWave)}, 5\ns_cbranch_scc1 L_halo_done")
        self.stamp()
        QF, SC, SP, PF = AF, AF + 16, AF + 32, AF + 48
        q4 = AF + 64
        pack5(ACC, lambda t: QF + 4 * t if t < 4 else q4)
        for h in range(4):
            a(f"v_cmp_eq_u32 vcc, {h}, {v(vG)}\nv_cndmask_b32 {v(QF+4*h+2)}, 0, {v(q4)}, vcc\nv_cndmask_b32 {v(QF+4*h+3)}, 0, {v(q4+1)}, vcc")
        for h in range(4):
            a(f"v_mfma_f32_16x16x32_bf16 {v(SC+4*h,4)}, {v(KOWN+4*h,4)}, {v(QF+4*h,4)}, 0")
            a(f"v_mfma_f32_16x16x32_bf16 {v(SP+4*h,4)}, {v(KPREV+4*h,4)}, {v(QF+4*h,4)}, {v(TT+20,4)}")
        la = [AF + 66 + h for h in range(4)]; lb = [AF + 70 + h for h in range(4)]; mx = [AF + 74 + h for h in range(4)]
        for h in range(4):
            c_, p_ = SC + 4 * h, SP + 4 * h
            a(f"v_cndmask_b32 {v(c_)}, {v(c_)}, {v(c_+1)}, {s(sPar,2)}\nv_cndmask_b32 {v(p_)}, {v(p_)}, {v(p_+1)}, {s(sPar,2)}")
            a(f"v_cndmask_b32 {v(c_+2)}, {v(c_+2)}, {v(c_+3)}, {s(sPar,2)}\nv_cndmask_b32 {v(p_+2)}, {v(p_+2)}, {v(p_+3)}, {s(sPar,2)}")
            a(f"v_cndmask_b32 {v(la[h])}, {v(p_)}, {v(c_)}, {s(sMa,2)}\nv_cndmask_b32 {v(lb[h])}, {v(p_+2)}, {v(c_+2)}, {s(sMb,2)}")
            a(f"v_max_f32 {v(mx[h])}, {v(la[h])}, {v(lb[h])}")
        sc = f2u(20 ** -0.5 * math.log2(math.e))
        a(f"s_mov_b32 {s(sB)}, {sc:#x}")
        self.rscatter4(a, mx, "v_max_f32")
        a(f"v_mul_f32 {v(mx[0])}, {s(sB)}, {v(mx[0])}")
        self.allgather4(a, mx)
        for h in range(4):
            a(f"v_fma_f32 {v(la[h])}, {v(la[h])}, {s(sB)}, -{v(mx[h])}\nv_fma_f32 {v(lb[h])}, {v(lb[h])}, {s(sB)}, -{v(mx[h])}")
        for h in range(4):
            a(f"v_exp_f32 {v(la[h])}, {v(la[h])}\nv_exp_f32 {v(lb[h])}, {v(lb[h])}")
        for h in range(4):
            a(f"v_add_f32 {v(mx[h])}, {v(la[h])}, {v(lb[h])}")
        self.rscatter4(a, mx, "v_add_f32")
        a(f"v_rcp_f32 {v(mx[0])}, {v(mx[0])}")
        self.allgather4(a, mx)
        k0 = TT + 16
        for h in range(4):
            a(f"v_mul_f32 {v(la[h])}, {v(la[h])}, {v(mx[h])}\nv_mul_f32 {v(lb[h])}, {v(lb[h])}, {v(mx[h])}")
            a(f"v_cvt_pk_bf16_f32 {v(la[h])}, {v(la[h])}, {v(la[h])}\nv_cvt_pk_bf16_f32 {v(lb[h])}, {v(lb[h])}, {v(lb[h])}")
            a(f"v_and_b32 {v(PF+4*h)}, {v(la[h])}, {v(k0)}\nv_and_b32 {v(PF+4*h+1)}, {v(lb[h])}, {v(k0+1)}")
            a(f"v_and_b32 {v(PF+4*h+2)}, {v(la[h])}, {v(k0+2)}\nv_and_b32 {v(PF+4*h+3)}, {v(lb[h])}, {v(k0+3)}")
        for h in range(4):
            a(f"v_mfma_f32_16x16x32_bf16 {v(ACC+4*h,4)}, {v(VFR+4*h,4)}, {v(PF+4*h,4)}, 0")
            a(f"v_mfma_f32_16x16x32_bf16 {v(ACC+16,4)}, {v(VM+4*h,4)}, {v(PF+4*h,4)}, {'0' if h == 0 else v(ACC+16,4)}")
        self.publish(13)
        self.lds_spin(a, vZ, L_MODE - L_CNT, 1, vLC)
        a(f"v_readfirstlane_b32 {s(sMode)}, {v(vLC)}")
        OP = TT
        pack5(ACC, lambda t: OP + 2 * t)
        self.handoff_store(OP, BUFA)
        vA16, vA8, vF8 = m + 6, m + 7, m + 8
        a(f"v_add_u32 {v(vA16)}, {s(sTile)}, {v(vL16)}\ns_add_u32 {s(sB)}, {s(sTile)}, 2048\nv_add_u32 {v(vA8)}, {s(sB)}, {v(vL8)}")
        a(f"v_and_b32 {v(vF8)}, 7, {v(vLane)}\nv_lshlrev_b32 {v(vF8)}, 3, {v(vF8)}\nv_add_u32 {v(vF8)}, {s(sTile)}, {v(vF8)}")
        a("s_waitcnt vmcnt(0)")
        self.flag_store(F1)
        self.stamp()

        def unpack_acc(src, fn=None):
            for t in range(5):
                for k in range(2):
                    a(f"v_lshlrev_b32 {v(ACC+4*t+2*k)}, 16, {v(src+2*t+k)}\nv_and_b32 {v(ACC+4*t+2*k+1)}, 0xffff0000, {v(src+2*t+k)}")
        def frags640(u0): return [(u0 + st // 5, (st % 5) * 5120 + 1024 * t, "pk") for st in range(20) for t in range(5)]
        def load_A(buf, v16=None, v8=None):
            for i in range(4):
                a(f"s_mul_i32 {s(sA)}, {s(sRot+i)}, 5120\ns_add_u32 {s(sA)}, {s(sA)}, {buf}")
                a16 = vA16 if v16 is None else v16[i]; a8 = vA8 if v8 is None else v8[i]
                for uu, imm in enumerate((0, 1024, 2560, 3584)):
                    a(f"buffer_load_dwordx4 {v(AF+20*i+4*uu,4)}, {v(a16)}, {s(sWS,4)}, {s(sA)} offen offset:{imm} sc1", tag=("A", 5*i+uu))
                a(f"buffer_load_dwordx2 {v(AF+20*i+16,2)}, {v(a8)}, {s(sWS,4)}, {s(sA)} offen sc1")
                a(f"buffer_load_dwordx2 {v(AF+20*i+18,2)}, {v(a8)}, {s(sWS,4)}, {s(sA)} offen offset:2560 sc1", tag=("A", 5*i+4))
        def gemm640():
            for st in range(20):
                a.wait(vm=("A", st))
                for t in range(5): self.mfma_w(st * 5 + t, ACC + 4 * t, AF + 4 * st)
        def stats_store(src, off):
            x_, y_ = TT + 12, TT + 13
            a(f"v_mov_b32 {v(x_)}, 0\nv_mov_b32 {v(y_)}, 0")
            for k in range(10):
                a(f"v_dot2c_f32_bf16 {v(x_)}, {s(sOnes)}, {v(src+k)}\nv_dot2c_f32_bf16 {v(y_)}, {v(src+k)}, {v(src+k)}")
            self.allreduce2(a, x_, y_, None)
            a(f"v_mov_b32 {v(TT+14)}, {s(sTag)}\nv_mov_b32 {v(TT+15)}, {s(sTag+1)}")
            a(f"s_lshl_b32 {s(sA)}, {s(sJ)}, 8\ns_add_u32 {s(sA)}, {s(sA)}, {s(sTile)}\ns_add_u32 {s(sA)}, {s(sA)}, {off}")
            a("s_waitcnt vmcnt(0)\ns_mov_b64 exec, 0xffff")
            self.moded([f"buffer_store_dwordx4 {v(TT+12,4)}, {v(vL16)}, {s(sWS,4)}, {s(sA)} offen"])
            a("s_mov_b64 exec, -1")
        def stats_poll(off):
            L = a.newlabel("Lp"); Lok = L + "_ok"
            e0, e1 = TT + 12, TT + 16
            a(f"s_mov_b32 {s(sA)}, {off}")
            a.label(L)
            a(f"buffer_load_dwordx4 {v(e0,4)}, {v(vA16)}, {s(sWS,4)}, {s(sA)} offen sc1")
            a(f"buffer_load_dwordx4 {v(e1,4)}, {v(vA16)}, {s(sWS,4)}, {s(sA)} offen offset:1024 sc1")
            a(f"s_waitcnt vmcnt(0)\nv_cmp_ne_u64 vcc, {s(sTag,2)}, {v(e0+2,2)}\nv_cmp_ne_u64 {s(sMk,2)}, {s(sTag,2)}, {v(e1+2,2)}")
            a(f"s_or_b64 vcc, vcc, {s(sMk,2)}\ns_cbranch_scc0 {Lok}")
            self.spin_tail(a, L, Lok)
            a.label(Lok)
        def stats_finish(mu, var):
            e0, e1 = TT + 12, TT + 16
            a(f"v_add_f32 {v(mu)}, {v(e0)}, {v(e1)}\nv_add_f32 {v(var)}, {v(e0+1)}, {v(e1+1)}")
            self.allreduce2(a, mu, var, None)
            a(f"v_mul_f32 {v(mu)}, {inv:#x}, {v(mu)}\nv_mul_f32 {v(var)}, {inv:#x}, {v(var)}")
            a(f"v_fma_f32 {v(var)}, -{v(mu)}, {v(mu)}, {v(var)}\nv_max_f32 {v(var)}, 0, {v(var)}")
        c0 = -2 * math.sqrt(2 / math.pi) * math.log2(math.e)
        GK = KOWN
        def gelu_consts(R):
            a(f"v_mul_f32 {v(GK)}, {f2u(c0):#x}, {v(R)}\nv_mul_f32 {v(GK+1)}, {v(R)}, {v(R)}\nv_mul_f32 {v(GK+1)}, {v(GK+1)}, {v(GK)}")
            a(f"v_mul_f32 {v(GK+1)}, {f2u(0.044715):#x}, {v(GK+1)}\nv_rcp_f32 {v(GK+2)}, {v(R)}")
        def gelu_ops(acc, n, dst, tmp):
            ops = []
            for b in range(0, n, 4):
                P = [(acc + b, tmp), (acc + b + 2, tmp + 2)]
                for x_, t_ in P: ops.append(f"v_pk_mul_f32 {v(t_,2)}, {v(x_,2)}, {v(x_,2)}")
                for x_, t_ in P: ops.append(f"v_pk_fma_f32 {v(t_,2)}, {v(t_,2)}, {v(GK,2)}, {v(GK,2)} op_sel:[0,1,0] op_sel_hi:[1,1,0]")
                for x_, t_ in P: ops.append(f"v_pk_mul_f32 {v(t_,2)}, {v(t_,2)}, {v(x_,2)}")
                for k in range(4): ops.append(f"v_exp_f32 {v(tmp+k)}, {v(tmp+k)}")
                for x_, t_ in P: ops.append(f"v_pk_fma_f32 {v(t_,2)}, {v(t_,2)}, {v(GK+2,2)}, {v(GK+2,2)} op_sel_hi:[1,0,0]")
                for k in range(4): ops.append(f"v_rcp_f32 {v(tmp+k)}, {v(tmp+k)}")
                for x_, t_ in P: ops.append(f"v_pk_mul_f32 {v(t_,2)}, {v(t_,2)}, {v(x_,2)}")
                for i_, (x_, t_) in enumerate(P): ops.append(f"v_cvt_pk_bf16_f32 {v(dst+b//2+i_)}, {v(t_)}, {v(t_+1)}")
            return ops

        self.stream_init(frags640(13)); self.prime()
        unpack_acc(X1P)
        a(f"s_mov_b32 {s(sB)}, {F1}")
        self.poll8(a, vF8, s(sB), TT + 12)
        load_A(BUFA); gemm640()
        pack5(ACC, lambda t: HP + 2 * t)
        self.handoff_store(HP, BUFB)
        stats_store(HP, S2)
        self.stamp()
        self.stream_init(frags640(17)); self.prime()
        self.lds_spin(a, vZ, L_CSRDY - L_CNT, 1, vLC)
        vCS = m + 9
        a(f"v_lshlrev_b32 {v(vCS)}, 4, {v(vG)}\nv_add_u32 {v(vCS)}, {L_CS1}, {v(vCS)}")
        for t in range(5): a(f"ds_read_b128 {v(ACC+4*t,4)}, {v(vCS)} offset:{64*t}", tag="cs")
        stats_poll(S2)
        load_A(BUFB)
        MU, RS = KOWN + 4, KOWN + 5
        var, R = KOWN + 6, KOWN + 7
        stats_finish(MU, var)
        a.wait(ds="cs")
        for k in range(20): a(f"v_mul_f32_e64 {v(ACC+k)}, -{v(MU)}, {v(ACC+k)}")
        a(f"v_add_f32 {v(R)}, {f2u(1e-5):#x}, {v(var)}\nv_rsq_f32 {v(RS)}, {v(R)}")
        a(f"v_mul_f32 {v(R)}, {v(RS)}, {v(RS)}\nv_mul_f32 {v(R)}, {v(R)}, {v(var)}\nv_add_f32 {v(R)}, {f2u(1e-5):#x}, {v(R)}\nv_rsq_f32 {v(R)}, {v(R)}")
        a(f"v_mul_f32 {v(R)}, {v(R)}, {v(RS)}")
        gelu_consts(R)
        gemm640()
        for op in gelu_ops(ACC, 20, OP, TT + 12): a(op)
        self.handoff_store(OP, BUFA)
        Lsh = a.newlabel("Lsh"); Lshb = Lsh + "_b"
        a(f"s_bitcmp1_b32 {s(sJ)}, 1\ns_cselect_b32 {s(sB)}, 0, 3\ns_cmp_eq_u32 {s(sWave)}, {s(sB)}\ns_cbranch_scc1 {Lsh}")
        a("s_waitcnt vmcnt(0)")
        self.flag_store(F3)
        a.label(Lshb)
        t = self.t
        t.label(Lsh); t.reset_hist()
        t(f"s_bitcmp1_b32 {s(sJ)}, 1\ns_mov_b32 {s(sSh)}, 0xc000c000\ns_cselect_b32 {s(sSh)}, 0x00030003, {s(sSh)}\ns_mov_b32 {s(sSh+1)}, {s(sSh)}")
        t(f"s_add_u32 {s(sA)}, {s(sTJ)}, {SHAD}\ns_mov_b64 exec, {s(sSh,2)}")
        t(f"buffer_store_dwordx4 {v(OP,4)}, {v(vL16)}, {s(sWS,4)}, {s(sA)} offen sc1")
        t(f"buffer_store_dwordx4 {v(OP+4,4)}, {v(vL16)}, {s(sWS,4)}, {s(sA)} offen offset:1024 sc1")
        t(f"buffer_store_dwordx2 {v(OP+8,2)}, {v(vL8)}, {s(sWS,4)}, {s(sA)} offen offset:2048 sc1")
        t(f"s_lshl_b32 {s(sA)}, {s(sJ)}, 3\ns_add_u32 {s(sA)}, {s(sA)}, {s(sTile)}\ns_add_u32 {s(sA)}, {s(sA)}, {F3}\ns_mov_b64 exec, 1")
        t(f"s_waitcnt vmcnt(3)\ns_cmp_lg_u32 {s(sMode)}, 1\ns_cbranch_scc1 {Lsh}_s")
        t(f"buffer_store_dwordx2 {v(self.vTag,2)}, {v(self.vZero)}, {s(sWS,4)}, {s(sA)} offen\ns_branch {Lsh}_t")
        t.label(Lsh + "_s")
        t(f"buffer_store_dwordx2 {v(self.vTag,2)}, {v(self.vZero)}, {s(sWS,4)}, {s(sA)} offen sc1")
        t.label(Lsh + "_t")
        t(f"s_waitcnt vmcnt(1)\nbuffer_store_dwordx2 {v(self.vTag,2)}, {v(self.vZero)}, {s(sWS,4)}, {s(sA)} offen offset:{FH-F3} sc1")
        t(f"s_mov_b64 exec, -1\ns_branch {Lshb}")
        self.stamp()
        self.stream_init(frags640(21)); self.prime()
        unpack_acc(HP)
        a(f"v_mul_f32_e64 {v(var)}, -{v(MU)}, {v(RS)}")
        for k in range(20): a(f"v_fma_f32 {v(ACC+k)}, {v(ACC+k)}, {v(RS)}, {v(var)}")
        sPv, sNx = sD, sE
        a(f"s_sub_u32 {s(sPv)}, {s(sTile)}, {TS}\ns_add_u32 {s(sA)}, {s(sPv)}, {SHAD}\ns_cmp_eq_u32 {s(sWave)}, 0\ns_cselect_b32 {s(sPv)}, {s(sA)}, {s(sPv)}")
        a(f"s_cmp_eq_u32 {s(sT)}, 0\ns_cselect_b32 {s(sPv)}, {OOB}, {s(sPv)}")
        a(f"s_add_u32 {s(sNx)}, {s(sTile)}, {TS}\ns_add_u32 {s(sA)}, {s(sNx)}, {SHAD}\ns_cmp_eq_u32 {s(sWave)}, 3\ns_cselect_b32 {s(sNx)}, {s(sA)}, {s(sNx)}")
        a(f"s_cmp_eq_u32 {s(sT)}, 127\ns_cselect_b32 {s(sNx)}, {OOB}, {s(sNx)}")
        v16 = [VFR + i for i in range(4)]; v8 = [VFR + 4 + i for i in range(4)]
        tb, tr_ = VFR + 8, VFR + 9
        for i in range(4):
            a(f"s_lshr_b32 {s(sA)}, {s(sRot+i)}, 1\ns_add_u32 {s(sA)}, {s(sA)}, 1\ns_sub_u32 {s(sB)}, 0, {s(sA)}\ns_bitcmp1_b32 {s(sRot+i)}, 0\ns_cselect_b32 {s(sA)}, {s(sA)}, {s(sB)}")
            a(f"s_cselect_b32 {s(sB)}, {s(sNx)}, {s(sPv)}")
            a(f"v_add_u32 {v(tr_)}, {s(sA)}, {v(vR)}\nv_cmp_lt_u32 vcc, 15, {v(tr_)}")
            a(f"v_mov_b32 {v(tb)}, {s(sTile)}\nv_mov_b32 {v(v8[i])}, {s(sB)}\nv_cndmask_b32 {v(tb)}, {v(tb)}, {v(v8[i])}, vcc")
            a(f"v_and_b32 {v(tr_)}, 15, {v(tr_)}\nv_lshl_add_u32 {v(tr_)}, {v(vG)}, 4, {v(tr_)}")
            a(f"v_lshl_add_u32 {v(v16[i])}, {v(tr_)}, 4, {v(tb)}\nv_lshl_add_u32 {v(v8[i])}, {v(tr_)}, 3, {v(tb)}\nv_add_u32 {v(v8[i])}, 2048, {v(v8[i])}")
        fa = VFR + 10
        a(f"s_sub_u32 {s(sA)}, {s(sTile)}, {TS}\ns_add_u32 {s(sB)}, {s(sA)}, {FH-F3}\ns_cmp_eq_u32 {s(sWave)}, 0\ns_cselect_b32 {s(sA)}, {s(sB)}, {s(sA)}")
        a(f"s_cmp_eq_u32 {s(sT)}, 0\ns_cselect_b32 {s(sA)}, {s(sTile)}, {s(sA)}")
        a(f"s_add_u32 {s(sCc)}, {s(sTile)}, {TS}\ns_add_u32 {s(sB)}, {s(sCc)}, {FH-F3}\ns_cmp_eq_u32 {s(sWave)}, 3\ns_cselect_b32 {s(sCc)}, {s(sB)}, {s(sCc)}")
        a(f"s_cmp_eq_u32 {s(sT)}, 127\ns_cselect_b32 {s(sCc)}, {s(sTile)}, {s(sCc)}")
        a(f"v_mov_b32 {v(tb)}, {s(sA)}\nv_mov_b32 {v(tr_)}, {s(sCc)}\nv_and_b32 {v(fa)}, 2, {v(vLane)}\nv_cmp_ne_u32 vcc, 0, {v(fa)}")
        a(f"v_cndmask_b32 {v(tb)}, {v(tb)}, {v(tr_)}, vcc\nv_mov_b32 {v(tr_)}, {s(sTile)}\nv_and_b32 {v(fa)}, 8, {v(vLane)}\nv_cmp_ne_u32 vcc, 0, {v(fa)}")
        a(f"v_cndmask_b32 {v(tb)}, {v(tr_)}, {v(tb)}, vcc\nv_and_b32 {v(fa)}, 7, {v(vLane)}\nv_lshl_add_u32 {v(fa)}, {v(fa)}, 3, {v(tb)}")
        a(f"s_mov_b32 {s(sB)}, {F3}")
        self.poll8(a, fa, s(sB), TT + 12)
        load_A(BUFA, v16, v8); gemm640()
        pack5(ACC, lambda t: X1P + 2 * t)
        self.handoff_store(X1P, BUFB)
        stats_store(X1P, S4)
        self.stamp()
        fr5 = [(25 + ch * 4 + st // 5, (st % 5) * 4096 + 1024 * tt, "pk") for ch in range(3) for st in range(20) for tt in range(4)]
        self.stream_init(fr5); self.prime()
        self.lds_spin(a, vZ, L_CSRDY - L_CNT, 2, vLC)
        for k in range(8): a(f"ds_read_b128 {v(ACC+4*k,4)}, {v(vCS)} offset:{L_CS3-L_CS1+64*k}", tag="cs")
        stats_poll(S4)
        load_A(BUFB)
        stats_finish(MU, var)
        a.wait(ds="cs")
        for k in range(32): a(f"v_mul_f32_e64 {v(ACC+k)}, -{v(MU)}, {v(ACC+k)}")
        a(f"v_add_f32 {v(R)}, {f2u(1e-5):#x}, {v(var)}\nv_rsq_f32 {v(R)}, {v(R)}")
        gelu_consts(R)
        GP = TT
        def g_store(ch):
            a(f"s_lshl_b32 {s(sA)}, {s(sJ)}, 11\ns_add_u32 {s(sA)}, {s(sA)}, {s(sTile)}\ns_add_u32 {s(sA)}, {s(sA)}, {BUFG + ch*16384}")
            self.moded([f"buffer_store_dwordx4 {v(GP,4)}, {v(vL16)}, {s(sWS,4)}, {s(sA)} offen",
                        f"buffer_store_dwordx4 {v(GP+4,4)}, {v(vL16)}, {s(sWS,4)}, {s(sA)} offen offset:1024"])
        for ch in range(3):
            acc = ACC + 16 * (ch & 1)
            side = []
            if ch > 0:
                side = gelu_ops(ACC + 16 * ((ch - 1) & 1), 16, GP, TT + 12)
            si = 0
            for st in range(20):
                if ch == 0: a.wait(vm=("A", st))
                for tt in range(4):
                    self.mfma_w(ch * 80 + st * 4 + tt, acc + 4 * tt, AF + 4 * st)
                    n = st * 4 + tt
                    if n >= 3:
                        while si < len(side) and si < (n - 2) * len(side) // 58:
                            a(side[si]); si += 1
                if ch > 0 and st == 15:
                    assert si == len(side)
                    g_store(ch - 1)
                    if ch == 1:
                        for k in range(4): a(f"ds_read_b128 {v(ACC+4*k,4)}, {v(vCS)} offset:{L_CS3-L_CS1+64*(8+k)}", tag="cs")
                if ch == 1 and st == 17:
                    a.wait(ds="cs")
                    for k in range(16): a(f"v_mul_f32_e64 {v(ACC+k)}, -{v(MU)}, {v(ACC+k)}")
                if ch > 0 and st == 19:
                    a("s_waitcnt vmcnt(0)")
                    self.flag_store(G0 + 128 * (ch - 1))
        for op in gelu_ops(ACC, 16, GP, TT + 12): a(op)
        g_store(2)
        a("s_waitcnt vmcnt(0)")
        self.flag_store(G0 + 256)
        self.stamp()
        fr6 = [(37 + st // 4, (st % 4) * 5120 + 1024 * t, "pk") for st in range(48) for t in range(5)]
        self.stream_init(fr6); self.prime()
        unpack_acc(HP)
        for t in range(5):
            for k in range(2):
                a(f"v_lshlrev_b32 {v(TT+12)}, 16, {v(X1P+2*t+k)}\nv_and_b32 {v(TT+13)}, 0xffff0000, {v(X1P+2*t+k)}")
                a(f"v_pk_add_f32 {v(ACC+4*t+2*k,2)}, {v(ACC+4*t+2*k,2)}, {v(TT+12,2)}")
        gf = VFR
        a(f"v_lshrrev_b32 {v(gf)}, 3, {v(vLane)}\nv_min_u32 {v(gf)}, 2, {v(gf)}\nv_lshl_add_u32 {v(gf)}, {v(gf)}, 7, {v(vF8)}")
        a(f"s_mov_b32 {s(sB)}, {G0}")
        self.poll8(a, gf, s(sB), TT + 12)
        def loadG(st):
            if st % 4 == 0:
                ch, ui = st // 16, (st % 16) // 4
                a(f"s_lshl_b32 {s(sA)}, {s(sRot+ui)}, 12\ns_add_u32 {s(sA)}, {s(sA)}, {BUFG + ch*16384}")
            a(f"buffer_load_dwordx4 {v(AF+4*(st%20),4)}, {v(vA16)}, {s(sWS,4)}, {s(sA)} offen offset:{(st%4)*1024} sc1", tag=("G", st))
        for st in range(20): loadG(st)
        for st in range(48):
            a.wait(vm=("G", st))
            for t in range(5): self.mfma_w(st * 5 + t, ACC + 4 * t, AF + 4 * (st % 20))
            if st + 20 < 48: loadG(st + 20)
        pack5(ACC, lambda t: OP + 2 * t)
        sg, sr, so = VFR + 1, VFR + 2, VFR + 3
        a(f"s_mul_i32 {s(sB)}, {s(sWave)}, 2560\ns_add_u32 {s(sB)}, {s(sB)}, {STAGE}")
        a(f"v_mul_u32_u24 {v(sg)}, 160, {v(vR)}\nv_lshl_add_u32 {v(sg)}, {v(vG)}, 3, {v(sg)}\nv_add_u32 {v(sg)}, {s(sB)}, {v(sg)}\nv_add_u32 {v(sr)}, {s(sB)}, {v(vL16)}")
        for t in range(5): a(f"ds_write_b64 {v(sg)}, {v(OP+2*t,2)} offset:{32*t}")
        for k in range(3): a(f"ds_read_b128 {v(AF+4*k,4)}, {v(sr)} offset:{1024*k}", tag=("o", k))
        self.srd(a, sOUT, 20, 2048 * 1280)
        a(f"s_mul_i32 {s(sA)}, {s(sT)}, {16*1280}\ns_mul_i32 {s(sB)}, {s(sJ)}, 160\ns_add_u32 {s(sA)}, {s(sA)}, {s(sB)}")
        for k in range(3):
            a(f"v_add_u32 {v(so)}, {64*k}, {v(vLane)}\nv_mul_u32_u24 {v(so+1)}, 6554, {v(so)}\nv_lshrrev_b32 {v(so+1)}, 16, {v(so+1)}")
            a(f"v_mul_u32_u24 {v(so+1)}, 1120, {v(so+1)}\nv_lshl_add_u32 {v(so+2+k)}, {v(so)}, 4, {v(so+1)}")
        for k in range(3):
            a.wait(ds=("o", k))
            if k == 2: a("s_mov_b32 exec_hi, 0")
            a(f"buffer_store_dwordx4 {v(AF+4*k,4)}, {v(so+2+k)}, {s(sOUT,4)}, {s(sA)} offen")
        a("s_mov_b64 exec, -1")
        self.stamp()
        self.finish(a)

    def finish(self, a):
        if self.stamps:
            a("s_waitcnt vmcnt(0) lgkmcnt(0)")
            a(f"s_memrealtime {s(sSt+22,2)}\ns_waitcnt lgkmcnt(0)")
            a(f"s_lshl_b32 {s(sA)}, s2, 3\ns_add_u32 {s(sA)}, {s(sA)}, {s(sWave)}\ns_lshl_b32 {s(sA)}, {s(sA)}, 7\ns_add_u32 {s(sA)}, {s(sA)}, {WS_STAMP}")
            a("v_mov_b32 v0, 0\ns_mov_b64 exec, 1")
            for k in range(12):
                a(f"v_mov_b32 v12, {s(sSt+2*k)}\nv_mov_b32 v13, {s(sBud)}")
                a(f"buffer_store_dwordx2 v[12:13], v0, {s(sWS,4)}, {s(sA)} offen offset:{8*k}")
        a("s_endpgm")

    def halo_done(self):
        a = self.a; m = vM
        a.label("L_halo_done"); a.reset_hist(); a.reset_cnt()
        self.publish(1000)
        def pf_wait(base, n2):
            self.pf_wait(a, base, n2, TT)
        for (wsoff, rowb, jb, nl, ldst, val, pfb, pfn) in ((WS_CS1, 2560, 320, 20, L_CS1, 1, 200, 20), (WS_CS3, 6144, 768, 48, L_CS3, 2, 600, 30)):
            pf_wait(pfb, pfn)
            a(f"s_mul_i32 {s(sA)}, {s(sJ)}, {jb}\ns_add_u32 {s(sA)}, {s(sA)}, {wsoff}")
            a(f"s_mov_b64 exec, {(1 << nl) - 1:#x}" if nl <= 32 else f"s_mov_b32 exec_lo, -1\ns_mov_b32 exec_hi, {(1 << (nl-32)) - 1:#x}")
            for k in range(20):
                a(f"buffer_load_dwordx4 {v(AF+4*k,4)}, {v(vL16)}, {s(sWS,4)}, {s(sA)} offen sc1")
                a(f"s_add_u32 {s(sA)}, {s(sA)}, {rowb}")
            a("s_waitcnt vmcnt(0)")
            for k in range(1, 20):
                a(f"v_pk_add_f32 {v(AF,2)}, {v(AF,2)}, {v(AF+4*k,2)}\nv_pk_add_f32 {v(AF+2,2)}, {v(AF+2,2)}, {v(AF+4*k+2,2)}")
            a(f"v_add_u32 {v(TT)}, {ldst}, {v(vL16)}\nds_write_b128 {v(TT)}, {v(AF,4)}")
            a(f"s_mov_b64 exec, -1\nv_mov_b32 {v(TT+1)}, {val}\nds_write_b32 {v(vZ)}, {v(TT+1)} offset:{L_CSRDY-L_CNT}")
        self.finish(a)

    def pf_wait(self, a, base, n2, tmp):
        per = {20: 20, 30: 60, 48: 48}[n2]
        if n2 == 30: a(f"s_mul_i32 {s(sA)}, {s(sJ)}, {60*8}")
        else: a(f"s_mul_i32 {s(sA)}, {s(sJ)}, 5\ns_lshr_b32 {s(sA)}, {s(sA)}, 2\ns_mul_i32 {s(sA)}, {s(sA)}, {per*8}")
        a(f"s_add_u32 {s(sA)}, {s(sA)}, {WS_PF + base*8}")
        a(f"v_min_u32 {v(tmp)}, {n2-1}, {v(vLane)}\nv_lshlrev_b32 {v(tmp)}, 4, {v(tmp)}")
        L = a.newlabel("Lpf"); Lok = L + "_ok"
        a.label(L)
        a(f"buffer_load_dwordx4 {v(tmp+4,4)}, {v(tmp)}, {s(sWS,4)}, {s(sA)} offen sc1")
        a(f"s_waitcnt vmcnt(0)\nv_cmp_ne_u64 vcc, {s(sTag,2)}, {v(tmp+4,2)}\nv_cmp_ne_u64 {s(sMk,2)}, {s(sTag,2)}, {v(tmp+6,2)}")
        a(f"s_or_b64 vcc, vcc, {s(sMk,2)}\ns_cbranch_scc0 {Lok}\ns_sleep 2")
        self.spin_tail(a, L, Lok)
        a.label(Lok)

    def loader(self):
        a = self.a
        a.label("L_loader"); a.reset_hist(); a.reset_cnt()
        self.srd(a, sIN, 6, 640 * 3840)
        a(f"v_lshl_add_u32 v12, {v(vLane)}, 2, {v(vZ)}\nv_subrev_u32 v13, 5, {v(vLane)}\nv_cmp_gt_u32 vcc, 3, v13\nv_mov_b32 v14, 1000\nv_cndmask_b32 v13, 0, v14, vcc")
        a("s_mov_b32 exec_hi, 0\nds_write_b32 v12, v13\ns_mov_b32 exec_hi, -1")
        a(f"v_and_b32 v12, 7, {v(vLane)}\nv_lshl_add_u32 v12, v12, 2, {v(vZ)}")
        for i in range(5):
            a(f"v_add_u32 v13, {64*i}, {v(vLane)}\nv_mul_u32_u24 v14, 6554, v13\nv_lshrrev_b32 v14, 16, v14")
            a(f"v_mul_u32_u24 v15, 10, v14\nv_sub_u32 v13, v13, v15")
            a(f"v_and_b32 v15, 0x13, v14\nv_bfe_u32 v21, v14, 2, 1\nv_lshl_or_b32 v15, v21, 3, v15\nv_bfe_u32 v21, v14, 3, 1\nv_lshl_or_b32 v15, v21, 2, v15")
            a(f"v_mul_u32_u24 v15, 3840, v15\nv_lshl_add_u32 v{16+i}, v13, 4, v15")
            if 0 < i < 4: a(f"v_subrev_u32 v{16+i}, {1024*i}, v{16+i}")
        sK, sCol = sD, sE
        pend = []
        first = True
        def publish_upto(u):
            a(f"v_mov_b32 v13, {u+1}\nds_write_b32 {v(vZ)}, v13 offset:{L_LANDED-L_CNT}")
        last_pub = -1
        barrier_done = False
        for u, (size, kind, arg) in enumerate(UNITS):
            if kind == "pseudo": continue
            if UNEED[u] > 0 or (kind == "pk" and arg[1] == 0 and arg[2] == 0):
                if not barrier_done:
                    self.tag_and_barrier(a); barrier_done = True
            if UNEED[u] > 0:
                L = a.newlabel("Lf"); Lok = L + "_ok"
                a(f"ds_read_b32 v13, v12\ns_waitcnt lgkmcnt(0)\nv_cmp_gt_u32 vcc, {UNEED[u]}, v13\ns_cbranch_vccz {Lok}")
                sv = list(a.vm)
                for pu in pend:
                    a.wait(vm=("u", pu)); publish_upto(pu)
                self.lds_spin(a, 12, 0, UNEED[u], 13, sleep=1)
                a.label(Lok)
                a.vm = sv
            if kind == "pk" and arg[1] == 0 and arg[2] == 0:
                wid = arg[0]
                for pu in pend:
                    a.wait(vm=("u", pu)); publish_upto(pu)
                pend = []
                self.pf_wait(a, [0, 200, 400, 600, 1080][wid], [20, 20, 20, 30, 48][wid], 24)
            if kind == "raw":
                ps, i = arg
                if i == 0:
                    a(f"s_mul_i32 {s(sCol)}, {s(sJ)}, 160\ns_add_u32 {s(sCol)}, {s(sCol)}, {[1280, 2560, 0][ps]}")
                    a(f"s_mul_i32 {s(sK)}, {s(sRho)}, {64*3840}")
                for st in range(5):
                    a(f"s_add_u32 {s(sA)}, {s(sK)}, {s(sCol)}\ns_mov_b32 m0, {UADDR[u] + st*5120}")
                    for k in range(4):
                        a(f"buffer_load_dwordx4 v{16+k}, {s(sIN,4)}, {s(sA)} offen offset:{1024*k} lds")
                    a(f"s_mov_b32 m0, {UADDR[u] + st*5120 + 4096}")
                    a(f"buffer_load_dwordx4 v20, {s(sIN,4)}, {s(sA)} offen lds", tag=("u", u))
                    a(f"s_add_u32 {s(sK)}, {s(sK)}, {32*3840}\ns_cmp_ge_u32 {s(sK)}, {640*3840}\ns_cselect_b32 {s(sK)}, 0, {s(sK)}")
            else:
                wid, ch, i = arg
                jb = 102400 if wid < 3 else 245760
                a(f"s_mul_i32 {s(sA)}, {s(sJ)}, {jb}\ns_mul_i32 {s(sB)}, {s(sRot+i)}, {size}\ns_add_u32 {s(sA)}, {s(sA)}, {s(sB)}")
                a(f"s_add_u32 {s(sA)}, {s(sA)}, {WS_WP + WP_OFF[wid] + ch*81920}")
                n = size // 1024
                for k in range(n):
                    if k % 4 == 0:
                        if k: a(f"s_add_u32 {s(sA)}, {s(sA)}, 4096")
                        a(f"s_mov_b32 m0, {UADDR[u] + k*1024}")
                    a(f"buffer_load_dwordx4 {v(vL16)}, {s(sWS,4)}, {s(sA)} offen offset:{1024*(k%4)} sc1 lds", tag=("u", u))
            pend.append(u)
            if not barrier_done and len(pend) >= 2:
                self.tag_and_barrier(a); barrier_done = True
            while len(pend) > 1:
                pu = pend.pop(0)
                a.wait(vm=("u", pu)); publish_upto(pu)
        for pu in pend:
            a.wait(vm=("u", pu)); publish_upto(pu)
        self.finish(a)

    def packer(self):
        a = self.a
        a.label("L_packer"); a.reset_hist(); a.reset_cnt()
        sU, sS, sCl, sB0, sB1, sRs, sDst, sWid, sSp, sScr = 64, 65, 66, 67, 68, 69, 70, 71, 74, 75
        a(f"s_lshl_b32 {s(sU)}, s2, 1\ns_add_u32 {s(sU)}, {s(sU)}, {s(sWave)}\ns_sub_u32 {s(sU)}, {s(sU)}, 6")
        a(f"s_sub_u32 {s(sScr)}, {s(sWave)}, 6\ns_lshl_b32 {s(sScr)}, {s(sScr)}, 12\ns_add_u32 {s(sScr)}, {s(sScr)}, {L_PSCR}")
        a(f"s_lshl_b32 {s(sA)}, {s(sC)}, 2\ns_mul_i32 {s(sA)}, {s(sA)}, {TS}\ns_mul_i32 {s(sB)}, {s(sJ)}, 2560\ns_add_u32 {s(sA)}, {s(sA)}, {s(sB)}\ns_add_u32 {s(sA)}, {s(sA)}, {WS_TILE}")
        a(f"v_lshrrev_b32 v12, 4, {v(vLane)}\ns_mov_b32 {s(sB)}, {TS}\nv_mul_lo_u32 v12, {s(sB)}, v12\nv_and_b32 v13, 15, {v(vLane)}\nv_lshl_add_u32 v14, v13, 7, v12")
        a(f"v_and_b32 v13, 3, {v(vLane)}\nv_lshl_add_u32 v15, v13, 7, v12")
        a(f"s_cmp_eq_u32 {s(sWave)}, 7\ns_cbranch_scc1 L_pk7")
        for buf in (BUFA, BUFB):
            a(f"s_add_u32 {s(sB)}, {s(sA)}, {buf}")
            a(f"buffer_load_dword v16, v14, {s(sWS,4)}, {s(sB)} offen sc1\nbuffer_load_dword v17, v15, {s(sWS,4)}, {s(sB)} offen offset:2048 sc1")
        a("s_branch L_pk_go")
        a.label("L_pk7")
        a(f"v_mov_b32 v18, 0\nbuffer_load_dword v18, v18, {s(sWS,4)}, 0 offen sc1")
        a("s_getpc_b64 s[62:63]")
        a.label("L_pcref")
        a(f"s_sub_u32 s62, s62, L_pcref-{KNAME}\ns_subb_u32 s63, s63, 0")
        a(f"s_lshr_b32 {s(sA)}, s2, 3\ns_lshl_b32 {s(sA)}, {s(sA)}, 11\nv_and_b32 v12, 15, {v(vLane)}\nv_lshlrev_b32 v12, 7, v12\nv_add_u32 v12, {s(sA)}, v12")
        a(f"v_min_u32 v12, L_code_end-{KNAME}-4, v12\nglobal_load_dword v16, v12, s[62:63]")
        a.label("L_pk_go")
        a(f"v_lshrrev_b32 v20, 3, {v(vLane)}\nv_and_b32 v21, 7, {v(vLane)}\nv_lshlrev_b32 v21, 4, v21")
        a(f"v_lshrrev_b32 v22, 2, v20\nv_mul_u32_u24 v22, 20, v22\nv_and_b32 v23, 3, v20\nv_add_u32 v22, v22, v23")
        a(f"v_add_u32 v24, {s(sScr)}, {v(vL16)}")
        a(f"v_lshrrev_b32 v25, 2, {v(vLane)}\nv_lshlrev_b32 v25, 7, v25\nv_and_b32 v26, 3, {v(vLane)}\nv_lshl_add_u32 v25, v26, 3, v25\nv_add_u32 v25, {s(sScr)}, v25")
        a(f"v_lshlrev_b32 v27, 2, {v(vLane)}\nv_mov_b32 v28, 0")
        a(f"s_mov_b32 {s(sMode)}, 0")
        a.label("L_pk_loop"); a.reset_hist()
        a(f"s_cmp_ge_u32 {s(sU)}, 1080\ns_cbranch_scc1 L_pk_w4")
        a(f"s_mul_hi_u32 {s(sCl)}, {s(sU)}, {(1<<32)//20+1}\ns_mul_i32 {s(sA)}, {s(sCl)}, 20\ns_sub_u32 {s(sS)}, {s(sU)}, {s(sA)}")
        a(f"s_mul_hi_u32 {s(sWid)}, {s(sCl)}, {(1<<32)//10+1}\ns_min_u32 {s(sWid)}, {s(sWid)}, 3\ns_mul_i32 {s(sA)}, {s(sWid)}, 10\ns_sub_u32 {s(sCl)}, {s(sCl)}, {s(sA)}")
        a(f"s_mul_hi_u32 {s(sA)}, {s(sS)}, {(1<<32)//5+1}\ns_mul_i32 {s(sB)}, {s(sA)}, 5\ns_sub_u32 {s(sB)}, {s(sS)}, {s(sB)}")
        a(f"s_mul_i32 {s(sA)}, {s(sA)}, 160")
        a(f"s_cmp_eq_u32 {s(sWid)}, 0\ns_cselect_b32 {s(sCc)}, 20, 16")
        a(f"s_mov_b32 {s(sSp)}, 0\ns_cmp_eq_u32 {s(sB)}, 4\ns_cbranch_scc1 L_pk_u4")
        a(f"s_lshr_b32 {s(sD)}, {s(sB)}, 1\ns_mul_i32 {s(sD)}, {s(sD)}, 80\ns_add_u32 {s(sB0)}, {s(sA)}, {s(sD)}")
        a(f"s_and_b32 {s(sD)}, {s(sB)}, 1\ns_mul_i32 {s(sD)}, {s(sD)}, {s(sCc)}\ns_lshl_b32 {s(sD)}, {s(sD)}, 1\ns_add_u32 {s(sB0)}, {s(sB0)}, {s(sD)}")
        a(f"s_add_u32 {s(sB1)}, {s(sB0)}, {s(sCc)}\ns_branch L_pk_rows")
        a.label("L_pk_u4")
        a(f"s_cmp_eq_u32 {s(sWid)}, 0\ns_cselect_b32 {s(sSp)}, 1, 0\ns_cselect_b32 {s(sD)}, 16, 64\ns_add_u32 {s(sB0)}, {s(sA)}, {s(sD)}\ns_add_u32 {s(sB1)}, {s(sB0)}, 80")
        a("s_branch L_pk_rows")
        a.label("L_pk_w4")
        a(f"s_sub_u32 {s(sA)}, {s(sU)}, 1080\ns_mul_hi_u32 {s(sCl)}, {s(sA)}, {(1<<32)//48+1}\ns_mul_i32 {s(sB)}, {s(sCl)}, 48\ns_sub_u32 {s(sS)}, {s(sA)}, {s(sB)}")
        a(f"s_mov_b32 {s(sWid)}, 4\ns_mov_b32 {s(sSp)}, 0")
        a(f"s_lshr_b32 {s(sA)}, {s(sS)}, 4\ns_lshl_b32 {s(sB0)}, {s(sA)}, 6\ns_bfe_u32 {s(sA)}, {s(sS)}, 0x30001\ns_mul_i32 {s(sA)}, {s(sA)}, 192\ns_add_u32 {s(sB0)}, {s(sB0)}, {s(sA)}")
        a(f"s_and_b32 {s(sA)}, {s(sS)}, 1\ns_lshl_b32 {s(sA)}, {s(sA)}, 5\ns_add_u32 {s(sB0)}, {s(sB0)}, {s(sA)}\ns_add_u32 {s(sB1)}, {s(sB0)}, 16")
        a.label("L_pk_rows"); a.reset_hist()
        a(f"s_mov_b32 {s(sIN)}, s8\ns_mov_b32 {s(sIN+1)}, s9\ns_mov_b32 {s(sIN+2)}, 819200\ns_mov_b32 {s(sIN+3)}, 0x20000")
        for wid, lo in ((1, 12), (2, 14), (3, 16), (4, 18)):
            a(f"s_cmp_eq_u32 {s(sWid)}, {wid}\ns_cselect_b32 {s(sIN)}, s{lo}, {s(sIN)}\ns_cselect_b32 {s(sIN+1)}, s{lo+1}, {s(sIN+1)}")
        a(f"s_cmp_ge_u32 {s(sWid)}, 3\ns_cselect_b32 {s(sIN+2)}, 1966080, {s(sIN+2)}")
        a(f"s_cmp_eq_u32 {s(sWid)}, 3\ns_movk_i32 {s(sRs)}, 1280\ns_cselect_b32 {s(sRs)}, 3072, {s(sRs)}")
        a(f"s_cmp_eq_u32 {s(sSp)}, 1\ns_cselect_b64 vcc, -1, 0\ns_cselect_b32 {s(sD)}, 40, 8\ns_mul_i32 {s(sD)}, {s(sD)}, {s(sRs)}")
        a(f"v_cndmask_b32 v30, v20, v22, vcc\nv_mul_lo_u32 v30, {s(sRs)}, v30\nv_add_u32 v30, v30, v21\nv_add_u32 v31, {s(sD)}, v30")
        a(f"s_lshl_b32 {s(sCc)}, {s(sCl)}, 7\ns_mul_i32 {s(sA)}, {s(sB0)}, {s(sRs)}\ns_add_u32 {s(sA)}, {s(sA)}, {s(sCc)}\ns_mul_i32 {s(sB)}, {s(sB1)}, {s(sRs)}\ns_add_u32 {s(sB)}, {s(sB)}, {s(sCc)}")
        a(f"buffer_load_dwordx4 v[32:35], v30, {s(sIN,4)}, {s(sA)} offen\nbuffer_load_dwordx4 v[36:39], v31, {s(sIN,4)}, {s(sA)} offen")
        a(f"buffer_load_dwordx4 v[40:43], v30, {s(sIN,4)}, {s(sB)} offen\nbuffer_load_dwordx4 v[44:47], v31, {s(sIN,4)}, {s(sB)} offen")
        a(f"s_cmp_lg_u32 {s(sMode)}, 0\ns_cbranch_scc1 L_pk_nb")
        a(f"s_cmp_lg_u32 {s(sWave)}, 7\ns_cbranch_scc1 L_pk_bar")
        a(f"s_waitcnt vmcnt(5)\nv_add_u32 v18, 1, v18\nds_write_b32 {v(vZ)}, v18 offset:{L_TAG-L_CNT}")
        a.label("L_pk_bar")
        self.tag_and_barrier(a)
        a(f"v_mov_b32 v48, {s(sTag)}\nv_mov_b32 v49, {s(sTag+1)}")
        a(f"s_cmp_lg_u32 {s(sWave)}, 7\ns_cbranch_scc1 L_pk_nb")
        a(f"s_getreg_b32 {s(sT)}, hwreg(HW_REG_XCC_ID)\ns_and_b32 {s(sT)}, {s(sT)}, 15\nv_mov_b32 v50, {s(sT)}\nv_mov_b32 v51, 0")
        a(f"s_lshl_b32 {s(sA)}, {s(sC)}, 3\ns_add_u32 {s(sA)}, {s(sA)}, {s(sJ)}\ns_lshl_b32 {s(sA)}, {s(sA)}, 4\ns_add_u32 {s(sA)}, {s(sA)}, {WS_XT}")
        a(f"s_mov_b64 exec, 1\nbuffer_store_dwordx4 v[48:51], v28, {s(sWS,4)}, {s(sA)} offen sc1\ns_mov_b64 exec, -1")
        a.label("L_pk_nb"); a.reset_hist()
        a("s_waitcnt vmcnt(0)")
        for k in range(4): a(f"ds_write_b128 v24, v[{32+4*k}:{35+4*k}] offset:{1024*k}")
        for tt in range(4):
            a(f"ds_read_b64_tr_b16 v[{52+4*tt}:{53+4*tt}], v25 offset:{32*tt}\nds_read_b64_tr_b16 v[{54+4*tt}:{55+4*tt}], v25 offset:{2048+32*tt}")
        a(f"s_cmp_eq_u32 {s(sWid)}, 3\ns_cbranch_scc1 L_pk_d3")
        a(f"s_mul_i32 {s(sDst)}, {s(sWid)}, 819200\ns_cmp_eq_u32 {s(sWid)}, 4\ns_cselect_b32 {s(sDst)}, {WP_OFF[4]}, {s(sDst)}\ns_mov_b32 {s(sD)}, 102400\ns_cselect_b32 {s(sD)}, 245760, {s(sD)}")
        a(f"s_mul_i32 {s(sA)}, {s(sS)}, 5120\ns_add_u32 {s(sDst)}, {s(sDst)}, {s(sA)}\ns_add_u32 {s(sDst)}, {s(sDst)}, {WS_WP}")
        a("s_waitcnt lgkmcnt(0)")
        for tt in range(4):
            a(f"s_lshl_b32 {s(sA)}, {s(sCl)}, 2\ns_add_u32 {s(sA)}, {s(sA)}, {tt}\ns_mul_hi_u32 {s(sB)}, {s(sA)}, {(1<<32)//5+1}\ns_mul_i32 {s(sCc)}, {s(sB)}, 5\ns_sub_u32 {s(sA)}, {s(sA)}, {s(sCc)}")
            a(f"s_lshl_b32 {s(sA)}, {s(sA)}, 10\ns_mul_i32 {s(sB)}, {s(sB)}, {s(sD)}\ns_add_u32 {s(sA)}, {s(sA)}, {s(sB)}\ns_add_u32 {s(sA)}, {s(sA)}, {s(sDst)}")
            a(f"buffer_store_dwordx4 v[{52+4*tt}:{55+4*tt}], {v(vL16)}, {s(sWS,4)}, {s(sA)} offen sc1")
        a(f"s_cmp_lg_u32 {s(sWid)}, 1\ns_cbranch_scc1 L_pk_fl")
        a(f"s_mul_i32 {s(sA)}, {s(sS)}, 2560\ns_add_u32 {s(sA)}, {s(sA)}, {WS_CS1}\ns_branch L_pk_cs")
        a.label("L_pk_d3"); a.reset_hist()
        a(f"s_mul_i32 {s(sA)}, {s(sCl)}, 81920\ns_lshl_b32 {s(sB)}, {s(sS)}, 12\ns_add_u32 {s(sA)}, {s(sA)}, {s(sB)}\ns_add_u32 {s(sA)}, {s(sA)}, {WS_WP + WP_OFF[3]}")
        a("s_waitcnt lgkmcnt(0)")
        for tt in range(4):
            a(f"buffer_store_dwordx4 v[{52+4*tt}:{55+4*tt}], {v(vL16)}, {s(sWS,4)}, {s(sA)} offen offset:{1024*tt} sc1")
        a(f"s_mul_i32 {s(sA)}, {s(sS)}, 6144\ns_add_u32 {s(sA)}, {s(sA)}, {WS_CS3}")
        a.label("L_pk_cs"); a.reset_hist()
        for tt in range(4): a(f"v_mov_b32 v{68+tt}, 0")
        for k in range(4):
            for tt in range(4): a(f"v_dot2c_f32_bf16 v{68+tt}, {s(sOnes)}, v{52+4*tt+k}")
        self.rscatter4(a, [68, 69, 70, 71], "v_add_f32")
        a(f"s_lshl_b32 {s(sB)}, {s(sCl)}, 8\ns_add_u32 {s(sA)}, {s(sA)}, {s(sB)}")
        a(f"buffer_store_dword v68, v27, {s(sWS,4)}, {s(sA)} offen sc1")
        a.label("L_pk_fl"); a.reset_hist()
        a(f"s_lshl_b32 {s(sA)}, {s(sU)}, 3\ns_add_u32 {s(sA)}, {s(sA)}, {WS_PF}\ns_waitcnt vmcnt(0)")
        a(f"s_mov_b64 exec, 1\nbuffer_store_dwordx2 v[48:49], v28, {s(sWS,4)}, {s(sA)} offen sc1\ns_mov_b64 exec, -1")
        a(f"s_cmp_lg_u32 {s(sMode)}, 0\ns_cbranch_scc1 L_pk_next\ns_cmp_lg_u32 {s(sWave)}, 7\ns_cbranch_scc1 L_pk_next")
        a(f"s_lshl_b32 {s(sA)}, {s(sC)}, 7\ns_add_u32 {s(sA)}, {s(sA)}, {WS_XT}\nv_and_b32 v72, 7, {v(vLane)}\nv_lshlrev_b32 v72, 4, v72")
        a.label("L_xt"); a.reset_hist()
        a(f"buffer_load_dwordx4 v[76:79], v72, {s(sWS,4)}, {s(sA)} offen sc1\ns_waitcnt vmcnt(0)\nv_cmp_ne_u64 vcc, {s(sTag,2)}, v[76:77]\ns_cbranch_vccz L_xt_ok\ns_sleep 2")
        self.spin_tail(a, "L_xt", "L_xt_ok")
        a.label("L_xt_ok"); a.reset_hist()
        a(f"v_cmp_ne_u32 vcc, {s(sT)}, v78\ns_cmp_eq_u64 vcc, 0\ns_cselect_b32 {s(sA)}, {2 if self.force_sc1 else 1}, 2\nv_mov_b32 v72, {s(sA)}")
        a(f"ds_write_b32 {v(vZ)}, v72 offset:{L_MODE-L_CNT}")
        a.label("L_pk_next"); a.reset_hist()
        a(f"s_add_u32 {s(sMode)}, {s(sMode)}, 1\ns_add_u32 {s(sU)}, {s(sU)}, 512\ns_cmp_lt_u32 {s(sU)}, 1560\ns_cbranch_scc1 L_pk_loop")
        a(f"s_cmp_eq_u32 {s(sWave)}, 7\ns_cbranch_scc1 L_pk_ep")
        a(f"s_lshl_b32 {s(sA)}, {s(sC)}, 2\ns_mul_i32 {s(sA)}, {s(sA)}, {TS}\ns_lshl_b32 {s(sB)}, {s(sJ)}, 11\ns_add_u32 {s(sA)}, {s(sA)}, {s(sB)}\ns_add_u32 {s(sA)}, {s(sA)}, {WS_TILE+BUFG}")
        for ch in range(3):
            a(f"buffer_load_dword v16, v14, {s(sWS,4)}, {s(sA)} offen sc1\ns_add_u32 {s(sA)}, {s(sA)}, 16384")
        a("s_branch L_pk_end")
        a.label("L_pk_ep"); a.reset_hist()
        a("s_cmp_lg_u32 s2, 0\ns_cbranch_scc1 L_pk_end")
        a(f"s_mov_b32 {s(sA)}, {WS_XT}")
        a.label("L_ep"); a.reset_hist()
        for k in range(4): a(f"buffer_load_dwordx2 v[{76+2*k}:{77+2*k}], {v(vL16)}, {s(sWS,4)}, {s(sA)} offen offset:{1024*k} sc1")
        a(f"s_waitcnt vmcnt(0)\nv_cmp_ne_u64 vcc, {s(sTag,2)}, v[76:77]")
        for k in range(1, 4):
            a(f"v_cmp_ne_u64 {s(sMk,2)}, {s(sTag,2)}, v[{76+2*k}:{77+2*k}]\ns_or_b64 vcc, vcc, {s(sMk,2)}")
        a("s_cbranch_scc0 L_ep_ok\ns_sleep 4")
        self.spin_tail(a, "L_ep", "L_ep_ok")
        a.label("L_ep_ok"); a.reset_hist()
        a(f"s_mov_b64 exec, 1\nbuffer_store_dword v48, v28, {s(sWS,4)}, 0 offen sc1\ns_mov_b64 exec, -1")
        a.label("L_pk_end"); a.reset_hist()
        self.finish(a)

    def build(self):
        self.prologue(); n0 = self.nst
        self.compute()
        self.halo_done()
        self.loader()
        self.packer()
        hdr = open("sequential_preLN__sliding_local_dilated__mixer_s_mlp__prompt.s.ref").read().split("; Override")[0]
        out = hdr + f"; @launch grid=(256,1,1) block=(512,1,1) lds={LDS_SIZE}\n"
        out += f'.amdgcn_target "amdgcn-amd-amdhsa--gfx950"\n.text\n.globl {KNAME}\n.p2align 8\n.type {KNAME},@function\n{KNAME}:\n'
        out += self.a.text() + self.t.text() + "L_end:\n    s_endpgm\nL_code_end:\n"
        out += f'''.section .rodata,"a"
.p2align 6
.amdhsa_kernel {KNAME}
  .amdhsa_next_free_vgpr 256
  .amdhsa_next_free_sgpr 102
  .amdhsa_accum_offset 256
  .amdhsa_group_segment_fixed_size 0
  .amdhsa_kernarg_size 88
  .amdhsa_user_sgpr_count 2
  .amdhsa_user_sgpr_kernarg_segment_ptr 1
  .amdhsa_system_sgpr_workgroup_id_x 1
  .amdhsa_float_denorm_mode_32 3
.end_amdhsa_kernel
'''
        return out

if __name__ == "__main__":
    import argparse
    p = argparse.ArgumentParser()
    p.add_argument("-o", default="sequential_preLN__sliding_local_dilated__mixer_s_mlp__prompt.s")
    p.add_argument("--stamps", action="store_true"); p.add_argument("--sc1", action="store_true")
    args = p.parse_args()
    g = Gen(stamps=args.stamps, force_sc1=args.sc1)
    open(args.o, "w").write(g.build())
    print("units:", [(u, UADDR.get(u), UNEED.get(u)) for u in range(len(UNITS))])
    print("nops inserted:", g.a.nops + g.t.nops)
```

```python
import sys, math, struct
from asmlib import Asm

KNAME = "sequential_preLN__sliding_local_dilated__mixer_s_mlp__prompt_kernel"

def f2u(x): return struct.unpack("<I", struct.pack("<f", x))[0]

WS_EPOCH = 0
WS_XT = 0x1000
WS_PF = 0x2000
WS_CS1 = 0x8000
WS_CS3 = 0x18000
WS_WP = 0x40000
WP_OFF = [0, 819200, 1638400, 2457600, 4423680]
WS_TILE = 0x680000
TS = 115712
BUFA, BUFB, BUFG, SHAD, FLG = 0, 20480, 40960, 90112, 110592
F1, F3, FH, G0, S2, S4 = FLG, FLG + 128, FLG + 256, FLG + 384, FLG + 1024, FLG + 3072
WS_STAMP = WS_TILE + 128 * TS
WS_SIZE = WS_STAMP + 2048 * 128
OOB = 0x40000000

RING = 153600
P1TMP = 128000
STAGE = 143360
L_CNT = 153600
L_LANDED = L_CNT + 32
L_MODE = L_CNT + 40
L_CSRDY = L_CNT + 44
L_XI = L_CNT + 56
L_HX = L_CNT + 60
L_XR = L_CNT + 64
L_TAG = L_CNT + 48
L_CS1 = L_CNT + 256
L_CS3 = L_CS1 + 320
L_PSCR = L_CNT + 2048
LDS_SIZE = 163840

XIMG = 51200
def plan_units():
    units = [(0, "pseudo", None)]
    for ps in range(3):
        for i in range(4): units.append((25600, "raw", (ps, i)))
    units.append((0, "pseudo", None))
    for wid in range(3):
        for i in range(4): units.append((25600, "pk", (wid, 0, i)))
    for wid in (3, 4):
        for ch in range(3):
            for i in range(4): units.append((20480, "pk", (wid, ch, i)))
    placed = [(XIMG, 102400, 0), (P1TMP, 25600, 13)]
    addr = {}; need = {}
    for u, (size, kind, arg) in enumerate(units):
        if kind == "pseudo": continue
        if kind == "raw": cands = [25600 * k for k in range(5)]
        elif size == 25600: cands = [25600 * k for k in range(6)]
        else: cands = [20480 * k for k in range(7)]
        best = None
        for a in cands:
            nd = 0
            for (pa, psz, pi) in placed:
                if pa < a + size and a < pa + psz: nd = max(nd, pi + 1)
            if best is None or nd < best[0]: best = (nd, a)
        need[u], addr[u] = best
        placed.append((best[1], size, u))
    return units, addr, need
UNITS, UADDR, UNEED = plan_units()
U_RAW, U_X, U_WO, U_W1, U_W2, U_W3, U_W4 = 1, 13, 14, 18, 22, 26, 38
HK, HV = 6, 7

vLane, vL16, vL8, vZ, vWA, vLa, vLC, vCV, vPA = 1, 2, 3, 4, 5, 6, 7, 8, 9
vM = 12
KOWN, VFR = 28, 44
AF, WW, ACC, HP, X1P, TT = 64, 144, 176, 208, 218, 228
SLOTS12 = [WW + 4 * i for i in range(8)] + [36, 40, 56, 60]
sWS, sIN, sOUT = 28, 32, 36
sWave, sX, sQ, sJ, sC, sT, sBud, sEp = 40, 41, 42, 43, 44, 45, 46, 47
sTag = 48
sMode = 50
sRot = 51
sTile = 55
sTJ = 56
sA, sB, sCc, sD, sE = 57, 58, 59, 60, 61
sPI = 62
sMa, sMb, sPar = 64, 66, 68
sSh = 70
sOnes = 72
sRho = 73
sSt = 76
sMk = 26

def v(a, n=1): return f"v{a}" if n == 1 else f"v[{a}:{a+n-1}]"
def s(a, n=1): return f"s{a}" if n == 1 else f"s[{a}:{a+n-1}]"

class Gen:
    def __init__(self, stamps=False, force_sc1=False, budget=1 << 17, opt=None):
        self.opt = opt or {}
        self.clk = 's_memtime' if self.opt.get('cyc') else 's_memrealtime'
        self.a = Asm(); self.t = Asm(); self.h = Asm(); self.h.nlabel = 200000
        self.stamps = stamps; self.force_sc1 = force_sc1; self.budget = budget
        self.nst = 0; self.inhelper = False
        self.t.nlabel = 100000

    def stamp(self, grp=0):
        sp = self.opt.get("sp", 0)
        if grp != sp and not (grp == 0 and self.nst == 0) and not (grp == 0 and self.inhelper): return
        if self.stamps and self.nst < 11:
            self.a(f"{self.clk} {s(sSt + 2 * self.nst, 2)}"); self.nst += 1

    def srd(self, a, d, lo, size):
        a(f"s_mov_b32 {s(d)}, {s(lo)}\ns_mov_b32 {s(d+1)}, {s(lo+1)}\ns_mov_b32 {s(d+2)}, {size}\ns_mov_b32 {s(d+3)}, 0x20000")

    def spin_tail(self, a, Lretry, Lok):
        a(f"s_cmp_eq_u32 {s(sBud)}, 0\ns_cbranch_scc1 {Lok}\ns_sub_u32 {s(sBud)}, {s(sBud)}, 1\ns_branch {Lretry}")

    def lds_spin(self, a, addr_v, off, need, tmp, sleep=0):
        L = a.newlabel("Lsp"); Lok = L + "_ok"
        a.label(L)
        a(f"ds_read_b32 {v(tmp)}, {v(addr_v)} offset:{off}\ns_waitcnt lgkmcnt(0)\nv_cmp_gt_u32 vcc, {need}, {v(tmp)}\ns_cbranch_vccz {Lok}")
        if sleep: a(f"s_sleep {sleep}")
        self.spin_tail(a, L, Lok)
        a.label(Lok)

    def allreduce2(self, a, x, y, t, op="v_add_f32"):
        a(f"v_permlane32_swap_b32 {v(x)}, {v(y)}")
        a(f"{op} {v(x)}, {v(x)}, {v(y)}")
        a(f"v_mov_b32 {v(y)}, {v(x)}")
        a(f"v_permlane16_swap_b32 {v(x)}, {v(y)}")
        a(f"{op} {v(x)}, {v(x)}, {v(y)}")
        a(f"v_mov_b32 {v(y)}, {v(x)}")
        a(f"v_permlane32_swap_b32 {v(x)}, {v(y)}")

    def rscatter4(self, a, m, op):
        a(f"v_permlane32_swap_b32 {v(m[0])}, {v(m[2])}")
        a(f"v_permlane32_swap_b32 {v(m[1])}, {v(m[3])}")
        a(f"{op} {v(m[0])}, {v(m[0])}, {v(m[2])}")
        a(f"{op} {v(m[1])}, {v(m[1])}, {v(m[3])}")
        a(f"v_permlane16_swap_b32 {v(m[0])}, {v(m[1])}")
        a(f"{op} {v(m[0])}, {v(m[0])}, {v(m[1])}")

    def allgather4(self, a, m):
        a(f"v_mov_b32 {v(m[1])}, {v(m[0])}")
        a(f"v_permlane16_swap_b32 {v(m[0])}, {v(m[1])}")
        a(f"v_mov_b32 {v(m[2])}, {v(m[0])}")
        a(f"v_mov_b32 {v(m[3])}, {v(m[1])}")
        a(f"v_permlane32_swap_b32 {v(m[0])}, {v(m[2])}")
        a(f"v_permlane32_swap_b32 {v(m[1])}, {v(m[3])}")

    def moded(self, lines, tag=None):
        a, t = self.a, self.t
        L = a.newlabel("Lm"); Lb = L + "_b"
        a(f"s_cmp_lg_u32 {s(sMode)}, 1\ns_cbranch_scc1 {L}")
        for ln in lines: a(ln, tag)
        a.label(Lb)
        t.label(L); t.reset_hist()
        for ln in lines: t(ln + (" sc1" if ln.startswith("buffer_store") else ""))
        t(f"s_branch {Lb}")

    def handoff_store(self, r, buf):
        a = self.a
        a(f"s_add_u32 {s(sA)}, {s(sTJ)}, {buf}")
        self.moded([f"buffer_store_dwordx4 {v(r,4)}, {v(vL16)}, {s(sWS,4)}, {s(sA)} offen",
                    f"buffer_store_dwordx4 {v(r+4,4)}, {v(vL16)}, {s(sWS,4)}, {s(sA)} offen offset:1024",
                    f"buffer_store_dwordx2 {v(r+8,2)}, {v(vL8)}, {s(sWS,4)}, {s(sA)} offen offset:2048"])

    def flag_store(self, off):
        a = self.a
        a(f"s_lshl_b32 {s(sA)}, {s(sJ)}, 3\ns_add_u32 {s(sA)}, {s(sA)}, {s(sTile)}\ns_add_u32 {s(sA)}, {s(sA)}, {off}")
        a("s_mov_b64 exec, 1")
        self.moded([f"buffer_store_dwordx2 {v(self.vTag,2)}, {v(self.vZero)}, {s(sWS,4)}, {s(sA)} offen"])
        a("s_mov_b64 exec, -1")

    def poll8(self, a, voff, soff, tmp, imm=0):
        L = a.newlabel("Lp"); Lok = L + "_ok"
        a.label(L)
        a(f"buffer_load_dwordx2 {v(tmp,2)}, {v(voff)}, {s(sWS,4)}, {soff} offen offset:{imm} sc1")
        a(f"s_waitcnt vmcnt(0)\nv_cmp_ne_u64 vcc, {s(sTag,2)}, {v(tmp,2)}\ns_cbranch_vccz {Lok}")
        self.spin_tail(a, L, Lok)
        a.label(Lok)

    def stream_init(self, frags, slots=None, G=2, start=0):
        self.fr = frags; self.rp = start; self.cur_unit = None; self.chk_issued = set()
        self.slots = slots or [WW + 4 * i for i in range(8)]; self.G = G

    def stream_read(self, sync_check=False):
        a = self.a
        if self.rp >= len(self.fr): return
        f = self.rp; u, off, kind = self.fr[f]
        if u != self.cur_unit:
            if self.cur_unit is not None:
                self.publish(self.cur_unit + 1)
            u0 = self.opt.get("u0", 2)
            if u0 <= u < u0 + 5 and a is not self.h: self.stamp(7)
            if u in self.chk_issued:
                L = a.newlabel("Lw"); Lok = L + "_ok"
                a.wait(ds=("chk", u))
                a(f"v_cmp_gt_u32 vcc, {u+1}, {v(vLC)}\ns_cbranch_vccnz {L}")
                a.label(Lok)
                t = self.t
                t.label(L); t.reset_hist()
                t(f"ds_read_b32 {v(vLC)}, {v(vLa)}\ns_waitcnt lgkmcnt(0)\nv_cmp_gt_u32 vcc, {u+1}, {v(vLC)}\ns_cbranch_vccz {Lok}")
                self.spin_tail(t, L, Lok)
            else:
                self.lds_spin(a, vLa, 0, u + 1, vLC)
            if u0 <= u < u0 + 5 and a is not self.h: self.stamp(7)
            if kind == "pk":
                a(f"v_add_u32 {v(vWA)}, {UADDR[u]}, {v(vL16)}")
            else:
                a(f"v_add_u32 {v(vWA)}, {UADDR[u]}, {v(vPA)}")
            self.cur_unit = u
        r = self.slots[f % len(self.slots)]
        if kind == "pk":
            a(f"ds_read_b128 {v(r,4)}, {v(vWA)} offset:{off}", tag=("w", f))
        else:
            base = vWA
            a(f"ds_read_b64_tr_b16 {v(r,2)}, {v(base)} offset:{off}")
            a(f"ds_read_b64_tr_b16 {v(r+2,2)}, {v(base)} offset:{off+1280}", tag=("w", f))
        self.rp += 1
        LA = 4
        if f + LA < len(self.fr):
            nu = self.fr[f + LA][0]
            if nu != u and nu not in self.chk_issued:
                a(f"ds_read_b32 {v(vLC)}, {v(vLa)}", tag=("chk", nu))
                self.chk_issued.add(nu)
        if self.rp == len(self.fr):
            self.publish(u + 1)

    def publish(self, val):
        self.a(f"v_mov_b32 {v(vCV)}, {val}\nds_write_b32 {v(self.vCnt)}, {v(vCV)}")

    def prime(self):
        for _ in range(len(self.slots)): self.stream_read()

    def mfma_w(self, f, acc, af, first=False, swap=False):
        a = self.a
        if f % self.G == 0: a.wait(ds=("w", min(f + self.G - 1, len(self.fr) - 1)))
        r = self.slots[f % len(self.slots)]
        c = "0" if first else v(acc, 4)
        if swap: a(f"v_mfma_f32_16x16x32_bf16 {v(acc,4)}, {v(af,4)}, {v(r,4)}, {c}")
        else: a(f"v_mfma_f32_16x16x32_bf16 {v(acc,4)}, {v(r,4)}, {v(af,4)}, {c}")
        self.stream_read()

    def prologue(self):
        a = self.a
        a("s_cmp_ge_u32 s2, 256\ns_cbranch_scc1 L_end")
        a("s_load_dwordx16 s[4:19], s[0:1], 0\ns_load_dwordx4 s[20:23], s[0:1], 64\ns_load_dwordx2 s[24:25], s[0:1], 80")
        self.stamp()
        a("s_getpc_b64 s[62:63]")
        a.label("L_pcref")
        a(f"s_lshr_b32 {s(sA)}, s2, 3\ns_lshl_b32 {s(sA)}, {s(sA)}, 12\nv_lshlrev_b32 v1, 7, v0\nv_add_u32 v1, {s(sA)}, v1")
        a(f"v_min_u32 v1, L_code_end-L_pcref-4, v1\nv_cmp_gt_u32 vcc, 32, v0\ns_and_saveexec_b64 {s(sMk,2)}, vcc\ns_cbranch_execz L_nopf")
        a("global_load_dword v255, v1, s[62:63]")
        a.label("L_nopf")
        a(f"s_mov_b64 exec, -1"); a.reset_cnt()
        a(f"v_and_b32 {v(vLane)}, 63, v0\nv_lshrrev_b32 v0, 6, v0")
        a(f"v_readfirstlane_b32 {s(sWave)}, v0")
        a(f"s_and_b32 {s(sX)}, s2, 7\ns_lshr_b32 {s(sA)}, s2, 3\ns_lshr_b32 {s(sQ)}, {s(sA)}, 3\ns_and_b32 {s(sJ)}, {s(sA)}, 7")
        a(f"s_lshl_b32 {s(sC)}, {s(sX)}, 2\ns_add_u32 {s(sC)}, {s(sC)}, {s(sQ)}")
        a(f"v_lshlrev_b32 {v(vL16)}, 4, {v(vLane)}\nv_lshlrev_b32 {v(vL8)}, 3, {v(vLane)}\nv_mov_b32 {v(vZ)}, {L_CNT}")
        a(f"s_mov_b32 {s(sBud)}, {self.budget}")
        for i in range(4):
            a(f"s_add_u32 {s(sRot+i)}, {s(sQ)}, {i}\ns_and_b32 {s(sRot+i)}, {s(sRot+i)}, 3")
        a(f"s_mul_i32 {s(sRho)}, {s(sQ)}, 5\ns_lshr_b32 {s(sRho)}, {s(sRho)}, 1\ns_add_u32 {s(sRho)}, {s(sRho)}, {s(sJ)}\ns_sub_u32 {s(sA)}, {s(sRho)}, 10\ns_cmp_ge_u32 {s(sRho)}, 10\ns_cselect_b32 {s(sRho)}, {s(sA)}, {s(sRho)}")
        a(f"s_mov_b32 {s(sOnes)}, 0x3f803f80")
        a(f"s_cmp_lg_u32 {s(sWave)}, 4\ns_cbranch_scc1 L_noinit")
        a(f"v_lshl_add_u32 v12, {v(vLane)}, 2, {v(vZ)}\nv_subrev_u32 v13, 6, {v(vLane)}\nv_cmp_gt_u32 vcc, 2, v13\nv_mov_b32 v14, 1000\nv_cndmask_b32 v13, 0, v14, vcc")
        a(f"ds_write_b32 v12, v13\ns_waitcnt lgkmcnt(0)")
        a.label("L_noinit")
        a("s_barrier")
        a(f"s_and_b32 {s(sA)}, {s(sWave)}, 6\ns_cmp_eq_u32 {s(sA)}, 4\ns_cbranch_scc1 L_loader")

    def get_tag(self, a, tmp):
        L = a.newlabel("Ltg"); Lok = L + "_ok"
        a.label(L)
        a(f"ds_read_b64 {v(tmp,2)}, {v(vZ)} offset:{L_TAG-L_CNT}\ns_waitcnt lgkmcnt(0)\nv_cmp_gt_u32 vcc, 1, {v(tmp+1)}\ns_cbranch_vccz {Lok}\ns_sleep 1")
        self.spin_tail(a, L, Lok)
        a.label(Lok)
        a(f"v_readfirstlane_b32 {s(sTag)}, {v(tmp)}")
        a(f"s_mul_i32 {s(sTag+1)}, {s(sTag)}, 0x9E3779B1\ns_xor_b32 {s(sTag+1)}, {s(sTag+1)}, 0x7F4A7C15")

    def compute(self):
        a = self.a; h = self.h
        m = vM
        self.vTag = m; self.vZero = m + 2; self.vCnt = m + 3
        vG, vR = m + 4, m + 5
        sImg = sE
        sXo = 75
        MF = "v_mfma_f32_16x16x32_bf16"
        a(f"s_add_u32 {s(sPI)}, {s(sWave)}, 1\ns_cmp_ge_u32 {s(sWave)}, {HK}\ns_cselect_b32 {s(sPI)}, 0, {s(sPI)}")
        a(f"s_lshl_b32 {s(sT)}, {s(sC)}, 2\ns_add_u32 {s(sT)}, {s(sT)}, {s(sPI)}\ns_sub_u32 {s(sT)}, {s(sT)}, 1")
        a(f"s_mul_i32 {s(sImg)}, {s(sPI)}, 20480\ns_add_u32 {s(sImg)}, {s(sImg)}, {XIMG}")
        a(f"s_cmp_eq_u32 {s(sWave)}, {HV}\ns_cbranch_scc1 L_w7_pre")
        t0, t1, x0, x1 = TT, TT + 1, TT + 2, TT + 3
        a(f"s_mul_i32 {s(sXo)}, {s(sT)}, {16*1280}\ns_cmp_lt_i32 {s(sT)}, 0\ns_cselect_b32 {s(sXo)}, {OOB}, {s(sXo)}")
        a(f"v_lshrrev_b32 {v(t0)}, 3, {v(vLane)}\nv_and_b32 {v(t1)}, 7, {v(vLane)}\nv_lshrrev_b32 {v(x1)}, 1, {v(t0)}\nv_xor_b32 {v(t1)}, {v(t1)}, {v(x1)}")
        a(f"v_mul_u32_u24 {v(t0)}, 1280, {v(t0)}\nv_add_u32 {v(t0)}, {s(sXo)}, {v(t0)}\nv_lshl_add_u32 {v(x0)}, {v(t1)}, 4, {v(t0)}")
        a(f"v_xor_b32 {v(t1)}, 4, {v(t1)}\nv_lshl_add_u32 {v(x1)}, {v(t1)}, 4, {v(t0)}\nv_add_u32 {v(x1)}, {8*1280-1024}, {v(x1)}")
        a(f"s_lshl_b32 {s(sB)}, {s(sRho)}, 7")
        a("s_waitcnt lgkmcnt(0)")
        self.srd(a, sIN, 4, 2048 * 1280)
        self.stamp(1)
        for ln in range(10):
            a(f"s_add_u32 m0, {s(sImg)}, {2048*ln}")
            a(f"buffer_load_dwordx4 {v(x0)}, {s(sIN,4)}, {s(sB)} offen lds")
            a(f"buffer_load_dwordx4 {v(x1)}, {s(sIN,4)}, {s(sB)} offen offset:1024 lds", tag=("x", ln))
            if ln < 9:
                a(f"s_add_u32 {s(sB)}, {s(sB)}, 128\ns_cmp_ge_u32 {s(sB)}, 1280\ns_cselect_b32 {s(sB)}, 0, {s(sB)}")
        a(f"v_mov_b32 {v(m+13)}, 1\ns_mov_b64 exec, 1\nds_add_u32 {v(vZ)}, {v(m+13)} offset:{L_XI-L_CNT}\ns_mov_b64 exec, -1")
        self.stamp(1)
        self.srd(a, sWS, 24, WS_SIZE)
        a.label("L_setup")
        a(f"v_lshrrev_b32 {v(vG)}, 4, {v(vLane)}\nv_and_b32 {v(vR)}, 15, {v(vLane)}\nv_mov_b32 {v(self.vZero)}, 0")
        a(f"v_and_b32 {v(vLa)}, 1, {v(vLane)}\nv_lshlrev_b32 {v(vLa)}, 2, {v(vLa)}\nv_add_u32 {v(vLa)}, {L_LANDED}, {v(vLa)}")
        a(f"s_sub_u32 {s(sA)}, {s(sWave)}, 2\ns_cmp_ge_u32 {s(sWave)}, {HK}\ns_cselect_b32 {s(sB)}, {s(sA)}, {s(sWave)}")
        a(f"s_lshl_b32 {s(sB)}, {s(sB)}, 2\ns_add_u32 {s(sB)}, {s(sB)}, {L_CNT}\nv_mov_b32 {v(self.vCnt)}, {s(sB)}")
        a(f"s_mul_i32 {s(sTile)}, {s(sT)}, {TS}\ns_add_u32 {s(sTile)}, {s(sTile)}, {WS_TILE}")
        a(f"s_mul_i32 {s(sTJ)}, {s(sJ)}, 2560\ns_add_u32 {s(sTJ)}, {s(sTJ)}, {s(sTile)}")
        xoK, xoK8, xoV = m + 10, m + 11, m + 12
        a(f"s_mul_i32 {s(sA)}, {s(sPI)}, 5120\ns_add_u32 {s(sA)}, {s(sA)}, {P1TMP}\nv_add_u32 {v(xoV)}, {s(sA)}, {v(vL8)}")
        a(f"s_cmp_eq_u32 {s(sWave)}, {HV}\ns_cselect_b32 {s(sA)}, {L_PSCR}, {s(sA)}\nv_add_u32 {v(xoK)}, {s(sA)}, {v(vL16)}\nv_add_u32 {v(xoK8)}, {s(sA)}, {v(vL8)}")
        ra0, ra1, fr_ = m + 6, m + 7, m + 8
        a(f"v_lshrrev_b32 {v(fr_)}, 1, {v(vR)}\nv_xor_b32 {v(ra0)}, {v(fr_)}, {v(vG)}\nv_xor_b32 {v(ra1)}, 4, {v(ra0)}")
        a(f"v_lshlrev_b32 {v(m+9)}, 7, {v(vR)}\nv_add_u32 {v(m+9)}, {s(sImg)}, {v(m+9)}")
        a(f"v_lshl_add_u32 {v(ra0)}, {v(ra0)}, 4, {v(m+9)}\nv_lshl_add_u32 {v(ra1)}, {v(ra1)}, 4, {v(m+9)}")
        p0, p1 = TT + 4, TT + 5
        a(f"v_lshrrev_b32 {v(p0)}, 1, {v(vG)}\nv_lshlrev_b32 {v(p0)}, 4, {v(p0)}\nv_and_b32 {v(p1)}, 1, {v(vG)}\nv_lshl_add_u32 {v(p0)}, {v(p1)}, 2, {v(p0)}")
        a(f"v_lshrrev_b32 {v(p1)}, 2, {v(vR)}\nv_add_u32 {v(p0)}, {v(p0)}, {v(p1)}\nv_mul_u32_u24 {v(p0)}, 160, {v(p0)}")
        a(f"v_and_b32 {v(p1)}, 3, {v(vLane)}\nv_lshl_add_u32 {v(vPA)}, {v(p1)}, 3, {v(p0)}")
        a(f"s_cmp_eq_u32 {s(sWave)}, {HV}\ns_cbranch_scc1 L_w7_pack")
        a(f"s_cmp_lg_u32 {s(sWave)}, {HK}\ns_cbranch_scc1 L_noprio\ns_setprio {self.opt.get('hprio', 1)}")
        a.label("L_noprio")
        xq = [TT + 6 + t for t in range(5)]
        a(f"v_lshrrev_b32 {v(p0)}, 1, {v(vG)}\nv_and_b32 {v(p1)}, 1, {v(vG)}\nv_lshl_add_u32 {v(p1)}, {v(p1)}, 3, {v(m+9)}")
        for t in range(5):
            a(f"s_mul_i32 {s(sA)}, {s(sJ)}, 10\ns_add_u32 {s(sA)}, {s(sA)}, {2*t}\ns_lshr_b32 {s(sB)}, {s(sA)}, 3\ns_and_b32 {s(sA)}, {s(sA)}, 7")
            a(f"s_add_u32 {s(sB)}, {s(sB)}, 10\ns_sub_u32 {s(sB)}, {s(sB)}, {s(sRho)}\ns_sub_u32 {s(sCc)}, {s(sB)}, 10\ns_cmp_ge_u32 {s(sB)}, 10\ns_cselect_b32 {s(sB)}, {s(sCc)}, {s(sB)}\ns_lshl_b32 {s(sB)}, {s(sB)}, 11")
            a(f"v_add_u32 {v(xq[t])}, {s(sA)}, {v(p0)}\nv_xor_b32 {v(xq[t])}, {v(xq[t])}, {v(fr_)}\nv_lshl_add_u32 {v(xq[t])}, {v(xq[t])}, 4, {v(p1)}\nv_add_u32 {v(xq[t])}, {s(sB)}, {v(xq[t])}")
        sm = [TT + 12, TT + 13, TT + 14, TT + 15]
        RSD = TT + 24
        inv = f2u(1.0 / 640)
        def xread(A, ln):
            for vv in range(2): A(f"ds_read_b128 {v(AF+8*ln+4*vv,4)}, {v(ra0+vv)} offset:{2048*ln}", tag=("xf", ln))
        def dots(A, ln):
            A.wait(ds=("xf", ln))
            for k in range(8):
                r_ = AF + 8 * ln + k
                A(f"v_dot2c_f32_bf16 {v(sm[2*(k&1)])}, {s(sOnes)}, {v(r_)}\nv_dot2c_f32_bf16 {v(sm[2*(k&1)+1])}, {v(r_)}, {v(r_)}")
        def stat_fin(A):
            A(f"v_add_f32 {v(sm[0])}, {v(sm[0])}, {v(sm[2])}\nv_add_f32 {v(sm[1])}, {v(sm[1])}, {v(sm[3])}")
            self.allreduce2(A, sm[0], sm[1], None)
            A(f"v_mul_f32 {v(sm[0])}, {inv:#x}, {v(sm[0])}\nv_mul_f32 {v(sm[1])}, {inv:#x}, {v(sm[1])}")
            A(f"v_fma_f32 {v(sm[1])}, -{v(sm[0])}, {v(sm[0])}, {v(sm[1])}\nv_max_f32 {v(sm[1])}, 0, {v(sm[1])}\nv_add_f32 {v(sm[1])}, {f2u(1e-5):#x}, {v(sm[1])}")
            A(f"v_rsq_f32 {v(RSD)}, {v(sm[1])}\nv_mul_f32_e64 {v(RSD+1)}, -{v(sm[0])}, {v(RSD)}\ns_mov_b32 {s(sD)}, 0xffff0000")
        tp = [TT + 16 + 2 * k for k in range(4)]
        def norm_ops(st):
            ops = []
            for k in range(4): ops += [f"v_lshlrev_b32 {v(tp[k])}, 16, {v(AF+4*st+k)}", f"v_and_b32 {v(tp[k]+1)}, {s(sD)}, {v(AF+4*st+k)}"]
            for k in range(4): ops += [f"v_fma_f32 {v(tp[k])}, {v(tp[k])}, {v(RSD)}, {v(RSD+1)}", f"v_fma_f32 {v(tp[k]+1)}, {v(tp[k]+1)}, {v(RSD)}, {v(RSD+1)}"]
            for k in range(4): ops.append(f"v_cvt_pk_bf16_f32 {v(AF+4*st+k)}, {v(tp[k])}, {v(tp[k]+1)}")
            return ops
        for r_ in sm: a(f"v_mov_b32 {v(r_)}, 0")
        for ln in range(10):
            a.wait(vm=("x", ln))
            if ln == 9: self.stamp(1)
            xread(a, ln)
            if ln >= 2: dots(a, ln - 2)
        a(f"v_mov_b32 {v(m+13)}, 1\ns_cmp_lg_u32 {s(sWave)}, {HK}\ns_cbranch_scc1 L_nohx\nds_write_b32 {v(vZ)}, {v(m+13)} offset:{L_HX-L_CNT}")
        a.ds.pop()
        a.label("L_nohx")
        for t in range(5): a(f"ds_read_b64 {v(X1P+2*t,2)}, {v(xq[t])}")
        self.publish(1)
        dots(a, 8); dots(a, 9)
        stat_fin(a)
        self.stamp(); self.stamp(1)
        fr = [(U_RAW + 4 * ps + st // 5, (st % 5) * 5120 + 32 * t, "tr") for ps in range(3) for st in range(20) for t in range(5)]
        VAC = ACC + 20
        accs = [ACC, VAC, ACC]
        KPREV = KOWN + 10
        def pack5(acc, dst, A=None):
            A = A or a
            for t in range(5):
                A(f"v_cvt_pk_bf16_f32 {v(dst(t))}, {v(acc+4*t)}, {v(acc+4*t+1)}\nv_cvt_pk_bf16_f32 {v(dst(t)+1)}, {v(acc+4*t+2)}, {v(acc+4*t+3)}")
        def k_out(A):
            pack5(ACC, lambda t: KOWN + 2 * t, A)
            A(f"ds_write_b128 {v(xoK)}, {v(KOWN,4)}\nds_write_b128 {v(xoK)}, {v(KOWN+4,4)} offset:1024\nds_write_b64 {v(xoK8)}, {v(KOWN+8,2)} offset:2048")
        def xr_add(A, n):
            A(f"s_lshl_b32 {s(sB)}, {s(sPI)}, 2\ns_add_u32 {s(sB)}, {s(sB)}, {L_XR}\nv_mov_b32 {v(m+13)}, {s(sB)}\nv_mov_b32 {v(m+14)}, {n}")
            A(f"s_mov_b64 exec, 1\nds_add_u32 {v(m+13)}, {v(m+14)}\ns_mov_b64 exec, -1")
        self.lds_spin(h, vZ, L_HX - L_CNT, 1, m + 14, sleep=1)
        for r_ in sm: h(f"v_mov_b32 {v(r_)}, 0")
        for ln in range(10): xread(h, ln)
        self.a = h; self.publish(U_RAW + 4); self.a = a
        for ln in range(10): dots(h, ln)
        stat_fin(h)
        self.w7_packB(h)
        h(f"s_setprio 0\ns_mov_b32 {s(sD)}, 0xffff0000")
        for st in range(20):
            for op in norm_ops(st): h(op)
        self.w7_stageC(h)
        h(f"s_setprio {self.opt.get('hprio', 1)}")
        self.a = h; self.stream_init(fr, start=100); self.prime(); self.a = a
        h("s_waitcnt lgkmcnt(0)\ns_branch L_vpass")
        h.label("L_w6_k"); h.reset_hist(); h("s_nop 7")
        k_out(h); xr_add(h, 1)
        h("s_setprio 0\ns_branch L_w6_rest")

        NS = self.opt.get('nser', 20)
        for st in range(NS):
            for op in norm_ops(st): a(op)
        self.stamp(1)
        self.stream_init(fr); self.prime()
        self.stamp(1)
        VF = TT
        VLO = 48
        MK = 60
        BIAS = TT + 20
        for ps in range(3):
            if ps == 1:
                a(f"s_cmp_eq_u32 {s(sWave)}, {HK}\ns_cbranch_scc1 L_w6_k")
                a.label("L_vpass")
            for st in range(20):
                side = norm_ops(st + NS) if ps == 0 and st + NS < 20 else []
                for t in range(5):
                    f = ps * 100 + st * 5 + t
                    self.mfma_w(f, accs[ps] + 4 * t, AF + 4 * st, first=(st == 0), swap=(ps == 1))
                    for op in side[4 * t:4 * t + 4]: a(op)
                if ps == 1 and st == 1: k_out(a)
                if ps == 2 and st == 2:
                    a(f"s_lshl_b32 {s(sB)}, {s(sPI)}, 2\ns_add_u32 {s(sB)}, {s(sB)}, {L_XR-4}\nv_mov_b32 {v(m+13)}, {s(sB)}")
                    self.lds_spin(a, m + 13, 0, 2, m + 14)
                    a(f"v_subrev_u32 {v(m+13)}, 5120, {v(xoK)}\nv_subrev_u32 {v(m+14)}, 5120, {v(xoV)}")
                    a(f"ds_read_b128 {v(KPREV,4)}, {v(m+13)}\nds_read_b128 {v(KPREV+4,4)}, {v(m+13)} offset:1024\nds_read_b64 {v(KPREV+8,2)}, {v(m+14)} offset:2048")
                    for t in range(5):
                        a(f"ds_read_b64 {v(VF+4*t+2,2)}, {v(m+14)} offset:{2560+512*t}", tag="kvprev")
                if ps == 2 and st == 6:
                    a.wait(ds="kvprev")
                    a(f"v_lshrrev_b32 {v(m+14)}, 2, {v(vR)}")
                    for t in range(1, 4):
                        a(f"v_cmp_gt_u32 vcc, {t}, {v(m+14)}")
                        for k in range(4): a(f"v_cndmask_b32 {v(VLO+4*(t-1)+k)}, 0, {v(VF+4*t+k)}, vcc")
                        for k in range(4): a(f"v_xor_b32 {v(VF+4*t+k)}, {v(VF+4*t+k)}, {v(VLO+4*(t-1)+k)}")
                if ps == 2 and st == 9:
                    tq = m + 14
                    a(f"v_and_b32 {v(tq)}, 1, {v(vR)}\nv_cmp_eq_u32 {s(sPar,2)}, 1, {v(tq)}")
                    a(f"v_lshl_add_u32 {v(tq)}, {v(vG)}, 2, {v(tq)}\nv_cmp_le_u32 {s(sMa,2)}, {v(tq)}, {v(vR)}")
                    a(f"v_add_u32 {v(tq)}, 2, {v(tq)}\nv_cmp_le_u32 {s(sMb,2)}, {v(tq)}, {v(vR)}")
                    a(f"v_mov_b32 {v(tq)}, 0xffff\nv_mov_b32 {v(m+13)}, 0xffff0000\nv_cndmask_b32 {v(tq)}, {v(tq)}, {v(m+13)}, {s(sPar,2)}")
                    a(f"v_cndmask_b32 {v(MK)}, 0, {v(tq)}, {s(sMa,2)}\nv_cndmask_b32 {v(MK+1)}, 0, {v(tq)}, {s(sMb,2)}")
                    a(f"v_xor_b32 {v(MK+2)}, {v(MK)}, {v(tq)}\nv_xor_b32 {v(MK+3)}, {v(MK+1)}, {v(tq)}")
                    a(f"s_cmp_eq_u32 {s(sT)}, 0\ns_cselect_b32 {s(sB)}, {f2u(-1e30):#x}, 0")
                    for k in range(4): a(f"v_mov_b32 {v(BIAS+k)}, {s(sB)}")
                    for hh in range(1, 4):
                        a(f"v_cmp_le_u32 vcc, {hh}, {v(vG)}\nv_cndmask_b32_e64 {v(VAC+hh)}, 0, -1, vcc")
                if ps == 2 and st == 12:
                    self.lds_spin(a, vZ, L_MODE - L_CNT, 1, m + 14)
                    a(f"v_readfirstlane_b32 {s(sMode)}, {v(m+14)}")
                    self.get_tag(a, self.vTag)
                    a(f"v_mov_b32 {v(self.vTag+1)}, {s(sTag+1)}")
            self.stamp(1)
            if ps == 1:
                pack5(VAC, lambda t: VF + 4 * t)
                for t in range(5): a(f"ds_write_b64 {v(xoV)}, {v(VF+4*t,2)} offset:{2560+512*t}")
                a(f"s_cmp_eq_u32 {s(sWave)}, {HV}\ns_cselect_b32 {s(sA)}, 1, 2")
                xr_add(a, s(sA))
                a(f"s_cmp_eq_u32 {s(sWave)}, {HV}\ns_cbranch_scc1 L_w7_rest")
        self.stamp()
        QF, SC, SP, PF, QP = AF, AF + 16, AF + 32, AF + 48, AF + 64
        GE = lambda hh: VAC + hh
        pack5(ACC, lambda t: QF if t == 0 else (QF + 14 if t == 4 else QP + 2 * t))
        for hh in range(4):
            for k in range(2):
                if hh > 0: a(f"v_and_b32 {v(QF+4*hh+k)}, {v(QP+2*hh+k)}, {v(GE(hh))}")
                if hh < 3: a(f"v_bfi_b32 {v(QF+4*hh+2+k)}, {v(GE(hh+1))}, 0, {v(QP+2*(hh+1)+k)}")
        for hh in range(4):
            a(f"{MF} {v(SC+4*hh,4)}, {v(KOWN+2*hh,4)}, {v(QF+4*hh,4)}, 0")
            a(f"{MF} {v(SP+4*hh,4)}, {v(KPREV+2*hh,4)}, {v(QF+4*hh,4)}, {v(BIAS,4)}")
        la = [AF + 64 + hh for hh in range(4)]; lb = [AF + 68 + hh for hh in range(4)]; mx = [AF + 72 + hh for hh in range(4)]
        a(f"s_mov_b32 {s(sB)}, {f2u(20 ** -0.5 * math.log2(math.e)):#x}")
        for hh in range(4):
            c_, p_ = SC + 4 * hh, SP + 4 * hh
            a(f"v_cndmask_b32 {v(c_)}, {v(c_)}, {v(c_+1)}, {s(sPar,2)}\nv_cndmask_b32 {v(p_)}, {v(p_)}, {v(p_+1)}, {s(sPar,2)}")
            a(f"v_cndmask_b32 {v(c_+2)}, {v(c_+2)}, {v(c_+3)}, {s(sPar,2)}\nv_cndmask_b32 {v(p_+2)}, {v(p_+2)}, {v(p_+3)}, {s(sPar,2)}")
            a(f"v_cndmask_b32 {v(la[hh])}, {v(p_)}, {v(c_)}, {s(sMa,2)}\nv_cndmask_b32 {v(lb[hh])}, {v(p_+2)}, {v(c_+2)}, {s(sMb,2)}")
            a(f"v_max_f32 {v(mx[hh])}, {v(la[hh])}, {v(lb[hh])}")
        self.rscatter4(a, mx, "v_max_f32")
        a(f"v_mul_f32 {v(mx[0])}, {s(sB)}, {v(mx[0])}")
        self.allgather4(a, mx)
        for hh in range(4):
            a(f"v_fma_f32 {v(la[hh])}, {v(la[hh])}, {s(sB)}, -{v(mx[hh])}\nv_fma_f32 {v(lb[hh])}, {v(lb[hh])}, {s(sB)}, -{v(mx[hh])}")
        for hh in range(4):
            a(f"v_exp_f32 {v(la[hh])}, {v(la[hh])}\nv_exp_f32 {v(lb[hh])}, {v(lb[hh])}")
        for hh in range(4):
            a(f"v_add_f32 {v(mx[hh])}, {v(la[hh])}, {v(lb[hh])}")
        self.rscatter4(a, mx, "v_add_f32")
        a(f"v_rcp_f32 {v(mx[0])}, {v(mx[0])}")
        self.allgather4(a, mx)
        for hh in range(4):
            a(f"v_mul_f32 {v(la[hh])}, {v(la[hh])}, {v(mx[hh])}\nv_mul_f32 {v(lb[hh])}, {v(lb[hh])}, {v(mx[hh])}")
            a(f"v_cvt_pk_bf16_f32 {v(la[hh])}, {v(la[hh])}, {v(la[hh])}\nv_cvt_pk_bf16_f32 {v(lb[hh])}, {v(lb[hh])}, {v(lb[hh])}")
            a(f"v_and_b32 {v(PF+4*hh)}, {v(la[hh])}, {v(MK)}\nv_and_b32 {v(PF+4*hh+1)}, {v(lb[hh])}, {v(MK+1)}")
            a(f"v_and_b32 {v(PF+4*hh+2)}, {v(la[hh])}, {v(MK+2)}\nv_and_b32 {v(PF+4*hh+3)}, {v(lb[hh])}, {v(MK+3)}")
        for hh in range(4):
            a(f"{MF} {v(ACC+4*hh,4)}, {v(VF+4*hh,4)}, {v(PF+4*hh,4)}, {'0' if hh == 0 else v(ACC+4*hh,4)}")
            lo = VF + 16 if hh == 3 else VLO + 4 * hh
            a(f"{MF} {v(ACC+4*hh+4,4)}, {v(lo,4)}, {v(PF+4*hh,4)}, 0")
        self.publish(U_X + 1)
        OP = TT
        pack5(ACC, lambda t: OP + 2 * t)
        self.handoff_store(OP, BUFA)
        vA16, vA8, vF8 = m + 6, m + 7, m + 8
        a(f"v_add_u32 {v(vA16)}, {s(sTile)}, {v(vL16)}\ns_add_u32 {s(sB)}, {s(sTile)}, 2048\nv_add_u32 {v(vA8)}, {s(sB)}, {v(vL8)}")
        a(f"v_and_b32 {v(vF8)}, 7, {v(vLane)}\nv_lshlrev_b32 {v(vF8)}, 3, {v(vF8)}\nv_add_u32 {v(vF8)}, {s(sTile)}, {v(vF8)}")
        a("s_waitcnt vmcnt(0)")
        self.flag_store(F1)
        self.stamp()

        def unpack_acc(src, fn=None):
            for t in range(5):
                for k in range(2):
                    a(f"v_lshlrev_b32 {v(ACC+4*t+2*k)}, 16, {v(src+2*t+k)}\nv_and_b32 {v(ACC+4*t+2*k+1)}, 0xffff0000, {v(src+2*t+k)}")
        def frags640(u0): return [(u0 + st // 5, (st % 5) * 5120 + 1024 * t, "pk") for st in range(20) for t in range(5)]
        def load_A(buf, v16=None, v8=None):
            self.stamp(self.ph)
            for i in range(4):
                a(f"s_mul_i32 {s(sA)}, {s(sRot+i)}, 5120\ns_add_u32 {s(sA)}, {s(sA)}, {buf}")
                a16 = vA16 if v16 is None else v16[i]; a8 = vA8 if v8 is None else v8[i]
                for uu, imm in enumerate((0, 1024, 2560, 3584)):
                    a(f"buffer_load_dwordx4 {v(AF+20*i+4*uu,4)}, {v(a16)}, {s(sWS,4)}, {s(sA)} offen offset:{imm} sc1", tag=("A", 5*i+uu))
                a(f"buffer_load_dwordx2 {v(AF+20*i+16,2)}, {v(a8)}, {s(sWS,4)}, {s(sA)} offen sc1")
                a(f"buffer_load_dwordx2 {v(AF+20*i+18,2)}, {v(a8)}, {s(sWS,4)}, {s(sA)} offen offset:2560 sc1", tag=("A", 5*i+4))
        def gemm640():
            for st in range(20):
                a.wait(vm=("A", st))
                if st in (0, 10, 19): self.stamp(self.ph)
                for t in range(5): self.mfma_w(st * 5 + t, ACC + 4 * t, AF + 4 * st)
            self.stamp(self.ph)
        def stats_store(src, off):
            x_, y_ = TT + 12, TT + 13
            a(f"v_mov_b32 {v(x_)}, 0\nv_mov_b32 {v(y_)}, 0")
            for k in range(10):
                a(f"v_dot2c_f32_bf16 {v(x_)}, {s(sOnes)}, {v(src+k)}\nv_dot2c_f32_bf16 {v(y_)}, {v(src+k)}, {v(src+k)}")
            self.allreduce2(a, x_, y_, None)
            a(f"v_mov_b32 {v(TT+14)}, {s(sTag)}\nv_mov_b32 {v(TT+15)}, {s(sTag+1)}")
            a(f"s_lshl_b32 {s(sA)}, {s(sJ)}, 8\ns_add_u32 {s(sA)}, {s(sA)}, {s(sTile)}\ns_add_u32 {s(sA)}, {s(sA)}, {off}")
            self.stamp(self.ph)
            a("s_waitcnt vmcnt(0)")
            self.stamp(self.ph)
            a("s_mov_b64 exec, 0xffff")
            self.moded([f"buffer_store_dwordx4 {v(TT+12,4)}, {v(vL16)}, {s(sWS,4)}, {s(sA)} offen"])
            a("s_mov_b64 exec, -1")
        def stats_poll(off):
            L = a.newlabel("Lp"); Lok = L + "_ok"
            e0, e1 = TT + 12, TT + 16
            a(f"s_mov_b32 {s(sA)}, {off}")
            a.label(L)
            a(f"buffer_load_dwordx4 {v(e0,4)}, {v(vA16)}, {s(sWS,4)}, {s(sA)} offen sc1")
            a(f"buffer_load_dwordx4 {v(e1,4)}, {v(vA16)}, {s(sWS,4)}, {s(sA)} offen offset:1024 sc1")
            a(f"s_waitcnt vmcnt(0)\nv_cmp_ne_u64 vcc, {s(sTag,2)}, {v(e0+2,2)}\nv_cmp_ne_u64 {s(sMk,2)}, {s(sTag,2)}, {v(e1+2,2)}")
            a(f"s_or_b64 vcc, vcc, {s(sMk,2)}\ns_cbranch_scc0 {Lok}")
            self.spin_tail(a, L, Lok)
            a.label(Lok)
        def stats_finish(mu, var):
            e0, e1 = TT + 12, TT + 16
            a(f"v_add_f32 {v(mu)}, {v(e0)}, {v(e1)}\nv_add_f32 {v(var)}, {v(e0+1)}, {v(e1+1)}")
            self.allreduce2(a, mu, var, None)
            a(f"v_mul_f32 {v(mu)}, {inv:#x}, {v(mu)}\nv_mul_f32 {v(var)}, {inv:#x}, {v(var)}")
            a(f"v_fma_f32 {v(var)}, -{v(mu)}, {v(mu)}, {v(var)}\nv_max_f32 {v(var)}, 0, {v(var)}")
        c0 = -2 * math.sqrt(2 / math.pi) * math.log2(math.e)
        GK = KOWN
        def gelu_consts(R):
            a(f"v_mul_f32 {v(GK)}, {f2u(c0):#x}, {v(R)}\nv_mul_f32 {v(GK+1)}, {v(R)}, {v(R)}\nv_mul_f32 {v(GK+1)}, {v(GK+1)}, {v(GK)}")
            a(f"v_mul_f32 {v(GK+1)}, {f2u(0.044715):#x}, {v(GK+1)}\nv_rcp_f32 {v(GK+2)}, {v(R)}")
        def gelu_ops(acc, n, dst, tmp, pk=True):
            ops = []
            for b in range(0, n, 4):
                P = [(acc + b, tmp), (acc + b + 2, tmp + 2)]
                if pk:
                    for x_, t_ in P: ops.append(f"v_pk_mul_f32 {v(t_,2)}, {v(x_,2)}, {v(x_,2)}")
                    for x_, t_ in P: ops.append(f"v_pk_fma_f32 {v(t_,2)}, {v(t_,2)}, {v(GK,2)}, {v(GK,2)} op_sel:[0,1,0] op_sel_hi:[1,1,0]")
                    for x_, t_ in P: ops.append(f"v_pk_mul_f32 {v(t_,2)}, {v(t_,2)}, {v(x_,2)}")
                    for k in range(4): ops.append(f"v_exp_f32 {v(tmp+k)}, {v(tmp+k)}")
                    for x_, t_ in P: ops.append(f"v_pk_fma_f32 {v(t_,2)}, {v(t_,2)}, {v(GK+2,2)}, {v(GK+2,2)} op_sel_hi:[1,0,0]")
                    for k in range(4): ops.append(f"v_rcp_f32 {v(tmp+k)}, {v(tmp+k)}")
                    for x_, t_ in P: ops.append(f"v_pk_mul_f32 {v(t_,2)}, {v(t_,2)}, {v(x_,2)}")
                else:
                    for k in range(4): ops.append(f"v_mul_f32 {v(tmp+k)}, {v(acc+b+k)}, {v(acc+b+k)}")
                    for k in range(4): ops.append(f"v_fma_f32 {v(tmp+k)}, {v(tmp+k)}, {v(GK+1)}, {v(GK)}")
                    for k in range(4): ops.append(f"v_mul_f32 {v(tmp+k)}, {v(tmp+k)}, {v(acc+b+k)}")
                    for k in range(4): ops.append(f"v_exp_f32 {v(tmp+k)}, {v(tmp+k)}")
                    for k in range(4): ops.append(f"v_fma_f32 {v(tmp+k)}, {v(tmp+k)}, {v(GK+2)}, {v(GK+2)}")
                    for k in range(4): ops.append(f"v_rcp_f32 {v(tmp+k)}, {v(tmp+k)}")
                    for k in range(4): ops.append(f"v_mul_f32 {v(tmp+k)}, {v(tmp+k)}, {v(acc+b+k)}")
                for i_, (x_, t_) in enumerate(P): ops.append(f"v_cvt_pk_bf16_f32 {v(dst+b//2+i_)}, {v(t_)}, {v(t_+1)}")
            return ops

        a.label("L_P2")
        self.ph = 2; self.stamp(2)
        self.stream_init(frags640(U_WO), SLOTS12, 4); self.prime()
        self.stamp(2)
        unpack_acc(X1P)
        a(f"s_mov_b32 {s(sB)}, {F1}")
        self.poll8(a, vF8, s(sB), TT + 12)
        load_A(BUFA); gemm640()
        pack5(ACC, lambda t: HP + 2 * t)
        self.handoff_store(HP, BUFB)
        stats_store(HP, S2)
        self.stamp()
        a.label("L_P3")
        self.ph = 3; self.stamp(3)
        self.stream_init(frags640(U_W1), SLOTS12, 4); self.prime()
        self.stamp(3)
        self.lds_spin(a, vZ, L_CSRDY - L_CNT, 1, vLC)
        vCS = m + 9
        a(f"v_lshlrev_b32 {v(vCS)}, 4, {v(vG)}\nv_add_u32 {v(vCS)}, {L_CS1}, {v(vCS)}")
        for t in range(5): a(f"ds_read_b128 {v(ACC+4*t,4)}, {v(vCS)} offset:{64*t}", tag="cs")
        stats_poll(S2)
        load_A(BUFB)
        MU, RS = KOWN + 4, KOWN + 5
        var, R = KOWN + 6, KOWN + 7
        stats_finish(MU, var)
        a.wait(ds="cs")
        for k in range(20): a(f"v_mul_f32_e64 {v(ACC+k)}, -{v(MU)}, {v(ACC+k)}")
        a(f"v_add_f32 {v(R)}, {f2u(1e-5):#x}, {v(var)}\nv_rsq_f32 {v(RS)}, {v(R)}")
        a(f"v_mul_f32 {v(R)}, {v(RS)}, {v(RS)}\nv_mul_f32 {v(R)}, {v(R)}, {v(var)}\nv_add_f32 {v(R)}, {f2u(1e-5):#x}, {v(R)}\nv_rsq_f32 {v(R)}, {v(R)}")
        a(f"v_mul_f32 {v(R)}, {v(R)}, {v(RS)}")
        gelu_consts(R)
        gemm640()
        for op in gelu_ops(ACC, 20, OP, TT + 12): a(op)
        self.stamp(3)
        self.handoff_store(OP, BUFA)
        Lsh = a.newlabel("Lsh"); Lshb = Lsh + "_b"
        a(f"s_bitcmp1_b32 {s(sJ)}, 1\ns_cselect_b32 {s(sB)}, 0, 3\ns_cmp_eq_u32 {s(sWave)}, {s(sB)}\ns_cbranch_scc1 {Lsh}")
        a("s_waitcnt vmcnt(0)")
        self.flag_store(F3)
        a.label(Lshb)
        self.stamp(3)
        t = self.t
        t.label(Lsh); t.reset_hist()
        t(f"s_bitcmp1_b32 {s(sJ)}, 1\ns_mov_b32 {s(sSh)}, 0xc000c000\ns_cselect_b32 {s(sSh)}, 0x00030003, {s(sSh)}\ns_mov_b32 {s(sSh+1)}, {s(sSh)}")
        t(f"s_add_u32 {s(sA)}, {s(sTJ)}, {SHAD}\ns_mov_b64 exec, {s(sSh,2)}")
        t(f"buffer_store_dwordx4 {v(OP,4)}, {v(vL16)}, {s(sWS,4)}, {s(sA)} offen sc1")
        t(f"buffer_store_dwordx4 {v(OP+4,4)}, {v(vL16)}, {s(sWS,4)}, {s(sA)} offen offset:1024 sc1")
        t(f"buffer_store_dwordx2 {v(OP+8,2)}, {v(vL8)}, {s(sWS,4)}, {s(sA)} offen offset:2048 sc1")
        t(f"s_lshl_b32 {s(sA)}, {s(sJ)}, 3\ns_add_u32 {s(sA)}, {s(sA)}, {s(sTile)}\ns_add_u32 {s(sA)}, {s(sA)}, {F3}\ns_mov_b64 exec, 1")
        t(f"s_waitcnt vmcnt(3)\ns_cmp_lg_u32 {s(sMode)}, 1\ns_cbranch_scc1 {Lsh}_s")
        t(f"buffer_store_dwordx2 {v(self.vTag,2)}, {v(self.vZero)}, {s(sWS,4)}, {s(sA)} offen\ns_branch {Lsh}_t")
        t.label(Lsh + "_s")
        t(f"buffer_store_dwordx2 {v(self.vTag,2)}, {v(self.vZero)}, {s(sWS,4)}, {s(sA)} offen sc1")
        t.label(Lsh + "_t")
        t(f"s_waitcnt vmcnt(1)\nbuffer_store_dwordx2 {v(self.vTag,2)}, {v(self.vZero)}, {s(sWS,4)}, {s(sA)} offen offset:{FH-F3} sc1")
        t(f"s_mov_b64 exec, -1\ns_branch {Lshb}")
        self.stamp()
        a.label("L_P4")
        self.ph = 4; self.stamp(4)
        self.stream_init(frags640(U_W2), SLOTS12, 4); self.prime()
        self.stamp(4)
        unpack_acc(HP)
        a(f"v_mul_f32_e64 {v(var)}, -{v(MU)}, {v(RS)}")
        for k in range(20): a(f"v_fma_f32 {v(ACC+k)}, {v(ACC+k)}, {v(RS)}, {v(var)}")
        sPv, sNx = sD, sE
        a(f"s_sub_u32 {s(sPv)}, {s(sTile)}, {TS}\ns_add_u32 {s(sA)}, {s(sPv)}, {SHAD}\ns_cmp_eq_u32 {s(sWave)}, 0\ns_cselect_b32 {s(sPv)}, {s(sA)}, {s(sPv)}")
        a(f"s_cmp_eq_u32 {s(sT)}, 0\ns_cselect_b32 {s(sPv)}, {OOB}, {s(sPv)}")
        a(f"s_add_u32 {s(sNx)}, {s(sTile)}, {TS}\ns_add_u32 {s(sA)}, {s(sNx)}, {SHAD}\ns_cmp_eq_u32 {s(sWave)}, 3\ns_cselect_b32 {s(sNx)}, {s(sA)}, {s(sNx)}")
        a(f"s_cmp_eq_u32 {s(sT)}, 127\ns_cselect_b32 {s(sNx)}, {OOB}, {s(sNx)}")
        v16 = [VFR + i for i in range(4)]; v8 = [VFR + 4 + i for i in range(4)]
        tb, tr_ = VFR + 8, VFR + 9
        for i in range(4):
            a(f"s_lshr_b32 {s(sA)}, {s(sRot+i)}, 1\ns_add_u32 {s(sA)}, {s(sA)}, 1\ns_sub_u32 {s(sB)}, 0, {s(sA)}\ns_bitcmp1_b32 {s(sRot+i)}, 0\ns_cselect_b32 {s(sA)}, {s(sA)}, {s(sB)}")
            a(f"s_cselect_b32 {s(sB)}, {s(sNx)}, {s(sPv)}")
            a(f"v_add_u32 {v(tr_)}, {s(sA)}, {v(vR)}\nv_cmp_lt_u32 vcc, 15, {v(tr_)}")
            a(f"v_mov_b32 {v(tb)}, {s(sTile)}\nv_mov_b32 {v(v8[i])}, {s(sB)}\nv_cndmask_b32 {v(tb)}, {v(tb)}, {v(v8[i])}, vcc")
            a(f"v_and_b32 {v(tr_)}, 15, {v(tr_)}\nv_lshl_add_u32 {v(tr_)}, {v(vG)}, 4, {v(tr_)}")
            a(f"v_lshl_add_u32 {v(v16[i])}, {v(tr_)}, 4, {v(tb)}\nv_lshl_add_u32 {v(v8[i])}, {v(tr_)}, 3, {v(tb)}\nv_add_u32 {v(v8[i])}, 2048, {v(v8[i])}")
        fa = VFR + 10
        a(f"s_sub_u32 {s(sA)}, {s(sTile)}, {TS}\ns_add_u32 {s(sB)}, {s(sA)}, {FH-F3}\ns_cmp_eq_u32 {s(sWave)}, 0\ns_cselect_b32 {s(sA)}, {s(sB)}, {s(sA)}")
        a(f"s_cmp_eq_u32 {s(sT)}, 0\ns_cselect_b32 {s(sA)}, {s(sTile)}, {s(sA)}")
        a(f"s_add_u32 {s(sCc)}, {s(sTile)}, {TS}\ns_add_u32 {s(sB)}, {s(sCc)}, {FH-F3}\ns_cmp_eq_u32 {s(sWave)}, 3\ns_cselect_b32 {s(sCc)}, {s(sB)}, {s(sCc)}")
        a(f"s_cmp_eq_u32 {s(sT)}, 127\ns_cselect_b32 {s(sCc)}, {s(sTile)}, {s(sCc)}")
        a(f"v_mov_b32 {v(tb)}, {s(sA)}\nv_mov_b32 {v(tr_)}, {s(sCc)}\nv_and_b32 {v(fa)}, 2, {v(vLane)}\nv_cmp_ne_u32 vcc, 0, {v(fa)}")
        a(f"v_cndmask_b32 {v(tb)}, {v(tb)}, {v(tr_)}, vcc\nv_mov_b32 {v(tr_)}, {s(sTile)}\nv_and_b32 {v(fa)}, 8, {v(vLane)}\nv_cmp_ne_u32 vcc, 0, {v(fa)}")
        a(f"v_cndmask_b32 {v(tb)}, {v(tr_)}, {v(tb)}, vcc\nv_and_b32 {v(fa)}, 7, {v(vLane)}\nv_lshl_add_u32 {v(fa)}, {v(fa)}, 3, {v(tb)}")
        a(f"s_mov_b32 {s(sB)}, {F3}")
        self.poll8(a, fa, s(sB), TT + 12)
        load_A(BUFA, v16, v8); gemm640()
        pack5(ACC, lambda t: X1P + 2 * t)
        self.handoff_store(X1P, BUFB)
        stats_store(X1P, S4)
        self.stamp()
        a.label("L_P5")
        fr5 = [(U_W3 + ch * 4 + st // 5, (st % 5) * 4096 + 1024 * tt, "pk") for ch in range(3) for st in range(20) for tt in range(4)]
        self.ph = 5; self.stamp(5)
        self.stream_init(fr5, SLOTS12, 4); self.prime()
        self.stamp(5)
        self.lds_spin(a, vZ, L_CSRDY - L_CNT, 2, vLC)
        for k in range(8): a(f"ds_read_b128 {v(ACC+4*k,4)}, {v(vCS)} offset:{L_CS3-L_CS1+64*k}", tag="cs")
        stats_poll(S4)
        load_A(BUFB)
        stats_finish(MU, var)
        a.wait(ds="cs")
        for k in range(32): a(f"v_mul_f32_e64 {v(ACC+k)}, -{v(MU)}, {v(ACC+k)}")
        a(f"v_add_f32 {v(R)}, {f2u(1e-5):#x}, {v(var)}\nv_rsq_f32 {v(R)}, {v(R)}")
        gelu_consts(R)
        GP = TT
        A6 = ACC + 16
        def g_store(ch):
            a(f"s_lshl_b32 {s(sA)}, {s(sJ)}, 11\ns_add_u32 {s(sA)}, {s(sA)}, {s(sTile)}\ns_add_u32 {s(sA)}, {s(sA)}, {BUFG + ch*16384}")
            self.moded([f"buffer_store_dwordx4 {v(GP,4)}, {v(vL16)}, {s(sWS,4)}, {s(sA)} offen",
                        f"buffer_store_dwordx4 {v(GP+4,4)}, {v(vL16)}, {s(sWS,4)}, {s(sA)} offen offset:1024"], tag=("gst", ch))
        def g_flag(ch):
            a.wait(vm=("gst", ch))
            self.flag_store(G0 + 128 * ch)
        PL = TT + 16
        def g_poll_issue(ch):
            a(f"s_mov_b32 {s(sB)}, {G0 + 128*ch}\nbuffer_load_dwordx2 {v(PL,2)}, {v(vF8)}, {s(sWS,4)}, {s(sB)} offen sc1", tag=("gp", ch))
        def g_poll_check(ch):
            L = a.newlabel("Lg"); Lok = L + "_ok"
            a.wait(vm=("gp", ch))
            a(f"v_cmp_ne_u64 vcc, {s(sTag,2)}, {v(PL,2)}\ns_cbranch_vccnz {L}")
            a.label(Lok)
            t = self.t
            t.label(L); t.reset_hist()
            t(f"s_mov_b32 {s(sB)}, {G0 + 128*ch}\nbuffer_load_dwordx2 {v(PL,2)}, {v(vF8)}, {s(sWS,4)}, {s(sB)} offen sc1")
            t(f"s_waitcnt vmcnt(0)\nv_cmp_ne_u64 vcc, {s(sTag,2)}, {v(PL,2)}\ns_cbranch_vccz {Lok}")
            self.spin_tail(t, L, Lok)
        sG = sD
        def loadG(st):
            if st % 4 == 0:
                ch, ui = st // 16, (st % 16) // 4
                a(f"s_lshl_b32 {s(sG)}, {s(sRot+ui)}, 12\ns_add_u32 {s(sG)}, {s(sG)}, {BUFG + ch*16384}")
            a(f"buffer_load_dwordx4 {v(AF+4*(st%20),4)}, {v(vA16)}, {s(sWS,4)}, {s(sG)} offen offset:{(st%4)*1024} sc1", tag=("G", st))
        for ch in range(3):
            acc = ACC + 16 * (ch & 1)
            self.stamp(5)
            side = gelu_ops(ACC + 16 * ((ch - 1) & 1), 16, GP, TT + 12, pk=False) if ch > 0 else []
            si = 0
            for st in range(20):
                if ch == 0: a.wait(vm=("A", st))
                for tt in range(4):
                    self.mfma_w(ch * 80 + st * 4 + tt, acc + 4 * tt, AF + 4 * st)
                    n = st * 4 + tt
                    if n >= 3:
                        while si < len(side) and si < (n - 2) * len(side) // 62:
                            a(side[si]); si += 1
                if ch > 0 and st == 16:
                    assert si == len(side)
                    g_store(ch - 1)
                    if ch == 1:
                        for k in range(4): a(f"ds_read_b128 {v(ACC+4*k,4)}, {v(vCS)} offset:{L_CS3-L_CS1+64*(8+k)}", tag="cs")
                if ch == 1 and st == 18:
                    a.wait(ds="cs")
                    for k in range(16): a(f"v_mul_f32_e64 {v(ACC+k)}, -{v(MU)}, {v(ACC+k)}")
                if ch == 2 and st == 4: g_flag(0)
                if ch == 2 and st == 14: g_poll_issue(0)
        self.stamp(5)
        g_poll_check(0)
        for st in range(16): loadG(st)
        g_flag(1)
        for op in gelu_ops(ACC, 16, GP, TT + 12): a(op)
        g_store(2)
        g_poll_issue(1)
        self.stamp(5)
        self.stamp()
        a.label("L_P6")
        fr6 = [(U_W4 + st // 4, (st % 4) * 5120 + 1024 * t, "pk") for st in range(48) for t in range(5)]
        self.stamp(6)
        self.stream_init(fr6, SLOTS12, 4); self.prime()
        self.stamp(6)
        unpack_acc(HP)
        for t in range(5):
            for k in range(2):
                a(f"v_lshlrev_b32 {v(TT+12)}, 16, {v(X1P+2*t+k)}\nv_and_b32 {v(TT+13)}, 0xffff0000, {v(X1P+2*t+k)}")
                a(f"v_pk_add_f32 {v(ACC+4*t+2*k,2)}, {v(ACC+4*t+2*k,2)}, {v(TT+12,2)}")
        self.stamp(6)
        nxt = 16
        for st in range(48):
            a.wait(vm=("G", st))
            if st in (0, 12, 24, 36, 47): self.stamp(6)
            for t in range(5): self.mfma_w(st * 5 + t, ACC + 4 * t, AF + 4 * (st % 20))
            if st == 1:
                g_flag(2); g_poll_check(1)
            if st == 8: g_poll_issue(2)
            if st == 12: g_poll_check(2)
            if st >= 1:
                while nxt < 48 and nxt <= st + 20 and nxt < 16 + 3 * st + 3:
                    loadG(nxt); nxt += 1
        self.stamp(6)
        pack5(ACC, lambda t: OP + 2 * t)
        sg, sr, so = VFR + 1, VFR + 2, VFR + 3
        a(f"s_mul_i32 {s(sB)}, {s(sWave)}, 2560\ns_add_u32 {s(sB)}, {s(sB)}, {STAGE}")
        a(f"v_mul_u32_u24 {v(sg)}, 160, {v(vR)}\nv_lshl_add_u32 {v(sg)}, {v(vG)}, 3, {v(sg)}\nv_add_u32 {v(sg)}, {s(sB)}, {v(sg)}\nv_add_u32 {v(sr)}, {s(sB)}, {v(vL16)}")
        for t in range(5): a(f"ds_write_b64 {v(sg)}, {v(OP+2*t,2)} offset:{32*t}")
        for k in range(3): a(f"ds_read_b128 {v(AF+4*k,4)}, {v(sr)} offset:{1024*k}", tag=("o", k))
        self.srd(a, sOUT, 20, 2048 * 1280)
        a(f"s_mul_i32 {s(sA)}, {s(sT)}, {16*1280}\ns_mul_i32 {s(sB)}, {s(sJ)}, 160\ns_add_u32 {s(sA)}, {s(sA)}, {s(sB)}")
        for k in range(3):
            a(f"v_add_u32 {v(so)}, {64*k}, {v(vLane)}\nv_mul_u32_u24 {v(so+1)}, 6554, {v(so)}\nv_lshrrev_b32 {v(so+1)}, 16, {v(so+1)}")
            a(f"v_mul_u32_u24 {v(so+1)}, 1120, {v(so+1)}\nv_lshl_add_u32 {v(so+2+k)}, {v(so)}, 4, {v(so+1)}")
        for k in range(3):
            a.wait(ds=("o", k))
            if k == 2: a("s_mov_b32 exec_hi, 0")
            a(f"buffer_store_dwordx4 {v(AF+4*k,4)}, {v(so+2+k)}, {s(sOUT,4)}, {s(sA)} offen")
        a("s_mov_b64 exec, -1")
        self.stamp()
        self.finish(a)

    def finish(self, a):
        if self.stamps:
            a("s_waitcnt vmcnt(0) lgkmcnt(0)")
            a(f"{self.clk} {s(sSt+22,2)}\ns_waitcnt lgkmcnt(0)")
            a(f"s_lshl_b32 {s(sA)}, s2, 3\ns_add_u32 {s(sA)}, {s(sA)}, {s(sWave)}\ns_lshl_b32 {s(sA)}, {s(sA)}, 7\ns_add_u32 {s(sA)}, {s(sA)}, {WS_STAMP}")
            a("v_mov_b32 v0, 0\ns_mov_b64 exec, 1")
            for k in range(12):
                a(f"v_mov_b32 v12, {s(sSt+2*k)}\nv_mov_b32 v13, {s(sBud)}")
                a(f"buffer_store_dwordx2 v[12:13], v0, {s(sWS,4)}, {s(sA)} offen offset:{8*k}")
        a("s_endpgm")

    def pf_wait(self, a, base, n2, tmp):
        per = {20: 20, 30: 60, 48: 48}[n2]
        if n2 == 30: a(f"s_mul_i32 {s(sA)}, {s(sJ)}, {60*8}")
        else: a(f"s_mul_i32 {s(sA)}, {s(sJ)}, 5\ns_lshr_b32 {s(sA)}, {s(sA)}, 2\ns_mul_i32 {s(sA)}, {s(sA)}, {per*8}")
        a(f"s_add_u32 {s(sA)}, {s(sA)}, {WS_PF + base*8}")
        a(f"v_min_u32 {v(tmp)}, {n2-1}, {v(vLane)}\nv_lshlrev_b32 {v(tmp)}, 4, {v(tmp)}")
        L = a.newlabel("Lpf"); Lok = L + "_ok"
        a.label(L)
        a(f"buffer_load_dwordx4 {v(tmp+4,4)}, {v(tmp)}, {s(sWS,4)}, {s(sA)} offen sc1")
        a(f"s_waitcnt vmcnt(0)\nv_cmp_ne_u64 vcc, {s(sTag,2)}, {v(tmp+4,2)}\nv_cmp_ne_u64 {s(sMk,2)}, {s(sTag,2)}, {v(tmp+6,2)}")
        a(f"s_or_b64 vcc, vcc, {s(sMk,2)}\ns_cbranch_scc0 {Lok}\ns_sleep 2")
        self.spin_tail(a, L, Lok)
        a.label(Lok)

    def loader(self):
        a = self.a
        a.label("L_loader"); a.reset_hist(); a.reset_cnt(); self.nst = 1; self.inhelper = True
        sL, sK, sCol = 64, sD, sE
        a(f"s_setprio 3\ns_and_b32 {s(sL)}, {s(sWave)}, 1")
        a(f"v_and_b32 v12, 7, {v(vLane)}\nv_lshl_add_u32 v12, v12, 2, {v(vZ)}")
        a(f"s_lshl_b32 {s(sA)}, {s(sL)}, 2\ns_add_u32 {s(sA)}, {s(sA)}, {L_LANDED}\nv_mov_b32 v11, {s(sA)}")
        a(f"s_lshr_b32 {s(sA)}, s2, 3\ns_mul_i32 {s(sA)}, {s(sA)}, {20*3840}\ns_lshl_b32 {s(sB)}, {s(sL)}, 6")
        for i in range(2):
            a(f"v_add_u32 v13, {s(sB)}, {v(vLane)}\nv_add_u32 v13, {128*i}, v13\nv_min_u32 v13, 199, v13\nv_mul_u32_u24 v14, 6554, v13\nv_lshrrev_b32 v14, 16, v14")
            a(f"v_mul_u32_u24 v14, {3840-1280}, v14\nv_lshl_add_u32 v{22+i}, v13, 7, v14\nv_add_u32 v{22+i}, {s(sA)}, v{22+i}")
        for i in range(5):
            a(f"v_add_u32 v13, {64*i}, {v(vLane)}\nv_mul_u32_u24 v14, 6554, v13\nv_lshrrev_b32 v14, 16, v14")
            a(f"v_mul_u32_u24 v15, 10, v14\nv_sub_u32 v13, v13, v15")
            a(f"v_and_b32 v15, 0x13, v14\nv_bfe_u32 v21, v14, 2, 1\nv_lshl_or_b32 v15, v21, 3, v15\nv_bfe_u32 v21, v14, 3, 1\nv_lshl_or_b32 v15, v21, 2, v15")
            a(f"v_mul_u32_u24 v15, 3840, v15\nv_lshl_add_u32 v{16+i}, v13, 4, v15")
            if 0 < i < 4: a(f"v_subrev_u32 v{16+i}, {1024*i}, v{16+i}")
        a("s_waitcnt lgkmcnt(0)")
        self.srd(a, sWS, 24, WS_SIZE); self.srd(a, sIN, 6, 640 * 3840)
        COL = [1280, 2560, 0]
        a(f"s_lshl_b32 {s(sA)}, {s(sL)}, 13\nv_lshlrev_b32 v51, 7, {v(vLane)}\nv_add_u32 v51, {s(sA)}, v51")
        def l2pf(ps):
            if not self.opt.get("pf"): return
            for i in range(2): a(f"buffer_load_dword v{40+2*ps+i}, v{22+i}, {s(sIN,4)}, 0 offen offset:{COL[ps]}")
        if not self.opt.get("notlb"):
            self.srd(a, sOUT, 20, 2048 * 1280)
            a(f"v_and_b32 v13, 7, {v(vLane)}\nv_lshlrev_b32 v46, 19, v13\nv_lshlrev_b32 v47, 20, v13\ns_mov_b64 exec, 0xff")
            a(f"buffer_load_dword v48, v46, {s(sIN,4)}, 0 offen\nbuffer_load_dword v49, v47, {s(sWS,4)}, 0 offen offset:128 sc1\nbuffer_load_dword v50, v46, {s(sOUT,4)}, 0 offen\ns_mov_b64 exec, -1")
        self.stamp()
        pf0 = self.opt.get("pf0", 1)
        for ps in range(pf0): l2pf(ps)
        if not self.opt.get('noxi'): self.lds_spin(a, vZ, L_XI - L_CNT, 5, 13)
        for ps in range(pf0, 3): l2pf(ps)
        self.stamp()
        pend = []
        MAXF = self.opt.get("maxf", 15)
        def publish_upto(u):
            a(f"v_mov_b32 v13, {u+1}\ns_mov_b64 exec, 1\nds_max_u32 v11, v13\ns_mov_b64 exec, -1")
        def throttle():
            if len(a.vm) > MAXF: a(f"s_waitcnt vmcnt({MAXF})")
            while pend and ("u", pend[0]) not in a.vm:
                publish_upto(pend.pop(0))
        self.have = 0
        def slot_free(need):
            if need <= self.have: return
            self.have = need
            L = a.newlabel("Lf"); Lok = L + "_ok"
            a(f"ds_read_b32 v13, v12\ns_waitcnt lgkmcnt(0)\nv_cmp_gt_u32 vcc, {need}, v13\ns_cbranch_vccz {Lok}")
            sv = list(a.vm)
            for pu in pend:
                a.wait(vm=("u", pu)); publish_upto(pu)
            self.lds_spin(a, 12, 0, need, 13, sleep=1)
            a.label(Lok)
            a.vm = sv
        for ps in range(3):
            a(f"s_mul_i32 {s(sCol)}, {s(sJ)}, 160\ns_add_u32 {s(sCol)}, {s(sCol)}, {COL[ps]}")
            a(f"s_lshl_b32 {s(sK)}, {s(sRho)}, 1\ns_add_u32 {s(sK)}, {s(sK)}, {s(sL)}\ns_mul_i32 {s(sK)}, {s(sK)}, {32*3840}")
            for n in range(10):
                ks = (2 * n, 2 * n + 1)
                us = [U_RAW + 4 * ps + k // 5 for k in ks]
                D = [UADDR[u] + (k % 5) * 5120 for u, k in zip(us, ks)]
                slot_free(max(UNEED[u] for u in us))
                a(f"s_mul_i32 {s(sB)}, {s(sL)}, {D[1]-D[0]}\ns_add_u32 {s(sB)}, {s(sB)}, {D[0]}\ns_add_u32 {s(sA)}, {s(sK)}, {s(sCol)}\ns_mov_b32 m0, {s(sB)}")
                tg = ("u", us[0])
                for k in range(4):
                    a(f"buffer_load_dwordx4 v{16+k}, {s(sIN,4)}, {s(sA)} offen offset:{1024*k} lds", tag=tg)
                a(f"s_add_u32 m0, {s(sB)}, 4096")
                a(f"buffer_load_dwordx4 v20, {s(sIN,4)}, {s(sA)} offen lds", tag=tg)
                a(f"s_add_u32 {s(sK)}, {s(sK)}, {64*3840}\ns_sub_u32 {s(sA)}, {s(sK)}, {640*3840}\ns_cmp_ge_u32 {s(sK)}, {640*3840}\ns_cselect_b32 {s(sK)}, {s(sA)}, {s(sK)}")
                if ks[0] % 5 == 4 or ks[1] % 5 == 4: pend.append(us[0])
                if self.opt.get("ls") and (10 * ps + n) % self.opt["ls"] == self.opt["ls"] - 1: self.stamp()
                throttle()
        MAXF = self.opt.get("maxf2", 15)
        for u in range(U_WO, len(UNITS)):
            size, kind, (wid, ch, i) = UNITS[u]
            slot_free(UNEED[u])
            if ch == 0 and i == 0:
                self.stamp()
                if not self.opt.get("nocode"):
                    a(f"v_add_u32 v13, L_P{wid+2}-L_pcref, v51\nglobal_load_dword v52, v13, s[62:63]")
                for pu in pend:
                    a.wait(vm=("u", pu)); publish_upto(pu)
                del pend[:]
                if wid == 0: self.get_tag(a, 24)
                self.pf_wait(a, [0, 200, 400, 600, 1080][wid], [20, 20, 20, 30, 48][wid], 24)
            jb = 102400 if wid < 3 else 245760
            n = 13 if size == 25600 else 10
            half = 12288 if size == 25600 else 10240
            a(f"s_mul_i32 {s(sA)}, {s(sJ)}, {jb}\ns_mul_i32 {s(sB)}, {s(sRot+i)}, {size}\ns_add_u32 {s(sA)}, {s(sA)}, {s(sB)}\ns_mul_i32 {s(sB)}, {s(sL)}, {half}")
            a(f"s_add_u32 {s(sA)}, {s(sA)}, {WS_WP + WP_OFF[wid] + ch*81920}\ns_add_u32 {s(sA)}, {s(sA)}, {s(sB)}")
            for k in range(n):
                if k % 4 == 0:
                    if k: a(f"s_add_u32 {s(sA)}, {s(sA)}, 4096")
                    a(f"s_add_u32 m0, {s(sB)}, {UADDR[u] + k*1024}")
                a(f"buffer_load_dwordx4 {v(vL16)}, {s(sWS,4)}, {s(sA)} offen offset:{1024*(k%4)} sc1 lds", tag=("u", u))
                if k == n - 1: pend.append(u)
                if k % 4 == 3 or k == n - 1: throttle()
        for pu in pend:
            a.wait(vm=("u", pu)); publish_upto(pu)
        self.finish(a)

    PC = 28
    def pk_consts(self, a, scr):
        c = self.PC
        a(f"v_lshrrev_b32 {v(c)}, 3, {v(vLane)}\nv_and_b32 {v(c+1)}, 7, {v(vLane)}\nv_lshlrev_b32 {v(c+1)}, 4, {v(c+1)}")
        a(f"v_add_u32 {v(c+4)}, {scr}, {v(vL16)}")
        a(f"v_lshrrev_b32 {v(c+5)}, 2, {v(vLane)}\nv_lshlrev_b32 {v(c+5)}, 7, {v(c+5)}\nv_and_b32 {v(c+3)}, 3, {v(vLane)}\nv_lshl_add_u32 {v(c+5)}, {v(c+3)}, 3, {v(c+5)}\nv_add_u32 {v(c+5)}, {scr}, {v(c+5)}")
        a(f"v_lshlrev_b32 {v(c+6)}, 2, {v(vLane)}\nv_mov_b32 {v(c+7)}, 0")
    def pk_decode(self, a, r):
        sU, sS, sCl, sWid = 64, 65, 66, 71
        L4 = a.newlabel("Lk4"); Ld = L4 + "_d"
        a(f"s_add_u32 {s(sU)}, s2, {256*r}")
        a(f"s_cmp_ge_u32 {s(sU)}, 1080\ns_cbranch_scc1 {L4}")
        a(f"s_mul_hi_u32 {s(sCl)}, {s(sU)}, {(1<<32)//20+1}\ns_mul_i32 {s(sA)}, {s(sCl)}, 20\ns_sub_u32 {s(sS)}, {s(sU)}, {s(sA)}")
        a(f"s_mul_hi_u32 {s(sWid)}, {s(sCl)}, {(1<<32)//10+1}\ns_min_u32 {s(sWid)}, {s(sWid)}, 3\ns_mul_i32 {s(sA)}, {s(sWid)}, 10\ns_sub_u32 {s(sCl)}, {s(sCl)}, {s(sA)}")
        a(f"s_branch {Ld}")
        a.label(L4)
        a(f"s_sub_u32 {s(sA)}, {s(sU)}, 1080\ns_mul_hi_u32 {s(sCl)}, {s(sA)}, {(1<<32)//48+1}\ns_mul_i32 {s(sB)}, {s(sCl)}, 48\ns_sub_u32 {s(sS)}, {s(sA)}, {s(sB)}\ns_mov_b32 {s(sWid)}, 4")
        a.label(Ld)
    def pk_A(self, a, r, R):
        sU, sS, sCl, sB0, sB1, sRs, sDst, sWid, sSp = 64, 65, 66, 67, 68, 69, 70, 71, 74
        c = self.PC; sR = sOUT
        self.pk_decode(a, r)
        L4 = a.newlabel("Lr4"); Lu = L4 + "_u"; Ld = L4 + "_d"
        a(f"s_cmp_eq_u32 {s(sWid)}, 4\ns_cbranch_scc1 {L4}")
        a(f"s_mul_hi_u32 {s(sA)}, {s(sS)}, {(1<<32)//5+1}\ns_mul_i32 {s(sB)}, {s(sA)}, 5\ns_sub_u32 {s(sB)}, {s(sS)}, {s(sB)}\ns_mul_i32 {s(sA)}, {s(sA)}, 160")
        a(f"s_mov_b32 {s(sCc)}, 16")
        a(f"s_cmp_eq_u32 {s(sB)}, 4\ns_cbranch_scc1 {Lu}")
        a(f"s_lshr_b32 {s(sD)}, {s(sB)}, 1\ns_mul_i32 {s(sD)}, {s(sD)}, 80\ns_add_u32 {s(sB0)}, {s(sA)}, {s(sD)}")
        a(f"s_and_b32 {s(sD)}, {s(sB)}, 1\ns_mul_i32 {s(sD)}, {s(sD)}, {s(sCc)}\ns_lshl_b32 {s(sD)}, {s(sD)}, 1\ns_add_u32 {s(sB0)}, {s(sB0)}, {s(sD)}")
        a(f"s_add_u32 {s(sB1)}, {s(sB0)}, {s(sCc)}\ns_branch {Ld}")
        a.label(Lu)
        a(f"s_add_u32 {s(sB0)}, {s(sA)}, 64\ns_add_u32 {s(sB1)}, {s(sB0)}, 80\ns_branch {Ld}")
        a.label(L4)
        a(f"s_lshr_b32 {s(sA)}, {s(sS)}, 4\ns_lshl_b32 {s(sB0)}, {s(sA)}, 6\ns_bfe_u32 {s(sA)}, {s(sS)}, 0x30001\ns_mul_i32 {s(sA)}, {s(sA)}, 192\ns_add_u32 {s(sB0)}, {s(sB0)}, {s(sA)}")
        a(f"s_and_b32 {s(sA)}, {s(sS)}, 1\ns_lshl_b32 {s(sA)}, {s(sA)}, 5\ns_add_u32 {s(sB0)}, {s(sB0)}, {s(sA)}\ns_add_u32 {s(sB1)}, {s(sB0)}, 16")
        a.label(Ld)
        a(f"s_mov_b32 {s(sR)}, s8\ns_mov_b32 {s(sR+1)}, s9\ns_mov_b32 {s(sR+2)}, 819200\ns_mov_b32 {s(sR+3)}, 0x20000")
        for wid, lo in ((1, 12), (2, 14), (3, 16), (4, 18)):
            a(f"s_cmp_eq_u32 {s(sWid)}, {wid}\ns_cselect_b32 {s(sR)}, s{lo}, {s(sR)}\ns_cselect_b32 {s(sR+1)}, s{lo+1}, {s(sR+1)}")
        a(f"s_cmp_ge_u32 {s(sWid)}, 3\ns_cselect_b32 {s(sR+2)}, 1966080, {s(sR+2)}")
        a(f"s_cmp_eq_u32 {s(sWid)}, 3\ns_movk_i32 {s(sRs)}, 1280\ns_cselect_b32 {s(sRs)}, 3072, {s(sRs)}")
        a(f"s_lshl_b32 {s(sD)}, {s(sRs)}, 3")
        a(f"v_mul_lo_u32 {v(c+8)}, {s(sRs)}, {v(c)}\nv_add_u32 {v(c+8)}, {v(c+8)}, {v(c+1)}\nv_add_u32 {v(c+9)}, {s(sD)}, {v(c+8)}")
        a(f"s_lshl_b32 {s(sCc)}, {s(sCl)}, 7\ns_mul_i32 {s(sA)}, {s(sB0)}, {s(sRs)}\ns_add_u32 {s(sA)}, {s(sA)}, {s(sCc)}\ns_mul_i32 {s(sB)}, {s(sB1)}, {s(sRs)}\ns_add_u32 {s(sB)}, {s(sB)}, {s(sCc)}")
        if r == 6:
            a(f"s_cmp_ge_u32 {s(sU)}, 1560\ns_cselect_b32 {s(sA)}, {OOB}, {s(sA)}\ns_cselect_b32 {s(sB)}, {OOB}, {s(sB)}")
        a(f"buffer_load_dwordx4 {v(R,4)}, {v(c+8)}, {s(sR,4)}, {s(sA)} offen\nbuffer_load_dwordx4 {v(R+4,4)}, {v(c+9)}, {s(sR,4)}, {s(sA)} offen")
        a(f"buffer_load_dwordx4 {v(R+8,4)}, {v(c+8)}, {s(sR,4)}, {s(sB)} offen")
        a(f"buffer_load_dwordx4 {v(R+12,4)}, {v(c+9)}, {s(sR,4)}, {s(sB)} offen", tag=("raw", r))
    def pk_B(self, a, r, R, FR, CS):
        sU, sS, sCl, sDst, sWid = 64, 65, 66, 70, 71
        c = self.PC
        self.pk_decode(a, r)
        a.wait(vm=("raw", r))
        for k in range(4): a(f"ds_write_b128 {v(c+4)}, {v(R+4*k,4)} offset:{1024*k}")
        for tt in range(4):
            a(f"ds_read_b64_tr_b16 {v(FR+4*tt,2)}, {v(c+5)} offset:{32*tt}\nds_read_b64_tr_b16 {v(FR+4*tt+2,2)}, {v(c+5)} offset:{2048+32*tt}")
        L3 = a.newlabel("Ld3"); Lc = L3 + "_c"
        sv = list(a.vm)
        a(f"s_cmp_eq_u32 {s(sWid)}, 3\ns_cbranch_scc1 {L3}")
        a(f"s_mul_i32 {s(sDst)}, {s(sWid)}, 819200\ns_cmp_eq_u32 {s(sWid)}, 4\ns_cselect_b32 {s(sDst)}, {WP_OFF[4]}, {s(sDst)}\ns_mov_b32 {s(sD)}, 102400\ns_cselect_b32 {s(sD)}, 245760, {s(sD)}")
        a(f"s_mul_i32 {s(sA)}, {s(sS)}, 5120\ns_add_u32 {s(sDst)}, {s(sDst)}, {s(sA)}\ns_add_u32 {s(sDst)}, {s(sDst)}, {WS_WP}")
        if r == 6: a(f"s_cmp_ge_u32 {s(sU)}, 1560\ns_cselect_b32 {s(sDst)}, {OOB}, {s(sDst)}")
        a("s_waitcnt lgkmcnt(0)")
        for tt in range(4):
            a(f"s_lshl_b32 {s(sA)}, {s(sCl)}, 2\ns_add_u32 {s(sA)}, {s(sA)}, {tt}\ns_mul_hi_u32 {s(sB)}, {s(sA)}, {(1<<32)//5+1}\ns_mul_i32 {s(sCc)}, {s(sB)}, 5\ns_sub_u32 {s(sA)}, {s(sA)}, {s(sCc)}")
            a(f"s_lshl_b32 {s(sA)}, {s(sA)}, 10\ns_mul_i32 {s(sB)}, {s(sB)}, {s(sD)}\ns_add_u32 {s(sA)}, {s(sA)}, {s(sB)}\ns_add_u32 {s(sA)}, {s(sA)}, {s(sDst)}")
            a(f"buffer_store_dwordx4 {v(FR+4*tt,4)}, {v(vL16)}, {s(sWS,4)}, {s(sA)} offen sc1")
        a(f"s_mul_i32 {s(sA)}, {s(sS)}, 2560\ns_add_u32 {s(sA)}, {s(sA)}, {WS_CS1}\ns_cmp_eq_u32 {s(sWid)}, 1\ns_cselect_b32 {s(sA)}, {s(sA)}, {OOB}\ns_branch {Lc}")
        a.label(L3); a.vm = sv
        a(f"s_mul_i32 {s(sA)}, {s(sCl)}, 81920\ns_lshl_b32 {s(sB)}, {s(sS)}, 12\ns_add_u32 {s(sA)}, {s(sA)}, {s(sB)}\ns_add_u32 {s(sA)}, {s(sA)}, {WS_WP + WP_OFF[3]}")
        a("s_waitcnt lgkmcnt(0)")
        for tt in range(4):
            a(f"buffer_store_dwordx4 {v(FR+4*tt,4)}, {v(vL16)}, {s(sWS,4)}, {s(sA)} offen offset:{1024*tt} sc1")
        a(f"s_mul_i32 {s(sA)}, {s(sS)}, 6144\ns_add_u32 {s(sA)}, {s(sA)}, {WS_CS3}")
        a.label(Lc)
        for tt in range(4): a(f"v_mov_b32 {v(CS+tt)}, 0")
        for k in range(4):
            for tt in range(4): a(f"v_dot2c_f32_bf16 {v(CS+tt)}, {s(sOnes)}, {v(FR+4*tt+k)}")
        self.rscatter4(a, [CS, CS + 1, CS + 2, CS + 3], "v_add_f32")
        a(f"s_lshl_b32 {s(sB)}, {s(sCl)}, 8\ns_add_u32 {s(sA)}, {s(sA)}, {s(sB)}")
        a(f"buffer_store_dword {v(CS)}, {v(c+6)}, {s(sWS,4)}, {s(sA)} offen sc1", tag=("st", r))
    def pk_C(self, a, r):
        c = self.PC
        a(f"s_add_u32 {s(sA)}, s2, {256*r}\ns_lshl_b32 {s(sA)}, {s(sA)}, 3\ns_add_u32 {s(sA)}, {s(sA)}, {WS_PF}")
        a.wait(vm=("st", r))
        a(f"s_mov_b64 exec, 1\nbuffer_store_dwordx2 {v(c+10,2)}, {v(c+7)}, {s(sWS,4)}, {s(sA)} offen sc1\ns_mov_b64 exec, -1")
    def touch_addr(self, a, d):
        a(f"s_lshl_b32 s63, {s(sC)}, 2\ns_mul_i32 s63, s63, {TS}\ns_add_u32 s63, s63, {WS_TILE}")
        a(f"v_lshrrev_b32 {v(d+2)}, 4, {v(vLane)}\ns_mov_b32 {s(sB)}, {TS}\nv_mul_lo_u32 {v(d+2)}, {s(sB)}, {v(d+2)}\nv_and_b32 {v(d)}, 15, {v(vLane)}\nv_lshl_add_u32 {v(d)}, {v(d)}, 7, {v(d+2)}")
        a(f"v_and_b32 {v(d+1)}, 3, {v(vLane)}\nv_lshl_add_u32 {v(d+1)}, {v(d+1)}, 7, {v(d+2)}")

    def w7_pre(self):
        h = self.h; c = self.PC
        h.label("L_w7_pre"); h.reset_hist(); h.reset_cnt()
        h("s_setprio 3")
        self.pk_consts(h, L_PSCR)
        h("s_waitcnt lgkmcnt(0)")
        self.srd(h, sWS, 24, WS_SIZE)
        h(f"buffer_load_dword {v(c+10)}, {v(c+7)}, {s(sWS,4)}, 0 offen sc1", tag="ep")
        for r in range(3): self.pk_A(h, r, 144 + 16 * r)
        h("s_branch L_setup")
        h.label("L_w7_pack"); h.reset_hist()
        self.touch_addr(h, 44)
        h(f"s_mul_i32 {s(sB)}, {s(sJ)}, 2560\ns_add_u32 {s(sA)}, s63, {s(sB)}")
        for buf in (BUFA, BUFB):
            h(f"s_add_u32 {s(sB)}, {s(sA)}, {buf}")
            h(f"buffer_load_dword v47, v44, {s(sWS,4)}, {s(sB)} offen sc1\nbuffer_load_dword v48, v45, {s(sWS,4)}, {s(sB)} offen offset:2048 sc1")
        h.wait(vm="ep")
        h(f"v_add_u32 {v(c+10)}, 1, {v(c+10)}\nv_mov_b32 {v(c+11)}, 1\nds_write_b64 {v(vZ)}, {v(c+10,2)} offset:{L_TAG-L_CNT}")
        h(f"v_readfirstlane_b32 {s(sTag)}, {v(c+10)}")
        h(f"s_mul_i32 {s(sTag+1)}, {s(sTag)}, 0x9E3779B1\ns_xor_b32 {s(sTag+1)}, {s(sTag+1)}, 0x7F4A7C15\ns_waitcnt lgkmcnt(0)\nv_mov_b32 {v(c+11)}, {s(sTag+1)}")
        h(f"s_getreg_b32 {s(sA)}, hwreg(HW_REG_XCC_ID)\ns_and_b32 {s(sA)}, {s(sA)}, 15\nv_mov_b32 {v(c+12)}, {s(sA)}\nv_mov_b32 {v(c+13)}, 0")
        h(f"s_lshl_b32 {s(sA)}, {s(sC)}, 3\ns_add_u32 {s(sA)}, {s(sA)}, {s(sJ)}\ns_lshl_b32 {s(sA)}, {s(sA)}, 4\ns_add_u32 {s(sA)}, {s(sA)}, {WS_XT}")
        h(f"s_mov_b64 exec, 1\nbuffer_store_dwordx4 {v(c+10,4)}, {v(c+7)}, {s(sWS,4)}, {s(sA)} offen sc1\ns_mov_b64 exec, -1")
    def w7_packB(self, h):
        for r in range(3): self.pk_B(h, r, 144 + 16 * r, 208, 224)
    def w7_stageC(self, h):
        for r in range(3): self.pk_C(h, r)

    def w7_rest(self):
        h = self.h
        h.label("L_w7_rest"); h.reset_hist(); h.reset_cnt()
        self.a, sa = h, self.a
        self.publish(1000)
        h("s_setprio 0")
        self.touch_addr(h, 44)
        h(f"s_lshl_b32 {s(sB)}, {s(sJ)}, 11\ns_add_u32 {s(sA)}, s63, {s(sB)}\ns_add_u32 {s(sA)}, {s(sA)}, {BUFG}")
        for ch in range(3):
            h(f"buffer_load_dword v47, v44, {s(sWS,4)}, {s(sA)} offen sc1\ns_add_u32 {s(sA)}, {s(sA)}, 16384")
        for (wsoff, rowb, jb, nl, ldst, val, pfb, pfn) in ((WS_CS1, 2560, 320, 20, L_CS1, 1, 200, 20), (WS_CS3, 6144, 768, 48, L_CS3, 2, 600, 30)):
            self.pf_wait(h, pfb, pfn, TT)
            h(f"s_mul_i32 {s(sA)}, {s(sJ)}, {jb}\ns_add_u32 {s(sA)}, {s(sA)}, {wsoff}")
            h(f"s_mov_b64 exec, {(1 << nl) - 1:#x}" if nl <= 32 else f"s_mov_b32 exec_lo, -1\ns_mov_b32 exec_hi, {(1 << (nl-32)) - 1:#x}")
            for k in range(20):
                h(f"buffer_load_dwordx4 {v(AF+4*k,4)}, {v(vL16)}, {s(sWS,4)}, {s(sA)} offen sc1")
                h(f"s_add_u32 {s(sA)}, {s(sA)}, {rowb}")
            h("s_waitcnt vmcnt(0)")
            for k in range(1, 20):
                for e in range(4): h(f"v_add_f32 {v(AF+e)}, {v(AF+e)}, {v(AF+4*k+e)}")
            h(f"v_add_u32 {v(TT)}, {ldst}, {v(vL16)}\nds_write_b128 {v(TT)}, {v(AF,4)}")
            h(f"s_mov_b64 exec, -1\nv_mov_b32 {v(TT+1)}, {val}\nds_write_b32 {v(vZ)}, {v(TT+1)} offset:{L_CSRDY-L_CNT}")
        self.finish(h)
        self.a = sa

    def w6_rest(self):
        h = self.h; c = self.PC
        h.label("L_w6_rest"); h.reset_hist(); h.reset_cnt()
        self.a, sa = h, self.a
        self.publish(1000)
        h("s_waitcnt lgkmcnt(0)")
        self.pk_consts(h, L_PSCR + 4096)
        self.get_tag(h, c + 10)
        h(f"v_mov_b32 {v(c+11)}, {s(sTag+1)}")
        h(f"s_getreg_b32 {s(sD)}, hwreg(HW_REG_XCC_ID)\ns_and_b32 {s(sD)}, {s(sD)}, 15")
        h(f"s_lshl_b32 {s(sA)}, {s(sC)}, 7\ns_add_u32 {s(sA)}, {s(sA)}, {WS_XT}\nv_and_b32 v44, 7, {v(vLane)}\nv_lshlrev_b32 v44, 4, v44")
        h.label("L_xt"); h.reset_hist()
        h(f"buffer_load_dwordx4 v[48:51], v44, {s(sWS,4)}, {s(sA)} offen sc1\ns_waitcnt vmcnt(0)\nv_cmp_ne_u64 vcc, {s(sTag,2)}, v[48:49]\ns_cbranch_vccz L_xt_ok\ns_sleep 2")
        self.spin_tail(h, "L_xt", "L_xt_ok")
        h.label("L_xt_ok"); h.reset_hist()
        h(f"v_cmp_ne_u32 vcc, {s(sD)}, v50\ns_cmp_eq_u64 vcc, 0\ns_cselect_b32 {s(sA)}, {2 if self.force_sc1 else 1}, 2\nv_mov_b32 v44, {s(sA)}")
        h(f"ds_write_b32 {v(vZ)}, v44 offset:{L_MODE-L_CNT}")
        for r in range(3, 7): self.pk_A(h, r, 64 + 16 * (r - 3))
        for r in range(3, 7): self.pk_B(h, r, 64 + 16 * (r - 3), 128 + 16 * (r - 3), 192 + 4 * (r - 3))
        for r in range(3, 7): self.pk_C(h, r)
        h("s_cmp_lg_u32 s2, 0\ns_cbranch_scc1 L_w6_end")
        h(f"s_mov_b32 {s(sA)}, {WS_XT}")
        h.label("L_ep"); h.reset_hist()
        for k in range(4): h(f"buffer_load_dwordx2 v[{48+2*k}:{49+2*k}], {v(vL16)}, {s(sWS,4)}, {s(sA)} offen offset:{1024*k} sc1")
        h(f"s_waitcnt vmcnt(0)\nv_cmp_ne_u64 vcc, {s(sTag,2)}, v[48:49]")
        for k in range(1, 4):
            h(f"v_cmp_ne_u64 {s(sMk,2)}, {s(sTag,2)}, v[{48+2*k}:{49+2*k}]\ns_or_b64 vcc, vcc, {s(sMk,2)}")
        h("s_cbranch_scc0 L_ep_ok\ns_sleep 4")
        self.spin_tail(h, "L_ep", "L_ep_ok")
        h.label("L_ep_ok"); h.reset_hist()
        h(f"s_mov_b64 exec, 1\nbuffer_store_dword {v(c+10)}, {v(c+7)}, {s(sWS,4)}, 0 offen sc1\ns_mov_b64 exec, -1")
        h.label("L_w6_end"); h.reset_hist()
        self.finish(h)
        self.a = sa

    def build(self):
        self.prologue(); n0 = self.nst
        self.w7_pre()
        self.compute()
        self.w6_rest(); self.w7_rest()
        self.loader()
        hdr = open("sequential_preLN__sliding_local_dilated__mixer_s_mlp__prompt.s.ref").read().split("; Override")[0]
        out = hdr + f"; @launch grid=(256,1,1) block=(512,1,1) lds={LDS_SIZE}\n"
        out += f'.amdgcn_target "amdgcn-amd-amdhsa--gfx950"\n.text\n.globl {KNAME}\n.p2align 8\n.type {KNAME},@function\n{KNAME}:\n'
        out += self.a.text() + self.h.text() + self.t.text() + "L_end:\n    s_endpgm\nL_code_end:\n"
        out += f'''.section .rodata,"a"
.p2align 6
.amdhsa_kernel {KNAME}
  .amdhsa_next_free_vgpr 256
  .amdhsa_next_free_sgpr 102
  .amdhsa_accum_offset 256
  .amdhsa_group_segment_fixed_size 0
  .amdhsa_kernarg_size 88
  .amdhsa_user_sgpr_count 2
  .amdhsa_user_sgpr_kernarg_segment_ptr 1
  .amdhsa_system_sgpr_workgroup_id_x 1
  .amdhsa_float_denorm_mode_32 3
.end_amdhsa_kernel
'''
        return out

if __name__ == "__main__":
    import argparse
    p = argparse.ArgumentParser()
    p.add_argument("-o", default="sequential_preLN__sliding_local_dilated__mixer_s_mlp__prompt.s")
    p.add_argument("--stamps", action="store_true"); p.add_argument("--sc1", action="store_true"); p.add_argument("--opt", action="append", default=[])
    args = p.parse_args()
    opt = {}
    for kv in args.opt:
        k_, _, v_ = kv.partition("="); opt[k_] = int(v_) if v_ else 1
    g = Gen(stamps=args.stamps, force_sc1=args.sc1, opt=opt)
    open(args.o, "w").write(g.build())
    print("units:", [(u, UADDR.get(u), UNEED.get(u)) for u in range(len(UNITS))])
    print("nops inserted:", g.a.nops + g.t.nops)
```

```python
import sys, math, struct
from asmlib import Asm

KNAME = "sequential_preLN__sliding_local_dilated__mixer_s_mlp__prompt_kernel"

def f2u(x): return struct.unpack("<I", struct.pack("<f", x))[0]

WS_EPOCH = 0
WS_XT = 0x1000
WS_PF = 0x8B2000
WS_CS1 = 0x8000
WS_CS3 = 0x18000
WS_WP = 0x40000
WP_OFF = [819200 * k for k in range(7)] + [819200 * 6 + 1966080]
PF_BASE = [200 * k for k in range(7)] + [1680]
WS_TILE = 0x8C8000
TS = 115712
BUFA, BUFB, BUFG, SHAD, FLG = 0, 20480, 40960, 90112, 110592
GBUF = [BUFG, BUFA, BUFB]
F1, F3, FH, G0, S2, S4 = FLG, FLG + 128, FLG + 256, FLG + 384, FLG + 1024, FLG + 3072
WS_KV = WS_TILE + 128 * TS
WS_STAMP = WS_KV + 256 * 10240
WS_SIZE = WS_STAMP + 2048 * 128
OOB = 0x40000000

RING = 153600
P1TMP = 128000
STAGE = 143360
L_CNT = 153600
L_LANDED = L_CNT + 32
L_MODE = L_CNT + 40
L_CSRDY = L_CNT + 44
L_XI = L_CNT + 56
L_C0 = L_CNT + 60
L_PKR = L_CNT + 96
L_XR = L_CNT + 64
L_TAG = L_CNT + 48
L_CS1 = L_CNT + 256
L_CS3 = L_CS1 + 320
L_PSCR = L_CNT + 2048
L_CW = L_PSCR + 6144
L_LW = L_CS3 + 768 + 64
LDS_SIZE = 163840

XIMG = 71680
def plan_units():
    units = [(0, "pseudo", None)]
    for ps in range(3):
        for i in range(5): units.append((20480, "raw", (ps, 0, i)))
    units.append((0, "pseudo", None))
    for wid in range(3, 6):
        for i in range(4): units.append((25600, "pk", (wid, 0, i)))
    for wid in (6, 7):
        for ch in range(3):
            for i in range(4): units.append((20480, "pk", (wid, ch, i)))
    placed = [(XIMG, 81920, 0), (P1TMP, 25600, 16)]
    addr = {}; need = {}
    for u, (size, kind, arg) in enumerate(units):
        if kind == "pseudo": continue
        if kind == "raw": cands = [20480 * k for k in range(6)]
        elif size == 25600: cands = [25600 * k for k in range(6)]
        else: cands = [20480 * k for k in range(7)]
        best = None
        for a in cands:
            nd = 0
            for (pa, psz, pi) in placed:
                if pa < a + size and a < pa + psz: nd = max(nd, pi + 1)
            if best is None or nd < best[0]: best = (nd, a)
        need[u], addr[u] = best
        placed.append((best[1], size, u))
    return units, addr, need
UNITS, UADDR, UNEED = plan_units()
U_RAW, U_X, U_WO, U_W1, U_W2, U_W3, U_W4 = 1, 16, 17, 21, 25, 29, 41
PUBS = set()
HK, HV = 6, 7

vLane, vL16, vL8, vZ, vWA, vLa, vLC, vCV, vPA = 1, 2, 3, 4, 5, 6, 7, 8, 9
vM = 12
KOWN, VFR = 28, 44
AF, WW, ACC, HP, X1P, TT = 64, 144, 176, 208, 218, 228
SLOTS12 = [WW + 4 * i for i in range(8)] + [36, 40, 56, 60]
sWS, sIN, sOUT = 28, 32, 36
sWave, sX, sQ, sJ, sC, sT, sBud, sEp = 40, 41, 42, 43, 44, 45, 46, 47
sTag = 48
sMode = 50
sRot = 51
sTile = 55
sTJ = 56
sA, sB, sCc, sD, sE = 57, 58, 59, 60, 61
sPI = 62
sMa, sMb, sPar = 64, 66, 68
sSh = 70
sOnes = 72
sRho = 73
sSt = 76
sCk = 22
sMk = 26

def v(a, n=1): return f"v{a}" if n == 1 else f"v[{a}:{a+n-1}]"
def s(a, n=1): return f"s{a}" if n == 1 else f"s[{a}:{a+n-1}]"

class Gen:
    def __init__(self, stamps=False, force_sc1=False, budget=1 << 17, opt=None):
        self.opt = dict(sw0=20, pstep=2, pph=0, t6=5); self.opt.update(opt or {})
        step = self.opt.get("pstep", 2)
        mx = max(UNEED.values()) + step
        PUBS.update([1, U_X + 1] + [x for x in range(2, mx + 1) if x % step == self.opt.get("pph", 1) % step])
        self.clk = 's_memtime' if self.opt.get('cyc') else 's_memrealtime'
        self.a = Asm(); self.t = Asm(); self.h = Asm(); self.h.nlabel = 200000
        self.stamps = stamps; self.force_sc1 = force_sc1; self.budget = budget
        self.nst = 0; self.inhelper = False
        self.t.nlabel = 100000

    def stamp(self, grp=0):
        sp = self.opt.get("sp", 0)
        if grp != sp and not (grp == 0 and self.nst == 0) and not (grp == 0 and self.inhelper): return
        if self.stamps and self.nst < 11:
            self.a(f"{self.clk} {s(sSt + 2 * self.nst, 2)}"); self.nst += 1

    def srd(self, a, d, lo, size):
        a(f"s_mov_b32 {s(d)}, {s(lo)}\ns_mov_b32 {s(d+1)}, {s(lo+1)}\ns_mov_b32 {s(d+2)}, {size}\ns_mov_b32 {s(d+3)}, 0x20000")

    def spin_tail(self, a, Lretry, Lok):
        a(f"s_cmp_eq_u32 {s(sBud)}, 0\ns_cbranch_scc1 {Lok}\ns_sub_u32 {s(sBud)}, {s(sBud)}, 1\ns_branch {Lretry}")

    def lds_spin(self, a, addr_v, off, need, tmp, sleep=0):
        L = a.newlabel("Lsp"); Lok = L + "_ok"
        a.label(L)
        a(f"ds_read_b32 {v(tmp)}, {v(addr_v)} offset:{off}\ns_waitcnt lgkmcnt(0)\nv_cmp_gt_u32 vcc, {need}, {v(tmp)}\ns_cbranch_vccz {Lok}")
        if sleep: a(f"s_sleep {sleep}")
        self.spin_tail(a, L, Lok)
        a.label(Lok)

    def allreduce2(self, a, x, y, t, op="v_add_f32"):
        a(f"v_permlane32_swap_b32 {v(x)}, {v(y)}")
        a(f"{op} {v(x)}, {v(x)}, {v(y)}")
        a(f"v_mov_b32 {v(y)}, {v(x)}")
        a(f"v_permlane16_swap_b32 {v(x)}, {v(y)}")
        a(f"{op} {v(x)}, {v(x)}, {v(y)}")
        a(f"v_mov_b32 {v(y)}, {v(x)}")
        a(f"v_permlane32_swap_b32 {v(x)}, {v(y)}")

    def rscatter4(self, a, m, op):
        a(f"v_permlane32_swap_b32 {v(m[0])}, {v(m[2])}")
        a(f"v_permlane32_swap_b32 {v(m[1])}, {v(m[3])}")
        a(f"{op} {v(m[0])}, {v(m[0])}, {v(m[2])}")
        a(f"{op} {v(m[1])}, {v(m[1])}, {v(m[3])}")
        a(f"v_permlane16_swap_b32 {v(m[0])}, {v(m[1])}")
        a(f"{op} {v(m[0])}, {v(m[0])}, {v(m[1])}")

    def allgather4(self, a, m):
        a(f"v_mov_b32 {v(m[1])}, {v(m[0])}")
        a(f"v_permlane16_swap_b32 {v(m[0])}, {v(m[1])}")
        a(f"v_mov_b32 {v(m[2])}, {v(m[0])}")
        a(f"v_mov_b32 {v(m[3])}, {v(m[1])}")
        a(f"v_permlane32_swap_b32 {v(m[0])}, {v(m[2])}")
        a(f"v_permlane32_swap_b32 {v(m[1])}, {v(m[3])}")

    def moded(self, lines, tag=None):
        a, t = self.a, self.t
        L = a.newlabel("Lm"); Lb = L + "_b"
        a(f"s_cmp_lg_u32 {s(sMode)}, 1\ns_cbranch_scc1 {L}")
        for ln in lines: a(ln, tag)
        a.label(Lb)
        t.label(L); t.reset_hist()
        for ln in lines: t(ln + (" sc1" if ln.startswith("buffer_store") else ""))
        t(f"s_branch {Lb}")

    def handoff_store(self, r, buf):
        a = self.a
        a(f"s_add_u32 {s(sA)}, {s(sTJ)}, {buf}")
        self.moded([f"buffer_store_dwordx4 {v(r,4)}, {v(vL16)}, {s(sWS,4)}, {s(sA)} offen",
                    f"buffer_store_dwordx4 {v(r+4,4)}, {v(vL16)}, {s(sWS,4)}, {s(sA)} offen offset:1024",
                    f"buffer_store_dwordx2 {v(r+8,2)}, {v(vL8)}, {s(sWS,4)}, {s(sA)} offen offset:2048"])

    def flag_store(self, off):
        a = self.a
        a(f"s_lshl_b32 {s(sA)}, {s(sJ)}, 3\ns_add_u32 {s(sA)}, {s(sA)}, {s(sTile)}\ns_add_u32 {s(sA)}, {s(sA)}, {off}")
        a("s_mov_b64 exec, 1")
        self.moded([f"buffer_store_dwordx2 {v(self.vTag,2)}, {v(self.vZero)}, {s(sWS,4)}, {s(sA)} offen"])
        a("s_mov_b64 exec, -1")

    def poll8(self, a, voff, soff, tmp, imm=0):
        L = a.newlabel("Lp"); Lok = L + "_ok"
        a.label(L)
        a(f"buffer_load_dwordx2 {v(tmp,2)}, {v(voff)}, {s(sWS,4)}, {soff} offen offset:{imm} sc1")
        a(f"s_waitcnt vmcnt(0)\nv_cmp_ne_u64 vcc, {s(sTag,2)}, {v(tmp,2)}\ns_cbranch_vccz {Lok}")
        self.spin_tail(a, L, Lok)
        a.label(Lok)

    def stream_init(self, frags, slots, G=4):
        self.fr = frags; self.rp = 0; self.cur_unit = None; self.chk = {}
        self.slots = slots; self.G = G; self.side = []; self.rate = 1

    def stream_read(self):
        a = self.a
        if self.rp >= len(self.fr): return
        f = self.rp; u, off, kind = self.fr[f]
        prev = self.cur_unit
        if u != prev:
            u0 = self.opt.get("u0", 2)
            if u0 <= u < u0 + 5: self.stamp(7)
            if self.chk.get(u) == 2:
                L = a.newlabel("Lw"); Lok = L + "_ok"
                a(f"s_cmp_lg_u64 {s(sCk,2)}, 0\ns_cbranch_scc1 {L}")
                a.label(Lok)
                t = self.t
                t.label(L); t.reset_hist()
                t(f"ds_read_b32 {v(vLC)}, {v(vLa)}\ns_waitcnt lgkmcnt(0)\nv_cmp_gt_u32 {s(sCk,2)}, {u+1}, {v(vLC)}\ns_cmp_lg_u64 {s(sCk,2)}, 0\ns_cbranch_scc0 {Lok}")
                self.spin_tail(t, L, Lok)
            else:
                self.lds_spin(a, vLa, 0, u + 1, vLC)
            if u0 <= u < u0 + 5: self.stamp(7)
            self.cur_unit = u
        r = self.slots[f % len(self.slots)]
        A = UADDR[u] + off
        a(f"ds_read_b128 {v(r,4)}, {v((vL16, vWA, vPA)[A >> 16])} offset:{A & 0xffff}", tag=("w", f))
        self.rp += 1
        last = self.rp == len(self.fr)
        if u != prev and prev is not None and (prev + 1) in PUBS: a(f"ds_write_b32 {v(self.vCnt)}, {v(vCV)}")
        nxt = lambda d: self.fr[f + d][0] if f + d < len(self.fr) else None
        LA = self.opt.get("la", 9)
        if nxt(LA) not in (None, u) and nxt(LA) not in self.chk:
            a(f"ds_read_b32 {v(vLC)}, {v(vLa)}", tag=("chk", nxt(LA))); self.chk[nxt(LA)] = 1
        if nxt(2) not in (None, u) and self.chk.get(nxt(2)) == 1:
            a.wait(ds=("chk", nxt(2)))
            a(f"v_cmp_gt_u32 {s(sCk,2)}, {nxt(2)+1}, {v(vLC)}"); self.chk[nxt(2)] = 2
        if nxt(1) != u and not last and (u + 1) in PUBS: a(f"v_mov_b32 {v(vCV)}, {u+1}")
        if last and (u + 1) in PUBS: self.publish(u + 1)

    def publish(self, val):
        self.a(f"v_mov_b32 {v(vCV)}, {val}\nds_write_b32 {v(self.vCnt)}, {v(vCV)}")

    def prime(self):
        for _ in range(len(self.slots)): self.stream_read()

    def mfma_w(self, f, acc, af, first=False, swap=False):
        a = self.a
        if f % self.G == 0: a.wait(ds=("w", min(f + self.G - 1, len(self.fr) - 1)))
        r = self.slots[f % len(self.slots)]
        c = "0" if first else v(acc, 4)
        if swap: a(f"v_mfma_f32_16x16x32_bf16 {v(acc,4)}, {v(af,4)}, {v(r,4)}, {c}")
        else: a(f"v_mfma_f32_16x16x32_bf16 {v(acc,4)}, {v(r,4)}, {v(af,4)}, {c}")
        self.stream_read()
        for _ in range(self.rate):
            if self.side:
                op = self.side.pop(0)
                if callable(op): op()
                elif isinstance(op, tuple): a(op[0], tag=op[1])
                else: a(op)

    def async_check(self, addr, off, need, tmp, name):
        a = self.a
        def chk():
            L = a.newlabel("La"); Lok = L + "_ok"
            a.wait(ds=name)
            a(f"v_cmp_gt_u32 vcc, {need}, {v(tmp)}\ns_cbranch_vccnz {L}")
            a.label(Lok)
            t = self.t
            t.label(L); t.reset_hist()
            t(f"ds_read_b32 {v(tmp)}, {v(addr)} offset:{off}\ns_waitcnt lgkmcnt(0)\nv_cmp_gt_u32 vcc, {need}, {v(tmp)}\ns_cbranch_vccz {Lok}")
            self.spin_tail(t, L, Lok)
        return (f"ds_read_b32 {v(tmp)}, {v(addr)} offset:{off}", name), chk

    def prologue(self):
        a = self.a
        a("s_cmp_ge_u32 s2, 256\ns_cbranch_scc1 L_end")
        a("s_load_dwordx16 s[4:19], s[0:1], 0\ns_load_dwordx4 s[20:23], s[0:1], 64\ns_load_dwordx2 s[24:25], s[0:1], 80")
        self.stamp()
        a("s_getpc_b64 s[62:63]")
        a.label("L_pcref")
        a(f"s_lshr_b32 {s(sA)}, s2, 3\ns_lshl_b32 {s(sA)}, {s(sA)}, 12\nv_lshlrev_b32 v1, 7, v0\nv_add_u32 v1, {s(sA)}, v1")
        a(f"v_min_u32 v1, L_code_end-L_pcref-4, v1\nv_cmp_gt_u32 vcc, 32, v0\ns_and_saveexec_b64 {s(sMk,2)}, vcc\ns_cbranch_execz L_nopf")
        a("global_load_dword v255, v1, s[62:63]")
        a.label("L_nopf")
        a(f"s_mov_b64 exec, -1"); a.reset_cnt()
        a(f"v_and_b32 {v(vLane)}, 63, v0\nv_lshrrev_b32 v0, 6, v0")
        a(f"v_readfirstlane_b32 {s(sWave)}, v0")
        a(f"s_and_b32 {s(sX)}, s2, 7\ns_lshr_b32 {s(sA)}, s2, 3\ns_lshr_b32 {s(sQ)}, {s(sA)}, 3\ns_and_b32 {s(sJ)}, {s(sA)}, 7")
        a(f"s_lshl_b32 {s(sC)}, {s(sX)}, 2\ns_add_u32 {s(sC)}, {s(sC)}, {s(sQ)}")
        a(f"v_lshlrev_b32 {v(vL16)}, 4, {v(vLane)}\nv_lshlrev_b32 {v(vL8)}, 3, {v(vLane)}\nv_mov_b32 {v(vZ)}, {L_CNT}")
        a(f"s_mov_b32 {s(sBud)}, {self.budget}")
        for i in range(4):
            a(f"s_add_u32 {s(sRot+i)}, {s(sQ)}, {i}\ns_and_b32 {s(sRot+i)}, {s(sRot+i)}, 3")
        a(f"s_lshl_b32 {s(sRho)}, {s(sQ)}, 1")
        a(f"s_mov_b32 {s(sOnes)}, 0x3f803f80")
        a(f"s_cmp_lg_u32 {s(sWave)}, 4\ns_cbranch_scc1 L_noinit")
        a(f"v_lshl_add_u32 v12, {v(vLane)}, 2, {v(vZ)}\nv_mov_b32 v14, 0\nv_mov_b32 v15, 0\nv_mov_b32 v16, 0\nv_mov_b32 v17, 0\nv_add_u32 v13, {L_CW}, {v(vL16)}")
        a(f"ds_write_b32 v12, v14\nds_write_b32 v12, v14 offset:{L_LW-L_CNT}\nds_write_b32 v12, v14 offset:{L_LW-L_CNT+256}\nds_write_b128 v13, v[14:17]\nds_write_b128 v13, v[14:17] offset:1024\ns_waitcnt lgkmcnt(0)")
        a.label("L_noinit")
        a("s_barrier")
        self.helper_start()

    def get_tag(self, a, tmp):
        L = a.newlabel("Ltg"); Lok = L + "_ok"
        a.label(L)
        a(f"ds_read_b64 {v(tmp,2)}, {v(vZ)} offset:{L_TAG-L_CNT}\ns_waitcnt lgkmcnt(0)\nv_cmp_gt_u32 vcc, 1, {v(tmp+1)}\ns_cbranch_vccz {Lok}\ns_sleep 1")
        self.spin_tail(a, L, Lok)
        a.label(Lok)
        a(f"v_readfirstlane_b32 {s(sTag)}, {v(tmp)}")
        a(f"s_mul_i32 {s(sTag+1)}, {s(sTag)}, 0x9E3779B1\ns_xor_b32 {s(sTag+1)}, {s(sTag+1)}, 0x7F4A7C15")

    def compute(self):
        a = self.a; h = self.h
        m = vM
        self.vTag = m; self.vZero = m + 2; self.vCnt = m + 3
        vG, vR = m + 4, m + 5
        sImg = sE
        sXo = 75
        MF = "v_mfma_f32_16x16x32_bf16"
        a(f"s_cmp_eq_u32 {s(sWave)}, 6\ns_cbranch_scc1 L_relay")
        a(f"s_add_u32 {s(sPI)}, {s(sWave)}, 1\ns_lshl_b32 {s(sT)}, {s(sC)}, 2\ns_add_u32 {s(sT)}, {s(sT)}, {s(sWave)}")
        a(f"s_mul_i32 {s(sImg)}, {s(sWave)}, 20480\ns_add_u32 {s(sImg)}, {s(sImg)}, {XIMG}")
        t0, t1, x0, x1 = TT, TT + 1, TT + 2, TT + 3
        a(f"s_mul_i32 {s(sXo)}, {s(sT)}, {16*1280}")
        a(f"v_lshrrev_b32 {v(t0)}, 3, {v(vLane)}\nv_and_b32 {v(t1)}, 7, {v(vLane)}\nv_lshrrev_b32 {v(x1)}, 1, {v(t0)}\nv_xor_b32 {v(t1)}, {v(t1)}, {v(x1)}")
        a(f"v_mul_u32_u24 {v(t0)}, 1280, {v(t0)}\nv_add_u32 {v(t0)}, {s(sXo)}, {v(t0)}\nv_lshl_add_u32 {v(x0)}, {v(t1)}, 4, {v(t0)}")
        a(f"v_xor_b32 {v(t1)}, 4, {v(t1)}\nv_lshl_add_u32 {v(x1)}, {v(t1)}, 4, {v(t0)}\nv_add_u32 {v(x1)}, {8*1280-1024}, {v(x1)}")
        a(f"s_lshl_b32 {s(sB)}, {s(sRho)}, 7")
        a("s_waitcnt lgkmcnt(0)")
        self.srd(a, sIN, 4, 2048 * 1280)
        self.stamp(1)
        for ln in range(10):
            a(f"s_add_u32 m0, {s(sImg)}, {2048*ln}")
            a(f"buffer_load_dwordx4 {v(x0)}, {s(sIN,4)}, {s(sB)} offen lds")
            a(f"buffer_load_dwordx4 {v(x1)}, {s(sIN,4)}, {s(sB)} offen offset:1024 lds", tag=("x", ln))
            if ln < 9:
                a(f"s_add_u32 {s(sB)}, {s(sB)}, 128\ns_cmp_ge_u32 {s(sB)}, 1280\ns_cselect_b32 {s(sB)}, 0, {s(sB)}")
        a(f"v_mov_b32 {v(m+13)}, 1\ns_mov_b64 exec, 1\nds_add_u32 {v(vZ)}, {v(m+13)} offset:{L_XI-L_CNT}\ns_mov_b64 exec, -1")
        self.stamp(1)
        self.srd(a, sWS, 24, WS_SIZE)
        a(f"v_lshrrev_b32 {v(vG)}, 4, {v(vLane)}\nv_and_b32 {v(vR)}, 15, {v(vLane)}\nv_mov_b32 {v(self.vZero)}, 0")
        a(f"v_and_b32 {v(vLa)}, 1, {v(vLane)}\nv_mul_u32_u24 {v(vLa)}, 260, {v(vLa)}\nv_add_u32 {v(vLa)}, {L_LW}, {v(vLa)}")
        a(f"s_lshl_b32 {s(sB)}, {s(sWave)}, 8\ns_add_u32 {s(sB)}, {s(sB)}, {L_CW}\nv_lshl_add_u32 {v(self.vCnt)}, {v(vLane)}, 2, {s(sB)}")
        a(f"s_mul_i32 {s(sTile)}, {s(sT)}, {TS}\ns_add_u32 {s(sTile)}, {s(sTile)}, {WS_TILE}")
        a(f"s_mul_i32 {s(sTJ)}, {s(sJ)}, 2560\ns_add_u32 {s(sTJ)}, {s(sTJ)}, {s(sTile)}")
        xoK, xoK8, xoV = m + 10, m + 11, m + 12
        a(f"s_mul_i32 {s(sA)}, {s(sPI)}, 5120\ns_add_u32 {s(sA)}, {s(sA)}, {P1TMP}\nv_add_u32 {v(xoV)}, {s(sA)}, {v(vL8)}")
        a(f"v_add_u32 {v(xoK)}, {s(sA)}, {v(vL16)}\nv_add_u32 {v(xoK8)}, {s(sA)}, {v(vL8)}")
        ra0, ra1, fr_ = m + 6, m + 7, m + 8
        a(f"v_lshrrev_b32 {v(fr_)}, 1, {v(vR)}\nv_xor_b32 {v(ra0)}, {v(fr_)}, {v(vG)}\nv_xor_b32 {v(ra1)}, 4, {v(ra0)}")
        a(f"v_lshlrev_b32 {v(m+9)}, 7, {v(vR)}\nv_add_u32 {v(m+9)}, {s(sImg)}, {v(m+9)}")
        a(f"v_lshl_add_u32 {v(ra0)}, {v(ra0)}, 4, {v(m+9)}\nv_lshl_add_u32 {v(ra1)}, {v(ra1)}, 4, {v(m+9)}")
        p0, p1 = TT + 4, TT + 5
        xq = [TT + 6 + t for t in range(5)]
        a(f"v_lshrrev_b32 {v(p0)}, 1, {v(vG)}\nv_and_b32 {v(p1)}, 1, {v(vG)}\nv_lshl_add_u32 {v(p1)}, {v(p1)}, 3, {v(m+9)}")
        for t in range(5):
            a(f"s_mul_i32 {s(sA)}, {s(sJ)}, 10\ns_add_u32 {s(sA)}, {s(sA)}, {2*t}\ns_lshr_b32 {s(sB)}, {s(sA)}, 3\ns_and_b32 {s(sA)}, {s(sA)}, 7")
            a(f"s_add_u32 {s(sB)}, {s(sB)}, 10\ns_sub_u32 {s(sB)}, {s(sB)}, {s(sRho)}\ns_sub_u32 {s(sCc)}, {s(sB)}, 10\ns_cmp_ge_u32 {s(sB)}, 10\ns_cselect_b32 {s(sB)}, {s(sCc)}, {s(sB)}\ns_lshl_b32 {s(sB)}, {s(sB)}, 11")
            a(f"v_add_u32 {v(xq[t])}, {s(sA)}, {v(p0)}\nv_xor_b32 {v(xq[t])}, {v(xq[t])}, {v(fr_)}\nv_lshl_add_u32 {v(xq[t])}, {v(xq[t])}, 4, {v(p1)}\nv_add_u32 {v(xq[t])}, {s(sB)}, {v(xq[t])}")
        sm = [TT + 12, TT + 13, TT + 14, TT + 15]
        RSD = TT + 24
        inv = f2u(1.0 / 640)
        def xread(A, ln):
            for vv in range(2): A(f"ds_read_b128 {v(AF+8*ln+4*vv,4)}, {v(ra0+vv)} offset:{2048*ln}", tag=("xf", ln))
        def dots(A, ln):
            A.wait(ds=("xf", ln))
            for k in range(8):
                r_ = AF + 8 * ln + k
                A(f"v_dot2c_f32_bf16 {v(sm[2*(k&1)])}, {s(sOnes)}, {v(r_)}\nv_dot2c_f32_bf16 {v(sm[2*(k&1)+1])}, {v(r_)}, {v(r_)}")
        def stat_fin(A):
            A(f"v_add_f32 {v(sm[0])}, {v(sm[0])}, {v(sm[2])}\nv_add_f32 {v(sm[1])}, {v(sm[1])}, {v(sm[3])}")
            self.allreduce2(A, sm[0], sm[1], None)
            A(f"v_mul_f32 {v(sm[0])}, {inv:#x}, {v(sm[0])}\nv_mul_f32 {v(sm[1])}, {inv:#x}, {v(sm[1])}")
            A(f"v_fma_f32 {v(sm[1])}, -{v(sm[0])}, {v(sm[0])}, {v(sm[1])}\nv_max_f32 {v(sm[1])}, 0, {v(sm[1])}\nv_add_f32 {v(sm[1])}, {f2u(1e-5):#x}, {v(sm[1])}")
            A(f"v_rsq_f32 {v(RSD)}, {v(sm[1])}\nv_mul_f32_e64 {v(RSD+1)}, -{v(sm[0])}, {v(RSD)}\ns_mov_b32 {s(sD)}, 0xffff0000")
        tp = [TT + 16 + 2 * k for k in range(4)]
        def norm_ops(st):
            ops = []
            for k in range(4): ops += [f"v_lshlrev_b32 {v(tp[k])}, 16, {v(AF+4*st+k)}", f"v_and_b32 {v(tp[k]+1)}, {s(sD)}, {v(AF+4*st+k)}"]
            for k in range(4): ops += [f"v_fma_f32 {v(tp[k])}, {v(tp[k])}, {v(RSD)}, {v(RSD+1)}", f"v_fma_f32 {v(tp[k]+1)}, {v(tp[k]+1)}, {v(RSD)}, {v(RSD+1)}"]
            for k in range(4): ops.append(f"v_cvt_pk_bf16_f32 {v(AF+4*st+k)}, {v(tp[k])}, {v(tp[k]+1)}")
            return ops
        for r_ in sm: a(f"v_mov_b32 {v(r_)}, 0")
        for ln in range(10):
            a.wait(vm=("x", ln))
            if ln == 9: self.stamp(1)
            xread(a, ln)
            if ln >= 2: dots(a, ln - 2)
        for t in range(5): a(f"ds_read_b64 {v(X1P+2*t,2)}, {v(xq[t])}")
        self.publish(1)
        dots(a, 8); dots(a, 9)
        stat_fin(a)
        self.stamp(); self.stamp(1)
        fr = [(U_RAW + 5 * ps + st // 4, (st % 4) * 5120 + 1024 * t, "pk") for ps in range(3) for st in range(20) for t in range(5)]
        VAC = ACC + 20
        accs = [ACC, VAC, ACC]
        KPREV = KOWN + 10
        def pack5(acc, dst, A=None):
            A = A or a
            for t in range(5):
                A(f"v_cvt_pk_bf16_f32 {v(dst(t))}, {v(acc+4*t)}, {v(acc+4*t+1)}\nv_cvt_pk_bf16_f32 {v(dst(t)+1)}, {v(acc+4*t+2)}, {v(acc+4*t+3)}")
        def k_out(A):
            pack5(ACC, lambda t: KOWN + 2 * t, A)
            A(f"ds_write_b128 {v(xoK)}, {v(KOWN,4)}\nds_write_b128 {v(xoK)}, {v(KOWN+4,4)} offset:1024\nds_write_b64 {v(xoK8)}, {v(KOWN+8,2)} offset:2048")
        def xr_add(A, n):
            A(f"s_lshl_b32 {s(sB)}, {s(sPI)}, 2\ns_add_u32 {s(sB)}, {s(sB)}, {L_XR}\nv_mov_b32 {v(m+13)}, {s(sB)}\nv_mov_b32 {v(m+14)}, {n}")
            A(f"ds_write_b32 {v(m+13)}, {v(m+14)}")
        for st in range(20):
            for op in norm_ops(st): a(op)
        self.stamp(1)
        VF = TT
        VLO = 48
        MK = TT + 20
        BIAS = TT + 24
        sGE = lambda hh: 8 + 2 * (hh - 1)
        sCM = lambda t: 14 + 2 * (t - 1)
        tq = m + 14
        a(f"v_add_u32 {v(vWA)}, 0x10000, {v(vL16)}\nv_add_u32 {v(vPA)}, 0x20000, {v(vL16)}")
        a(f"v_and_b32 {v(tq)}, 1, {v(vR)}\nv_cmp_eq_u32 {s(sPar,2)}, 1, {v(tq)}")
        a(f"v_lshl_add_u32 {v(tq)}, {v(vG)}, 2, {v(tq)}\nv_cmp_le_u32 {s(sMa,2)}, {v(tq)}, {v(vR)}")
        a(f"v_add_u32 {v(tq)}, 2, {v(tq)}\nv_cmp_le_u32 {s(sMb,2)}, {v(tq)}, {v(vR)}")
        a(f"v_mov_b32 {v(tq)}, 0xffff\nv_mov_b32 {v(m+13)}, 0xffff0000\nv_cndmask_b32 {v(tq)}, {v(tq)}, {v(m+13)}, {s(sPar,2)}")
        a(f"v_cndmask_b32 {v(MK)}, 0, {v(tq)}, {s(sMa,2)}\nv_cndmask_b32 {v(MK+1)}, 0, {v(tq)}, {s(sMb,2)}")
        a(f"v_xor_b32 {v(MK+2)}, {v(MK)}, {v(tq)}\nv_xor_b32 {v(MK+3)}, {v(MK+1)}, {v(tq)}")
        a(f"s_cmp_eq_u32 {s(sT)}, 0\ns_cselect_b32 {s(sB)}, {f2u(-1e30):#x}, 0\ns_waitcnt vmcnt(0)")
        for k in range(4): a(f"v_mov_b32 {v(BIAS+k)}, {s(sB)}")
        for hh in range(1, 4):
            a(f"v_cmp_le_u32 {s(sGE(hh),2)}, {hh}, {v(vG)}\nv_cmp_gt_u32 {s(sCM(hh),2)}, {4*hh}, {v(vR)}")
        vXo, vXp, vKp, vVp, vOne, vTwo = m + 15, m + 6, m + 7, m + 9, 10, 11
        a(f"s_lshl_b32 {s(sB)}, {s(sWave)}, 8\ns_add_u32 {s(sB)}, {s(sB)}, {L_CW + 1024 - 256}\ns_cmp_eq_u32 {s(sWave)}, 0\ns_cselect_b32 {s(sB)}, {L_XR}, {s(sB)}\nv_mov_b32 {v(vXp)}, {s(sB)}\nv_add_u32 {v(vXo)}, 1024, {v(self.vCnt)}")
        a(f"v_subrev_u32 {v(vKp)}, 5120, {v(xoK)}\nv_subrev_u32 {v(vVp)}, 5120, {v(xoV)}\nv_mov_b32 {v(vOne)}, 1\nv_mov_b32 {v(vTwo)}, 2")
        self.get_tag(a, self.vTag)
        a(f"v_mov_b32 {v(self.vTag+1)}, {s(sTag+1)}")
        self.stream_init(fr, [WW + 4 * i for i in range(8)] + [48, 52, 56, 60]); self.prime()
        self.stamp(1)
        def pack_ops(acc, dst):
            return [f"v_cvt_pk_bf16_f32 {v(dst(t)+k)}, {v(acc+4*t+2*k)}, {v(acc+4*t+2*k+1)}" for t in range(5) for k in range(2)]
        for ps in range(3):
            for st in range(20):
                if ps == 1 and st == 1:
                    self.side += pack_ops(ACC, lambda t: KOWN + 2 * t)
                    self.side += [f"ds_write_b128 {v(xoK)}, {v(KOWN,4)}", f"ds_write_b128 {v(xoK)}, {v(KOWN+4,4)} offset:1024", f"ds_write_b64 {v(xoK8)}, {v(KOWN+8,2)} offset:2048", f"ds_write_b32 {v(vXo)}, {v(vOne)}"]
                if ps == 2 and st == 1:
                    self.side += pack_ops(VAC, lambda t: VF + 4 * t)
                    self.side += [f"ds_write_b64 {v(xoV)}, {v(VF+4*t,2)} offset:{2560+512*t}" for t in range(5)] + [f"ds_write_b32 {v(vXo)}, {v(vTwo)}"]
                if ps == 2 and st == 8:
                    rd, ck = self.async_check(vZ, L_MODE - L_CNT, 1, m + 14, "mode")
                    self.side += [rd] + [""] * 8 + [ck, f"v_readfirstlane_b32 {s(sMode)}, {v(m+14)}"]
                if ps == 2 and st == 12:
                    rd, ck = self.async_check(vXp, 0, 1, m + 13, "xr1")
                    self.side += [rd] + [""] * 8 + [ck, f"ds_read_b128 {v(KPREV,4)}, {v(vKp)}", f"ds_read_b128 {v(KPREV+4,4)}, {v(vKp)} offset:1024", (f"ds_read_b64 {v(KPREV+8,2)}, {v(vVp)} offset:2048", "kprev")]
                for t in range(5):
                    f = ps * 100 + st * 5 + t
                    self.mfma_w(f, accs[ps] + 4 * t, AF + 4 * st, first=(st == 0), swap=(ps == 1))
            self.stamp(1)
        assert not self.side
        self.stamp()
        QF, SC, SP, PF, QP = AF, AF + 16, AF + 32, AF + 48, AF + 64
        pack5(ACC, lambda t: QF if t == 0 else (QF + 14 if t == 4 else QP + 2 * t))
        for hh in range(4):
            for k in range(2):
                if hh > 0: a(f"v_cndmask_b32 {v(QF+4*hh+k)}, 0, {v(QP+2*hh+k)}, {s(sGE(hh),2)}")
                if hh < 3: a(f"v_cndmask_b32 {v(QF+4*hh+2+k)}, {v(QP+2*(hh+1)+k)}, 0, {s(sGE(hh+1),2)}")
        a.wait(ds="kprev")
        for hh in range(4):
            a(f"{MF} {v(SC+4*hh,4)}, {v(KOWN+2*hh,4)}, {v(QF+4*hh,4)}, 0")
            a(f"{MF} {v(SP+4*hh,4)}, {v(KPREV+2*hh,4)}, {v(QF+4*hh,4)}, {v(BIAS,4)}")
        self.lds_spin(a, vXp, 0, 2, m + 14)
        for t in range(5):
            a(f"ds_read_b64 {v(VF+4*t+2,2)}, {v(vVp)} offset:{2560+512*t}", tag="vprev")
        la = [AF + 64 + hh for hh in range(4)]; lb = [AF + 68 + hh for hh in range(4)]; mx = [AF + 72 + hh for hh in range(4)]
        a(f"s_mov_b32 {s(sB)}, {f2u(20 ** -0.5 * math.log2(math.e)):#x}")
        for hh in range(4):
            c_, p_ = SC + 4 * hh, SP + 4 * hh
            a(f"v_cndmask_b32 {v(c_)}, {v(c_)}, {v(c_+1)}, {s(sPar,2)}\nv_cndmask_b32 {v(p_)}, {v(p_)}, {v(p_+1)}, {s(sPar,2)}")
            a(f"v_cndmask_b32 {v(c_+2)}, {v(c_+2)}, {v(c_+3)}, {s(sPar,2)}\nv_cndmask_b32 {v(p_+2)}, {v(p_+2)}, {v(p_+3)}, {s(sPar,2)}")
            a(f"v_cndmask_b32 {v(la[hh])}, {v(p_)}, {v(c_)}, {s(sMa,2)}\nv_cndmask_b32 {v(lb[hh])}, {v(p_+2)}, {v(c_+2)}, {s(sMb,2)}")
            a(f"v_max_f32 {v(mx[hh])}, {v(la[hh])}, {v(lb[hh])}")
        self.rscatter4(a, mx, "v_max_f32")
        a(f"v_mul_f32 {v(mx[0])}, {s(sB)}, {v(mx[0])}")
        self.allgather4(a, mx)
        for hh in range(4):
            a(f"v_fma_f32 {v(la[hh])}, {v(la[hh])}, {s(sB)}, -{v(mx[hh])}\nv_fma_f32 {v(lb[hh])}, {v(lb[hh])}, {s(sB)}, -{v(mx[hh])}")
        for hh in range(4):
            a(f"v_exp_f32 {v(la[hh])}, {v(la[hh])}\nv_exp_f32 {v(lb[hh])}, {v(lb[hh])}")
        for hh in range(4):
            a(f"v_add_f32 {v(mx[hh])}, {v(la[hh])}, {v(lb[hh])}")
        a.wait(ds="vprev")
        for t in range(1, 4):
            for k in range(4): a(f"v_cndmask_b32 {v(VLO+4*(t-1)+k)}, 0, {v(VF+4*t+k)}, {s(sCM(t),2)}")
            for k in range(4): a(f"v_xor_b32 {v(VF+4*t+k)}, {v(VF+4*t+k)}, {v(VLO+4*(t-1)+k)}")
        self.rscatter4(a, mx, "v_add_f32")
        a(f"v_rcp_f32 {v(mx[0])}, {v(mx[0])}")
        self.allgather4(a, mx)
        for hh in range(4):
            a(f"v_mul_f32 {v(la[hh])}, {v(la[hh])}, {v(mx[hh])}\nv_mul_f32 {v(lb[hh])}, {v(lb[hh])}, {v(mx[hh])}")
            a(f"v_cvt_pk_bf16_f32 {v(la[hh])}, {v(la[hh])}, {v(la[hh])}\nv_cvt_pk_bf16_f32 {v(lb[hh])}, {v(lb[hh])}, {v(lb[hh])}")
            a(f"v_and_b32 {v(PF+4*hh)}, {v(la[hh])}, {v(MK)}\nv_and_b32 {v(PF+4*hh+1)}, {v(lb[hh])}, {v(MK+1)}")
            a(f"v_and_b32 {v(PF+4*hh+2)}, {v(la[hh])}, {v(MK+2)}\nv_and_b32 {v(PF+4*hh+3)}, {v(lb[hh])}, {v(MK+3)}")
        for hh in range(4):
            a(f"{MF} {v(ACC+4*hh,4)}, {v(VF+4*hh,4)}, {v(PF+4*hh,4)}, {'0' if hh == 0 else v(ACC+4*hh,4)}")
            lo = VF + 16 if hh == 3 else VLO + 4 * hh
            a(f"{MF} {v(ACC+4*hh+4,4)}, {v(lo,4)}, {v(PF+4*hh,4)}, 0")
        self.publish(U_X + 1)
        OP = TT
        pack5(ACC, lambda t: OP + 2 * t)
        self.handoff_store(OP, BUFA)
        vA16, vA8, vF8 = m + 6, m + 7, m + 8
        a(f"v_add_u32 {v(vA16)}, {s(sTile)}, {v(vL16)}\ns_add_u32 {s(sB)}, {s(sTile)}, 2048\nv_add_u32 {v(vA8)}, {s(sB)}, {v(vL8)}")
        a(f"v_and_b32 {v(vF8)}, 7, {v(vLane)}\nv_lshlrev_b32 {v(vF8)}, 3, {v(vF8)}\nv_add_u32 {v(vF8)}, {s(sTile)}, {v(vF8)}")
        a("s_waitcnt vmcnt(0)")
        self.flag_store(F1)
        self.stamp()

        def unpack_acc(src, fn=None):
            for t in range(5):
                for k in range(2):
                    a(f"v_lshlrev_b32 {v(ACC+4*t+2*k)}, 16, {v(src+2*t+k)}\nv_and_b32 {v(ACC+4*t+2*k+1)}, 0xffff0000, {v(src+2*t+k)}")
        def frags640(u0): return [(u0 + st // 5, (st % 5) * 5120 + 1024 * t, "pk") for st in range(20) for t in range(5)]
        def load_A(buf, v16=None, v8=None):
            self.stamp(self.ph)
            for i in range(4):
                a(f"s_mul_i32 {s(sA)}, {s(sRot+i)}, 5120\ns_add_u32 {s(sA)}, {s(sA)}, {buf}")
                a16 = vA16 if v16 is None else v16[i]; a8 = vA8 if v8 is None else v8[i]
                for uu, imm in enumerate((0, 1024, 2560, 3584)):
                    a(f"buffer_load_dwordx4 {v(AF+20*i+4*uu,4)}, {v(a16)}, {s(sWS,4)}, {s(sA)} offen offset:{imm} sc1", tag=("A", 5*i+uu))
                a(f"buffer_load_dwordx2 {v(AF+20*i+16,2)}, {v(a8)}, {s(sWS,4)}, {s(sA)} offen sc1")
                a(f"buffer_load_dwordx2 {v(AF+20*i+18,2)}, {v(a8)}, {s(sWS,4)}, {s(sA)} offen offset:2560 sc1", tag=("A", 5*i+4))
        def gemm640():
            for st in range(20):
                a.wait(vm=("A", st))
                if st in (0, 10, 19): self.stamp(self.ph)
                for t in range(5): self.mfma_w(st * 5 + t, ACC + 4 * t, AF + 4 * st)
            self.stamp(self.ph)
        def stats_store(src, off):
            x_, y_ = TT + 12, TT + 13
            a(f"v_mov_b32 {v(x_)}, 0\nv_mov_b32 {v(y_)}, 0")
            for k in range(10):
                a(f"v_dot2c_f32_bf16 {v(x_)}, {s(sOnes)}, {v(src+k)}\nv_dot2c_f32_bf16 {v(y_)}, {v(src+k)}, {v(src+k)}")
            self.allreduce2(a, x_, y_, None)
            a(f"v_mov_b32 {v(TT+14)}, {s(sTag)}\nv_mov_b32 {v(TT+15)}, {s(sTag+1)}")
            a(f"s_lshl_b32 {s(sA)}, {s(sJ)}, 8\ns_add_u32 {s(sA)}, {s(sA)}, {s(sTile)}\ns_add_u32 {s(sA)}, {s(sA)}, {off}")
            self.stamp(self.ph)
            a("s_waitcnt vmcnt(0)")
            self.stamp(self.ph)
            a("s_mov_b64 exec, 0xffff")
            self.moded([f"buffer_store_dwordx4 {v(TT+12,4)}, {v(vL16)}, {s(sWS,4)}, {s(sA)} offen"])
            a("s_mov_b64 exec, -1")
        def stats_poll(off):
            L = a.newlabel("Lp"); Lok = L + "_ok"
            e0, e1 = TT + 12, TT + 16
            a(f"s_mov_b32 {s(sA)}, {off}")
            a.label(L)
            a(f"buffer_load_dwordx4 {v(e0,4)}, {v(vA16)}, {s(sWS,4)}, {s(sA)} offen sc1")
            a(f"buffer_load_dwordx4 {v(e1,4)}, {v(vA16)}, {s(sWS,4)}, {s(sA)} offen offset:1024 sc1")
            a(f"s_waitcnt vmcnt(0)\nv_cmp_ne_u64 vcc, {s(sTag,2)}, {v(e0+2,2)}\nv_cmp_ne_u64 {s(sMk,2)}, {s(sTag,2)}, {v(e1+2,2)}")
            a(f"s_or_b64 vcc, vcc, {s(sMk,2)}\ns_cbranch_scc0 {Lok}")
            self.spin_tail(a, L, Lok)
            a.label(Lok)
        def stats_finish(mu, var):
            e0, e1 = TT + 12, TT + 16
            a(f"v_add_f32 {v(mu)}, {v(e0)}, {v(e1)}\nv_add_f32 {v(var)}, {v(e0+1)}, {v(e1+1)}")
            self.allreduce2(a, mu, var, None)
            a(f"v_mul_f32 {v(mu)}, {inv:#x}, {v(mu)}\nv_mul_f32 {v(var)}, {inv:#x}, {v(var)}")
            a(f"v_fma_f32 {v(var)}, -{v(mu)}, {v(mu)}, {v(var)}\nv_max_f32 {v(var)}, 0, {v(var)}")
        c0 = -2 * math.sqrt(2 / math.pi) * math.log2(math.e)
        GK = KOWN
        def gelu_consts(R):
            a(f"v_mul_f32 {v(GK)}, {f2u(c0):#x}, {v(R)}\nv_mul_f32 {v(GK+1)}, {v(R)}, {v(R)}\nv_mul_f32 {v(GK+1)}, {v(GK+1)}, {v(GK)}")
            a(f"v_mul_f32 {v(GK+1)}, {f2u(0.044715):#x}, {v(GK+1)}\nv_rcp_f32 {v(GK+2)}, {v(R)}")
        def gelu_ops(acc, n, dst, tmp, pk=True):
            ops = []
            for b in range(0, n, 4):
                P = [(acc + b, tmp), (acc + b + 2, tmp + 2)]
                if pk:
                    for x_, t_ in P: ops.append(f"v_pk_mul_f32 {v(t_,2)}, {v(x_,2)}, {v(x_,2)}")
                    for x_, t_ in P: ops.append(f"v_pk_fma_f32 {v(t_,2)}, {v(t_,2)}, {v(GK,2)}, {v(GK,2)} op_sel:[0,1,0] op_sel_hi:[1,1,0]")
                    for x_, t_ in P: ops.append(f"v_pk_mul_f32 {v(t_,2)}, {v(t_,2)}, {v(x_,2)}")
                    for k in range(4): ops.append(f"v_exp_f32 {v(tmp+k)}, {v(tmp+k)}")
                    for x_, t_ in P: ops.append(f"v_pk_fma_f32 {v(t_,2)}, {v(t_,2)}, {v(GK+2,2)}, {v(GK+2,2)} op_sel_hi:[1,0,0]")
                    for k in range(4): ops.append(f"v_rcp_f32 {v(tmp+k)}, {v(tmp+k)}")
                    for x_, t_ in P: ops.append(f"v_pk_mul_f32 {v(t_,2)}, {v(t_,2)}, {v(x_,2)}")
                else:
                    for k in range(4): ops.append(f"v_mul_f32 {v(tmp+k)}, {v(acc+b+k)}, {v(acc+b+k)}")
                    for k in range(4): ops.append(f"v_fma_f32 {v(tmp+k)}, {v(tmp+k)}, {v(GK+1)}, {v(GK)}")
                    for k in range(4): ops.append(f"v_mul_f32 {v(tmp+k)}, {v(tmp+k)}, {v(acc+b+k)}")
                    for k in range(4): ops.append(f"v_exp_f32 {v(tmp+k)}, {v(tmp+k)}")
                    for k in range(4): ops.append(f"v_fma_f32 {v(tmp+k)}, {v(tmp+k)}, {v(GK+2)}, {v(GK+2)}")
                    for k in range(4): ops.append(f"v_rcp_f32 {v(tmp+k)}, {v(tmp+k)}")
                    for k in range(4): ops.append(f"v_mul_f32 {v(tmp+k)}, {v(tmp+k)}, {v(acc+b+k)}")
                for i_, (x_, t_) in enumerate(P): ops.append(f"v_cvt_pk_bf16_f32 {v(dst+b//2+i_)}, {v(t_)}, {v(t_+1)}")
            return ops

        a.label("L_P2")
        self.ph = 2; self.stamp(2)
        self.stream_init(frags640(U_WO), SLOTS12, 4); self.prime()
        self.stamp(2)
        unpack_acc(X1P)
        a(f"s_mov_b32 {s(sB)}, {F1}")
        self.poll8(a, vF8, s(sB), TT + 12)
        load_A(BUFA); gemm640()
        pack5(ACC, lambda t: HP + 2 * t)
        self.handoff_store(HP, BUFB)
        stats_store(HP, S2)
        self.stamp()
        a.label("L_P3")
        self.ph = 3; self.stamp(3)
        self.stream_init(frags640(U_W1), SLOTS12, 4); self.prime()
        self.stamp(3)
        self.lds_spin(a, vZ, L_CSRDY - L_CNT, 1, vLC)
        vCS = m + 9
        a(f"v_lshlrev_b32 {v(vCS)}, 4, {v(vG)}\nv_add_u32 {v(vCS)}, {L_CS1}, {v(vCS)}")
        for t in range(5): a(f"ds_read_b128 {v(ACC+4*t,4)}, {v(vCS)} offset:{64*t}", tag="cs")
        stats_poll(S2)
        load_A(BUFB)
        MU, RS = KOWN + 4, KOWN + 5
        var, R = KOWN + 6, KOWN + 7
        stats_finish(MU, var)
        a.wait(ds="cs")
        for k in range(20): a(f"v_mul_f32_e64 {v(ACC+k)}, -{v(MU)}, {v(ACC+k)}")
        a(f"v_add_f32 {v(R)}, {f2u(1e-5):#x}, {v(var)}\nv_rsq_f32 {v(RS)}, {v(R)}")
        a(f"v_mul_f32 {v(R)}, {v(RS)}, {v(RS)}\nv_mul_f32 {v(R)}, {v(R)}, {v(var)}\nv_add_f32 {v(R)}, {f2u(1e-5):#x}, {v(R)}\nv_rsq_f32 {v(R)}, {v(R)}")
        a(f"v_mul_f32 {v(R)}, {v(R)}, {v(RS)}")
        gelu_consts(R)
        gemm640()
        for op in gelu_ops(ACC, 20, OP, TT + 12): a(op)
        self.stamp(3)
        self.handoff_store(OP, BUFA)
        Lsh = a.newlabel("Lsh"); Lshb = Lsh + "_b"
        a(f"s_bitcmp1_b32 {s(sJ)}, 1\ns_cselect_b32 {s(sB)}, 0, 3\ns_cmp_eq_u32 {s(sWave)}, {s(sB)}\ns_cbranch_scc1 {Lsh}")
        a("s_waitcnt vmcnt(0)")
        self.flag_store(F3)
        a.label(Lshb)
        self.stamp(3)
        t = self.t
        t.label(Lsh); t.reset_hist()
        t(f"s_bitcmp1_b32 {s(sJ)}, 1\ns_mov_b32 {s(sSh)}, 0xc000c000\ns_cselect_b32 {s(sSh)}, 0x00030003, {s(sSh)}\ns_mov_b32 {s(sSh+1)}, {s(sSh)}")
        t(f"s_add_u32 {s(sA)}, {s(sTJ)}, {SHAD}\ns_mov_b64 exec, {s(sSh,2)}")
        t(f"buffer_store_dwordx4 {v(OP,4)}, {v(vL16)}, {s(sWS,4)}, {s(sA)} offen sc1")
        t(f"buffer_store_dwordx4 {v(OP+4,4)}, {v(vL16)}, {s(sWS,4)}, {s(sA)} offen offset:1024 sc1")
        t(f"buffer_store_dwordx2 {v(OP+8,2)}, {v(vL8)}, {s(sWS,4)}, {s(sA)} offen offset:2048 sc1")
        t(f"s_lshl_b32 {s(sA)}, {s(sJ)}, 3\ns_add_u32 {s(sA)}, {s(sA)}, {s(sTile)}\ns_add_u32 {s(sA)}, {s(sA)}, {F3}\ns_mov_b64 exec, 1")
        t(f"s_waitcnt vmcnt(3)\ns_cmp_lg_u32 {s(sMode)}, 1\ns_cbranch_scc1 {Lsh}_s")
        t(f"buffer_store_dwordx2 {v(self.vTag,2)}, {v(self.vZero)}, {s(sWS,4)}, {s(sA)} offen\ns_branch {Lsh}_t")
        t.label(Lsh + "_s")
        t(f"buffer_store_dwordx2 {v(self.vTag,2)}, {v(self.vZero)}, {s(sWS,4)}, {s(sA)} offen sc1")
        t.label(Lsh + "_t")
        t(f"s_waitcnt vmcnt(1)\nbuffer_store_dwordx2 {v(self.vTag,2)}, {v(self.vZero)}, {s(sWS,4)}, {s(sA)} offen offset:{FH-F3} sc1")
        t(f"s_mov_b64 exec, -1\ns_branch {Lshb}")
        self.stamp()
        a.label("L_P4")
        self.ph = 4; self.stamp(4)
        self.stream_init(frags640(U_W2), SLOTS12, 4); self.prime()
        self.stamp(4)
        unpack_acc(HP)
        a(f"v_mul_f32_e64 {v(var)}, -{v(MU)}, {v(RS)}")
        for k in range(20): a(f"v_fma_f32 {v(ACC+k)}, {v(ACC+k)}, {v(RS)}, {v(var)}")
        sPv, sNx = sD, sE
        a(f"s_sub_u32 {s(sPv)}, {s(sTile)}, {TS}\ns_add_u32 {s(sA)}, {s(sPv)}, {SHAD}\ns_cmp_eq_u32 {s(sWave)}, 0\ns_cselect_b32 {s(sPv)}, {s(sA)}, {s(sPv)}")
        a(f"s_cmp_eq_u32 {s(sT)}, 0\ns_cselect_b32 {s(sPv)}, {OOB}, {s(sPv)}")
        a(f"s_add_u32 {s(sNx)}, {s(sTile)}, {TS}\ns_add_u32 {s(sA)}, {s(sNx)}, {SHAD}\ns_cmp_eq_u32 {s(sWave)}, 3\ns_cselect_b32 {s(sNx)}, {s(sA)}, {s(sNx)}")
        a(f"s_cmp_eq_u32 {s(sT)}, 127\ns_cselect_b32 {s(sNx)}, {OOB}, {s(sNx)}")
        v16 = [VFR + i for i in range(4)]; v8 = [VFR + 4 + i for i in range(4)]
        tb, tr_ = VFR + 8, VFR + 9
        for i in range(4):
            a(f"s_lshr_b32 {s(sA)}, {s(sRot+i)}, 1\ns_add_u32 {s(sA)}, {s(sA)}, 1\ns_sub_u32 {s(sB)}, 0, {s(sA)}\ns_bitcmp1_b32 {s(sRot+i)}, 0\ns_cselect_b32 {s(sA)}, {s(sA)}, {s(sB)}")
            a(f"s_cselect_b32 {s(sB)}, {s(sNx)}, {s(sPv)}")
            a(f"v_add_u32 {v(tr_)}, {s(sA)}, {v(vR)}\nv_cmp_lt_u32 vcc, 15, {v(tr_)}")
            a(f"v_mov_b32 {v(tb)}, {s(sTile)}\nv_mov_b32 {v(v8[i])}, {s(sB)}\nv_cndmask_b32 {v(tb)}, {v(tb)}, {v(v8[i])}, vcc")
            a(f"v_and_b32 {v(tr_)}, 15, {v(tr_)}\nv_lshl_add_u32 {v(tr_)}, {v(vG)}, 4, {v(tr_)}")
            a(f"v_lshl_add_u32 {v(v16[i])}, {v(tr_)}, 4, {v(tb)}\nv_lshl_add_u32 {v(v8[i])}, {v(tr_)}, 3, {v(tb)}\nv_add_u32 {v(v8[i])}, 2048, {v(v8[i])}")
        fa = VFR + 10
        a(f"s_sub_u32 {s(sA)}, {s(sTile)}, {TS}\ns_add_u32 {s(sB)}, {s(sA)}, {FH-F3}\ns_cmp_eq_u32 {s(sWave)}, 0\ns_cselect_b32 {s(sA)}, {s(sB)}, {s(sA)}")
        a(f"s_cmp_eq_u32 {s(sT)}, 0\ns_cselect_b32 {s(sA)}, {s(sTile)}, {s(sA)}")
        a(f"s_add_u32 {s(sCc)}, {s(sTile)}, {TS}\ns_add_u32 {s(sB)}, {s(sCc)}, {FH-F3}\ns_cmp_eq_u32 {s(sWave)}, 3\ns_cselect_b32 {s(sCc)}, {s(sB)}, {s(sCc)}")
        a(f"s_cmp_eq_u32 {s(sT)}, 127\ns_cselect_b32 {s(sCc)}, {s(sTile)}, {s(sCc)}")
        a(f"v_mov_b32 {v(tb)}, {s(sA)}\nv_mov_b32 {v(tr_)}, {s(sCc)}\nv_and_b32 {v(fa)}, 2, {v(vLane)}\nv_cmp_ne_u32 vcc, 0, {v(fa)}")
        a(f"v_cndmask_b32 {v(tb)}, {v(tb)}, {v(tr_)}, vcc\nv_mov_b32 {v(tr_)}, {s(sTile)}\nv_and_b32 {v(fa)}, 8, {v(vLane)}\nv_cmp_ne_u32 vcc, 0, {v(fa)}")
        a(f"v_cndmask_b32 {v(tb)}, {v(tr_)}, {v(tb)}, vcc\nv_and_b32 {v(fa)}, 7, {v(vLane)}\nv_lshl_add_u32 {v(fa)}, {v(fa)}, 3, {v(tb)}")
        a(f"s_mov_b32 {s(sB)}, {F3}")
        self.poll8(a, fa, s(sB), TT + 12)
        load_A(BUFA, v16, v8); gemm640()
        pack5(ACC, lambda t: X1P + 2 * t)
        self.handoff_store(X1P, BUFB)
        stats_store(X1P, S4)
        self.stamp()
        a.label("L_P5")
        fr5 = [(U_W3 + ch * 4 + st // 5, (st % 5) * 4096 + 1024 * tt, "pk") for ch in range(3) for st in range(20) for tt in range(4)]
        self.ph = 5; self.stamp(5)
        self.stream_init(fr5, SLOTS12, 4); self.prime()
        self.stamp(5)
        self.lds_spin(a, vZ, L_CSRDY - L_CNT, 2, vLC)
        for k in range(8): a(f"ds_read_b128 {v(ACC+4*k,4)}, {v(vCS)} offset:{L_CS3-L_CS1+64*k}", tag="cs")
        stats_poll(S4)
        load_A(BUFB)
        stats_finish(MU, var)
        a.wait(ds="cs")
        for k in range(32): a(f"v_mul_f32_e64 {v(ACC+k)}, -{v(MU)}, {v(ACC+k)}")
        a(f"v_add_f32 {v(R)}, {f2u(1e-5):#x}, {v(var)}\nv_rsq_f32 {v(R)}, {v(R)}")
        gelu_consts(R)
        GP = TT
        A6 = ACC + 16
        def g_store(ch):
            a(f"s_lshl_b32 {s(sA)}, {s(sJ)}, 11\ns_add_u32 {s(sA)}, {s(sA)}, {s(sTile)}\ns_add_u32 {s(sA)}, {s(sA)}, {GBUF[ch]}")
            self.moded([f"buffer_store_dwordx4 {v(GP,4)}, {v(vL16)}, {s(sWS,4)}, {s(sA)} offen",
                        f"buffer_store_dwordx4 {v(GP+4,4)}, {v(vL16)}, {s(sWS,4)}, {s(sA)} offen offset:1024"], tag=("gst", ch))
        def g_flag(ch):
            a.wait(vm=("gst", ch))
            self.flag_store(G0 + 128 * ch)
        PL = TT + 16
        def g_poll_issue(ch):
            a(f"s_mov_b32 {s(sB)}, {G0 + 128*ch}\nbuffer_load_dwordx2 {v(PL,2)}, {v(vF8)}, {s(sWS,4)}, {s(sB)} offen sc1", tag=("gp", ch))
        def g_poll_check(ch):
            L = a.newlabel("Lg"); Lok = L + "_ok"
            a.wait(vm=("gp", ch))
            a(f"v_cmp_ne_u64 vcc, {s(sTag,2)}, {v(PL,2)}\ns_cbranch_vccnz {L}")
            a.label(Lok)
            t = self.t
            t.label(L); t.reset_hist()
            t(f"s_mov_b32 {s(sB)}, {G0 + 128*ch}\nbuffer_load_dwordx2 {v(PL,2)}, {v(vF8)}, {s(sWS,4)}, {s(sB)} offen sc1")
            t(f"s_waitcnt vmcnt(0)\nv_cmp_ne_u64 vcc, {s(sTag,2)}, {v(PL,2)}\ns_cbranch_vccz {Lok}")
            self.spin_tail(t, L, Lok)
        sG = sD
        def loadG(st):
            if st % 4 == 0:
                ch, ui = st // 16, (st % 16) // 4
                a(f"s_lshl_b32 {s(sG)}, {s(sRot+ui)}, 12\ns_add_u32 {s(sG)}, {s(sG)}, {GBUF[ch]}")
            a(f"buffer_load_dwordx4 {v(AF+4*(st%20),4)}, {v(vA16)}, {s(sWS,4)}, {s(sG)} offen offset:{(st%4)*1024} sc1", tag=("G", st))
        for ch in range(3):
            acc = ACC + 16 * (ch & 1)
            self.stamp(5)
            side = gelu_ops(ACC + 16 * ((ch - 1) & 1), 16, GP, TT + 12, pk=False) if ch > 0 else []
            si = 0
            for st in range(20):
                if ch == 0: a.wait(vm=("A", st))
                for tt in range(4):
                    self.mfma_w(ch * 80 + st * 4 + tt, acc + 4 * tt, AF + 4 * st)
                    n = st * 4 + tt
                    if n >= 3:
                        while si < len(side) and si < (n - 2) * len(side) // 62:
                            a(side[si]); si += 1
                if ch > 0 and st == 16:
                    assert si == len(side)
                    if ch == 2: g_poll_check(0)
                    g_store(ch - 1)
                    if ch == 1:
                        for k in range(4): a(f"ds_read_b128 {v(ACC+4*k,4)}, {v(vCS)} offset:{L_CS3-L_CS1+64*(8+k)}", tag="cs")
                if ch == 1 and st == 18:
                    a.wait(ds="cs")
                    for k in range(16): a(f"v_mul_f32_e64 {v(ACC+k)}, -{v(MU)}, {v(ACC+k)}")
                if ch == 2 and st == 2: g_flag(0)
                if ch == 2 and st == 12: g_poll_issue(0)
        self.stamp(5)
        for st in range(16): loadG(st)
        g_flag(1)
        for op in gelu_ops(ACC, 16, GP, TT + 12): a(op)
        g_store(2)
        g_poll_issue(1)
        self.stamp(5)
        self.stamp()
        a.label("L_P6")
        fr6 = [(U_W4 + st // 4, (st % 4) * 5120 + 1024 * t, "pk") for st in range(48) for t in range(5)]
        self.stamp(6)
        self.stream_init(fr6, SLOTS12, 4); self.prime()
        self.stamp(6)
        unpack_acc(HP)
        for t in range(5):
            for k in range(2):
                a(f"v_lshlrev_b32 {v(TT+12)}, 16, {v(X1P+2*t+k)}\nv_and_b32 {v(TT+13)}, 0xffff0000, {v(X1P+2*t+k)}")
                a(f"v_pk_add_f32 {v(ACC+4*t+2*k,2)}, {v(ACC+4*t+2*k,2)}, {v(TT+12,2)}")
        self.stamp(6)
        nxt = 16
        for st in range(48):
            a.wait(vm=("G", st))
            if st in (0, 12, 24, 36, 47): self.stamp(6)
            for t in range(5): self.mfma_w(st * 5 + t, ACC + 4 * t, AF + 4 * (st % 20))
            if st == 1:
                g_flag(2); g_poll_check(1)
            if st == 8: g_poll_issue(2)
            if st == 12: g_poll_check(2)
            if st >= 1:
                while nxt < 48 and nxt <= st + 20 and nxt < 16 + 3 * st + 3:
                    loadG(nxt); nxt += 1
        self.stamp(6)
        pack5(ACC, lambda t: OP + 2 * t)
        sg, sr, so = VFR + 1, VFR + 2, VFR + 3
        a(f"s_mul_i32 {s(sB)}, {s(sWave)}, 2560\ns_add_u32 {s(sB)}, {s(sB)}, {STAGE}")
        a(f"v_mul_u32_u24 {v(sg)}, 160, {v(vR)}\nv_lshl_add_u32 {v(sg)}, {v(vG)}, 3, {v(sg)}\nv_add_u32 {v(sg)}, {s(sB)}, {v(sg)}\nv_add_u32 {v(sr)}, {s(sB)}, {v(vL16)}")
        for t in range(5): a(f"ds_write_b64 {v(sg)}, {v(OP+2*t,2)} offset:{32*t}")
        for k in range(3): a(f"ds_read_b128 {v(AF+4*k,4)}, {v(sr)} offset:{1024*k}", tag=("o", k))
        self.srd(a, sOUT, 20, 2048 * 1280)
        a(f"s_mul_i32 {s(sA)}, {s(sT)}, {16*1280}\ns_mul_i32 {s(sB)}, {s(sJ)}, 160\ns_add_u32 {s(sA)}, {s(sA)}, {s(sB)}")
        for k in range(3):
            a(f"v_add_u32 {v(so)}, {64*k}, {v(vLane)}\nv_mul_u32_u24 {v(so+1)}, 6554, {v(so)}\nv_lshrrev_b32 {v(so+1)}, 16, {v(so+1)}")
            a(f"v_mul_u32_u24 {v(so+1)}, 1120, {v(so+1)}\nv_lshl_add_u32 {v(so+2+k)}, {v(so)}, 4, {v(so+1)}")
        for k in range(3):
            a.wait(ds=("o", k))
            if k == 2: a("s_mov_b32 exec_hi, 0")
            a(f"buffer_store_dwordx4 {v(AF+4*k,4)}, {v(so+2+k)}, {s(sOUT,4)}, {s(sA)} offen")
        a("s_mov_b64 exec, -1")
        self.stamp()
        self.finish(a)

    def finish(self, a):
        if self.stamps:
            a("s_waitcnt vmcnt(0) lgkmcnt(0)")
            a(f"{self.clk} {s(sSt+22,2)}\ns_waitcnt lgkmcnt(0)")
            a(f"s_lshl_b32 {s(sA)}, s2, 3\ns_add_u32 {s(sA)}, {s(sA)}, {s(sWave)}\ns_lshl_b32 {s(sA)}, {s(sA)}, 7\ns_add_u32 {s(sA)}, {s(sA)}, {WS_STAMP}")
            a("v_mov_b32 v0, 0\ns_mov_b64 exec, 1")
            for k in range(12):
                a(f"v_mov_b32 v12, {s(sSt+2*k)}\nv_mov_b32 v13, {s(sBud)}")
                a(f"buffer_store_dwordx2 v[12:13], v0, {s(sWS,4)}, {s(sA)} offen offset:{8*k}")
        a("s_endpgm")

    def pf_wait(self, a, base, n2, tmp):
        per = {20: 20, 30: 60, 48: 48}[n2]
        if n2 == 30: a(f"s_mul_i32 {s(sA)}, {s(sJ)}, {60*8}")
        else: a(f"s_mul_i32 {s(sA)}, {s(sJ)}, 5\ns_lshr_b32 {s(sA)}, {s(sA)}, 2\ns_mul_i32 {s(sA)}, {s(sA)}, {per*8}")
        a(f"s_add_u32 {s(sA)}, {s(sA)}, {WS_PF + base*8}")
        a(f"v_min_u32 {v(tmp)}, {n2-1}, {v(vLane)}\nv_lshlrev_b32 {v(tmp)}, 4, {v(tmp)}")
        L = a.newlabel("Lpf"); Lok = L + "_ok"
        a.label(L)
        a(f"buffer_load_dwordx4 {v(tmp+4,4)}, {v(tmp)}, {s(sWS,4)}, {s(sA)} offen sc1")
        a(f"s_waitcnt vmcnt(0)\nv_cmp_ne_u64 vcc, {s(sTag,2)}, {v(tmp+4,2)}\nv_cmp_ne_u64 {s(sMk,2)}, {s(sTag,2)}, {v(tmp+6,2)}")
        a(f"s_or_b64 vcc, vcc, {s(sMk,2)}\ns_cbranch_scc0 {Lok}\ns_sleep 8")
        self.spin_tail(a, L, Lok)
        a.label(Lok)

    def helper_start(self):
        a = self.a; c = self.PC
        a(f"s_lshl_b32 {s(sA)}, 1, {s(sWave)}\ns_and_b32 {s(sA)}, {s(sA)}, 0xb0\ns_cbranch_scc0 L_compute")
        a(f"s_setprio 3\ns_min_u32 {s(sA)}, {s(sWave)}, 6\ns_sub_u32 {s(sA)}, {s(sA)}, 4\ns_lshl_b32 s70, {s(sA)}, 11\ns_add_u32 s70, s70, {L_PSCR}")
        a(f"s_lshl_b32 s63, {s(sA)}, 8\ns_add_u32 s63, s63, s2\nv_mov_b32 {v(c+7)}, 0")
        self.pk_A(a, 0, 64, pre_wait=True)
        self.srd(a, sWS, 24, WS_SIZE)
        a(f"s_cmp_eq_u32 {s(sWave)}, 7\ns_cbranch_scc1 L_service\ns_branch L_loader")
        a.label("L_compute"); a.reset_hist(); a.reset_cnt()

    def loader(self):
        a = self.a
        a.label("L_loader"); a.reset_hist(); a.reset_cnt(); self.nst = 1; self.inhelper = True; a.vm = [("raw", 0)] * 4
        sL = sMode
        a(f"s_and_b32 {s(sL)}, {s(sWave)}, 1")
        self.srd(a, sIN, 20, 2048 * 1280)
        a(f"v_and_b32 v13, 15, {v(vLane)}\nv_lshlrev_b32 v46, 19, v13\nv_lshlrev_b32 v47, 20, v13\ns_mov_b64 exec, 0x3ff")
        a(f"buffer_load_dword v49, v47, {s(sWS,4)}, 0 offen offset:128 sc1\nbuffer_load_dword v50, v46, {s(sIN,4)}, 0 offen\ns_mov_b64 exec, -1")
        a(f"v_and_b32 v12, 3, {v(vLane)}\nv_mul_u32_u24 v12, 260, v12\nv_add_u32 v12, {L_CW}, v12")
        a(f"s_lshl_b32 {s(sA)}, {s(sL)}, 8\ns_add_u32 {s(sA)}, {s(sA)}, {L_LW}\nv_lshl_add_u32 v11, {v(vLane)}, 2, {s(sA)}")
        self.pack_seq(a)
        for k in (1, 2): self.pk_B(a, k, 64 + 16 * k, 192 + 16 * (k & 1), 224)
        self.stamp()
        pend = []
        MAXF = self.opt.get("maxf", 24)
        def publish_upto(u, A=None):
            (A or a)(f"v_mov_b32 v13, {u+1}\nds_max_u32 v11, v13")
        def throttle():
            if len(a.vm) > MAXF: a(f"s_waitcnt vmcnt({MAXF})")
            while pend and ("u", pend[0]) not in a.vm:
                publish_upto(pend.pop(0))
        def guarded_wait(addr, off, need, sleep, pre=False):
            L = a.newlabel("Lf"); Lok = L + "_ok"
            if pre: a(f"s_waitcnt lgkmcnt(0)\nv_cmp_gt_u32 vcc, {need}, v14\ns_cbranch_vccnz {L}")
            else: a(f"s_branch {L}")
            a.label(Lok)
            t = self.t
            t.label(L); t.reset_hist(); t.vm = list(a.vm)
            self.a = t
            t(f"ds_read_b32 v13, {v(addr)} offset:{off}\ns_waitcnt lgkmcnt(0)\nv_cmp_gt_u32 vcc, {need}, v13\ns_cbranch_vccz {Lok}")
            for pi_, pu in enumerate(pend):
                t.wait(vm=("u", pu)); publish_upto(pu, t)
                if pi_ < len(pend) - 1:
                    t(f"ds_read_b32 v13, {v(addr)} offset:{off}\ns_waitcnt lgkmcnt(0)\nv_cmp_gt_u32 vcc, {need}, v13\ns_cbranch_vccz {Lok}")
            self.lds_spin(t, addr, off, need, 13, sleep=sleep)
            t(f"s_branch {Lok}")
            self.a = a
        sJ1, sJ2, sH1, sH2 = 64, 65, 66, 67
        sR5, sR4a, sR4b = 8, 13, 68
        have = 0; pre = False
        todo = [u for u in range(U_RAW, len(UNITS)) if UNITS[u][1] != "pseudo"]
        def need_of(u):
            nd = UNEED[u]
            if nd in (U_W1, U_W2) and not self.opt.get("nodefer"): nd += 1
            while nd and nd not in PUBS: nd += 1
            assert nd <= u, (u, nd)
            return nd
        def consts():
            a(f"s_mul_i32 {s(sH1)}, {s(sL)}, 12288\ns_mul_i32 {s(sH2)}, {s(sL)}, 10240\ns_mul_i32 {s(sJ1)}, {s(sJ)}, 102400\ns_mul_i32 {s(sJ2)}, {s(sJ)}, 245760")
            for i in range(5):
                a(f"s_add_u32 {s(sB)}, {s(sQ)}, {i}\ns_sub_u32 {s(sA)}, {s(sB)}, 5\ns_cmp_ge_u32 {s(sB)}, 5\ns_cselect_b32 {s(sB)}, {s(sA)}, {s(sB)}\ns_mul_i32 {s(sB)}, {s(sB)}, 20480")
                a(f"s_add_u32 {s(sB)}, {s(sB)}, {s(sJ1)}\ns_add_u32 {s(sR5+i)}, {s(sB)}, {s(sH2)}")
            for i in range(4):
                a(f"s_mul_i32 {s(sB)}, {s(sRot+i)}, 25600\ns_add_u32 {s(sB)}, {s(sB)}, {s(sJ1)}\ns_add_u32 {s(sR4a+i)}, {s(sB)}, {s(sH1)}")
                a(f"s_mul_i32 {s(sB)}, {s(sRot+i)}, 20480\ns_add_u32 {s(sB)}, {s(sB)}, {s(sJ2)}\ns_add_u32 {s(sR4b+i)}, {s(sB)}, {s(sH2)}")
        consts()
        a("s_getpc_b64 s[18:19]")
        a.label("L_pc2")
        a(f"s_add_u32 s18, s18, L_table-L_pc2\ns_addc_u32 s19, s19, 0\ns_lshl_b32 s17, {s(sL)}, 8\ns_add_u32 s17, s17, {L_LW}\nv_mov_b32 v15, 0")
        a(f"s_setprio {self.opt.get('lprio', 3)}")
        for ti, u in enumerate(todo):
            size, kind, (wid, ch, i) = UNITS[u]
            if self.opt.get("fake") and u >= U_W1:
                a("s_waitcnt vmcnt(0)"); publish_upto(100); del pend[:]; break
            nd = need_of(u)
            if nd > have:
                have = nd; guarded_wait(12, 0, nd, self.opt.get('lsleep', 2), pre)
            if u == U_W1: MAXF = self.opt.get("maxf2", 8)
            if u == U_W3 + 7: MAXF = self.opt.get("maxf3", 24)
            if ch == 0 and i == 0 and wid in (0, 3):
                guarded_wait(vZ, L_PKR - L_CNT, wid + 1, 1)
            if ch == 0 and i == 0 and wid in (0, 3, 4, 5, 6, 7): self.stamp()
            n = 13 if size == 25600 else 10
            sH = sH1 if size == 25600 else sH2
            sR = (sR5 if wid < 3 else sR4a if wid < 6 else sR4b) + i
            pre = ti + 1 < len(todo) and need_of(todo[ti + 1]) > have
            for k in range(n):
                if k % 4 == 0:
                    a(f"s_add_u32 m0, {s(sH)}, {UADDR[u] + k*1024}\ns_add_u32 {s(sA)}, {s(sR)}, {WS_WP + WP_OFF[wid] + ch*81920 + k*1024}")
                a(f"buffer_load_dwordx4 {v(vL16)}, {s(sWS,4)}, {s(sA)} offen offset:{1024*(k%4)}{'' if self.opt.get('nosc') else ' sc1'} lds", tag=("u", u))
                if k == n - 5 and pre: a("ds_read_b32 v14, v12")
                if k == n - 1:
                    if self.opt.get("dsl"): pend.append(u)
                    else: a(f"s_sub_u32 m0, s17, {4*(u+1)}\nglobal_load_lds_dword v15, s[18:19] offset:{4*(u+1)}")
                if k == n - 1 or (MAXF < n and k % 4 == 3): throttle()
            if u == U_RAW + 2: self.pk_C(a, [1, 2])
        for pu in pend:
            a.wait(vm=("u", pu)); publish_upto(pu)
        self.finish(a)

    PC = 28
    PR, PFR, PCS = 144, 192, 208
    def pk_decode(self, a, k):
        sU, sS, sCl, sWid = 64, 65, 66, 71
        Ld = a.newlabel("Lpd")
        a(f"s_add_u32 {s(sU)}, s63, {768*k}")
        a(f"s_cmp_ge_u32 {s(sU)}, 1680\ns_cbranch_scc1 {Ld}_4")
        a(f"s_mul_hi_u32 {s(sCl)}, {s(sU)}, {(1<<32)//20+1}\ns_mul_i32 {s(sA)}, {s(sCl)}, 20\ns_sub_u32 {s(sS)}, {s(sU)}, {s(sA)}")
        a(f"s_mul_hi_u32 {s(sWid)}, {s(sCl)}, {(1<<32)//10+1}\ns_min_u32 {s(sWid)}, {s(sWid)}, 6\ns_mul_i32 {s(sA)}, {s(sWid)}, 10\ns_sub_u32 {s(sCl)}, {s(sCl)}, {s(sA)}\ns_branch {Ld}")
        a.label(Ld + "_4")
        a(f"s_sub_u32 {s(sA)}, {s(sU)}, 1680\ns_mul_hi_u32 {s(sCl)}, {s(sA)}, {(1<<32)//48+1}\ns_mul_i32 {s(sB)}, {s(sCl)}, 48\ns_sub_u32 {s(sS)}, {s(sA)}, {s(sB)}\ns_mov_b32 {s(sWid)}, 7")
        a.label(Ld)
    def pk_A(self, a, k, R, pre_wait=False):
        sU, sS, sCl, sB0, sB1, sRs, sWid = 64, 65, 66, 67, 68, 69, 71
        c = self.PC; sR = sOUT
        NT = '' if self.opt.get('nont') else ' nt'
        self.pk_decode(a, k)
        L = a.newlabel("Lpa")
        a(f"s_lshl_b32 {s(sCc)}, {s(sCl)}, 7\nv_lshrrev_b32 {v(c)}, 3, {v(vLane)}\nv_and_b32 {v(c+1)}, 7, {v(vLane)}")
        a(f"s_cmp_lt_u32 {s(sWid)}, 3\ns_cbranch_scc1 {L}_q\ns_cmp_eq_u32 {s(sWid)}, 7\ns_cbranch_scc1 {L}_4")
        a(f"s_mul_hi_u32 {s(sA)}, {s(sS)}, {(1<<32)//5+1}\ns_mul_i32 {s(sB)}, {s(sA)}, 5\ns_sub_u32 {s(sB)}, {s(sS)}, {s(sB)}\ns_mul_i32 {s(sA)}, {s(sA)}, 160")
        a(f"s_lshr_b32 {s(sD)}, {s(sB)}, 1\ns_mul_i32 {s(sD)}, {s(sD)}, 80\ns_and_b32 {s(sB1)}, {s(sB)}, 1\ns_lshl_b32 {s(sB1)}, {s(sB1)}, 5\ns_add_u32 {s(sD)}, {s(sD)}, {s(sB1)}")
        a(f"s_cmp_eq_u32 {s(sB)}, 4\ns_cselect_b32 {s(sD)}, 64, {s(sD)}\ns_cselect_b32 {s(sB1)}, 80, 16\ns_add_u32 {s(sB0)}, {s(sA)}, {s(sD)}\ns_add_u32 {s(sB1)}, {s(sB0)}, {s(sB1)}")
        a(f"s_cmp_eq_u32 {s(sWid)}, 6\ns_movk_i32 {s(sRs)}, 1280\ns_cselect_b32 {s(sRs)}, 3072, {s(sRs)}\ns_lshl_b32 {s(sD)}, {s(sRs)}, 3\ns_branch {L}")
        a.label(L + "_4")
        a(f"s_lshr_b32 {s(sA)}, {s(sS)}, 4\ns_lshl_b32 {s(sB0)}, {s(sA)}, 6\ns_bfe_u32 {s(sA)}, {s(sS)}, 0x30001\ns_mul_i32 {s(sA)}, {s(sA)}, 192\ns_add_u32 {s(sB0)}, {s(sB0)}, {s(sA)}")
        a(f"s_and_b32 {s(sA)}, {s(sS)}, 1\ns_lshl_b32 {s(sA)}, {s(sA)}, 5\ns_add_u32 {s(sB0)}, {s(sB0)}, {s(sA)}\ns_add_u32 {s(sB1)}, {s(sB0)}, 16")
        a(f"s_movk_i32 {s(sRs)}, 1280\ns_movk_i32 {s(sD)}, {8*1280}\ns_branch {L}")
        a.label(L + "_q")
        a(f"s_lshl_b32 {s(sB0)}, {s(sS)}, 5\ns_add_u32 {s(sB1)}, {s(sB0)}, 4\ns_movk_i32 {s(sRs)}, 3840\ns_mov_b32 {s(sD)}, {16*3840}")
        a(f"s_add_u32 {s(sA)}, {s(sWid)}, 1\ns_cmp_eq_u32 {s(sA)}, 3\ns_cselect_b32 {s(sA)}, 0, {s(sA)}\ns_mul_i32 {s(sA)}, {s(sA)}, 1280\ns_add_u32 {s(sCc)}, {s(sCc)}, {s(sA)}")
        a(f"v_and_b32 {v(c+2)}, 4, {v(c)}\nv_add_u32 {v(c)}, {v(c)}, {v(c+2)}")
        a.label(L)
        a(f"v_mul_lo_u32 {v(c+8)}, {s(sRs)}, {v(c)}\nv_lshl_add_u32 {v(c+8)}, {v(c+1)}, 4, {v(c+8)}\nv_add_u32 {v(c+9)}, {s(sD)}, {v(c+8)}")
        a(f"s_mul_i32 {s(sB0)}, {s(sB0)}, {s(sRs)}\ns_add_u32 {s(sB0)}, {s(sB0)}, {s(sCc)}\ns_mul_i32 {s(sB1)}, {s(sB1)}, {s(sRs)}\ns_add_u32 {s(sB1)}, {s(sB1)}, {s(sCc)}")
        a(f"s_cmp_ge_u32 {s(sU)}, 2160\ns_cselect_b32 {s(sB0)}, {OOB}, {s(sB0)}\ns_cselect_b32 {s(sB1)}, {OOB}, {s(sB1)}")
        if pre_wait: a("s_waitcnt lgkmcnt(0)")
        a(f"s_mov_b32 {s(sR)}, s6\ns_mov_b32 {s(sR+1)}, s7\ns_mov_b32 {s(sR+2)}, 819200\ns_mov_b32 {s(sR+3)}, 0x20000")
        for wid, lo in ((3, 8), (4, 12), (5, 14), (6, 16), (7, 18)):
            a(f"s_cmp_eq_u32 {s(sWid)}, {wid}\ns_cselect_b64 {s(sR,2)}, s[{lo}:{lo+1}], {s(sR,2)}")
        a(f"s_cmp_ge_u32 {s(sWid)}, 6\ns_cselect_b32 {s(sR+2)}, 1966080, {s(sR+2)}\ns_cmp_lt_u32 {s(sWid)}, 3\ns_cselect_b32 {s(sR+2)}, 2457600, {s(sR+2)}")
        a(f"buffer_load_dwordx4 {v(R,4)}, {v(c+8)}, {s(sR,4)}, {s(sB0)} offen{NT}\nbuffer_load_dwordx4 {v(R+4,4)}, {v(c+9)}, {s(sR,4)}, {s(sB0)} offen{NT}")
        a(f"buffer_load_dwordx4 {v(R+8,4)}, {v(c+8)}, {s(sR,4)}, {s(sB1)} offen{NT}")
        a(f"buffer_load_dwordx4 {v(R+12,4)}, {v(c+9)}, {s(sR,4)}, {s(sB1)} offen{NT}", tag=("raw", k))
    def pk_B(self, a, k_, R, FR, CS):
        sU, sS, sCl, sDst, sScr, sWid = 64, 65, 66, 69, 70, 71
        c = self.PC
        self.pk_decode(a, k_)
        if k_ == 0:
            a(f"v_add_u32 {v(c+4)}, {s(sScr)}, {v(vL16)}")
            a(f"v_lshrrev_b32 {v(c+5)}, 2, {v(vLane)}\nv_lshlrev_b32 {v(c+5)}, 7, {v(c+5)}\nv_and_b32 {v(c+3)}, 3, {v(vLane)}\nv_lshl_add_u32 {v(c+5)}, {v(c+3)}, 3, {v(c+5)}\nv_add_u32 {v(c+5)}, {s(sScr)}, {v(c+5)}")
            a(f"v_lshlrev_b32 {v(c+6)}, 2, {v(vLane)}")
        D = [67, 68, 74, 75]
        L3 = a.newlabel("Ld3"); Lc = L3 + "_c"
        a(f"s_cmp_eq_u32 {s(sWid)}, 6\ns_cbranch_scc1 {L3}")
        a(f"s_mul_i32 {s(sDst)}, {s(sWid)}, 819200\ns_cmp_eq_u32 {s(sWid)}, 7\ns_cselect_b32 {s(sDst)}, {WP_OFF[7]}, {s(sDst)}\ns_mov_b32 {s(sD)}, 102400\ns_cselect_b32 {s(sD)}, 245760, {s(sD)}")
        a(f"s_mul_i32 {s(sA)}, {s(sS)}, 5120\ns_add_u32 {s(sDst)}, {s(sDst)}, {s(sA)}\ns_add_u32 {s(sDst)}, {s(sDst)}, {WS_WP}")
        a(f"s_cmp_ge_u32 {s(sU)}, 2160\ns_cselect_b32 {s(sDst)}, {OOB}, {s(sDst)}")
        for tt in range(4):
            a(f"s_lshl_b32 {s(sA)}, {s(sCl)}, 2\ns_add_u32 {s(sA)}, {s(sA)}, {tt}\ns_mul_hi_u32 {s(sB)}, {s(sA)}, {(1<<32)//5+1}\ns_mul_i32 {s(sCc)}, {s(sB)}, 5\ns_sub_u32 {s(sA)}, {s(sA)}, {s(sCc)}")
            a(f"s_lshl_b32 {s(sA)}, {s(sA)}, 10\ns_mul_i32 {s(sB)}, {s(sB)}, {s(sD)}\ns_add_u32 {s(sA)}, {s(sA)}, {s(sB)}\ns_add_u32 {s(D[tt])}, {s(sA)}, {s(sDst)}")
        a(f"s_mul_i32 {s(sA)}, {s(sS)}, 2560\ns_add_u32 {s(sA)}, {s(sA)}, {WS_CS1}\ns_cmp_eq_u32 {s(sWid)}, 4\ns_cselect_b32 {s(sA)}, {s(sA)}, {OOB}\ns_branch {Lc}")
        a.label(L3)
        a(f"s_mul_i32 {s(sA)}, {s(sCl)}, 81920\ns_lshl_b32 {s(sB)}, {s(sS)}, 12\ns_add_u32 {s(sA)}, {s(sA)}, {s(sB)}")
        for tt in range(4): a(f"s_add_u32 {s(D[tt])}, {s(sA)}, {WS_WP + WP_OFF[6] + 1024*tt}")
        a(f"s_mul_i32 {s(sA)}, {s(sS)}, 6144\ns_add_u32 {s(sA)}, {s(sA)}, {WS_CS3}")
        a.label(Lc)
        a(f"s_lshl_b32 {s(sB)}, {s(sCl)}, 8\ns_add_u32 {s(sA)}, {s(sA)}, {s(sB)}")
        a.wait(vm=("raw", k_))
        for hb in range(2):
            for k in range(2): a(f"ds_write_b128 {v(c+4)}, {v(R+8*hb+4*k,4)} offset:{1024*k}")
            for tt in range(4): a(f"ds_read_b64_tr_b16 {v(FR+4*tt+2*hb,2)}, {v(c+5)} offset:{32*tt}")
        a("s_waitcnt lgkmcnt(0)")
        for tt in range(4):
            a(f"buffer_store_dwordx4 {v(FR+4*tt,4)}, {v(vL16)}, {s(sWS,4)}, {s(D[tt])} offen sc1", tag=("pst", k_))
        if k_ > 0:
            for tt in range(4): a(f"v_mov_b32 {v(CS+tt)}, 0")
            for k in range(4):
                for tt in range(4): a(f"v_dot2c_f32_bf16 {v(CS+tt)}, {s(sOnes)}, {v(FR+4*tt+k)}")
            self.rscatter4(a, [CS, CS + 1, CS + 2, CS + 3], "v_add_f32")
            a(f"buffer_store_dword {v(CS)}, {v(c+6)}, {s(sWS,4)}, {s(sA)} offen sc1", tag=("pst", k_))
    def pk_C(self, a, ks):
        c = self.PC
        a(f"s_lshl_b32 {s(sA)}, s63, 5\ns_add_u32 {s(sA)}, {s(sA)}, {WS_PF + 24576*ks[0]}")
        a.wait(vm=("pst", ks[-1]))
        a("s_mov_b64 exec, 1")
        for k in ks:
            a(f"buffer_store_dwordx2 {v(c+10,2)}, {v(c+7)}, {s(sWS,4)}, {s(sA)} offen sc1")
            if k != ks[-1]: a(f"s_add_u32 {s(sA)}, {s(sA)}, 24576")
        a("s_mov_b64 exec, -1")
    def pack_seq(self, a, mid=None):
        c = self.PC
        self.pk_B(a, 0, 64, 192, 224)
        self.stamp()
        if mid: mid()
        else:
            self.get_tag(a, c + 10); a(f"v_mov_b32 {v(c+11)}, {s(sTag+1)}")
        self.pk_C(a, [0])
        a(f"v_mov_b32 v13, 1\ns_mov_b64 exec, 1\nds_add_u32 {v(vZ)}, v13 offset:{L_C0-L_CNT}\ns_mov_b64 exec, -1")
        self.stamp()
        if not self.opt.get("noxi"): self.lds_spin(a, vZ, L_XI - L_CNT, 4, 13, sleep=1)
        for k in (1, 2): self.pk_A(a, k, 64 + 16 * k)
    def touch_addr(self, a, d):
        a(f"s_lshl_b32 s74, {s(sC)}, 2\ns_mul_i32 s74, s74, {TS}\ns_add_u32 s74, s74, {WS_TILE}")
        a(f"v_lshrrev_b32 {v(d+2)}, 4, {v(vLane)}\ns_mov_b32 {s(sB)}, {TS}\nv_mul_lo_u32 {v(d+2)}, {s(sB)}, {v(d+2)}\nv_and_b32 {v(d)}, 15, {v(vLane)}\nv_lshl_add_u32 {v(d)}, {v(d)}, 7, {v(d+2)}")
        a(f"v_and_b32 {v(d+1)}, 3, {v(vLane)}\nv_lshl_add_u32 {v(d+1)}, {v(d+1)}, 7, {v(d+2)}")

    def sweep(self, h, name, loads, val, sleep):
        h.label(name); h.reset_hist()
        for k, ld in enumerate(loads): h(f"buffer_load_dwordx2 {v(128+2*k,2)}, {ld} sc1")
        h(f"s_waitcnt vmcnt(0)\nv_cmp_ne_u64 vcc, {s(sTag,2)}, {v(128,2)}")
        for k in range(1, len(loads)): h(f"v_cmp_ne_u64 {s(sMk,2)}, {s(sTag,2)}, {v(128+2*k,2)}\ns_or_b64 vcc, vcc, {s(sMk,2)}")
        h(f"s_cbranch_vccz {name}_ok\ns_sleep {sleep}")
        self.spin_tail(h, name, name + "_ok")
        h.label(name + "_ok"); h.reset_hist()
        h(f"v_mov_b32 v56, {val}\ns_mov_b64 exec, 1\nds_write_b32 {v(vZ)}, v56 offset:{L_PKR-L_CNT}\ns_mov_b64 exec, -1")

    def prestore(self, h):
        h("v_mov_b32 v232, 0\nv_mov_b32 v233, 0\nv_mov_b32 v234, 0\nv_mov_b32 v235, 0")
        for w in range(4):
            h(f"s_mul_i32 {s(sA)}, {s(sJ)}, 2560\ns_add_u32 {s(sA)}, {s(sA)}, {s(sTile)}\ns_add_u32 {s(sA)}, {s(sA)}, {w*TS}")
            for buf in (BUFA, BUFB):
                h(f"s_add_u32 {s(sB)}, {s(sA)}, {buf}")
                h(f"buffer_store_dwordx4 v[232:235], {v(vL16)}, {s(sWS,4)}, {s(sB)} offen sc1\nbuffer_store_dwordx4 v[232:235], {v(vL16)}, {s(sWS,4)}, {s(sB)} offen offset:1024 sc1")
                h(f"buffer_store_dwordx2 v[232:233], {v(vL8)}, {s(sWS,4)}, {s(sB)} offen offset:2048 sc1")
            h(f"s_lshl_b32 {s(sA)}, {s(sJ)}, 11\ns_add_u32 {s(sA)}, {s(sA)}, {s(sTile)}\ns_add_u32 {s(sA)}, {s(sA)}, {w*TS + BUFG}")
            for ch in range(1):
                h(f"buffer_store_dwordx4 v[232:235], {v(vL16)}, {s(sWS,4)}, {s(sA)} offen sc1\nbuffer_store_dwordx4 v[232:235], {v(vL16)}, {s(sWS,4)}, {s(sA)} offen offset:1024 sc1\ns_add_u32 {s(sA)}, {s(sA)}, 16384")

    def relay(self):
        h = self.h
        h.label("L_relay"); h.reset_hist(); h.reset_cnt()
        self.a, sa = h, self.a; self.nst = 1; self.inhelper = True
        h("s_setprio 2\ns_waitcnt lgkmcnt(0)")
        self.srd(h, sWS, 24, WS_SIZE)
        h(f"s_mul_i32 {s(sA)}, {s(sJ)}, 5\ns_lshr_b32 {s(sA)}, {s(sA)}, 2\ns_mul_i32 {s(sTJ)}, {s(sA)}, 640\ns_add_u32 {s(sTJ)}, {s(sTJ)}, {WS_PF}")
        h(f"v_min_u32 v58, 39, {v(vLane)}\nv_lshlrev_b32 v58, 5, v58\nv_add_u32 v59, 6400, v58\nv_add_u32 v60, 12800, v58")
        if self.opt.get("pre") in (3, 4):
            h(f"s_lshl_b32 {s(sTile)}, {s(sC)}, 2\ns_mul_i32 {s(sTile)}, {s(sTile)}, {TS}\ns_add_u32 {s(sTile)}, {s(sTile)}, {WS_TILE}")
            if self.opt["pre"] == 4: self.lds_spin(h, vZ, L_C0 - L_CNT, 3, 13, sleep=2)
            self.prestore(h)
        self.get_tag(h, 28)
        self.lds_spin(h, vZ, L_C0 - L_CNT, 3, 13, sleep=2)
        h(f"s_sleep {self.opt.get('sw0', 8)}")
        self.stamp()
        self.sweep(h, "L_pfa", [f"v{58+k}, {s(sWS,4)}, {s(sTJ)} offen" for k in range(3)], 3, 4)
        self.stamp()
        if self.opt.get("t6"):
            self.touch_addr(h, 46)
            h(f"v_and_b32 {v(vLa)}, 1, {v(vLane)}\nv_mul_u32_u24 {v(vLa)}, 260, {v(vLa)}\nv_add_u32 {v(vLa)}, {L_LW}, {v(vLa)}")
            self.lds_spin(h, vLa, 0, self.opt["t6"], 13, sleep=2)
            for buf in (BUFA, BUFB)[:self.opt.get("t6n", 2)]:
                h(f"s_mul_i32 {s(sB)}, {s(sJ)}, 2560\ns_add_u32 {s(sB)}, {s(sB)}, s74\ns_add_u32 {s(sB)}, {s(sB)}, {buf}")
                h(f"buffer_load_dword v50, v46, {s(sWS,4)}, {s(sB)} offen sc1\nbuffer_load_dword v50, v47, {s(sWS,4)}, {s(sB)} offen offset:2048 sc1")
        h(f"s_lshl_b32 {s(sA)}, {s(sC)}, 3\ns_add_u32 {s(sA)}, {s(sA)}, {s(sJ)}\ns_mul_i32 {s(sA)}, {s(sA)}, 10240\ns_add_u32 {s(sD)}, {s(sA)}, {WS_KV}\ns_sub_u32 {s(sE)}, {s(sD)}, {8*10240}")
        h(f"v_add_u32 v40, {P1TMP + 4*5120}, {v(vL8)}\nv_add_u32 v41, {P1TMP}, {v(vL8)}")
        for k in range(5): h(f"v_mov_b32 {v(66+4*k)}, {s(sTag)}\nv_mov_b32 {v(67+4*k)}, {s(sTag+1)}")
        def out(part):
            self.lds_spin(h, vZ, L_CW + 1024 + 768 - L_CNT, part + 1, 13, sleep=1)
            for k in range(5): h(f"ds_read_b64 {v(64+4*k,2)}, v40 offset:{2560*part+512*k}")
            h(f"s_waitcnt lgkmcnt(0)\ns_add_u32 {s(sA)}, {s(sD)}, {5120*part}")
            for k in range(5):
                if k == 4: h(f"s_add_u32 {s(sA)}, {s(sA)}, 4096")
                h(f"buffer_store_dwordx4 {v(64+4*k,4)}, {v(vL16)}, {s(sWS,4)}, {s(sA)} offen offset:{1024*(k%4)} sc1")
        def inc(part):
            L = f"L_kv{part}"
            for k in range(5): h(f"v_mov_b32 {v(96+4*k)}, 0\nv_mov_b32 {v(97+4*k)}, 0")
            h(f"s_cmp_eq_u32 {s(sC)}, 0\ns_cbranch_scc1 {L}_ok")
            h(f"s_add_u32 {s(sA)}, {s(sE)}, {5120*part}\ns_add_u32 {s(sB)}, {s(sA)}, 4096")
            h.label(L); h.reset_hist()
            for k in range(5): h(f"buffer_load_dwordx4 {v(96+4*k,4)}, {v(vL16)}, {s(sWS,4)}, {s(sB if k == 4 else sA)} offen offset:{1024*(k%4)} sc1")
            h(f"s_waitcnt vmcnt(0)\nv_cmp_ne_u64 vcc, {s(sTag,2)}, {v(98,2)}")
            for k in range(1, 5): h(f"v_cmp_ne_u64 {s(sMk,2)}, {s(sTag,2)}, {v(98+4*k,2)}\ns_or_b64 vcc, vcc, {s(sMk,2)}")
            h(f"s_cbranch_vccz {L}_ok\ns_sleep 1")
            self.spin_tail(h, L, L + "_ok")
            h.label(L + "_ok"); h.reset_hist()
            for k in range(5): h(f"ds_write_b64 v41, {v(96+4*k,2)} offset:{2560*part+512*k}")
            h(f"v_mov_b32 v42, {part+1}\ns_mov_b64 exec, 1\nds_write_b32 {v(vZ)}, v42 offset:{L_XR-L_CNT}\ns_mov_b64 exec, -1")
        if self.opt.get("norelay"):
            h(f"v_mov_b32 v42, 2\nds_write_b32 {v(vZ)}, v42 offset:{L_XR-L_CNT}")
        else:
            out(0); inc(0); self.stamp(); out(1); self.stamp(); inc(1); self.stamp()
        self.finish(h)
        self.a = sa

    def service(self):
        h = self.h; c = self.PC
        h.label("L_service"); h.reset_hist(); h.reset_cnt()
        self.a, sa = h, self.a; self.nst = 1; self.inhelper = True
        h.vm = [("raw", 0)] * 4
        h(f"buffer_load_dword {v(c+10)}, {v(c+7)}, {s(sWS,4)}, 0 offen sc1", tag="ep")
        self.touch_addr(h, 44); h(f"s_mov_b32 {s(sTile)}, s74")
        h(f"v_and_b32 {v(vLa)}, 1, {v(vLane)}\nv_mul_u32_u24 {v(vLa)}, 260, {v(vLa)}\nv_add_u32 {v(vLa)}, {L_LW}, {v(vLa)}")
        h(f"s_mul_i32 {s(sA)}, {s(sJ)}, 5\ns_lshr_b32 {s(sA)}, {s(sA)}, 2\ns_mul_i32 {s(sTJ)}, {s(sA)}, 640\ns_add_u32 {s(sTJ)}, {s(sTJ)}, {WS_PF}")
        h(f"s_mul_i32 {s(sT)}, {s(sJ)}, 1920\ns_add_u32 {s(sT)}, {s(sT)}, {WS_PF + 32*PF_BASE[6]}\ns_mul_i32 {s(sE)}, {s(sA)}, 1536\ns_add_u32 {s(sE)}, {s(sE)}, {WS_PF + 32*PF_BASE[7]}")
        h(f"v_min_u32 v58, 39, {v(vLane)}\nv_lshlrev_b32 v58, 5, v58")
        for k in range(1, 6): h(f"v_add_u32 v{58+k}, {6400*k}, v58")
        h(f"v_min_u32 v53, 59, {v(vLane)}\nv_lshlrev_b32 v53, 5, v53\nv_min_u32 v54, 47, {v(vLane)}\nv_lshlrev_b32 v54, 5, v54")
        h.wait(vm="ep")
        h(f"v_add_u32 {v(c+10)}, 1, {v(c+10)}\nv_mov_b32 {v(c+11)}, 1\nds_write_b64 {v(vZ)}, {v(c+10,2)} offset:{L_TAG-L_CNT}")
        h(f"v_readfirstlane_b32 {s(sTag)}, {v(c+10)}")
        h(f"s_mul_i32 {s(sTag+1)}, {s(sTag)}, 0x9E3779B1\ns_xor_b32 {s(sTag+1)}, {s(sTag+1)}, 0x7F4A7C15\ns_waitcnt lgkmcnt(0)\nv_mov_b32 {v(c+11)}, {s(sTag+1)}")
        def xt_pub():
            h(f"s_getreg_b32 {s(sPI)}, hwreg(HW_REG_XCC_ID)\ns_and_b32 {s(sPI)}, {s(sPI)}, 15\nv_mov_b32 {v(c+12)}, {s(sPI)}\nv_mov_b32 {v(c+13)}, 0")
            h(f"s_lshl_b32 {s(sA)}, {s(sC)}, 3\ns_add_u32 {s(sA)}, {s(sA)}, {s(sJ)}\ns_lshl_b32 {s(sA)}, {s(sA)}, 4\ns_add_u32 {s(sA)}, {s(sA)}, {WS_XT}")
            h(f"s_mov_b64 exec, 1\nbuffer_store_dwordx4 {v(c+10,4)}, {v(c+7)}, {s(sWS,4)}, {s(sA)} offen sc1\ns_mov_b64 exec, -1")
        def touch20(buf):
            h(f"s_mul_i32 {s(sB)}, {s(sJ)}, 2560\ns_add_u32 {s(sB)}, {s(sB)}, {s(sTile)}\ns_add_u32 {s(sB)}, {s(sB)}, {buf}")
            h(f"buffer_load_dword v47, v44, {s(sWS,4)}, {s(sB)} offen sc1\nbuffer_load_dword v47, v45, {s(sWS,4)}, {s(sB)} offen offset:2048 sc1")
        def touch16(buf):
            h(f"s_lshl_b32 {s(sB)}, {s(sJ)}, 11\ns_add_u32 {s(sB)}, {s(sB)}, {s(sTile)}\ns_add_u32 {s(sB)}, {s(sB)}, {buf}")
            h(f"buffer_load_dword v47, v44, {s(sWS,4)}, {s(sB)} offen sc1")
        self.pack_seq(h, xt_pub)
        prestore = lambda: self.prestore(h)
        swa = [f"v{58+k}, {s(sWS,4)}, {s(sTJ)} offen" for k in range(3)]
        if self.opt.get("pre") == 1: prestore()
        for k in (1, 2): self.pk_B(h, k, 64 + 16 * k, 192 + 16 * (k & 1), 224)
        self.stamp()
        if self.opt.get("pre") == 2: prestore()
        h(f"s_lshl_b32 {s(sA)}, {s(sC)}, 7\ns_add_u32 {s(sA)}, {s(sA)}, {WS_XT}\nv_and_b32 v57, 7, {v(vLane)}\nv_lshlrev_b32 v57, 4, v57")
        h.label("L_xt"); h.reset_hist()
        h(f"buffer_load_dwordx4 v[48:51], v57, {s(sWS,4)}, {s(sA)} offen sc1\ns_waitcnt vmcnt(0)\nv_cmp_ne_u64 vcc, {s(sTag,2)}, v[48:49]\ns_cbranch_vccz L_xt_ok\ns_sleep 4")
        self.spin_tail(h, "L_xt", "L_xt_ok")
        h.label("L_xt_ok"); h.reset_hist()
        h(f"v_cmp_ne_u32 vcc, {s(sPI)}, v50\ns_cmp_eq_u64 vcc, 0\ns_cselect_b32 {s(sA)}, {2 if self.force_sc1 else 1}, 2\nv_mov_b32 v57, {s(sA)}")
        self.lds_spin(h, vZ, L_PKR - L_CNT, 1, 13, sleep=2)
        h(f"s_mov_b64 exec, 1\nds_write_b32 {v(vZ)}, v57 offset:{L_MODE-L_CNT}\ns_mov_b64 exec, -1")
        self.pk_C(h, [1, 2])
        self.stamp()
        self.lds_spin(h, vZ, L_PKR - L_CNT, 3, 13, sleep=2)
        self.lds_spin(h, vLa, 0, self.opt.get("gs", 10), 13, sleep=2)
        self.sweep(h, "L_pfb", [f"v{61+k}, {s(sWS,4)}, {s(sTJ)} offen" for k in range(3)] + [f"v53, {s(sWS,4)}, {s(sT)} offen", f"v54, {s(sWS,4)}, {s(sE)} offen", f"v54, {s(sWS,4)}, {s(sE)} offen offset:1536"], 8, 8)
        self.stamp()
        self.lds_spin(h, vLa, 0, self.opt.get("gt", 14), 13, sleep=2)
        if not self.opt.get("not") and not self.opt.get("t6"): touch20(BUFA); touch20(BUFB)
        if not self.opt.get("nog") and not self.opt.get("not"):
            touch16(BUFG)
        for (wsoff, rowb, jb, nl, R) in ((WS_CS1, 2560, 320, 20, 64), (WS_CS3, 6144, 768, 48, 144)):
            h(f"s_mul_i32 {s(sA)}, {s(sJ)}, {jb}\ns_add_u32 {s(sA)}, {s(sA)}, {wsoff}")
            h(f"s_mov_b64 exec, {(1 << nl) - 1:#x}" if nl <= 32 else f"s_mov_b32 exec_lo, -1\ns_mov_b32 exec_hi, {(1 << (nl-32)) - 1:#x}")
            for k in range(20):
                if not self.opt.get("nocs"): h(f"buffer_load_dwordx4 {v(R+4*k,4)}, {v(vL16)}, {s(sWS,4)}, {s(sA)} offen sc1")
                h(f"s_add_u32 {s(sA)}, {s(sA)}, {rowb}")
        h("s_waitcnt vmcnt(0)\ns_setprio 0")
        for (nl, R, ldst) in ((48, 144, L_CS3), (20, 64, L_CS1)):
            if nl == 20: h(f"s_mov_b64 exec, {(1 << nl) - 1:#x}")
            for k in range(1, 20):
                for e in range(4): h(f"v_add_f32 {v(R+e)}, {v(R+e)}, {v(R+4*k+e)}")
            h(f"v_add_u32 {v(TT)}, {ldst}, {v(vL16)}\nds_write_b128 {v(TT)}, {v(R,4)}")
        h(f"s_mov_b64 exec, -1\nv_mov_b32 {v(TT+1)}, 2\nds_write_b32 {v(vZ)}, {v(TT+1)} offset:{L_CSRDY-L_CNT}")
        self.stamp()
        h("s_cmp_lg_u32 s2, 0\ns_cbranch_scc1 L_sv_end")
        h(f"s_mov_b32 {s(sA)}, {WS_XT}")
        h.label("L_ep"); h.reset_hist()
        for k in range(4): h(f"buffer_load_dwordx2 v[{48+2*k}:{49+2*k}], {v(vL16)}, {s(sWS,4)}, {s(sA)} offen offset:{1024*k} sc1")
        h(f"s_waitcnt vmcnt(0)\nv_cmp_ne_u64 vcc, {s(sTag,2)}, v[48:49]")
        for k in range(1, 4):
            h(f"v_cmp_ne_u64 {s(sMk,2)}, {s(sTag,2)}, v[{48+2*k}:{49+2*k}]\ns_or_b64 vcc, vcc, {s(sMk,2)}")
        h("s_cbranch_scc0 L_ep_ok\ns_sleep 4")
        self.spin_tail(h, "L_ep", "L_ep_ok")
        h.label("L_ep_ok"); h.reset_hist()
        h(f"s_mov_b64 exec, 1\nbuffer_store_dword {v(c+10)}, {v(c+7)}, {s(sWS,4)}, 0 offen sc1\ns_mov_b64 exec, -1")
        h.label("L_sv_end"); h.reset_hist()
        self.finish(h)
        self.a = sa

    def build(self):
        self.prologue(); n0 = self.nst
        self.compute()
        self.relay(); self.service()
        self.loader()
        hdr = open("sequential_preLN__sliding_local_dilated__mixer_s_mlp__prompt.s.ref").read().split("; Override")[0]
        out = hdr + f"; @launch grid=(256,1,1) block=(512,1,1) lds={LDS_SIZE}\n"
        out += f'.amdgcn_target "amdgcn-amd-amdhsa--gfx950"\n.text\n.globl {KNAME}\n.p2align 8\n.type {KNAME},@function\n{KNAME}:\n'
        out += self.a.text() + self.h.text() + self.t.text() + "L_end:\n    s_endpgm\nL_code_end:\n.p2align 7\n.type L_table,@object\nL_table:\n" + "".join(f".long {i}\n" for i in range(64)) + ".size L_table, 256\n"
        out += f'''.section .rodata,"a"
.p2align 6
.amdhsa_kernel {KNAME}
  .amdhsa_next_free_vgpr 256
  .amdhsa_next_free_sgpr 102
  .amdhsa_accum_offset 256
  .amdhsa_group_segment_fixed_size 0
  .amdhsa_kernarg_size 88
  .amdhsa_user_sgpr_count 2
  .amdhsa_user_sgpr_kernarg_segment_ptr 1
  .amdhsa_system_sgpr_workgroup_id_x 1
  .amdhsa_float_denorm_mode_32 3
.end_amdhsa_kernel
'''
        return out

if __name__ == "__main__":
    import argparse
    p = argparse.ArgumentParser()
    p.add_argument("-o", default="sequential_preLN__sliding_local_dilated__mixer_s_mlp__prompt.s")
    p.add_argument("--stamps", action="store_true"); p.add_argument("--sc1", action="store_true"); p.add_argument("--opt", action="append", default=[])
    args = p.parse_args()
    opt = {}
    for kv in args.opt:
        k_, _, v_ = kv.partition("="); opt[k_] = int(v_) if v_ else 1
    g = Gen(stamps=args.stamps, force_sc1=args.sc1, opt=opt)
    open(args.o, "w").write(g.build())
    print("units:", [(u, UADDR.get(u), UNEED.get(u)) for u in range(len(UNITS))])
    print("nops inserted:", g.a.nops + g.t.nops)
```

```python
import sys, math, struct
from asmlib import Asm

KNAME = "sequential_preLN__sliding_local_dilated__mixer_s_mlp__prompt_kernel"

def f2u(x): return struct.unpack("<I", struct.pack("<f", x))[0]

WS_EPOCH = 0
WS_XT = 0x1000
WS_PF = 0x8B2000
WS_CS1 = 0x8000
WS_CS3 = 0x18000
WS_WP = 0x40000
WP_OFF = [819200 * k for k in range(7)] + [819200 * 6 + 1966080]
PF_BASE = [200 * k for k in range(7)] + [1680]
WS_TILE = 0x8C8000
TS = 115712
BUFA, BUFB, BUFG, SHAD, FLG = 0, 20480, 40960, 90112, 110592
GBUF = [BUFG, BUFA, BUFB]
F1, F3, FH, G0, S2, S4 = FLG, FLG + 128, FLG + 256, FLG + 384, FLG + 1024, FLG + 3072
WS_KV = WS_TILE + 128 * TS
WS_STAMP = WS_KV + 256 * 10240
WS_SIZE = WS_STAMP + 2048 * 128
OOB = 0x40000000

RING = 153600
P1TMP = 128000
STAGE = 143360
L_CNT = 153600
L_LANDED = L_CNT + 32
L_MODE = L_CNT + 40
L_CSRDY = L_CNT + 44
L_XI = L_CNT + 56
L_C0 = L_CNT + 60
L_PKR = L_CNT + 96
L_XR = L_CNT + 64
L_TAG = L_CNT + 48
L_CS1 = L_CNT + 256
L_CS3 = L_CS1 + 320
L_PSCR = L_CNT + 2048
L_CW = L_PSCR + 6144
L_LW = L_CS3 + 768 + 64
LDS_SIZE = 163840

XIMG = 71680
def plan_units():
    units = [(0, "pseudo", None)]
    for ps in range(3):
        for i in range(5): units.append((20480, "raw", (ps, 0, i)))
    units.append((0, "pseudo", None))
    for wid in range(3, 6):
        for i in range(4): units.append((25600, "pk", (wid, 0, i)))
    for wid in (6, 7):
        for ch in range(3):
            for i in range(4): units.append((20480, "pk", (wid, ch, i)))
    placed = [(XIMG, 81920, 0), (P1TMP, 25600, 16)]
    addr = {}; need = {}
    for u, (size, kind, arg) in enumerate(units):
        if kind == "pseudo": continue
        if kind == "raw": cands = [20480 * k for k in range(6)]
        elif size == 25600: cands = [25600 * k for k in range(6)]
        else: cands = [20480 * k for k in range(7)]
        best = None
        for a in cands:
            nd = 0
            for (pa, psz, pi) in placed:
                if pa < a + size and a < pa + psz: nd = max(nd, pi + 1)
            if best is None or nd < best[0]: best = (nd, a)
        need[u], addr[u] = best
        placed.append((best[1], size, u))
    return units, addr, need
UNITS, UADDR, UNEED = plan_units()
U_RAW, U_X, U_WO, U_W1, U_W2, U_W3, U_W4 = 1, 16, 17, 21, 25, 29, 41
PUBS = set()
HK, HV = 6, 7

vLane, vL16, vL8, vZ, vWA, vLa, vLC, vCV, vPA = 1, 2, 3, 4, 5, 6, 7, 8, 9
vM = 12
KOWN, VFR = 28, 44
AF, WW, ACC, HP, X1P, TT = 64, 144, 176, 208, 218, 228
SLOTS12 = [WW + 4 * i for i in range(8)] + [36, 40, 56, 60]
sWS, sIN, sOUT = 28, 32, 36
sWave, sX, sQ, sJ, sC, sT, sBud, sEp = 40, 41, 42, 43, 44, 45, 46, 47
sTag = 48
sMode = 50
sRot = 51
sTile = 55
sTJ = 56
sA, sB, sCc, sD, sE = 57, 58, 59, 60, 61
sPI = 62
sMa, sMb, sPar = 64, 66, 68
sSh = 70
sOnes = 72
sRho = 73
sSt = 76
sCk = 22
sMk = 26

def v(a, n=1): return f"v{a}" if n == 1 else f"v[{a}:{a+n-1}]"
def s(a, n=1): return f"s{a}" if n == 1 else f"s[{a}:{a+n-1}]"

class Gen:
    def __init__(self, stamps=False, force_sc1=False, budget=1 << 17, opt=None):
        self.opt = dict(sw0=20, pstep=2, pph=0, t6=5); self.opt.update(opt or {})
        step = self.opt.get("pstep", 2)
        mx = max(UNEED.values()) + step
        PUBS.update([1, U_X + 1] + [x for x in range(2, mx + 1) if x % step == self.opt.get("pph", 1) % step])
        self.clk = 's_memtime' if self.opt.get('cyc') else 's_memrealtime'
        self.a = Asm(); self.t = Asm(); self.h = Asm(); self.h.nlabel = 200000
        self.stamps = stamps; self.force_sc1 = force_sc1; self.budget = budget
        self.nst = 0; self.inhelper = False
        self.t.nlabel = 100000

    def stamp(self, grp=0):
        sp = self.opt.get("sp", 0)
        if grp != sp and not (grp == 0 and self.nst == 0) and not (grp == 0 and self.inhelper): return
        if self.stamps and self.nst < 11:
            self.a(f"{self.clk} {s(sSt + 2 * self.nst, 2)}"); self.nst += 1

    def srd(self, a, d, lo, size):
        a(f"s_mov_b32 {s(d)}, {s(lo)}\ns_mov_b32 {s(d+1)}, {s(lo+1)}\ns_mov_b32 {s(d+2)}, {size}\ns_mov_b32 {s(d+3)}, 0x20000")

    def spin_tail(self, a, Lretry, Lok):
        a(f"s_cmp_eq_u32 {s(sBud)}, 0\ns_cbranch_scc1 {Lok}\ns_sub_u32 {s(sBud)}, {s(sBud)}, 1\ns_branch {Lretry}")

    def lds_spin(self, a, addr_v, off, need, tmp, sleep=0):
        L = a.newlabel("Lsp"); Lok = L + "_ok"
        a.label(L)
        a(f"ds_read_b32 {v(tmp)}, {v(addr_v)} offset:{off}\ns_waitcnt lgkmcnt(0)\nv_cmp_gt_u32 vcc, {need}, {v(tmp)}\ns_cbranch_vccz {Lok}")
        if sleep: a(f"s_sleep {sleep}")
        self.spin_tail(a, L, Lok)
        a.label(Lok)

    def allreduce2(self, a, x, y, t, op="v_add_f32"):
        a(f"v_permlane32_swap_b32 {v(x)}, {v(y)}")
        a(f"{op} {v(x)}, {v(x)}, {v(y)}")
        a(f"v_mov_b32 {v(y)}, {v(x)}")
        a(f"v_permlane16_swap_b32 {v(x)}, {v(y)}")
        a(f"{op} {v(x)}, {v(x)}, {v(y)}")
        a(f"v_mov_b32 {v(y)}, {v(x)}")
        a(f"v_permlane32_swap_b32 {v(x)}, {v(y)}")

    def rscatter4(self, a, m, op):
        a(f"v_permlane32_swap_b32 {v(m[0])}, {v(m[2])}")
        a(f"v_permlane32_swap_b32 {v(m[1])}, {v(m[3])}")
        a(f"{op} {v(m[0])}, {v(m[0])}, {v(m[2])}")
        a(f"{op} {v(m[1])}, {v(m[1])}, {v(m[3])}")
        a(f"v_permlane16_swap_b32 {v(m[0])}, {v(m[1])}")
        a(f"{op} {v(m[0])}, {v(m[0])}, {v(m[1])}")

    def allgather4(self, a, m):
        a(f"v_mov_b32 {v(m[1])}, {v(m[0])}")
        a(f"v_permlane16_swap_b32 {v(m[0])}, {v(m[1])}")
        a(f"v_mov_b32 {v(m[2])}, {v(m[0])}")
        a(f"v_mov_b32 {v(m[3])}, {v(m[1])}")
        a(f"v_permlane32_swap_b32 {v(m[0])}, {v(m[2])}")
        a(f"v_permlane32_swap_b32 {v(m[1])}, {v(m[3])}")

    def moded(self, lines, tag=None):
        a, t = self.a, self.t
        L = a.newlabel("Lm"); Lb = L + "_b"
        a(f"s_cmp_lg_u32 {s(sMode)}, 1\ns_cbranch_scc1 {L}")
        for ln in lines: a(ln, tag)
        a.label(Lb)
        t.label(L); t.reset_hist()
        for ln in lines: t(ln + (" sc1" if ln.startswith("buffer_store") else ""))
        t(f"s_branch {Lb}")

    def handoff_store(self, r, buf):
        a = self.a
        a(f"s_add_u32 {s(sA)}, {s(sTJ)}, {buf}")
        self.moded([f"buffer_store_dwordx4 {v(r,4)}, {v(vL16)}, {s(sWS,4)}, {s(sA)} offen",
                    f"buffer_store_dwordx4 {v(r+4,4)}, {v(vL16)}, {s(sWS,4)}, {s(sA)} offen offset:1024",
                    f"buffer_store_dwordx2 {v(r+8,2)}, {v(vL8)}, {s(sWS,4)}, {s(sA)} offen offset:2048"])

    def flag_store(self, off):
        a = self.a
        a(f"s_lshl_b32 {s(sA)}, {s(sJ)}, 3\ns_add_u32 {s(sA)}, {s(sA)}, {s(sTile)}\ns_add_u32 {s(sA)}, {s(sA)}, {off}")
        a("s_mov_b64 exec, 1")
        self.moded([f"buffer_store_dwordx2 {v(self.vTag,2)}, {v(self.vZero)}, {s(sWS,4)}, {s(sA)} offen"])
        a("s_mov_b64 exec, -1")

    def poll8(self, a, voff, soff, tmp, imm=0):
        L = a.newlabel("Lp"); Lok = L + "_ok"
        a.label(L)
        a(f"buffer_load_dwordx2 {v(tmp,2)}, {v(voff)}, {s(sWS,4)}, {soff} offen offset:{imm} sc1")
        a(f"s_waitcnt vmcnt(0)\nv_cmp_ne_u64 vcc, {s(sTag,2)}, {v(tmp,2)}\ns_cbranch_vccz {Lok}")
        self.spin_tail(a, L, Lok)
        a.label(Lok)

    def stream_init(self, frags, slots, G=4):
        self.fr = frags; self.rp = 0; self.cur_unit = None; self.chk = {}
        self.slots = slots; self.G = G; self.side = []; self.rate = 1

    def stream_read(self):
        a = self.a
        if self.rp >= len(self.fr): return
        f = self.rp; u, off, kind = self.fr[f]
        prev = self.cur_unit
        if u != prev:
            u0 = self.opt.get("u0", 2)
            if u0 <= u < u0 + 5: self.stamp(7)
            if self.chk.get(u) == 2:
                L = a.newlabel("Lw"); Lok = L + "_ok"
                a(f"s_cmp_lg_u64 {s(sCk,2)}, 0\ns_cbranch_scc1 {L}")
                a.label(Lok)
                t = self.t
                t.label(L); t.reset_hist()
                t(f"ds_read_b32 {v(vLC)}, {v(vLa)}\ns_waitcnt lgkmcnt(0)\nv_cmp_gt_u32 {s(sCk,2)}, {u+1}, {v(vLC)}\ns_cmp_lg_u64 {s(sCk,2)}, 0\ns_cbranch_scc0 {Lok}")
                self.spin_tail(t, L, Lok)
            else:
                self.lds_spin(a, vLa, 0, u + 1, vLC)
            if u0 <= u < u0 + 5: self.stamp(7)
            self.cur_unit = u
        r = self.slots[f % len(self.slots)]
        A = UADDR[u] + off
        a(f"ds_read_b128 {v(r,4)}, {v((vL16, vWA, vPA)[A >> 16])} offset:{A & 0xffff}", tag=("w", f))
        self.rp += 1
        last = self.rp == len(self.fr)
        if u != prev and prev is not None and (prev + 1) in PUBS: a(f"ds_write_b32 {v(self.vCnt)}, {v(vCV)}")
        nxt = lambda d: self.fr[f + d][0] if f + d < len(self.fr) else None
        LA = self.opt.get("la", 9)
        if nxt(LA) not in (None, u) and nxt(LA) not in self.chk:
            a(f"ds_read_b32 {v(vLC)}, {v(vLa)}", tag=("chk", nxt(LA))); self.chk[nxt(LA)] = 1
        if nxt(2) not in (None, u) and self.chk.get(nxt(2)) == 1:
            a.wait(ds=("chk", nxt(2)))
            a(f"v_cmp_gt_u32 {s(sCk,2)}, {nxt(2)+1}, {v(vLC)}"); self.chk[nxt(2)] = 2
        if nxt(1) != u and not last and (u + 1) in PUBS: a(f"v_mov_b32 {v(vCV)}, {u+1}")
        if last and (u + 1) in PUBS: self.publish(u + 1)

    def publish(self, val):
        self.a(f"v_mov_b32 {v(vCV)}, {val}\nds_write_b32 {v(self.vCnt)}, {v(vCV)}")

    def prime(self):
        for _ in range(len(self.slots)): self.stream_read()

    def mfma_w(self, f, acc, af, first=False, swap=False):
        a = self.a
        if f % self.G == 0: a.wait(ds=("w", min(f + self.G - 1, len(self.fr) - 1)))
        r = self.slots[f % len(self.slots)]
        c = "0" if first else v(acc, 4)
        if swap: a(f"v_mfma_f32_16x16x32_bf16 {v(acc,4)}, {v(af,4)}, {v(r,4)}, {c}")
        else: a(f"v_mfma_f32_16x16x32_bf16 {v(acc,4)}, {v(r,4)}, {v(af,4)}, {c}")
        self.stream_read()
        for _ in range(self.rate):
            if self.side:
                op = self.side.pop(0)
                if callable(op): op()
                elif isinstance(op, tuple): a(op[0], tag=op[1])
                else: a(op)

    def async_check(self, addr, off, need, tmp, name):
        a = self.a
        def chk():
            L = a.newlabel("La"); Lok = L + "_ok"
            a.wait(ds=name)
            a(f"v_cmp_gt_u32 vcc, {need}, {v(tmp)}\ns_cbranch_vccnz {L}")
            a.label(Lok)
            t = self.t
            t.label(L); t.reset_hist()
            t(f"ds_read_b32 {v(tmp)}, {v(addr)} offset:{off}\ns_waitcnt lgkmcnt(0)\nv_cmp_gt_u32 vcc, {need}, {v(tmp)}\ns_cbranch_vccz {Lok}")
            self.spin_tail(t, L, Lok)
        return (f"ds_read_b32 {v(tmp)}, {v(addr)} offset:{off}", name), chk

    def prologue(self):
        a = self.a
        a("s_cmp_ge_u32 s2, 256\ns_cbranch_scc1 L_end")
        a("s_load_dwordx16 s[4:19], s[0:1], 0\ns_load_dwordx4 s[20:23], s[0:1], 64\ns_load_dwordx2 s[24:25], s[0:1], 80")
        self.stamp()
        a("s_getpc_b64 s[62:63]")
        a.label("L_pcref")
        a(f"s_lshr_b32 {s(sA)}, s2, 3\ns_lshl_b32 {s(sA)}, {s(sA)}, 12\nv_lshlrev_b32 v1, 7, v0\nv_add_u32 v1, {s(sA)}, v1")
        a(f"v_min_u32 v1, L_code_end-L_pcref-4, v1\nv_cmp_gt_u32 vcc, 32, v0\ns_and_saveexec_b64 {s(sMk,2)}, vcc\ns_cbranch_execz L_nopf")
        a("global_load_dword v255, v1, s[62:63]")
        a.label("L_nopf")
        a(f"s_mov_b64 exec, -1"); a.reset_cnt()
        a(f"v_and_b32 {v(vLane)}, 63, v0\nv_lshrrev_b32 v0, 6, v0")
        a(f"v_readfirstlane_b32 {s(sWave)}, v0")
        a(f"s_and_b32 {s(sX)}, s2, 7\ns_lshr_b32 {s(sA)}, s2, 3\ns_lshr_b32 {s(sQ)}, {s(sA)}, 3\ns_and_b32 {s(sJ)}, {s(sA)}, 7")
        a(f"s_lshl_b32 {s(sC)}, {s(sX)}, 2\ns_add_u32 {s(sC)}, {s(sC)}, {s(sQ)}")
        a(f"v_lshlrev_b32 {v(vL16)}, 4, {v(vLane)}\nv_lshlrev_b32 {v(vL8)}, 3, {v(vLane)}\nv_mov_b32 {v(vZ)}, {L_CNT}")
        a(f"s_mov_b32 {s(sBud)}, {self.budget}")
        for i in range(4):
            a(f"s_add_u32 {s(sRot+i)}, {s(sQ)}, {i}\ns_and_b32 {s(sRot+i)}, {s(sRot+i)}, 3")
        a(f"s_lshl_b32 {s(sRho)}, {s(sQ)}, 1")
        a(f"s_mov_b32 {s(sOnes)}, 0x3f803f80")
        a(f"s_cmp_lg_u32 {s(sWave)}, 4\ns_cbranch_scc1 L_noinit")
        a(f"v_lshl_add_u32 v12, {v(vLane)}, 2, {v(vZ)}\nv_mov_b32 v14, 0\nv_mov_b32 v15, 0\nv_mov_b32 v16, 0\nv_mov_b32 v17, 0\nv_add_u32 v13, {L_CW}, {v(vL16)}")
        a(f"ds_write_b32 v12, v14\nds_write_b32 v12, v14 offset:{L_LW-L_CNT}\nds_write_b32 v12, v14 offset:{L_LW-L_CNT+256}\nds_write_b128 v13, v[14:17]\nds_write_b128 v13, v[14:17] offset:1024\ns_waitcnt lgkmcnt(0)")
        a.label("L_noinit")
        a("s_barrier")
        self.helper_start()

    def get_tag(self, a, tmp):
        L = a.newlabel("Ltg"); Lok = L + "_ok"
        a.label(L)
        a(f"ds_read_b64 {v(tmp,2)}, {v(vZ)} offset:{L_TAG-L_CNT}\ns_waitcnt lgkmcnt(0)\nv_cmp_gt_u32 vcc, 1, {v(tmp+1)}\ns_cbranch_vccz {Lok}\ns_sleep 1")
        self.spin_tail(a, L, Lok)
        a.label(Lok)
        a(f"v_readfirstlane_b32 {s(sTag)}, {v(tmp)}")
        a(f"s_mul_i32 {s(sTag+1)}, {s(sTag)}, 0x9E3779B1\ns_xor_b32 {s(sTag+1)}, {s(sTag+1)}, 0x7F4A7C15")

    def compute(self):
        a = self.a; h = self.h
        m = vM
        self.vTag = m; self.vZero = m + 2; self.vCnt = m + 3
        vG, vR = m + 4, m + 5
        sImg = sE
        sXo = 75
        MF = "v_mfma_f32_16x16x32_bf16"
        a(f"s_cmp_eq_u32 {s(sWave)}, 6\ns_cbranch_scc1 L_relay")
        a(f"s_add_u32 {s(sPI)}, {s(sWave)}, 1\ns_lshl_b32 {s(sT)}, {s(sC)}, 2\ns_add_u32 {s(sT)}, {s(sT)}, {s(sWave)}")
        a(f"s_mul_i32 {s(sImg)}, {s(sWave)}, 20480\ns_add_u32 {s(sImg)}, {s(sImg)}, {XIMG}")
        t0, t1, x0, x1 = TT, TT + 1, TT + 2, TT + 3
        a(f"s_mul_i32 {s(sXo)}, {s(sT)}, {16*1280}")
        a(f"v_lshrrev_b32 {v(t0)}, 3, {v(vLane)}\nv_and_b32 {v(t1)}, 7, {v(vLane)}\nv_lshrrev_b32 {v(x1)}, 1, {v(t0)}\nv_xor_b32 {v(t1)}, {v(t1)}, {v(x1)}")
        a(f"v_mul_u32_u24 {v(t0)}, 1280, {v(t0)}\nv_add_u32 {v(t0)}, {s(sXo)}, {v(t0)}\nv_lshl_add_u32 {v(x0)}, {v(t1)}, 4, {v(t0)}")
        a(f"v_xor_b32 {v(t1)}, 4, {v(t1)}\nv_lshl_add_u32 {v(x1)}, {v(t1)}, 4, {v(t0)}\nv_add_u32 {v(x1)}, {8*1280-1024}, {v(x1)}")
        a(f"s_lshl_b32 {s(sB)}, {s(sRho)}, 7")
        a("s_waitcnt lgkmcnt(0)")
        self.srd(a, sIN, 4, 2048 * 1280)
        self.stamp(1)
        for ln in range(10):
            a(f"s_add_u32 m0, {s(sImg)}, {2048*ln}")
            a(f"buffer_load_dwordx4 {v(x0)}, {s(sIN,4)}, {s(sB)} offen lds")
            a(f"buffer_load_dwordx4 {v(x1)}, {s(sIN,4)}, {s(sB)} offen offset:1024 lds", tag=("x", ln))
            if ln < 9:
                a(f"s_add_u32 {s(sB)}, {s(sB)}, 128\ns_cmp_ge_u32 {s(sB)}, 1280\ns_cselect_b32 {s(sB)}, 0, {s(sB)}")
        a(f"v_mov_b32 {v(m+13)}, 1\ns_mov_b64 exec, 1\nds_add_u32 {v(vZ)}, {v(m+13)} offset:{L_XI-L_CNT}\ns_mov_b64 exec, -1")
        self.stamp(1)
        self.srd(a, sWS, 24, WS_SIZE)
        a(f"v_lshrrev_b32 {v(vG)}, 4, {v(vLane)}\nv_and_b32 {v(vR)}, 15, {v(vLane)}\nv_mov_b32 {v(self.vZero)}, 0")
        a(f"v_and_b32 {v(vLa)}, 1, {v(vLane)}\nv_mul_u32_u24 {v(vLa)}, 260, {v(vLa)}\nv_add_u32 {v(vLa)}, {L_LW}, {v(vLa)}")
        a(f"s_lshl_b32 {s(sB)}, {s(sWave)}, 8\ns_add_u32 {s(sB)}, {s(sB)}, {L_CW}\nv_lshl_add_u32 {v(self.vCnt)}, {v(vLane)}, 2, {s(sB)}")
        a(f"s_mul_i32 {s(sTile)}, {s(sT)}, {TS}\ns_add_u32 {s(sTile)}, {s(sTile)}, {WS_TILE}")
        a(f"s_mul_i32 {s(sTJ)}, {s(sJ)}, 2560\ns_add_u32 {s(sTJ)}, {s(sTJ)}, {s(sTile)}")
        xoK, xoK8, xoV = m + 10, m + 11, m + 12
        a(f"s_mul_i32 {s(sA)}, {s(sPI)}, 5120\ns_add_u32 {s(sA)}, {s(sA)}, {P1TMP}\nv_add_u32 {v(xoV)}, {s(sA)}, {v(vL8)}")
        a(f"v_add_u32 {v(xoK)}, {s(sA)}, {v(vL16)}\nv_add_u32 {v(xoK8)}, {s(sA)}, {v(vL8)}")
        ra0, ra1, fr_ = m + 6, m + 7, m + 8
        a(f"v_lshrrev_b32 {v(fr_)}, 1, {v(vR)}\nv_xor_b32 {v(ra0)}, {v(fr_)}, {v(vG)}\nv_xor_b32 {v(ra1)}, 4, {v(ra0)}")
        a(f"v_lshlrev_b32 {v(m+9)}, 7, {v(vR)}\nv_add_u32 {v(m+9)}, {s(sImg)}, {v(m+9)}")
        a(f"v_lshl_add_u32 {v(ra0)}, {v(ra0)}, 4, {v(m+9)}\nv_lshl_add_u32 {v(ra1)}, {v(ra1)}, 4, {v(m+9)}")
        p0, p1 = TT + 4, TT + 5
        xq = [TT + 6 + t for t in range(5)]
        a(f"v_lshrrev_b32 {v(p0)}, 1, {v(vG)}\nv_and_b32 {v(p1)}, 1, {v(vG)}\nv_lshl_add_u32 {v(p1)}, {v(p1)}, 3, {v(m+9)}")
        for t in range(5):
            a(f"s_mul_i32 {s(sA)}, {s(sJ)}, 10\ns_add_u32 {s(sA)}, {s(sA)}, {2*t}\ns_lshr_b32 {s(sB)}, {s(sA)}, 3\ns_and_b32 {s(sA)}, {s(sA)}, 7")
            a(f"s_add_u32 {s(sB)}, {s(sB)}, 10\ns_sub_u32 {s(sB)}, {s(sB)}, {s(sRho)}\ns_sub_u32 {s(sCc)}, {s(sB)}, 10\ns_cmp_ge_u32 {s(sB)}, 10\ns_cselect_b32 {s(sB)}, {s(sCc)}, {s(sB)}\ns_lshl_b32 {s(sB)}, {s(sB)}, 11")
            a(f"v_add_u32 {v(xq[t])}, {s(sA)}, {v(p0)}\nv_xor_b32 {v(xq[t])}, {v(xq[t])}, {v(fr_)}\nv_lshl_add_u32 {v(xq[t])}, {v(xq[t])}, 4, {v(p1)}\nv_add_u32 {v(xq[t])}, {s(sB)}, {v(xq[t])}")
        sm = [TT + 12, TT + 13, TT + 14, TT + 15]
        RSD = TT + 24
        inv = f2u(1.0 / 640)
        def xread(A, ln):
            for vv in range(2): A(f"ds_read_b128 {v(AF+8*ln+4*vv,4)}, {v(ra0+vv)} offset:{2048*ln}", tag=("xf", ln))
        def dots(A, ln):
            A.wait(ds=("xf", ln))
            for k in range(8):
                r_ = AF + 8 * ln + k
                A(f"v_dot2c_f32_bf16 {v(sm[2*(k&1)])}, {s(sOnes)}, {v(r_)}\nv_dot2c_f32_bf16 {v(sm[2*(k&1)+1])}, {v(r_)}, {v(r_)}")
        def stat_fin(A):
            A(f"v_add_f32 {v(sm[0])}, {v(sm[0])}, {v(sm[2])}\nv_add_f32 {v(sm[1])}, {v(sm[1])}, {v(sm[3])}")
            self.allreduce2(A, sm[0], sm[1], None)
            A(f"v_mul_f32 {v(sm[0])}, {inv:#x}, {v(sm[0])}\nv_mul_f32 {v(sm[1])}, {inv:#x}, {v(sm[1])}")
            A(f"v_fma_f32 {v(sm[1])}, -{v(sm[0])}, {v(sm[0])}, {v(sm[1])}\nv_max_f32 {v(sm[1])}, 0, {v(sm[1])}\nv_add_f32 {v(sm[1])}, {f2u(1e-5):#x}, {v(sm[1])}")
            A(f"v_rsq_f32 {v(RSD)}, {v(sm[1])}\nv_mul_f32_e64 {v(RSD+1)}, -{v(sm[0])}, {v(RSD)}\ns_mov_b32 {s(sD)}, 0xffff0000")
        tp = [TT + 16 + 2 * k for k in range(4)]
        def norm_ops(st):
            ops = []
            for k in range(4): ops += [f"v_lshlrev_b32 {v(tp[k])}, 16, {v(AF+4*st+k)}", f"v_and_b32 {v(tp[k]+1)}, {s(sD)}, {v(AF+4*st+k)}"]
            for k in range(4): ops += [f"v_fma_f32 {v(tp[k])}, {v(tp[k])}, {v(RSD)}, {v(RSD+1)}", f"v_fma_f32 {v(tp[k]+1)}, {v(tp[k]+1)}, {v(RSD)}, {v(RSD+1)}"]
            for k in range(4): ops.append(f"v_cvt_pk_bf16_f32 {v(AF+4*st+k)}, {v(tp[k])}, {v(tp[k]+1)}")
            return ops
        for r_ in sm: a(f"v_mov_b32 {v(r_)}, 0")
        for ln in range(10):
            a.wait(vm=("x", ln))
            if ln == 9: self.stamp(1)
            xread(a, ln)
            if ln >= 2: dots(a, ln - 2)
        for t in range(5): a(f"ds_read_b64 {v(X1P+2*t,2)}, {v(xq[t])}")
        self.publish(1)
        dots(a, 8); dots(a, 9)
        stat_fin(a)
        self.stamp(); self.stamp(1)
        fr = [(U_RAW + 5 * ps + st // 4, (st % 4) * 5120 + 1024 * t, "pk") for ps in range(3) for st in range(20) for t in range(5)]
        VAC = ACC + 20
        accs = [ACC, VAC, ACC]
        KPREV = KOWN + 10
        def pack5(acc, dst, A=None):
            A = A or a
            for t in range(5):
                A(f"v_cvt_pk_bf16_f32 {v(dst(t))}, {v(acc+4*t)}, {v(acc+4*t+1)}\nv_cvt_pk_bf16_f32 {v(dst(t)+1)}, {v(acc+4*t+2)}, {v(acc+4*t+3)}")
        def k_out(A):
            pack5(ACC, lambda t: KOWN + 2 * t, A)
            A(f"ds_write_b128 {v(xoK)}, {v(KOWN,4)}\nds_write_b128 {v(xoK)}, {v(KOWN+4,4)} offset:1024\nds_write_b64 {v(xoK8)}, {v(KOWN+8,2)} offset:2048")
        def xr_add(A, n):
            A(f"s_lshl_b32 {s(sB)}, {s(sPI)}, 2\ns_add_u32 {s(sB)}, {s(sB)}, {L_XR}\nv_mov_b32 {v(m+13)}, {s(sB)}\nv_mov_b32 {v(m+14)}, {n}")
            A(f"ds_write_b32 {v(m+13)}, {v(m+14)}")
        for st in range(20):
            for op in norm_ops(st): a(op)
        self.stamp(1)
        VF = TT
        VLO = 48
        MK = TT + 20
        BIAS = TT + 24
        sGE = lambda hh: 8 + 2 * (hh - 1)
        sCM = lambda t: 14 + 2 * (t - 1)
        tq = m + 14
        a(f"v_add_u32 {v(vWA)}, 0x10000, {v(vL16)}\nv_add_u32 {v(vPA)}, 0x20000, {v(vL16)}")
        a(f"v_and_b32 {v(tq)}, 1, {v(vR)}\nv_cmp_eq_u32 {s(sPar,2)}, 1, {v(tq)}")
        a(f"v_lshl_add_u32 {v(tq)}, {v(vG)}, 2, {v(tq)}\nv_cmp_le_u32 {s(sMa,2)}, {v(tq)}, {v(vR)}")
        a(f"v_add_u32 {v(tq)}, 2, {v(tq)}\nv_cmp_le_u32 {s(sMb,2)}, {v(tq)}, {v(vR)}")
        a(f"v_mov_b32 {v(tq)}, 0xffff\nv_mov_b32 {v(m+13)}, 0xffff0000\nv_cndmask_b32 {v(tq)}, {v(tq)}, {v(m+13)}, {s(sPar,2)}")
        a(f"v_cndmask_b32 {v(MK)}, 0, {v(tq)}, {s(sMa,2)}\nv_cndmask_b32 {v(MK+1)}, 0, {v(tq)}, {s(sMb,2)}")
        a(f"v_xor_b32 {v(MK+2)}, {v(MK)}, {v(tq)}\nv_xor_b32 {v(MK+3)}, {v(MK+1)}, {v(tq)}")
        a(f"s_cmp_eq_u32 {s(sT)}, 0\ns_cselect_b32 {s(sB)}, {f2u(-1e30):#x}, 0\ns_waitcnt vmcnt(0)")
        for k in range(4): a(f"v_mov_b32 {v(BIAS+k)}, {s(sB)}")
        for hh in range(1, 4):
            a(f"v_cmp_le_u32 {s(sGE(hh),2)}, {hh}, {v(vG)}\nv_cmp_gt_u32 {s(sCM(hh),2)}, {4*hh}, {v(vR)}")
        vXo, vXp, vKp, vVp, vOne, vTwo = m + 15, m + 6, m + 7, m + 9, 10, 11
        a(f"s_lshl_b32 {s(sB)}, {s(sWave)}, 8\ns_add_u32 {s(sB)}, {s(sB)}, {L_CW + 1024 - 256}\ns_cmp_eq_u32 {s(sWave)}, 0\ns_cselect_b32 {s(sB)}, {L_XR}, {s(sB)}\nv_mov_b32 {v(vXp)}, {s(sB)}\nv_add_u32 {v(vXo)}, 1024, {v(self.vCnt)}")
        a(f"v_subrev_u32 {v(vKp)}, 5120, {v(xoK)}\nv_subrev_u32 {v(vVp)}, 5120, {v(xoV)}\nv_mov_b32 {v(vOne)}, 1\nv_mov_b32 {v(vTwo)}, 2")
        self.get_tag(a, self.vTag)
        a(f"v_mov_b32 {v(self.vTag+1)}, {s(sTag+1)}")
        self.stream_init(fr, [WW + 4 * i for i in range(8)] + [48, 52, 56, 60]); self.prime()
        self.stamp(1)
        def pack_ops(acc, dst):
            return [f"v_cvt_pk_bf16_f32 {v(dst(t)+k)}, {v(acc+4*t+2*k)}, {v(acc+4*t+2*k+1)}" for t in range(5) for k in range(2)]
        for ps in range(3):
            for st in range(20):
                if ps == 1 and st == 1:
                    self.side += pack_ops(ACC, lambda t: KOWN + 2 * t)
                    self.side += [f"ds_write_b128 {v(xoK)}, {v(KOWN,4)}", f"ds_write_b128 {v(xoK)}, {v(KOWN+4,4)} offset:1024", f"ds_write_b64 {v(xoK8)}, {v(KOWN+8,2)} offset:2048", f"ds_write_b32 {v(vXo)}, {v(vOne)}"]
                if ps == 2 and st == 1:
                    self.side += pack_ops(VAC, lambda t: VF + 4 * t)
                    self.side += [f"ds_write_b64 {v(xoV)}, {v(VF+4*t,2)} offset:{2560+512*t}" for t in range(5)] + [f"ds_write_b32 {v(vXo)}, {v(vTwo)}"]
                if ps == 2 and st == 8:
                    rd, ck = self.async_check(vZ, L_MODE - L_CNT, 1, m + 14, "mode")
                    self.side += [rd] + [""] * 8 + [ck, f"v_readfirstlane_b32 {s(sMode)}, {v(m+14)}"]
                if ps == 2 and st == 12:
                    rd, ck = self.async_check(vXp, 0, 1, m + 13, "xr1")
                    self.side += [rd] + [""] * 8 + [ck, f"ds_read_b128 {v(KPREV,4)}, {v(vKp)}", f"ds_read_b128 {v(KPREV+4,4)}, {v(vKp)} offset:1024", (f"ds_read_b64 {v(KPREV+8,2)}, {v(vVp)} offset:2048", "kprev")]
                for t in range(5):
                    f = ps * 100 + st * 5 + t
                    self.mfma_w(f, accs[ps] + 4 * t, AF + 4 * st, first=(st == 0), swap=(ps == 1))
            self.stamp(1)
        assert not self.side
        self.stamp()
        QF, SC, SP, PF, QP = AF, AF + 16, AF + 32, AF + 48, AF + 64
        pack5(ACC, lambda t: QF if t == 0 else (QF + 14 if t == 4 else QP + 2 * t))
        for hh in range(4):
            for k in range(2):
                if hh > 0: a(f"v_cndmask_b32 {v(QF+4*hh+k)}, 0, {v(QP+2*hh+k)}, {s(sGE(hh),2)}")
                if hh < 3: a(f"v_cndmask_b32 {v(QF+4*hh+2+k)}, {v(QP+2*(hh+1)+k)}, 0, {s(sGE(hh+1),2)}")
        a.wait(ds="kprev")
        for hh in range(4):
            a(f"{MF} {v(SC+4*hh,4)}, {v(KOWN+2*hh,4)}, {v(QF+4*hh,4)}, 0")
            a(f"{MF} {v(SP+4*hh,4)}, {v(KPREV+2*hh,4)}, {v(QF+4*hh,4)}, {v(BIAS,4)}")
        self.lds_spin(a, vXp, 0, 2, m + 14)
        for t in range(5):
            a(f"ds_read_b64 {v(VF+4*t+2,2)}, {v(vVp)} offset:{2560+512*t}", tag="vprev")
        la = [AF + 64 + hh for hh in range(4)]; lb = [AF + 68 + hh for hh in range(4)]; mx = [AF + 72 + hh for hh in range(4)]
        a(f"s_mov_b32 {s(sB)}, {f2u(20 ** -0.5 * math.log2(math.e)):#x}")
        for hh in range(4):
            c_, p_ = SC + 4 * hh, SP + 4 * hh
            a(f"v_cndmask_b32 {v(c_)}, {v(c_)}, {v(c_+1)}, {s(sPar,2)}\nv_cndmask_b32 {v(p_)}, {v(p_)}, {v(p_+1)}, {s(sPar,2)}")
            a(f"v_cndmask_b32 {v(c_+2)}, {v(c_+2)}, {v(c_+3)}, {s(sPar,2)}\nv_cndmask_b32 {v(p_+2)}, {v(p_+2)}, {v(p_+3)}, {s(sPar,2)}")
            a(f"v_cndmask_b32 {v(la[hh])}, {v(p_)}, {v(c_)}, {s(sMa,2)}\nv_cndmask_b32 {v(lb[hh])}, {v(p_+2)}, {v(c_+2)}, {s(sMb,2)}")
            a(f"v_max_f32 {v(mx[hh])}, {v(la[hh])}, {v(lb[hh])}")
        self.rscatter4(a, mx, "v_max_f32")
        a(f"v_mul_f32 {v(mx[0])}, {s(sB)}, {v(mx[0])}")
        self.allgather4(a, mx)
        for hh in range(4):
            a(f"v_fma_f32 {v(la[hh])}, {v(la[hh])}, {s(sB)}, -{v(mx[hh])}\nv_fma_f32 {v(lb[hh])}, {v(lb[hh])}, {s(sB)}, -{v(mx[hh])}")
        for hh in range(4):
            a(f"v_exp_f32 {v(la[hh])}, {v(la[hh])}\nv_exp_f32 {v(lb[hh])}, {v(lb[hh])}")
        for hh in range(4):
            a(f"v_add_f32 {v(mx[hh])}, {v(la[hh])}, {v(lb[hh])}")
        a.wait(ds="vprev")
        for t in range(1, 4):
            for k in range(4): a(f"v_cndmask_b32 {v(VLO+4*(t-1)+k)}, 0, {v(VF+4*t+k)}, {s(sCM(t),2)}")
            for k in range(4): a(f"v_xor_b32 {v(VF+4*t+k)}, {v(VF+4*t+k)}, {v(VLO+4*(t-1)+k)}")
        self.rscatter4(a, mx, "v_add_f32")
        a(f"v_rcp_f32 {v(mx[0])}, {v(mx[0])}")
        self.allgather4(a, mx)
        for hh in range(4):
            a(f"v_mul_f32 {v(la[hh])}, {v(la[hh])}, {v(mx[hh])}\nv_mul_f32 {v(lb[hh])}, {v(lb[hh])}, {v(mx[hh])}")
            a(f"v_cvt_pk_bf16_f32 {v(la[hh])}, {v(la[hh])}, {v(la[hh])}\nv_cvt_pk_bf16_f32 {v(lb[hh])}, {v(lb[hh])}, {v(lb[hh])}")
            a(f"v_and_b32 {v(PF+4*hh)}, {v(la[hh])}, {v(MK)}\nv_and_b32 {v(PF+4*hh+1)}, {v(lb[hh])}, {v(MK+1)}")
            a(f"v_and_b32 {v(PF+4*hh+2)}, {v(la[hh])}, {v(MK+2)}\nv_and_b32 {v(PF+4*hh+3)}, {v(lb[hh])}, {v(MK+3)}")
        for hh in range(4):
            a(f"{MF} {v(ACC+4*hh,4)}, {v(VF+4*hh,4)}, {v(PF+4*hh,4)}, {'0' if hh == 0 else v(ACC+4*hh,4)}")
            lo = VF + 16 if hh == 3 else VLO + 4 * hh
            a(f"{MF} {v(ACC+4*hh+4,4)}, {v(lo,4)}, {v(PF+4*hh,4)}, 0")
        self.publish(U_X + 1)
        OP = TT
        pack5(ACC, lambda t: OP + 2 * t)
        self.handoff_store(OP, BUFA)
        vA16, vA8, vF8 = m + 6, m + 7, m + 8
        a(f"v_add_u32 {v(vA16)}, {s(sTile)}, {v(vL16)}\ns_add_u32 {s(sB)}, {s(sTile)}, 2048\nv_add_u32 {v(vA8)}, {s(sB)}, {v(vL8)}")
        a(f"v_and_b32 {v(vF8)}, 7, {v(vLane)}\nv_lshlrev_b32 {v(vF8)}, 3, {v(vF8)}\nv_add_u32 {v(vF8)}, {s(sTile)}, {v(vF8)}")
        a("s_waitcnt vmcnt(0)")
        self.flag_store(F1)
        self.stamp()

        def unpack_acc(src, fn=None):
            for t in range(5):
                for k in range(2):
                    a(f"v_lshlrev_b32 {v(ACC+4*t+2*k)}, 16, {v(src+2*t+k)}\nv_and_b32 {v(ACC+4*t+2*k+1)}, 0xffff0000, {v(src+2*t+k)}")
        def frags640(u0): return [(u0 + st // 5, (st % 5) * 5120 + 1024 * t, "pk") for st in range(20) for t in range(5)]
        def load_A(buf, v16=None, v8=None):
            self.stamp(self.ph)
            for i in range(4):
                a(f"s_mul_i32 {s(sA)}, {s(sRot+i)}, 5120\ns_add_u32 {s(sA)}, {s(sA)}, {buf}")
                a16 = vA16 if v16 is None else v16[i]; a8 = vA8 if v8 is None else v8[i]
                for uu, imm in enumerate((0, 1024, 2560, 3584)):
                    a(f"buffer_load_dwordx4 {v(AF+20*i+4*uu,4)}, {v(a16)}, {s(sWS,4)}, {s(sA)} offen offset:{imm} sc1", tag=("A", 5*i+uu))
                a(f"buffer_load_dwordx2 {v(AF+20*i+16,2)}, {v(a8)}, {s(sWS,4)}, {s(sA)} offen sc1")
                a(f"buffer_load_dwordx2 {v(AF+20*i+18,2)}, {v(a8)}, {s(sWS,4)}, {s(sA)} offen offset:2560 sc1", tag=("A", 5*i+4))
        def gemm640():
            for st in range(20):
                a.wait(vm=("A", st))
                if st in (0, 10, 19): self.stamp(self.ph)
                for t in range(5): self.mfma_w(st * 5 + t, ACC + 4 * t, AF + 4 * st)
            self.stamp(self.ph)
        def stats_store(src, off):
            x_, y_ = TT + 12, TT + 13
            a(f"v_mov_b32 {v(x_)}, 0\nv_mov_b32 {v(y_)}, 0")
            for k in range(10):
                a(f"v_dot2c_f32_bf16 {v(x_)}, {s(sOnes)}, {v(src+k)}\nv_dot2c_f32_bf16 {v(y_)}, {v(src+k)}, {v(src+k)}")
            self.allreduce2(a, x_, y_, None)
            a(f"v_mov_b32 {v(TT+14)}, {s(sTag)}\nv_mov_b32 {v(TT+15)}, {s(sTag+1)}")
            a(f"s_lshl_b32 {s(sA)}, {s(sJ)}, 8\ns_add_u32 {s(sA)}, {s(sA)}, {s(sTile)}\ns_add_u32 {s(sA)}, {s(sA)}, {off}")
            self.stamp(self.ph)
            a("s_waitcnt vmcnt(0)")
            self.stamp(self.ph)
            a("s_mov_b64 exec, 0xffff")
            self.moded([f"buffer_store_dwordx4 {v(TT+12,4)}, {v(vL16)}, {s(sWS,4)}, {s(sA)} offen"])
            a("s_mov_b64 exec, -1")
        def stats_poll(off):
            L = a.newlabel("Lp"); Lok = L + "_ok"
            e0, e1 = TT + 12, TT + 16
            a(f"s_mov_b32 {s(sA)}, {off}")
            a.label(L)
            a(f"buffer_load_dwordx4 {v(e0,4)}, {v(vA16)}, {s(sWS,4)}, {s(sA)} offen sc1")
            a(f"buffer_load_dwordx4 {v(e1,4)}, {v(vA16)}, {s(sWS,4)}, {s(sA)} offen offset:1024 sc1")
            a(f"s_waitcnt vmcnt(0)\nv_cmp_ne_u64 vcc, {s(sTag,2)}, {v(e0+2,2)}\nv_cmp_ne_u64 {s(sMk,2)}, {s(sTag,2)}, {v(e1+2,2)}")
            a(f"s_or_b64 vcc, vcc, {s(sMk,2)}\ns_cbranch_scc0 {Lok}")
            self.spin_tail(a, L, Lok)
            a.label(Lok)
        def stats_finish(mu, var):
            e0, e1 = TT + 12, TT + 16
            a(f"v_add_f32 {v(mu)}, {v(e0)}, {v(e1)}\nv_add_f32 {v(var)}, {v(e0+1)}, {v(e1+1)}")
            self.allreduce2(a, mu, var, None)
            a(f"v_mul_f32 {v(mu)}, {inv:#x}, {v(mu)}\nv_mul_f32 {v(var)}, {inv:#x}, {v(var)}")
            a(f"v_fma_f32 {v(var)}, -{v(mu)}, {v(mu)}, {v(var)}\nv_max_f32 {v(var)}, 0, {v(var)}")
        c0 = -2 * math.sqrt(2 / math.pi) * math.log2(math.e)
        GK = KOWN
        def gelu_consts(R):
            a(f"v_mul_f32 {v(GK)}, {f2u(c0):#x}, {v(R)}\nv_mul_f32 {v(GK+1)}, {v(R)}, {v(R)}\nv_mul_f32 {v(GK+1)}, {v(GK+1)}, {v(GK)}")
            a(f"v_mul_f32 {v(GK+1)}, {f2u(0.044715):#x}, {v(GK+1)}\nv_rcp_f32 {v(GK+2)}, {v(R)}")
        def gelu_ops(acc, n, dst, tmp, pk=True):
            ops = []
            for b in range(0, n, 4):
                P = [(acc + b, tmp), (acc + b + 2, tmp + 2)]
                if pk:
                    for x_, t_ in P: ops.append(f"v_pk_mul_f32 {v(t_,2)}, {v(x_,2)}, {v(x_,2)}")
                    for x_, t_ in P: ops.append(f"v_pk_fma_f32 {v(t_,2)}, {v(t_,2)}, {v(GK,2)}, {v(GK,2)} op_sel:[0,1,0] op_sel_hi:[1,1,0]")
                    for x_, t_ in P: ops.append(f"v_pk_mul_f32 {v(t_,2)}, {v(t_,2)}, {v(x_,2)}")
                    for k in range(4): ops.append(f"v_exp_f32 {v(tmp+k)}, {v(tmp+k)}")
                    for x_, t_ in P: ops.append(f"v_pk_fma_f32 {v(t_,2)}, {v(t_,2)}, {v(GK+2,2)}, {v(GK+2,2)} op_sel_hi:[1,0,0]")
                    for k in range(4): ops.append(f"v_rcp_f32 {v(tmp+k)}, {v(tmp+k)}")
                    for x_, t_ in P: ops.append(f"v_pk_mul_f32 {v(t_,2)}, {v(t_,2)}, {v(x_,2)}")
                else:
                    for k in range(4): ops.append(f"v_mul_f32 {v(tmp+k)}, {v(acc+b+k)}, {v(acc+b+k)}")
                    for k in range(4): ops.append(f"v_fma_f32 {v(tmp+k)}, {v(tmp+k)}, {v(GK+1)}, {v(GK)}")
                    for k in range(4): ops.append(f"v_mul_f32 {v(tmp+k)}, {v(tmp+k)}, {v(acc+b+k)}")
                    for k in range(4): ops.append(f"v_exp_f32 {v(tmp+k)}, {v(tmp+k)}")
                    for k in range(4): ops.append(f"v_fma_f32 {v(tmp+k)}, {v(tmp+k)}, {v(GK+2)}, {v(GK+2)}")
                    for k in range(4): ops.append(f"v_rcp_f32 {v(tmp+k)}, {v(tmp+k)}")
                    for k in range(4): ops.append(f"v_mul_f32 {v(tmp+k)}, {v(tmp+k)}, {v(acc+b+k)}")
                for i_, (x_, t_) in enumerate(P): ops.append(f"v_cvt_pk_bf16_f32 {v(dst+b//2+i_)}, {v(t_)}, {v(t_+1)}")
            return ops

        a.label("L_P2")
        self.ph = 2; self.stamp(2)
        self.stream_init(frags640(U_WO), SLOTS12, 4); self.prime()
        self.stamp(2)
        unpack_acc(X1P)
        a(f"s_mov_b32 {s(sB)}, {F1}")
        self.poll8(a, vF8, s(sB), TT + 12)
        load_A(BUFA); gemm640()
        pack5(ACC, lambda t: HP + 2 * t)
        self.handoff_store(HP, BUFB)
        stats_store(HP, S2)
        self.stamp()
        a.label("L_P3")
        self.ph = 3; self.stamp(3)
        self.stream_init(frags640(U_W1), SLOTS12, 4); self.prime()
        self.stamp(3)
        self.lds_spin(a, vZ, L_CSRDY - L_CNT, 1, vLC)
        vCS = m + 9
        a(f"v_lshlrev_b32 {v(vCS)}, 4, {v(vG)}\nv_add_u32 {v(vCS)}, {L_CS1}, {v(vCS)}")
        for t in range(5): a(f"ds_read_b128 {v(ACC+4*t,4)}, {v(vCS)} offset:{64*t}", tag="cs")
        stats_poll(S2)
        load_A(BUFB)
        MU, RS = KOWN + 4, KOWN + 5
        var, R = KOWN + 6, KOWN + 7
        stats_finish(MU, var)
        a.wait(ds="cs")
        for k in range(20): a(f"v_mul_f32_e64 {v(ACC+k)}, -{v(MU)}, {v(ACC+k)}")
        a(f"v_add_f32 {v(R)}, {f2u(1e-5):#x}, {v(var)}\nv_rsq_f32 {v(RS)}, {v(R)}")
        a(f"v_mul_f32 {v(R)}, {v(RS)}, {v(RS)}\nv_mul_f32 {v(R)}, {v(R)}, {v(var)}\nv_add_f32 {v(R)}, {f2u(1e-5):#x}, {v(R)}\nv_rsq_f32 {v(R)}, {v(R)}")
        a(f"v_mul_f32 {v(R)}, {v(R)}, {v(RS)}")
        gelu_consts(R)
        gemm640()
        for op in gelu_ops(ACC, 20, OP, TT + 12): a(op)
        self.stamp(3)
        self.handoff_store(OP, BUFA)
        Lsh = a.newlabel("Lsh"); Lshb = Lsh + "_b"
        a(f"s_bitcmp1_b32 {s(sJ)}, 1\ns_cselect_b32 {s(sB)}, 0, 3\ns_cmp_eq_u32 {s(sWave)}, {s(sB)}\ns_cbranch_scc1 {Lsh}")
        a("s_waitcnt vmcnt(0)")
        self.flag_store(F3)
        a.label(Lshb)
        self.stamp(3)
        t = self.t
        t.label(Lsh); t.reset_hist()
        t(f"s_bitcmp1_b32 {s(sJ)}, 1\ns_mov_b32 {s(sSh)}, 0xc000c000\ns_cselect_b32 {s(sSh)}, 0x00030003, {s(sSh)}\ns_mov_b32 {s(sSh+1)}, {s(sSh)}")
        t(f"s_add_u32 {s(sA)}, {s(sTJ)}, {SHAD}\ns_mov_b64 exec, {s(sSh,2)}")
        t(f"buffer_store_dwordx4 {v(OP,4)}, {v(vL16)}, {s(sWS,4)}, {s(sA)} offen sc1")
        t(f"buffer_store_dwordx4 {v(OP+4,4)}, {v(vL16)}, {s(sWS,4)}, {s(sA)} offen offset:1024 sc1")
        t(f"buffer_store_dwordx2 {v(OP+8,2)}, {v(vL8)}, {s(sWS,4)}, {s(sA)} offen offset:2048 sc1")
        t(f"s_lshl_b32 {s(sA)}, {s(sJ)}, 3\ns_add_u32 {s(sA)}, {s(sA)}, {s(sTile)}\ns_add_u32 {s(sA)}, {s(sA)}, {F3}\ns_mov_b64 exec, 1")
        t(f"s_waitcnt vmcnt(3)\ns_cmp_lg_u32 {s(sMode)}, 1\ns_cbranch_scc1 {Lsh}_s")
        t(f"buffer_store_dwordx2 {v(self.vTag,2)}, {v(self.vZero)}, {s(sWS,4)}, {s(sA)} offen\ns_branch {Lsh}_t")
        t.label(Lsh + "_s")
        t(f"buffer_store_dwordx2 {v(self.vTag,2)}, {v(self.vZero)}, {s(sWS,4)}, {s(sA)} offen sc1")
        t.label(Lsh + "_t")
        t(f"s_waitcnt vmcnt(1)\nbuffer_store_dwordx2 {v(self.vTag,2)}, {v(self.vZero)}, {s(sWS,4)}, {s(sA)} offen offset:{FH-F3} sc1")
        t(f"s_mov_b64 exec, -1\ns_branch {Lshb}")
        self.stamp()
        a.label("L_P4")
        self.ph = 4; self.stamp(4)
        self.stream_init(frags640(U_W2), SLOTS12, 4); self.prime()
        self.stamp(4)
        unpack_acc(HP)
        a(f"v_mul_f32_e64 {v(var)}, -{v(MU)}, {v(RS)}")
        for k in range(20): a(f"v_fma_f32 {v(ACC+k)}, {v(ACC+k)}, {v(RS)}, {v(var)}")
        sPv, sNx = sD, sE
        a(f"s_sub_u32 {s(sPv)}, {s(sTile)}, {TS}\ns_add_u32 {s(sA)}, {s(sPv)}, {SHAD}\ns_cmp_eq_u32 {s(sWave)}, 0\ns_cselect_b32 {s(sPv)}, {s(sA)}, {s(sPv)}")
        a(f"s_cmp_eq_u32 {s(sT)}, 0\ns_cselect_b32 {s(sPv)}, {OOB}, {s(sPv)}")
        a(f"s_add_u32 {s(sNx)}, {s(sTile)}, {TS}\ns_add_u32 {s(sA)}, {s(sNx)}, {SHAD}\ns_cmp_eq_u32 {s(sWave)}, 3\ns_cselect_b32 {s(sNx)}, {s(sA)}, {s(sNx)}")
        a(f"s_cmp_eq_u32 {s(sT)}, 127\ns_cselect_b32 {s(sNx)}, {OOB}, {s(sNx)}")
        v16 = [VFR + i for i in range(4)]; v8 = [VFR + 4 + i for i in range(4)]
        tb, tr_ = VFR + 8, VFR + 9
        for i in range(4):
            a(f"s_lshr_b32 {s(sA)}, {s(sRot+i)}, 1\ns_add_u32 {s(sA)}, {s(sA)}, 1\ns_sub_u32 {s(sB)}, 0, {s(sA)}\ns_bitcmp1_b32 {s(sRot+i)}, 0\ns_cselect_b32 {s(sA)}, {s(sA)}, {s(sB)}")
            a(f"s_cselect_b32 {s(sB)}, {s(sNx)}, {s(sPv)}")
            a(f"v_add_u32 {v(tr_)}, {s(sA)}, {v(vR)}\nv_cmp_lt_u32 vcc, 15, {v(tr_)}")
            a(f"v_mov_b32 {v(tb)}, {s(sTile)}\nv_mov_b32 {v(v8[i])}, {s(sB)}\nv_cndmask_b32 {v(tb)}, {v(tb)}, {v(v8[i])}, vcc")
            a(f"v_and_b32 {v(tr_)}, 15, {v(tr_)}\nv_lshl_add_u32 {v(tr_)}, {v(vG)}, 4, {v(tr_)}")
            a(f"v_lshl_add_u32 {v(v16[i])}, {v(tr_)}, 4, {v(tb)}\nv_lshl_add_u32 {v(v8[i])}, {v(tr_)}, 3, {v(tb)}\nv_add_u32 {v(v8[i])}, 2048, {v(v8[i])}")
        fa = VFR + 10
        a(f"s_sub_u32 {s(sA)}, {s(sTile)}, {TS}\ns_add_u32 {s(sB)}, {s(sA)}, {FH-F3}\ns_cmp_eq_u32 {s(sWave)}, 0\ns_cselect_b32 {s(sA)}, {s(sB)}, {s(sA)}")
        a(f"s_cmp_eq_u32 {s(sT)}, 0\ns_cselect_b32 {s(sA)}, {s(sTile)}, {s(sA)}")
        a(f"s_add_u32 {s(sCc)}, {s(sTile)}, {TS}\ns_add_u32 {s(sB)}, {s(sCc)}, {FH-F3}\ns_cmp_eq_u32 {s(sWave)}, 3\ns_cselect_b32 {s(sCc)}, {s(sB)}, {s(sCc)}")
        a(f"s_cmp_eq_u32 {s(sT)}, 127\ns_cselect_b32 {s(sCc)}, {s(sTile)}, {s(sCc)}")
        a(f"v_mov_b32 {v(tb)}, {s(sA)}\nv_mov_b32 {v(tr_)}, {s(sCc)}\nv_and_b32 {v(fa)}, 2, {v(vLane)}\nv_cmp_ne_u32 vcc, 0, {v(fa)}")
        a(f"v_cndmask_b32 {v(tb)}, {v(tb)}, {v(tr_)}, vcc\nv_mov_b32 {v(tr_)}, {s(sTile)}\nv_and_b32 {v(fa)}, 8, {v(vLane)}\nv_cmp_ne_u32 vcc, 0, {v(fa)}")
        a(f"v_cndmask_b32 {v(tb)}, {v(tr_)}, {v(tb)}, vcc\nv_and_b32 {v(fa)}, 7, {v(vLane)}\nv_lshl_add_u32 {v(fa)}, {v(fa)}, 3, {v(tb)}")
        a(f"s_mov_b32 {s(sB)}, {F3}")
        self.poll8(a, fa, s(sB), TT + 12)
        load_A(BUFA, v16, v8); gemm640()
        pack5(ACC, lambda t: X1P + 2 * t)
        self.handoff_store(X1P, BUFB)
        stats_store(X1P, S4)
        self.stamp()
        a.label("L_P5")
        fr5 = [(U_W3 + ch * 4 + st // 5, (st % 5) * 4096 + 1024 * tt, "pk") for ch in range(3) for st in range(20) for tt in range(4)]
        self.ph = 5; self.stamp(5)
        self.stream_init(fr5, SLOTS12, 4); self.prime()
        self.stamp(5)
        self.lds_spin(a, vZ, L_CSRDY - L_CNT, 2, vLC)
        for k in range(8): a(f"ds_read_b128 {v(ACC+4*k,4)}, {v(vCS)} offset:{L_CS3-L_CS1+64*k}", tag="cs")
        stats_poll(S4)
        load_A(BUFB)
        stats_finish(MU, var)
        a.wait(ds="cs")
        for k in range(32): a(f"v_mul_f32_e64 {v(ACC+k)}, -{v(MU)}, {v(ACC+k)}")
        a(f"v_add_f32 {v(R)}, {f2u(1e-5):#x}, {v(var)}\nv_rsq_f32 {v(R)}, {v(R)}")
        gelu_consts(R)
        GP = TT
        A6 = ACC + 16
        def g_store(ch):
            a(f"s_lshl_b32 {s(sA)}, {s(sJ)}, 11\ns_add_u32 {s(sA)}, {s(sA)}, {s(sTile)}\ns_add_u32 {s(sA)}, {s(sA)}, {GBUF[ch]}")
            self.moded([f"buffer_store_dwordx4 {v(GP,4)}, {v(vL16)}, {s(sWS,4)}, {s(sA)} offen",
                        f"buffer_store_dwordx4 {v(GP+4,4)}, {v(vL16)}, {s(sWS,4)}, {s(sA)} offen offset:1024"], tag=("gst", ch))
        def g_flag(ch):
            a.wait(vm=("gst", ch))
            self.flag_store(G0 + 128 * ch)
        PL = TT + 16
        def g_poll_issue(ch):
            a(f"s_mov_b32 {s(sB)}, {G0 + 128*ch}\nbuffer_load_dwordx2 {v(PL,2)}, {v(vF8)}, {s(sWS,4)}, {s(sB)} offen sc1", tag=("gp", ch))
        def g_poll_check(ch):
            L = a.newlabel("Lg"); Lok = L + "_ok"
            a.wait(vm=("gp", ch))
            a(f"v_cmp_ne_u64 vcc, {s(sTag,2)}, {v(PL,2)}\ns_cbranch_vccnz {L}")
            a.label(Lok)
            t = self.t
            t.label(L); t.reset_hist()
            t(f"s_mov_b32 {s(sB)}, {G0 + 128*ch}\nbuffer_load_dwordx2 {v(PL,2)}, {v(vF8)}, {s(sWS,4)}, {s(sB)} offen sc1")
            t(f"s_waitcnt vmcnt(0)\nv_cmp_ne_u64 vcc, {s(sTag,2)}, {v(PL,2)}\ns_cbranch_vccz {Lok}")
            self.spin_tail(t, L, Lok)
        sG = sD
        def loadG(st):
            if st % 4 == 0:
                ch, ui = st // 16, (st % 16) // 4
                a(f"s_lshl_b32 {s(sG)}, {s(sRot+ui)}, 12\ns_add_u32 {s(sG)}, {s(sG)}, {GBUF[ch]}")
            a(f"buffer_load_dwordx4 {v(AF+4*(st%20),4)}, {v(vA16)}, {s(sWS,4)}, {s(sG)} offen offset:{(st%4)*1024} sc1", tag=("G", st))
        for ch in range(3):
            acc = ACC + 16 * (ch & 1)
            self.stamp(5)
            side = gelu_ops(ACC + 16 * ((ch - 1) & 1), 16, GP, TT + 12, pk=False) if ch > 0 else []
            si = 0
            for st in range(20):
                if ch == 0: a.wait(vm=("A", st))
                for tt in range(4):
                    self.mfma_w(ch * 80 + st * 4 + tt, acc + 4 * tt, AF + 4 * st)
                    n = st * 4 + tt
                    if n >= 3:
                        while si < len(side) and si < (n - 2) * len(side) // 62:
                            a(side[si]); si += 1
                if ch > 0 and st == 16:
                    assert si == len(side)
                    if ch == 2: g_poll_check(0)
                    g_store(ch - 1)
                    if ch == 1:
                        for k in range(4): a(f"ds_read_b128 {v(ACC+4*k,4)}, {v(vCS)} offset:{L_CS3-L_CS1+64*(8+k)}", tag="cs")
                if ch == 1 and st == 18:
                    a.wait(ds="cs")
                    for k in range(16): a(f"v_mul_f32_e64 {v(ACC+k)}, -{v(MU)}, {v(ACC+k)}")
                if ch == 2 and st == 2: g_flag(0)
                if ch == 2 and st == 12: g_poll_issue(0)
        self.stamp(5)
        for st in range(16): loadG(st)
        g_flag(1)
        for op in gelu_ops(ACC, 16, GP, TT + 12): a(op)
        g_store(2)
        g_poll_issue(1)
        self.stamp(5)
        self.stamp()
        a.label("L_P6")
        fr6 = [(U_W4 + st // 4, (st % 4) * 5120 + 1024 * t, "pk") for st in range(48) for t in range(5)]
        self.stamp(6)
        self.stream_init(fr6, SLOTS12, 4); self.prime()
        self.stamp(6)
        unpack_acc(HP)
        for t in range(5):
            for k in range(2):
                a(f"v_lshlrev_b32 {v(TT+12)}, 16, {v(X1P+2*t+k)}\nv_and_b32 {v(TT+13)}, 0xffff0000, {v(X1P+2*t+k)}")
                a(f"v_pk_add_f32 {v(ACC+4*t+2*k,2)}, {v(ACC+4*t+2*k,2)}, {v(TT+12,2)}")
        self.stamp(6)
        nxt = 16
        for st in range(48):
            a.wait(vm=("G", st))
            if st in (0, 12, 24, 36, 47): self.stamp(6)
            for t in range(5): self.mfma_w(st * 5 + t, ACC + 4 * t, AF + 4 * (st % 20))
            if st == 1:
                g_flag(2); g_poll_check(1)
            if st == 8: g_poll_issue(2)
            if st == 12: g_poll_check(2)
            if st >= 1:
                while nxt < 48 and nxt <= st + 20 and nxt < 16 + 3 * st + 3:
                    loadG(nxt); nxt += 1
        self.stamp(6)
        pack5(ACC, lambda t: OP + 2 * t)
        sg, sr, so = VFR + 1, VFR + 2, VFR + 3
        a(f"s_mul_i32 {s(sB)}, {s(sWave)}, 2560\ns_add_u32 {s(sB)}, {s(sB)}, {STAGE}")
        a(f"v_mul_u32_u24 {v(sg)}, 160, {v(vR)}\nv_lshl_add_u32 {v(sg)}, {v(vG)}, 3, {v(sg)}\nv_add_u32 {v(sg)}, {s(sB)}, {v(sg)}\nv_add_u32 {v(sr)}, {s(sB)}, {v(vL16)}")
        for t in range(5): a(f"ds_write_b64 {v(sg)}, {v(OP+2*t,2)} offset:{32*t}")
        for k in range(3): a(f"ds_read_b128 {v(AF+4*k,4)}, {v(sr)} offset:{1024*k}", tag=("o", k))
        self.srd(a, sOUT, 20, 2048 * 1280)
        a(f"s_mul_i32 {s(sA)}, {s(sT)}, {16*1280}\ns_mul_i32 {s(sB)}, {s(sJ)}, 160\ns_add_u32 {s(sA)}, {s(sA)}, {s(sB)}")
        for k in range(3):
            a(f"v_add_u32 {v(so)}, {64*k}, {v(vLane)}\nv_mul_u32_u24 {v(so+1)}, 6554, {v(so)}\nv_lshrrev_b32 {v(so+1)}, 16, {v(so+1)}")
            a(f"v_mul_u32_u24 {v(so+1)}, 1120, {v(so+1)}\nv_lshl_add_u32 {v(so+2+k)}, {v(so)}, 4, {v(so+1)}")
        for k in range(3):
            a.wait(ds=("o", k))
            if k == 2: a("s_mov_b32 exec_hi, 0")
            a(f"buffer_store_dwordx4 {v(AF+4*k,4)}, {v(so+2+k)}, {s(sOUT,4)}, {s(sA)} offen")
        a("s_mov_b64 exec, -1")
        self.stamp()
        self.finish(a)

    def finish(self, a):
        if self.stamps and self.opt.get("dbg"):
            L = a.newlabel("Ldb")
            a("s_waitcnt vmcnt(0) lgkmcnt(0)")
            a(f"{self.clk} {s(sSt+22,2)}\ns_load_dwordx2 s[4:5], s[0:1], 72\ns_waitcnt lgkmcnt(0)\ns_cmp_lg_u32 {s(sWave)}, {self.opt['dbg']-1}\ns_cbranch_scc1 {L}")
            a("v_mov_b32 v0, 0\ns_mov_b64 exec, 1")
            for k in range(12):
                a(f"v_mov_b32 v12, {s(sSt+2*k)}\nglobal_atomic_umax v0, v12, s[4:5] offset:{4*k}")
            a(f"s_not_b32 {s(sA)}, {s(sSt)}\nv_mov_b32 v12, {s(sA)}\nglobal_atomic_umax v0, v12, s[4:5] offset:60")
            a.label(L)
        elif self.stamps:
            a("s_waitcnt vmcnt(0) lgkmcnt(0)")
            a(f"{self.clk} {s(sSt+22,2)}\ns_waitcnt lgkmcnt(0)")
            a(f"s_lshl_b32 {s(sA)}, s2, 3\ns_add_u32 {s(sA)}, {s(sA)}, {s(sWave)}\ns_lshl_b32 {s(sA)}, {s(sA)}, 7\ns_add_u32 {s(sA)}, {s(sA)}, {WS_STAMP}")
            a("v_mov_b32 v0, 0\ns_mov_b64 exec, 1")
            for k in range(12):
                a(f"v_mov_b32 v12, {s(sSt+2*k)}\nv_mov_b32 v13, {s(sBud)}")
                a(f"buffer_store_dwordx2 v[12:13], v0, {s(sWS,4)}, {s(sA)} offen offset:{8*k}")
        a("s_endpgm")

    def pf_wait(self, a, base, n2, tmp):
        per = {20: 20, 30: 60, 48: 48}[n2]
        if n2 == 30: a(f"s_mul_i32 {s(sA)}, {s(sJ)}, {60*8}")
        else: a(f"s_mul_i32 {s(sA)}, {s(sJ)}, 5\ns_lshr_b32 {s(sA)}, {s(sA)}, 2\ns_mul_i32 {s(sA)}, {s(sA)}, {per*8}")
        a(f"s_add_u32 {s(sA)}, {s(sA)}, {WS_PF + base*8}")
        a(f"v_min_u32 {v(tmp)}, {n2-1}, {v(vLane)}\nv_lshlrev_b32 {v(tmp)}, 4, {v(tmp)}")
        L = a.newlabel("Lpf"); Lok = L + "_ok"
        a.label(L)
        a(f"buffer_load_dwordx4 {v(tmp+4,4)}, {v(tmp)}, {s(sWS,4)}, {s(sA)} offen sc1")
        a(f"s_waitcnt vmcnt(0)\nv_cmp_ne_u64 vcc, {s(sTag,2)}, {v(tmp+4,2)}\nv_cmp_ne_u64 {s(sMk,2)}, {s(sTag,2)}, {v(tmp+6,2)}")
        a(f"s_or_b64 vcc, vcc, {s(sMk,2)}\ns_cbranch_scc0 {Lok}\ns_sleep 8")
        self.spin_tail(a, L, Lok)
        a.label(Lok)

    def helper_start(self):
        a = self.a; c = self.PC
        a(f"s_lshl_b32 {s(sA)}, 1, {s(sWave)}\ns_and_b32 {s(sA)}, {s(sA)}, 0xb0\ns_cbranch_scc0 L_compute")
        a(f"s_setprio 3\ns_min_u32 {s(sA)}, {s(sWave)}, 6\ns_sub_u32 {s(sA)}, {s(sA)}, 4\ns_lshl_b32 s70, {s(sA)}, 11\ns_add_u32 s70, s70, {L_PSCR}")
        a(f"s_lshl_b32 s63, {s(sA)}, 8\ns_add_u32 s63, s63, s2\nv_mov_b32 {v(c+7)}, 0")
        self.pk_A(a, 0, 64, pre_wait=True)
        self.srd(a, sWS, 24, WS_SIZE)
        a(f"s_cmp_eq_u32 {s(sWave)}, 7\ns_cbranch_scc1 L_service\ns_branch L_loader")
        a.label("L_compute"); a.reset_hist(); a.reset_cnt()

    def loader(self):
        a = self.a
        a.label("L_loader"); a.reset_hist(); a.reset_cnt(); self.nst = 1; self.inhelper = True; a.vm = [("raw", 0)] * 4
        sL = sMode
        a(f"s_and_b32 {s(sL)}, {s(sWave)}, 1")
        self.srd(a, sIN, 20, 2048 * 1280)
        a(f"v_and_b32 v13, 15, {v(vLane)}\nv_lshlrev_b32 v46, 19, v13\nv_lshlrev_b32 v47, 20, v13\ns_mov_b64 exec, 0x3ff")
        a(f"buffer_load_dword v49, v47, {s(sWS,4)}, 0 offen offset:128 sc1\nbuffer_load_dword v50, v46, {s(sIN,4)}, 0 offen\ns_mov_b64 exec, -1")
        a(f"v_and_b32 v12, 3, {v(vLane)}\nv_mul_u32_u24 v12, 260, v12\nv_add_u32 v12, {L_CW}, v12")
        a(f"s_lshl_b32 {s(sA)}, {s(sL)}, 8\ns_add_u32 {s(sA)}, {s(sA)}, {L_LW}\nv_lshl_add_u32 v11, {v(vLane)}, 2, {s(sA)}")
        self.pack_seq(a)
        for k in (1, 2): self.pk_B(a, k, 64 + 16 * k, 192 + 16 * (k & 1), 224)
        self.stamp()
        pend = []
        MAXF = self.opt.get("maxf", 24)
        def publish_upto(u, A=None):
            (A or a)(f"v_mov_b32 v13, {u+1}\nds_max_u32 v11, v13")
        def throttle():
            if len(a.vm) > MAXF: a(f"s_waitcnt vmcnt({MAXF})")
            while pend and ("u", pend[0]) not in a.vm:
                publish_upto(pend.pop(0))
        def guarded_wait(addr, off, need, sleep, pre=False):
            L = a.newlabel("Lf"); Lok = L + "_ok"
            if pre: a(f"s_waitcnt lgkmcnt(0)\nv_cmp_gt_u32 vcc, {need}, v14\ns_cbranch_vccnz {L}")
            else: a(f"s_branch {L}")
            a.label(Lok)
            t = self.t
            t.label(L); t.reset_hist(); t.vm = list(a.vm)
            self.a = t
            t(f"ds_read_b32 v13, {v(addr)} offset:{off}\ns_waitcnt lgkmcnt(0)\nv_cmp_gt_u32 vcc, {need}, v13\ns_cbranch_vccz {Lok}")
            for pi_, pu in enumerate(pend):
                t.wait(vm=("u", pu)); publish_upto(pu, t)
                if pi_ < len(pend) - 1:
                    t(f"ds_read_b32 v13, {v(addr)} offset:{off}\ns_waitcnt lgkmcnt(0)\nv_cmp_gt_u32 vcc, {need}, v13\ns_cbranch_vccz {Lok}")
            self.lds_spin(t, addr, off, need, 13, sleep=sleep)
            t(f"s_branch {Lok}")
            self.a = a
        sJ1, sJ2, sH1, sH2 = 64, 65, 66, 67
        sR5, sR4a, sR4b = 8, 13, 68
        have = 0; pre = False
        todo = [u for u in range(U_RAW, len(UNITS)) if UNITS[u][1] != "pseudo"]
        def need_of(u):
            nd = UNEED[u]
            if nd in (U_W1, U_W2) and not self.opt.get("nodefer"): nd += 1
            while nd and nd not in PUBS: nd += 1
            assert nd <= u, (u, nd)
            return nd
        def consts():
            a(f"s_mul_i32 {s(sH1)}, {s(sL)}, 12288\ns_mul_i32 {s(sH2)}, {s(sL)}, 10240\ns_mul_i32 {s(sJ1)}, {s(sJ)}, 102400\ns_mul_i32 {s(sJ2)}, {s(sJ)}, 245760")
            for i in range(5):
                a(f"s_add_u32 {s(sB)}, {s(sQ)}, {i}\ns_sub_u32 {s(sA)}, {s(sB)}, 5\ns_cmp_ge_u32 {s(sB)}, 5\ns_cselect_b32 {s(sB)}, {s(sA)}, {s(sB)}\ns_mul_i32 {s(sB)}, {s(sB)}, 20480")
                a(f"s_add_u32 {s(sB)}, {s(sB)}, {s(sJ1)}\ns_add_u32 {s(sR5+i)}, {s(sB)}, {s(sH2)}")
            for i in range(4):
                a(f"s_mul_i32 {s(sB)}, {s(sRot+i)}, 25600\ns_add_u32 {s(sB)}, {s(sB)}, {s(sJ1)}\ns_add_u32 {s(sR4a+i)}, {s(sB)}, {s(sH1)}")
                a(f"s_mul_i32 {s(sB)}, {s(sRot+i)}, 20480\ns_add_u32 {s(sB)}, {s(sB)}, {s(sJ2)}\ns_add_u32 {s(sR4b+i)}, {s(sB)}, {s(sH2)}")
        consts()
        a("s_getpc_b64 s[18:19]")
        a.label("L_pc2")
        a(f"s_add_u32 s18, s18, L_table-L_pc2\ns_addc_u32 s19, s19, 0\ns_lshl_b32 s17, {s(sL)}, 8\ns_add_u32 s17, s17, {L_LW}\nv_mov_b32 v15, 0")
        a(f"s_setprio {self.opt.get('lprio', 3)}")
        for ti, u in enumerate(todo):
            size, kind, (wid, ch, i) = UNITS[u]
            if self.opt.get("fake") and u >= U_W1:
                a("s_waitcnt vmcnt(0)"); publish_upto(100); del pend[:]; break
            nd = need_of(u)
            if nd > have:
                have = nd; guarded_wait(12, 0, nd, self.opt.get('lsleep', 2), pre)
            if u == U_W1: MAXF = self.opt.get("maxf2", 8)
            if u == U_W3 + 7: MAXF = self.opt.get("maxf3", 24)
            if ch == 0 and i == 0 and wid in (0, 3):
                guarded_wait(vZ, L_PKR - L_CNT, wid + 1, 1)
            if ch == 0 and i == 0 and wid in (0, 3, 4, 5, 6, 7): self.stamp()
            n = 13 if size == 25600 else 10
            sH = sH1 if size == 25600 else sH2
            sR = (sR5 if wid < 3 else sR4a if wid < 6 else sR4b) + i
            pre = ti + 1 < len(todo) and need_of(todo[ti + 1]) > have
            for k in range(n):
                if k % 4 == 0:
                    a(f"s_add_u32 m0, {s(sH)}, {UADDR[u] + k*1024}\ns_add_u32 {s(sA)}, {s(sR)}, {WS_WP + WP_OFF[wid] + ch*81920 + k*1024}")
                a(f"buffer_load_dwordx4 {v(vL16)}, {s(sWS,4)}, {s(sA)} offen offset:{1024*(k%4)}{'' if self.opt.get('nosc') else ' sc1'} lds", tag=("u", u))
                if k == n - 5 and pre: a("ds_read_b32 v14, v12")
                if k == n - 1:
                    if self.opt.get("dsl"): pend.append(u)
                    else: a(f"s_sub_u32 m0, s17, {4*(u+1)}\nglobal_load_lds_dword v15, s[18:19] offset:{4*(u+1)}")
                if k == n - 1 or (MAXF < n and k % 4 == 3): throttle()
            if u == U_RAW + 2: self.pk_C(a, [1, 2])
        for pu in pend:
            a.wait(vm=("u", pu)); publish_upto(pu)
        self.finish(a)

    PC = 28
    PR, PFR, PCS = 144, 192, 208
    def pk_decode(self, a, k):
        sU, sS, sCl, sWid = 64, 65, 66, 71
        Ld = a.newlabel("Lpd")
        a(f"s_add_u32 {s(sU)}, s63, {768*k}")
        a(f"s_cmp_ge_u32 {s(sU)}, 1680\ns_cbranch_scc1 {Ld}_4")
        a(f"s_mul_hi_u32 {s(sCl)}, {s(sU)}, {(1<<32)//20+1}\ns_mul_i32 {s(sA)}, {s(sCl)}, 20\ns_sub_u32 {s(sS)}, {s(sU)}, {s(sA)}")
        a(f"s_mul_hi_u32 {s(sWid)}, {s(sCl)}, {(1<<32)//10+1}\ns_min_u32 {s(sWid)}, {s(sWid)}, 6\ns_mul_i32 {s(sA)}, {s(sWid)}, 10\ns_sub_u32 {s(sCl)}, {s(sCl)}, {s(sA)}\ns_branch {Ld}")
        a.label(Ld + "_4")
        a(f"s_sub_u32 {s(sA)}, {s(sU)}, 1680\ns_mul_hi_u32 {s(sCl)}, {s(sA)}, {(1<<32)//48+1}\ns_mul_i32 {s(sB)}, {s(sCl)}, 48\ns_sub_u32 {s(sS)}, {s(sA)}, {s(sB)}\ns_mov_b32 {s(sWid)}, 7")
        a.label(Ld)
    def pk_A(self, a, k, R, pre_wait=False):
        sU, sS, sCl, sB0, sB1, sRs, sWid = 64, 65, 66, 67, 68, 69, 71
        c = self.PC; sR = sOUT
        NT = '' if self.opt.get('nont') else ' nt'
        self.pk_decode(a, k)
        L = a.newlabel("Lpa")
        a(f"s_lshl_b32 {s(sCc)}, {s(sCl)}, 7\nv_lshrrev_b32 {v(c)}, 3, {v(vLane)}\nv_and_b32 {v(c+1)}, 7, {v(vLane)}")
        a(f"s_cmp_lt_u32 {s(sWid)}, 3\ns_cbranch_scc1 {L}_q\ns_cmp_eq_u32 {s(sWid)}, 7\ns_cbranch_scc1 {L}_4")
        a(f"s_mul_hi_u32 {s(sA)}, {s(sS)}, {(1<<32)//5+1}\ns_mul_i32 {s(sB)}, {s(sA)}, 5\ns_sub_u32 {s(sB)}, {s(sS)}, {s(sB)}\ns_mul_i32 {s(sA)}, {s(sA)}, 160")
        a(f"s_lshr_b32 {s(sD)}, {s(sB)}, 1\ns_mul_i32 {s(sD)}, {s(sD)}, 80\ns_and_b32 {s(sB1)}, {s(sB)}, 1\ns_lshl_b32 {s(sB1)}, {s(sB1)}, 5\ns_add_u32 {s(sD)}, {s(sD)}, {s(sB1)}")
        a(f"s_cmp_eq_u32 {s(sB)}, 4\ns_cselect_b32 {s(sD)}, 64, {s(sD)}\ns_cselect_b32 {s(sB1)}, 80, 16\ns_add_u32 {s(sB0)}, {s(sA)}, {s(sD)}\ns_add_u32 {s(sB1)}, {s(sB0)}, {s(sB1)}")
        a(f"s_cmp_eq_u32 {s(sWid)}, 6\ns_movk_i32 {s(sRs)}, 1280\ns_cselect_b32 {s(sRs)}, 3072, {s(sRs)}\ns_lshl_b32 {s(sD)}, {s(sRs)}, 3\ns_branch {L}")
        a.label(L + "_4")
        a(f"s_lshr_b32 {s(sA)}, {s(sS)}, 4\ns_lshl_b32 {s(sB0)}, {s(sA)}, 6\ns_bfe_u32 {s(sA)}, {s(sS)}, 0x30001\ns_mul_i32 {s(sA)}, {s(sA)}, 192\ns_add_u32 {s(sB0)}, {s(sB0)}, {s(sA)}")
        a(f"s_and_b32 {s(sA)}, {s(sS)}, 1\ns_lshl_b32 {s(sA)}, {s(sA)}, 5\ns_add_u32 {s(sB0)}, {s(sB0)}, {s(sA)}\ns_add_u32 {s(sB1)}, {s(sB0)}, 16")
        a(f"s_movk_i32 {s(sRs)}, 1280\ns_movk_i32 {s(sD)}, {8*1280}\ns_branch {L}")
        a.label(L + "_q")
        a(f"s_lshl_b32 {s(sB0)}, {s(sS)}, 5\ns_add_u32 {s(sB1)}, {s(sB0)}, 4\ns_movk_i32 {s(sRs)}, 3840\ns_mov_b32 {s(sD)}, {16*3840}")
        a(f"s_add_u32 {s(sA)}, {s(sWid)}, 1\ns_cmp_eq_u32 {s(sA)}, 3\ns_cselect_b32 {s(sA)}, 0, {s(sA)}\ns_mul_i32 {s(sA)}, {s(sA)}, 1280\ns_add_u32 {s(sCc)}, {s(sCc)}, {s(sA)}")
        a(f"v_and_b32 {v(c+2)}, 4, {v(c)}\nv_add_u32 {v(c)}, {v(c)}, {v(c+2)}")
        a.label(L)
        a(f"v_mul_lo_u32 {v(c+8)}, {s(sRs)}, {v(c)}\nv_lshl_add_u32 {v(c+8)}, {v(c+1)}, 4, {v(c+8)}\nv_add_u32 {v(c+9)}, {s(sD)}, {v(c+8)}")
        a(f"s_mul_i32 {s(sB0)}, {s(sB0)}, {s(sRs)}\ns_add_u32 {s(sB0)}, {s(sB0)}, {s(sCc)}\ns_mul_i32 {s(sB1)}, {s(sB1)}, {s(sRs)}\ns_add_u32 {s(sB1)}, {s(sB1)}, {s(sCc)}")
        a(f"s_cmp_ge_u32 {s(sU)}, 2160\ns_cselect_b32 {s(sB0)}, {OOB}, {s(sB0)}\ns_cselect_b32 {s(sB1)}, {OOB}, {s(sB1)}")
        if pre_wait: a("s_waitcnt lgkmcnt(0)")
        a(f"s_mov_b32 {s(sR)}, s6\ns_mov_b32 {s(sR+1)}, s7\ns_mov_b32 {s(sR+2)}, 819200\ns_mov_b32 {s(sR+3)}, 0x20000")
        for wid, lo in ((3, 8), (4, 12), (5, 14), (6, 16), (7, 18)):
            a(f"s_cmp_eq_u32 {s(sWid)}, {wid}\ns_cselect_b64 {s(sR,2)}, s[{lo}:{lo+1}], {s(sR,2)}")
        a(f"s_cmp_ge_u32 {s(sWid)}, 6\ns_cselect_b32 {s(sR+2)}, 1966080, {s(sR+2)}\ns_cmp_lt_u32 {s(sWid)}, 3\ns_cselect_b32 {s(sR+2)}, 2457600, {s(sR+2)}")
        a(f"buffer_load_dwordx4 {v(R,4)}, {v(c+8)}, {s(sR,4)}, {s(sB0)} offen{NT}\nbuffer_load_dwordx4 {v(R+4,4)}, {v(c+9)}, {s(sR,4)}, {s(sB0)} offen{NT}")
        a(f"buffer_load_dwordx4 {v(R+8,4)}, {v(c+8)}, {s(sR,4)}, {s(sB1)} offen{NT}")
        a(f"buffer_load_dwordx4 {v(R+12,4)}, {v(c+9)}, {s(sR,4)}, {s(sB1)} offen{NT}", tag=("raw", k))
    def pk_B(self, a, k_, R, FR, CS):
        sU, sS, sCl, sDst, sScr, sWid = 64, 65, 66, 69, 70, 71
        c = self.PC
        self.pk_decode(a, k_)
        if k_ == 0:
            a(f"v_add_u32 {v(c+4)}, {s(sScr)}, {v(vL16)}")
            a(f"v_lshrrev_b32 {v(c+5)}, 2, {v(vLane)}\nv_lshlrev_b32 {v(c+5)}, 7, {v(c+5)}\nv_and_b32 {v(c+3)}, 3, {v(vLane)}\nv_lshl_add_u32 {v(c+5)}, {v(c+3)}, 3, {v(c+5)}\nv_add_u32 {v(c+5)}, {s(sScr)}, {v(c+5)}")
            a(f"v_lshlrev_b32 {v(c+6)}, 2, {v(vLane)}")
        D = [67, 68, 74, 75]
        L3 = a.newlabel("Ld3"); Lc = L3 + "_c"
        a(f"s_cmp_eq_u32 {s(sWid)}, 6\ns_cbranch_scc1 {L3}")
        a(f"s_mul_i32 {s(sDst)}, {s(sWid)}, 819200\ns_cmp_eq_u32 {s(sWid)}, 7\ns_cselect_b32 {s(sDst)}, {WP_OFF[7]}, {s(sDst)}\ns_mov_b32 {s(sD)}, 102400\ns_cselect_b32 {s(sD)}, 245760, {s(sD)}")
        a(f"s_mul_i32 {s(sA)}, {s(sS)}, 5120\ns_add_u32 {s(sDst)}, {s(sDst)}, {s(sA)}\ns_add_u32 {s(sDst)}, {s(sDst)}, {WS_WP}")
        a(f"s_cmp_ge_u32 {s(sU)}, 2160\ns_cselect_b32 {s(sDst)}, {OOB}, {s(sDst)}")
        for tt in range(4):
            a(f"s_lshl_b32 {s(sA)}, {s(sCl)}, 2\ns_add_u32 {s(sA)}, {s(sA)}, {tt}\ns_mul_hi_u32 {s(sB)}, {s(sA)}, {(1<<32)//5+1}\ns_mul_i32 {s(sCc)}, {s(sB)}, 5\ns_sub_u32 {s(sA)}, {s(sA)}, {s(sCc)}")
            a(f"s_lshl_b32 {s(sA)}, {s(sA)}, 10\ns_mul_i32 {s(sB)}, {s(sB)}, {s(sD)}\ns_add_u32 {s(sA)}, {s(sA)}, {s(sB)}\ns_add_u32 {s(D[tt])}, {s(sA)}, {s(sDst)}")
        a(f"s_mul_i32 {s(sA)}, {s(sS)}, 2560\ns_add_u32 {s(sA)}, {s(sA)}, {WS_CS1}\ns_cmp_eq_u32 {s(sWid)}, 4\ns_cselect_b32 {s(sA)}, {s(sA)}, {OOB}\ns_branch {Lc}")
        a.label(L3)
        a(f"s_mul_i32 {s(sA)}, {s(sCl)}, 81920\ns_lshl_b32 {s(sB)}, {s(sS)}, 12\ns_add_u32 {s(sA)}, {s(sA)}, {s(sB)}")
        for tt in range(4): a(f"s_add_u32 {s(D[tt])}, {s(sA)}, {WS_WP + WP_OFF[6] + 1024*tt}")
        a(f"s_mul_i32 {s(sA)}, {s(sS)}, 6144\ns_add_u32 {s(sA)}, {s(sA)}, {WS_CS3}")
        a.label(Lc)
        a(f"s_lshl_b32 {s(sB)}, {s(sCl)}, 8\ns_add_u32 {s(sA)}, {s(sA)}, {s(sB)}")
        a.wait(vm=("raw", k_))
        for hb in range(2):
            for k in range(2): a(f"ds_write_b128 {v(c+4)}, {v(R+8*hb+4*k,4)} offset:{1024*k}")
            for tt in range(4): a(f"ds_read_b64_tr_b16 {v(FR+4*tt+2*hb,2)}, {v(c+5)} offset:{32*tt}")
        a("s_waitcnt lgkmcnt(0)")
        for tt in range(4):
            a(f"buffer_store_dwordx4 {v(FR+4*tt,4)}, {v(vL16)}, {s(sWS,4)}, {s(D[tt])} offen sc1", tag=("pst", k_))
        if k_ > 0:
            for tt in range(4): a(f"v_mov_b32 {v(CS+tt)}, 0")
            for k in range(4):
                for tt in range(4): a(f"v_dot2c_f32_bf16 {v(CS+tt)}, {s(sOnes)}, {v(FR+4*tt+k)}")
            self.rscatter4(a, [CS, CS + 1, CS + 2, CS + 3], "v_add_f32")
            a(f"buffer_store_dword {v(CS)}, {v(c+6)}, {s(sWS,4)}, {s(sA)} offen sc1", tag=("pst", k_))
    def pk_C(self, a, ks):
        c = self.PC
        a(f"s_lshl_b32 {s(sA)}, s63, 5\ns_add_u32 {s(sA)}, {s(sA)}, {WS_PF + 24576*ks[0]}")
        a.wait(vm=("pst", ks[-1]))
        a("s_mov_b64 exec, 1")
        for k in ks:
            a(f"buffer_store_dwordx2 {v(c+10,2)}, {v(c+7)}, {s(sWS,4)}, {s(sA)} offen sc1")
            if k != ks[-1]: a(f"s_add_u32 {s(sA)}, {s(sA)}, 24576")
        a("s_mov_b64 exec, -1")
    def pack_seq(self, a, mid=None):
        c = self.PC
        self.pk_B(a, 0, 64, 192, 224)
        self.stamp()
        if mid: mid()
        else:
            self.get_tag(a, c + 10); a(f"v_mov_b32 {v(c+11)}, {s(sTag+1)}")
        self.pk_C(a, [0])
        a(f"v_mov_b32 v13, 1\ns_mov_b64 exec, 1\nds_add_u32 {v(vZ)}, v13 offset:{L_C0-L_CNT}\ns_mov_b64 exec, -1")
        self.stamp()
        if not self.opt.get("noxi"): self.lds_spin(a, vZ, L_XI - L_CNT, 4, 13, sleep=1)
        for k in (1, 2): self.pk_A(a, k, 64 + 16 * k)
    def touch_addr(self, a, d):
        a(f"s_lshl_b32 s74, {s(sC)}, 2\ns_mul_i32 s74, s74, {TS}\ns_add_u32 s74, s74, {WS_TILE}")
        a(f"v_lshrrev_b32 {v(d+2)}, 4, {v(vLane)}\ns_mov_b32 {s(sB)}, {TS}\nv_mul_lo_u32 {v(d+2)}, {s(sB)}, {v(d+2)}\nv_and_b32 {v(d)}, 15, {v(vLane)}\nv_lshl_add_u32 {v(d)}, {v(d)}, 7, {v(d+2)}")
        a(f"v_and_b32 {v(d+1)}, 3, {v(vLane)}\nv_lshl_add_u32 {v(d+1)}, {v(d+1)}, 7, {v(d+2)}")

    def sweep(self, h, name, loads, val, sleep):
        h.label(name); h.reset_hist()
        for k, ld in enumerate(loads): h(f"buffer_load_dwordx2 {v(128+2*k,2)}, {ld} sc1")
        h(f"s_waitcnt vmcnt(0)\nv_cmp_ne_u64 vcc, {s(sTag,2)}, {v(128,2)}")
        for k in range(1, len(loads)): h(f"v_cmp_ne_u64 {s(sMk,2)}, {s(sTag,2)}, {v(128+2*k,2)}\ns_or_b64 vcc, vcc, {s(sMk,2)}")
        h(f"s_cbranch_vccz {name}_ok\ns_sleep {sleep}")
        self.spin_tail(h, name, name + "_ok")
        h.label(name + "_ok"); h.reset_hist()
        h(f"v_mov_b32 v56, {val}\ns_mov_b64 exec, 1\nds_write_b32 {v(vZ)}, v56 offset:{L_PKR-L_CNT}\ns_mov_b64 exec, -1")

    def prestore(self, h):
        h("v_mov_b32 v232, 0\nv_mov_b32 v233, 0\nv_mov_b32 v234, 0\nv_mov_b32 v235, 0")
        for w in range(4):
            h(f"s_mul_i32 {s(sA)}, {s(sJ)}, 2560\ns_add_u32 {s(sA)}, {s(sA)}, {s(sTile)}\ns_add_u32 {s(sA)}, {s(sA)}, {w*TS}")
            for buf in (BUFA, BUFB):
                h(f"s_add_u32 {s(sB)}, {s(sA)}, {buf}")
                h(f"buffer_store_dwordx4 v[232:235], {v(vL16)}, {s(sWS,4)}, {s(sB)} offen sc1\nbuffer_store_dwordx4 v[232:235], {v(vL16)}, {s(sWS,4)}, {s(sB)} offen offset:1024 sc1")
                h(f"buffer_store_dwordx2 v[232:233], {v(vL8)}, {s(sWS,4)}, {s(sB)} offen offset:2048 sc1")
            h(f"s_lshl_b32 {s(sA)}, {s(sJ)}, 11\ns_add_u32 {s(sA)}, {s(sA)}, {s(sTile)}\ns_add_u32 {s(sA)}, {s(sA)}, {w*TS + BUFG}")
            for ch in range(1):
                h(f"buffer_store_dwordx4 v[232:235], {v(vL16)}, {s(sWS,4)}, {s(sA)} offen sc1\nbuffer_store_dwordx4 v[232:235], {v(vL16)}, {s(sWS,4)}, {s(sA)} offen offset:1024 sc1\ns_add_u32 {s(sA)}, {s(sA)}, 16384")

    def relay(self):
        h = self.h
        h.label("L_relay"); h.reset_hist(); h.reset_cnt()
        self.a, sa = h, self.a; self.nst = 1; self.inhelper = True
        h("s_setprio 2\ns_waitcnt lgkmcnt(0)")
        self.srd(h, sWS, 24, WS_SIZE)
        h(f"s_mul_i32 {s(sA)}, {s(sJ)}, 5\ns_lshr_b32 {s(sA)}, {s(sA)}, 2\ns_mul_i32 {s(sTJ)}, {s(sA)}, 640\ns_add_u32 {s(sTJ)}, {s(sTJ)}, {WS_PF}")
        h(f"v_min_u32 v58, 39, {v(vLane)}\nv_lshlrev_b32 v58, 5, v58\nv_add_u32 v59, 6400, v58\nv_add_u32 v60, 12800, v58")
        if self.opt.get("pre") in (3, 4):
            h(f"s_lshl_b32 {s(sTile)}, {s(sC)}, 2\ns_mul_i32 {s(sTile)}, {s(sTile)}, {TS}\ns_add_u32 {s(sTile)}, {s(sTile)}, {WS_TILE}")
            if self.opt["pre"] == 4: self.lds_spin(h, vZ, L_C0 - L_CNT, 3, 13, sleep=2)
            self.prestore(h)
        self.get_tag(h, 28)
        self.lds_spin(h, vZ, L_C0 - L_CNT, 3, 13, sleep=2)
        h(f"s_sleep {self.opt.get('sw0', 8)}")
        self.stamp()
        self.sweep(h, "L_pfa", [f"v{58+k}, {s(sWS,4)}, {s(sTJ)} offen" for k in range(3)], 3, 4)
        self.stamp()
        if self.opt.get("t6"):
            self.touch_addr(h, 46)
            h(f"v_and_b32 {v(vLa)}, 1, {v(vLane)}\nv_mul_u32_u24 {v(vLa)}, 260, {v(vLa)}\nv_add_u32 {v(vLa)}, {L_LW}, {v(vLa)}")
            self.lds_spin(h, vLa, 0, self.opt["t6"], 13, sleep=2)
            for buf in (BUFA, BUFB)[:self.opt.get("t6n", 2)]:
                h(f"s_mul_i32 {s(sB)}, {s(sJ)}, 2560\ns_add_u32 {s(sB)}, {s(sB)}, s74\ns_add_u32 {s(sB)}, {s(sB)}, {buf}")
                h(f"buffer_load_dword v50, v46, {s(sWS,4)}, {s(sB)} offen sc1\nbuffer_load_dword v50, v47, {s(sWS,4)}, {s(sB)} offen offset:2048 sc1")
        h(f"s_lshl_b32 {s(sA)}, {s(sC)}, 3\ns_add_u32 {s(sA)}, {s(sA)}, {s(sJ)}\ns_mul_i32 {s(sA)}, {s(sA)}, 10240\ns_add_u32 {s(sD)}, {s(sA)}, {WS_KV}\ns_sub_u32 {s(sE)}, {s(sD)}, {8*10240}")
        h(f"v_add_u32 v40, {P1TMP + 4*5120}, {v(vL8)}\nv_add_u32 v41, {P1TMP}, {v(vL8)}")
        for k in range(5): h(f"v_mov_b32 {v(66+4*k)}, {s(sTag)}\nv_mov_b32 {v(67+4*k)}, {s(sTag+1)}")
        def out(part):
            self.lds_spin(h, vZ, L_CW + 1024 + 768 - L_CNT, part + 1, 13, sleep=1)
            for k in range(5): h(f"ds_read_b64 {v(64+4*k,2)}, v40 offset:{2560*part+512*k}")
            h(f"s_waitcnt lgkmcnt(0)\ns_add_u32 {s(sA)}, {s(sD)}, {5120*part}")
            for k in range(5):
                if k == 4: h(f"s_add_u32 {s(sA)}, {s(sA)}, 4096")
                h(f"buffer_store_dwordx4 {v(64+4*k,4)}, {v(vL16)}, {s(sWS,4)}, {s(sA)} offen offset:{1024*(k%4)} sc1")
        def inc(part):
            L = f"L_kv{part}"
            for k in range(5): h(f"v_mov_b32 {v(96+4*k)}, 0\nv_mov_b32 {v(97+4*k)}, 0")
            h(f"s_cmp_eq_u32 {s(sC)}, 0\ns_cbranch_scc1 {L}_ok")
            h(f"s_add_u32 {s(sA)}, {s(sE)}, {5120*part}\ns_add_u32 {s(sB)}, {s(sA)}, 4096")
            h.label(L); h.reset_hist()
            for k in range(5): h(f"buffer_load_dwordx4 {v(96+4*k,4)}, {v(vL16)}, {s(sWS,4)}, {s(sB if k == 4 else sA)} offen offset:{1024*(k%4)} sc1")
            h(f"s_waitcnt vmcnt(0)\nv_cmp_ne_u64 vcc, {s(sTag,2)}, {v(98,2)}")
            for k in range(1, 5): h(f"v_cmp_ne_u64 {s(sMk,2)}, {s(sTag,2)}, {v(98+4*k,2)}\ns_or_b64 vcc, vcc, {s(sMk,2)}")
            h(f"s_cbranch_vccz {L}_ok\ns_sleep 1")
            self.spin_tail(h, L, L + "_ok")
            h.label(L + "_ok"); h.reset_hist()
            for k in range(5): h(f"ds_write_b64 v41, {v(96+4*k,2)} offset:{2560*part+512*k}")
            h(f"v_mov_b32 v42, {part+1}\ns_mov_b64 exec, 1\nds_write_b32 {v(vZ)}, v42 offset:{L_XR-L_CNT}\ns_mov_b64 exec, -1")
        if self.opt.get("norelay"):
            h(f"v_mov_b32 v42, 2\nds_write_b32 {v(vZ)}, v42 offset:{L_XR-L_CNT}")
        else:
            out(0); inc(0); self.stamp(); out(1); self.stamp(); inc(1); self.stamp()
        self.finish(h)
        self.a = sa

    def service(self):
        h = self.h; c = self.PC
        h.label("L_service"); h.reset_hist(); h.reset_cnt()
        self.a, sa = h, self.a; self.nst = 1; self.inhelper = True
        h.vm = [("raw", 0)] * 4
        h(f"buffer_load_dword {v(c+10)}, {v(c+7)}, {s(sWS,4)}, 0 offen sc1", tag="ep")
        self.touch_addr(h, 44); h(f"s_mov_b32 {s(sTile)}, s74")
        h(f"v_and_b32 {v(vLa)}, 1, {v(vLane)}\nv_mul_u32_u24 {v(vLa)}, 260, {v(vLa)}\nv_add_u32 {v(vLa)}, {L_LW}, {v(vLa)}")
        h(f"s_mul_i32 {s(sA)}, {s(sJ)}, 5\ns_lshr_b32 {s(sA)}, {s(sA)}, 2\ns_mul_i32 {s(sTJ)}, {s(sA)}, 640\ns_add_u32 {s(sTJ)}, {s(sTJ)}, {WS_PF}")
        h(f"s_mul_i32 {s(sT)}, {s(sJ)}, 1920\ns_add_u32 {s(sT)}, {s(sT)}, {WS_PF + 32*PF_BASE[6]}\ns_mul_i32 {s(sE)}, {s(sA)}, 1536\ns_add_u32 {s(sE)}, {s(sE)}, {WS_PF + 32*PF_BASE[7]}")
        h(f"v_min_u32 v58, 39, {v(vLane)}\nv_lshlrev_b32 v58, 5, v58")
        for k in range(1, 6): h(f"v_add_u32 v{58+k}, {6400*k}, v58")
        h(f"v_min_u32 v53, 59, {v(vLane)}\nv_lshlrev_b32 v53, 5, v53\nv_min_u32 v54, 47, {v(vLane)}\nv_lshlrev_b32 v54, 5, v54")
        h.wait(vm="ep")
        h(f"v_add_u32 {v(c+10)}, 1, {v(c+10)}\nv_mov_b32 {v(c+11)}, 1\nds_write_b64 {v(vZ)}, {v(c+10,2)} offset:{L_TAG-L_CNT}")
        h(f"v_readfirstlane_b32 {s(sTag)}, {v(c+10)}")
        h(f"s_mul_i32 {s(sTag+1)}, {s(sTag)}, 0x9E3779B1\ns_xor_b32 {s(sTag+1)}, {s(sTag+1)}, 0x7F4A7C15\ns_waitcnt lgkmcnt(0)\nv_mov_b32 {v(c+11)}, {s(sTag+1)}")
        def xt_pub():
            h(f"s_getreg_b32 {s(sPI)}, hwreg(HW_REG_XCC_ID)\ns_and_b32 {s(sPI)}, {s(sPI)}, 15\nv_mov_b32 {v(c+12)}, {s(sPI)}\nv_mov_b32 {v(c+13)}, 0")
            h(f"s_lshl_b32 {s(sA)}, {s(sC)}, 3\ns_add_u32 {s(sA)}, {s(sA)}, {s(sJ)}\ns_lshl_b32 {s(sA)}, {s(sA)}, 4\ns_add_u32 {s(sA)}, {s(sA)}, {WS_XT}")
            h(f"s_mov_b64 exec, 1\nbuffer_store_dwordx4 {v(c+10,4)}, {v(c+7)}, {s(sWS,4)}, {s(sA)} offen sc1\ns_mov_b64 exec, -1")
        def touch20(buf):
            h(f"s_mul_i32 {s(sB)}, {s(sJ)}, 2560\ns_add_u32 {s(sB)}, {s(sB)}, {s(sTile)}\ns_add_u32 {s(sB)}, {s(sB)}, {buf}")
            h(f"buffer_load_dword v47, v44, {s(sWS,4)}, {s(sB)} offen sc1\nbuffer_load_dword v47, v45, {s(sWS,4)}, {s(sB)} offen offset:2048 sc1")
        def touch16(buf):
            h(f"s_lshl_b32 {s(sB)}, {s(sJ)}, 11\ns_add_u32 {s(sB)}, {s(sB)}, {s(sTile)}\ns_add_u32 {s(sB)}, {s(sB)}, {buf}")
            h(f"buffer_load_dword v47, v44, {s(sWS,4)}, {s(sB)} offen sc1")
        self.pack_seq(h, xt_pub)
        prestore = lambda: self.prestore(h)
        swa = [f"v{58+k}, {s(sWS,4)}, {s(sTJ)} offen" for k in range(3)]
        if self.opt.get("pre") == 1: prestore()
        for k in (1, 2): self.pk_B(h, k, 64 + 16 * k, 192 + 16 * (k & 1), 224)
        self.stamp()
        if self.opt.get("pre") == 2: prestore()
        h(f"s_lshl_b32 {s(sA)}, {s(sC)}, 7\ns_add_u32 {s(sA)}, {s(sA)}, {WS_XT}\nv_and_b32 v57, 7, {v(vLane)}\nv_lshlrev_b32 v57, 4, v57")
        h.label("L_xt"); h.reset_hist()
        h(f"buffer_load_dwordx4 v[48:51], v57, {s(sWS,4)}, {s(sA)} offen sc1\ns_waitcnt vmcnt(0)\nv_cmp_ne_u64 vcc, {s(sTag,2)}, v[48:49]\ns_cbranch_vccz L_xt_ok\ns_sleep 4")
        self.spin_tail(h, "L_xt", "L_xt_ok")
        h.label("L_xt_ok"); h.reset_hist()
        h(f"v_cmp_ne_u32 vcc, {s(sPI)}, v50\ns_cmp_eq_u64 vcc, 0\ns_cselect_b32 {s(sA)}, {2 if self.force_sc1 else 1}, 2\nv_mov_b32 v57, {s(sA)}")
        self.lds_spin(h, vZ, L_PKR - L_CNT, 1, 13, sleep=2)
        h(f"s_mov_b64 exec, 1\nds_write_b32 {v(vZ)}, v57 offset:{L_MODE-L_CNT}\ns_mov_b64 exec, -1")
        self.pk_C(h, [1, 2])
        self.stamp()
        self.lds_spin(h, vZ, L_PKR - L_CNT, 3, 13, sleep=2)
        self.lds_spin(h, vLa, 0, self.opt.get("gs", 10), 13, sleep=2)
        self.sweep(h, "L_pfb", [f"v{61+k}, {s(sWS,4)}, {s(sTJ)} offen" for k in range(3)] + [f"v53, {s(sWS,4)}, {s(sT)} offen", f"v54, {s(sWS,4)}, {s(sE)} offen", f"v54, {s(sWS,4)}, {s(sE)} offen offset:1536"], 8, 8)
        self.stamp()
        self.lds_spin(h, vLa, 0, self.opt.get("gt", 14), 13, sleep=2)
        if not self.opt.get("not") and not self.opt.get("t6"): touch20(BUFA); touch20(BUFB)
        if not self.opt.get("nog") and not self.opt.get("not"):
            touch16(BUFG)
        for (wsoff, rowb, jb, nl, R) in ((WS_CS1, 2560, 320, 20, 64), (WS_CS3, 6144, 768, 48, 144)):
            h(f"s_mul_i32 {s(sA)}, {s(sJ)}, {jb}\ns_add_u32 {s(sA)}, {s(sA)}, {wsoff}")
            h(f"s_mov_b64 exec, {(1 << nl) - 1:#x}" if nl <= 32 else f"s_mov_b32 exec_lo, -1\ns_mov_b32 exec_hi, {(1 << (nl-32)) - 1:#x}")
            for k in range(20):
                if not self.opt.get("nocs"): h(f"buffer_load_dwordx4 {v(R+4*k,4)}, {v(vL16)}, {s(sWS,4)}, {s(sA)} offen sc1")
                h(f"s_add_u32 {s(sA)}, {s(sA)}, {rowb}")
        h("s_waitcnt vmcnt(0)\ns_setprio 0")
        for (nl, R, ldst) in ((48, 144, L_CS3), (20, 64, L_CS1)):
            if nl == 20: h(f"s_mov_b64 exec, {(1 << nl) - 1:#x}")
            for k in range(1, 20):
                for e in range(4): h(f"v_add_f32 {v(R+e)}, {v(R+e)}, {v(R+4*k+e)}")
            h(f"v_add_u32 {v(TT)}, {ldst}, {v(vL16)}\nds_write_b128 {v(TT)}, {v(R,4)}")
        h(f"s_mov_b64 exec, -1\nv_mov_b32 {v(TT+1)}, 2\nds_write_b32 {v(vZ)}, {v(TT+1)} offset:{L_CSRDY-L_CNT}")
        self.stamp()
        h("s_cmp_lg_u32 s2, 0\ns_cbranch_scc1 L_sv_end")
        h(f"s_mov_b32 {s(sA)}, {WS_XT}")
        h.label("L_ep"); h.reset_hist()
        for k in range(4): h(f"buffer_load_dwordx2 v[{48+2*k}:{49+2*k}], {v(vL16)}, {s(sWS,4)}, {s(sA)} offen offset:{1024*k} sc1")
        h(f"s_waitcnt vmcnt(0)\nv_cmp_ne_u64 vcc, {s(sTag,2)}, v[48:49]")
        for k in range(1, 4):
            h(f"v_cmp_ne_u64 {s(sMk,2)}, {s(sTag,2)}, v[{48+2*k}:{49+2*k}]\ns_or_b64 vcc, vcc, {s(sMk,2)}")
        h("s_cbranch_scc0 L_ep_ok\ns_sleep 4")
        self.spin_tail(h, "L_ep", "L_ep_ok")
        h.label("L_ep_ok"); h.reset_hist()
        h(f"s_mov_b64 exec, 1\nbuffer_store_dword {v(c+10)}, {v(c+7)}, {s(sWS,4)}, 0 offen sc1\ns_mov_b64 exec, -1")
        h.label("L_sv_end"); h.reset_hist()
        self.finish(h)
        self.a = sa

    def build(self):
        self.prologue(); n0 = self.nst
        self.compute()
        self.relay(); self.service()
        self.loader()
        hdr = open("sequential_preLN__sliding_local_dilated__mixer_s_mlp__prompt.s.ref").read().split("; Override")[0]
        out = hdr + f"; @launch grid=(256,1,1) block=(512,1,1) lds={LDS_SIZE}\n"
        out += f'.amdgcn_target "amdgcn-amd-amdhsa--gfx950"\n.text\n.globl {KNAME}\n.p2align 8\n.type {KNAME},@function\n{KNAME}:\n'
        out += self.a.text() + self.h.text() + self.t.text() + "L_end:\n    s_endpgm\nL_code_end:\n.p2align 7\n.type L_table,@object\nL_table:\n" + "".join(f".long {i}\n" for i in range(64)) + ".size L_table, 256\n"
        out += f'''.section .rodata,"a"
.p2align 6
.amdhsa_kernel {KNAME}
  .amdhsa_next_free_vgpr 256
  .amdhsa_next_free_sgpr 102
  .amdhsa_accum_offset 256
  .amdhsa_group_segment_fixed_size 0
  .amdhsa_kernarg_size 88
  .amdhsa_user_sgpr_count 2
  .amdhsa_user_sgpr_kernarg_segment_ptr 1
  .amdhsa_system_sgpr_workgroup_id_x 1
  .amdhsa_float_denorm_mode_32 3
.end_amdhsa_kernel
'''
        return out

if __name__ == "__main__":
    import argparse
    p = argparse.ArgumentParser()
    p.add_argument("-o", default="sequential_preLN__sliding_local_dilated__mixer_s_mlp__prompt.s")
    p.add_argument("--stamps", action="store_true"); p.add_argument("--sc1", action="store_true"); p.add_argument("--opt", action="append", default=[])
    args = p.parse_args()
    opt = {}
    for kv in args.opt:
        k_, _, v_ = kv.partition("="); opt[k_] = int(v_) if v_ else 1
    g = Gen(stamps=args.stamps, force_sc1=args.sc1, opt=opt)
    open(args.o, "w").write(g.build())
    print("units:", [(u, UADDR.get(u), UNEED.get(u)) for u in range(len(UNITS))])
    print("nops inserted:", g.a.nops + g.t.nops)
```

```python
import sys, math, struct
from asmlib import Asm

KNAME = "sequential_preLN__sliding_local_dilated__mixer_s_mlp__prompt_kernel"

def f2u(x): return struct.unpack("<I", struct.pack("<f", x))[0]

WS_EPOCH = 0
WS_XT = 0x1000
WS_PF = 0x8B2000
WS_CS1 = 0x8000
WS_CS3 = 0x18000
WS_WP = 0x40000
WP_OFF = [819200 * k for k in range(7)] + [819200 * 6 + 1966080]
PF_BASE = [200 * k for k in range(7)] + [1680]
WS_TILE = 0x8C8000
TS = 115712
BUFA, BUFB, BUFG, SHAD, FLG = 0, 20480, 40960, 90112, 110592
GBUF = [BUFG, BUFA, BUFB]
F1, F3, FH, G0, S2, S4 = FLG, FLG + 128, FLG + 256, FLG + 384, FLG + 1024, FLG + 3072
WS_KV = WS_TILE + 128 * TS
WS_STAMP = WS_KV + 256 * 10240
WS_SIZE = WS_STAMP + 2048 * 128
OOB = 0x40000000

RING = 153600
P1TMP = 128000
STAGE = 143360
L_CNT = 153600
L_LANDED = L_CNT + 32
L_MODE = L_CNT + 40
L_CSRDY = L_CNT + 44
L_XI = L_CNT + 56
L_C0 = L_CNT + 60
L_PKR = L_CNT + 96
L_XR = L_CNT + 64
L_TAG = L_CNT + 48
L_CS1 = L_CNT + 256
L_CS3 = L_CS1 + 320
L_PSCR = L_CNT + 2048
L_CW = L_PSCR + 6144
L_LW = L_CS3 + 768 + 64
LDS_SIZE = 163840

XIMG = 71680
def plan_units():
    units = [(0, "pseudo", None)]
    for ps in range(3):
        for i in range(5): units.append((20480, "raw", (ps, 0, i)))
    units.append((0, "pseudo", None))
    for wid in range(3, 6):
        for i in range(4): units.append((25600, "pk", (wid, 0, i)))
    for wid in (6, 7):
        for ch in range(3):
            for i in range(4): units.append((20480, "pk", (wid, ch, i)))
    placed = [(XIMG, 81920, 0), (P1TMP, 25600, 16)]
    addr = {}; need = {}
    for u, (size, kind, arg) in enumerate(units):
        if kind == "pseudo": continue
        if kind == "raw": cands = [20480 * k for k in range(6)]
        elif size == 25600: cands = [25600 * k for k in range(6)]
        else: cands = [20480 * k for k in range(7)]
        best = None
        for a in cands:
            nd = 0
            for (pa, psz, pi) in placed:
                if pa < a + size and a < pa + psz: nd = max(nd, pi + 1)
            if best is None or nd < best[0]: best = (nd, a)
        need[u], addr[u] = best
        placed.append((best[1], size, u))
    return units, addr, need
UNITS, UADDR, UNEED = plan_units()
U_RAW, U_X, U_WO, U_W1, U_W2, U_W3, U_W4 = 1, 16, 17, 21, 25, 29, 41
PUBS = set()
HK, HV = 6, 7

vLane, vL16, vL8, vZ, vWA, vLa, vLC, vCV, vPA = 1, 2, 3, 4, 5, 6, 7, 8, 9
vM = 12
KOWN, VFR = 28, 44
AF, WW, ACC, HP, X1P, TT = 64, 144, 176, 208, 218, 228
SLOTS12 = [WW + 4 * i for i in range(8)] + [36, 40, 56, 60]
sWS, sIN, sOUT = 28, 32, 36
sWave, sX, sQ, sJ, sC, sT, sBud, sEp = 40, 41, 42, 43, 44, 45, 46, 47
sTag = 48
sMode = 50
sRot = 51
sTile = 55
sTJ = 56
sA, sB, sCc, sD, sE = 57, 58, 59, 60, 61
sPI = 62
sMa, sMb, sPar = 64, 66, 68
sSh = 70
sOnes = 72
sRho = 73
sSt = 76
sCk = 22
sMk = 26

def v(a, n=1): return f"v{a}" if n == 1 else f"v[{a}:{a+n-1}]"
def s(a, n=1): return f"s{a}" if n == 1 else f"s[{a}:{a+n-1}]"

class Gen:
    def __init__(self, stamps=False, force_sc1=False, budget=1 << 17, opt=None):
        self.opt = dict(sw0=20, pstep=2, pph=0, t6=5); self.opt.update(opt or {})
        step = self.opt.get("pstep", 2)
        mx = max(UNEED.values()) + step
        PUBS.update([1, U_X + 1] + [x for x in range(2, mx + 1) if x % step == self.opt.get("pph", 1) % step])
        self.clk = 's_memtime' if self.opt.get('cyc') else 's_memrealtime'
        self.a = Asm(); self.t = Asm(); self.h = Asm(); self.h.nlabel = 200000
        self.stamps = stamps; self.force_sc1 = force_sc1; self.budget = budget
        self.nst = 0; self.inhelper = False
        self.t.nlabel = 100000

    def stamp(self, grp=0):
        sp = self.opt.get("sp", 0)
        if grp != sp and not (grp == 0 and self.nst == 0) and not (grp == 0 and self.inhelper): return
        if self.stamps and self.nst < 11:
            self.a(f"{self.clk} {s(sSt + 2 * self.nst, 2)}"); self.nst += 1

    def srd(self, a, d, lo, size):
        a(f"s_mov_b32 {s(d)}, {s(lo)}\ns_mov_b32 {s(d+1)}, {s(lo+1)}\ns_mov_b32 {s(d+2)}, {size}\ns_mov_b32 {s(d+3)}, 0x20000")

    def spin_tail(self, a, Lretry, Lok):
        a(f"s_cmp_eq_u32 {s(sBud)}, 0\ns_cbranch_scc1 {Lok}\ns_sub_u32 {s(sBud)}, {s(sBud)}, 1\ns_branch {Lretry}")

    def lds_spin(self, a, addr_v, off, need, tmp, sleep=0):
        L = a.newlabel("Lsp"); Lok = L + "_ok"
        a.label(L)
        a(f"ds_read_b32 {v(tmp)}, {v(addr_v)} offset:{off}\ns_waitcnt lgkmcnt(0)\nv_cmp_gt_u32 vcc, {need}, {v(tmp)}\ns_cbranch_vccz {Lok}")
        if sleep: a(f"s_sleep {sleep}")
        self.spin_tail(a, L, Lok)
        a.label(Lok)

    def allreduce2(self, a, x, y, t, op="v_add_f32"):
        a(f"v_permlane32_swap_b32 {v(x)}, {v(y)}")
        a(f"{op} {v(x)}, {v(x)}, {v(y)}")
        a(f"v_mov_b32 {v(y)}, {v(x)}")
        a(f"v_permlane16_swap_b32 {v(x)}, {v(y)}")
        a(f"{op} {v(x)}, {v(x)}, {v(y)}")
        a(f"v_mov_b32 {v(y)}, {v(x)}")
        a(f"v_permlane32_swap_b32 {v(x)}, {v(y)}")

    def rscatter4(self, a, m, op):
        a(f"v_permlane32_swap_b32 {v(m[0])}, {v(m[2])}")
        a(f"v_permlane32_swap_b32 {v(m[1])}, {v(m[3])}")
        a(f"{op} {v(m[0])}, {v(m[0])}, {v(m[2])}")
        a(f"{op} {v(m[1])}, {v(m[1])}, {v(m[3])}")
        a(f"v_permlane16_swap_b32 {v(m[0])}, {v(m[1])}")
        a(f"{op} {v(m[0])}, {v(m[0])}, {v(m[1])}")

    def allgather4(self, a, m):
        a(f"v_mov_b32 {v(m[1])}, {v(m[0])}")
        a(f"v_permlane16_swap_b32 {v(m[0])}, {v(m[1])}")
        a(f"v_mov_b32 {v(m[2])}, {v(m[0])}")
        a(f"v_mov_b32 {v(m[3])}, {v(m[1])}")
        a(f"v_permlane32_swap_b32 {v(m[0])}, {v(m[2])}")
        a(f"v_permlane32_swap_b32 {v(m[1])}, {v(m[3])}")

    def moded(self, lines, tag=None):
        a, t = self.a, self.t
        L = a.newlabel("Lm"); Lb = L + "_b"
        a(f"s_cmp_lg_u32 {s(sMode)}, 1\ns_cbranch_scc1 {L}")
        for ln in lines: a(ln, tag)
        a.label(Lb)
        t.label(L); t.reset_hist()
        for ln in lines: t(ln + (" sc1" if ln.startswith("buffer_store") else ""))
        t(f"s_branch {Lb}")

    def handoff_store(self, r, buf):
        a = self.a
        a(f"s_add_u32 {s(sA)}, {s(sTJ)}, {buf}")
        self.moded([f"buffer_store_dwordx4 {v(r,4)}, {v(vL16)}, {s(sWS,4)}, {s(sA)} offen",
                    f"buffer_store_dwordx4 {v(r+4,4)}, {v(vL16)}, {s(sWS,4)}, {s(sA)} offen offset:1024",
                    f"buffer_store_dwordx2 {v(r+8,2)}, {v(vL8)}, {s(sWS,4)}, {s(sA)} offen offset:2048"])

    def flag_store(self, off):
        a = self.a
        a(f"s_lshl_b32 {s(sA)}, {s(sJ)}, 3\ns_add_u32 {s(sA)}, {s(sA)}, {s(sTile)}\ns_add_u32 {s(sA)}, {s(sA)}, {off}")
        a("s_mov_b64 exec, 1")
        self.moded([f"buffer_store_dwordx2 {v(self.vTag,2)}, {v(self.vZero)}, {s(sWS,4)}, {s(sA)} offen"])
        a("s_mov_b64 exec, -1")

    def poll8(self, a, voff, soff, tmp, imm=0):
        L = a.newlabel("Lp"); Lok = L + "_ok"
        a.label(L)
        a(f"buffer_load_dwordx2 {v(tmp,2)}, {v(voff)}, {s(sWS,4)}, {soff} offen offset:{imm} sc1")
        a(f"s_waitcnt vmcnt(0)\nv_cmp_ne_u64 vcc, {s(sTag,2)}, {v(tmp,2)}\ns_cbranch_vccz {Lok}")
        self.spin_tail(a, L, Lok)
        a.label(Lok)

    def stream_init(self, frags, slots, G=4):
        self.fr = frags; self.rp = 0; self.cur_unit = None; self.chk = {}
        self.slots = slots; self.G = G; self.side = []; self.rate = 1

    def stream_read(self):
        a = self.a
        if self.rp >= len(self.fr): return
        f = self.rp; u, off, kind = self.fr[f]
        prev = self.cur_unit
        if u != prev:
            u0 = self.opt.get("u0", 2)
            if u0 <= u < u0 + 5: self.stamp(7)
            if self.chk.get(u) == 2:
                L = a.newlabel("Lw"); Lok = L + "_ok"
                a(f"s_cmp_lg_u64 {s(sCk,2)}, 0\ns_cbranch_scc1 {L}")
                a.label(Lok)
                t = self.t
                t.label(L); t.reset_hist()
                t(f"ds_read_b32 {v(vLC)}, {v(vLa)}\ns_waitcnt lgkmcnt(0)\nv_cmp_gt_u32 {s(sCk,2)}, {u+1}, {v(vLC)}\ns_cmp_lg_u64 {s(sCk,2)}, 0\ns_cbranch_scc0 {Lok}")
                self.spin_tail(t, L, Lok)
            else:
                self.lds_spin(a, vLa, 0, u + 1, vLC)
            if u0 <= u < u0 + 5: self.stamp(7)
            self.cur_unit = u
        r = self.slots[f % len(self.slots)]
        A = UADDR[u] + off
        a(f"ds_read_b128 {v(r,4)}, {v((vL16, vWA, vPA)[A >> 16])} offset:{A & 0xffff}", tag=("w", f))
        self.rp += 1
        last = self.rp == len(self.fr)
        if u != prev and prev is not None and (prev + 1) in PUBS: a(f"ds_write_b32 {v(self.vCnt)}, {v(vCV)}")
        nxt = lambda d: self.fr[f + d][0] if f + d < len(self.fr) else None
        LA = self.opt.get("la", 9)
        if nxt(LA) not in (None, u) and nxt(LA) not in self.chk:
            a(f"ds_read_b32 {v(vLC)}, {v(vLa)}", tag=("chk", nxt(LA))); self.chk[nxt(LA)] = 1
        if nxt(2) not in (None, u) and self.chk.get(nxt(2)) == 1:
            a.wait(ds=("chk", nxt(2)))
            a(f"v_cmp_gt_u32 {s(sCk,2)}, {nxt(2)+1}, {v(vLC)}"); self.chk[nxt(2)] = 2
        if nxt(1) != u and not last and (u + 1) in PUBS: a(f"v_mov_b32 {v(vCV)}, {u+1}")
        if last and (u + 1) in PUBS: self.publish(u + 1)

    def publish(self, val):
        self.a(f"v_mov_b32 {v(vCV)}, {val}\nds_write_b32 {v(self.vCnt)}, {v(vCV)}")

    def prime(self):
        for _ in range(len(self.slots)): self.stream_read()

    def mfma_w(self, f, acc, af, first=False, swap=False):
        a = self.a
        if f % self.G == 0: a.wait(ds=("w", min(f + self.G - 1, len(self.fr) - 1)))
        r = self.slots[f % len(self.slots)]
        c = "0" if first else v(acc, 4)
        if swap: a(f"v_mfma_f32_16x16x32_bf16 {v(acc,4)}, {v(af,4)}, {v(r,4)}, {c}")
        else: a(f"v_mfma_f32_16x16x32_bf16 {v(acc,4)}, {v(r,4)}, {v(af,4)}, {c}")
        self.stream_read()
        for _ in range(self.rate):
            if self.side:
                op = self.side.pop(0)
                if callable(op): op()
                elif isinstance(op, tuple): a(op[0], tag=op[1])
                else: a(op)

    def async_check(self, addr, off, need, tmp, name):
        a = self.a
        def chk():
            L = a.newlabel("La"); Lok = L + "_ok"
            a.wait(ds=name)
            a(f"v_cmp_gt_u32 vcc, {need}, {v(tmp)}\ns_cbranch_vccnz {L}")
            a.label(Lok)
            t = self.t
            t.label(L); t.reset_hist()
            t(f"ds_read_b32 {v(tmp)}, {v(addr)} offset:{off}\ns_waitcnt lgkmcnt(0)\nv_cmp_gt_u32 vcc, {need}, {v(tmp)}\ns_cbranch_vccz {Lok}")
            self.spin_tail(t, L, Lok)
        return (f"ds_read_b32 {v(tmp)}, {v(addr)} offset:{off}", name), chk

    def prologue(self):
        a = self.a
        a("s_cmp_ge_u32 s2, 256\ns_cbranch_scc1 L_end")
        a("s_load_dwordx16 s[4:19], s[0:1], 0\ns_load_dwordx4 s[20:23], s[0:1], 64\ns_load_dwordx2 s[24:25], s[0:1], 80")
        self.stamp()
        a("s_getpc_b64 s[62:63]")
        a.label("L_pcref")
        a(f"s_lshr_b32 {s(sA)}, s2, 3\ns_lshl_b32 {s(sA)}, {s(sA)}, 12\nv_lshlrev_b32 v1, 7, v0\nv_add_u32 v1, {s(sA)}, v1")
        a(f"v_min_u32 v1, L_code_end-L_pcref-4, v1\nv_cmp_gt_u32 vcc, 32, v0\ns_and_saveexec_b64 {s(sMk,2)}, vcc\ns_cbranch_execz L_nopf")
        a("global_load_dword v255, v1, s[62:63]")
        a.label("L_nopf")
        a(f"s_mov_b64 exec, -1"); a.reset_cnt()
        a(f"v_and_b32 {v(vLane)}, 63, v0\nv_lshrrev_b32 v0, 6, v0")
        a(f"v_readfirstlane_b32 {s(sWave)}, v0")
        a(f"s_and_b32 {s(sX)}, s2, 7\ns_lshr_b32 {s(sA)}, s2, 3\ns_lshr_b32 {s(sQ)}, {s(sA)}, 3\ns_and_b32 {s(sJ)}, {s(sA)}, 7")
        a(f"s_lshl_b32 {s(sC)}, {s(sX)}, 2\ns_add_u32 {s(sC)}, {s(sC)}, {s(sQ)}")
        a(f"v_lshlrev_b32 {v(vL16)}, 4, {v(vLane)}\nv_lshlrev_b32 {v(vL8)}, 3, {v(vLane)}\nv_mov_b32 {v(vZ)}, {L_CNT}")
        a(f"s_mov_b32 {s(sBud)}, {self.budget}")
        for i in range(4):
            a(f"s_add_u32 {s(sRot+i)}, {s(sQ)}, {i}\ns_and_b32 {s(sRot+i)}, {s(sRot+i)}, 3")
        a(f"s_lshl_b32 {s(sRho)}, {s(sQ)}, 1")
        a(f"s_mov_b32 {s(sOnes)}, 0x3f803f80")
        a(f"s_cmp_lg_u32 {s(sWave)}, 4\ns_cbranch_scc1 L_noinit")
        a(f"v_lshl_add_u32 v12, {v(vLane)}, 2, {v(vZ)}\nv_mov_b32 v14, 0\nv_mov_b32 v15, 0\nv_mov_b32 v16, 0\nv_mov_b32 v17, 0\nv_add_u32 v13, {L_CW}, {v(vL16)}")
        a(f"ds_write_b32 v12, v14\nds_write_b32 v12, v14 offset:{L_LW-L_CNT}\nds_write_b32 v12, v14 offset:{L_LW-L_CNT+256}\nds_write_b128 v13, v[14:17]\nds_write_b128 v13, v[14:17] offset:1024\ns_waitcnt lgkmcnt(0)")
        a.label("L_noinit")
        a("s_barrier")
        self.helper_start()

    def get_tag(self, a, tmp):
        L = a.newlabel("Ltg"); Lok = L + "_ok"
        a.label(L)
        a(f"ds_read_b64 {v(tmp,2)}, {v(vZ)} offset:{L_TAG-L_CNT}\ns_waitcnt lgkmcnt(0)\nv_cmp_gt_u32 vcc, 1, {v(tmp+1)}\ns_cbranch_vccz {Lok}\ns_sleep 1")
        self.spin_tail(a, L, Lok)
        a.label(Lok)
        a(f"v_readfirstlane_b32 {s(sTag)}, {v(tmp)}")
        a(f"s_mul_i32 {s(sTag+1)}, {s(sTag)}, 0x9E3779B1\ns_xor_b32 {s(sTag+1)}, {s(sTag+1)}, 0x7F4A7C15")

    def compute(self):
        a = self.a; h = self.h
        m = vM
        self.vTag = m; self.vZero = m + 2; self.vCnt = m + 3
        vG, vR = m + 4, m + 5
        sImg = sE
        sXo = 75
        MF = "v_mfma_f32_16x16x32_bf16"
        a(f"s_cmp_eq_u32 {s(sWave)}, 6\ns_cbranch_scc1 L_relay")
        a(f"s_add_u32 {s(sPI)}, {s(sWave)}, 1\ns_lshl_b32 {s(sT)}, {s(sC)}, 2\ns_add_u32 {s(sT)}, {s(sT)}, {s(sWave)}")
        a(f"s_mul_i32 {s(sImg)}, {s(sWave)}, 20480\ns_add_u32 {s(sImg)}, {s(sImg)}, {XIMG}")
        t0, t1, x0, x1 = TT, TT + 1, TT + 2, TT + 3
        a(f"s_mul_i32 {s(sXo)}, {s(sT)}, {16*1280}")
        a(f"v_lshrrev_b32 {v(t0)}, 3, {v(vLane)}\nv_and_b32 {v(t1)}, 7, {v(vLane)}\nv_lshrrev_b32 {v(x1)}, 1, {v(t0)}\nv_xor_b32 {v(t1)}, {v(t1)}, {v(x1)}")
        a(f"v_mul_u32_u24 {v(t0)}, 1280, {v(t0)}\nv_add_u32 {v(t0)}, {s(sXo)}, {v(t0)}\nv_lshl_add_u32 {v(x0)}, {v(t1)}, 4, {v(t0)}")
        a(f"v_xor_b32 {v(t1)}, 4, {v(t1)}\nv_lshl_add_u32 {v(x1)}, {v(t1)}, 4, {v(t0)}\nv_add_u32 {v(x1)}, {8*1280-1024}, {v(x1)}")
        a(f"s_lshl_b32 {s(sB)}, {s(sRho)}, 7")
        a("s_waitcnt lgkmcnt(0)")
        self.srd(a, sIN, 4, 2048 * 1280)
        self.stamp(1)
        for ln in range(10):
            a(f"s_add_u32 m0, {s(sImg)}, {2048*ln}")
            a(f"buffer_load_dwordx4 {v(x0)}, {s(sIN,4)}, {s(sB)} offen lds")
            a(f"buffer_load_dwordx4 {v(x1)}, {s(sIN,4)}, {s(sB)} offen offset:1024 lds", tag=("x", ln))
            if ln < 9:
                a(f"s_add_u32 {s(sB)}, {s(sB)}, 128\ns_cmp_ge_u32 {s(sB)}, 1280\ns_cselect_b32 {s(sB)}, 0, {s(sB)}")
        a(f"v_mov_b32 {v(m+13)}, 1\ns_mov_b64 exec, 1\nds_add_u32 {v(vZ)}, {v(m+13)} offset:{L_XI-L_CNT}\ns_mov_b64 exec, -1")
        self.stamp(1)
        self.srd(a, sWS, 24, WS_SIZE)
        a(f"v_lshrrev_b32 {v(vG)}, 4, {v(vLane)}\nv_and_b32 {v(vR)}, 15, {v(vLane)}\nv_mov_b32 {v(self.vZero)}, 0")
        a(f"v_and_b32 {v(vLa)}, 1, {v(vLane)}\nv_mul_u32_u24 {v(vLa)}, 260, {v(vLa)}\nv_add_u32 {v(vLa)}, {L_LW}, {v(vLa)}")
        a(f"s_lshl_b32 {s(sB)}, {s(sWave)}, 8\ns_add_u32 {s(sB)}, {s(sB)}, {L_CW}\nv_lshl_add_u32 {v(self.vCnt)}, {v(vLane)}, 2, {s(sB)}")
        a(f"s_mul_i32 {s(sTile)}, {s(sT)}, {TS}\ns_add_u32 {s(sTile)}, {s(sTile)}, {WS_TILE}")
        a(f"s_mul_i32 {s(sTJ)}, {s(sJ)}, 2560\ns_add_u32 {s(sTJ)}, {s(sTJ)}, {s(sTile)}")
        xoK, xoK8, xoV = m + 10, m + 11, m + 12
        a(f"s_mul_i32 {s(sA)}, {s(sPI)}, 5120\ns_add_u32 {s(sA)}, {s(sA)}, {P1TMP}\nv_add_u32 {v(xoV)}, {s(sA)}, {v(vL8)}")
        a(f"v_add_u32 {v(xoK)}, {s(sA)}, {v(vL16)}\nv_add_u32 {v(xoK8)}, {s(sA)}, {v(vL8)}")
        ra0, ra1, fr_ = m + 6, m + 7, m + 8
        a(f"v_lshrrev_b32 {v(fr_)}, 1, {v(vR)}\nv_xor_b32 {v(ra0)}, {v(fr_)}, {v(vG)}\nv_xor_b32 {v(ra1)}, 4, {v(ra0)}")
        a(f"v_lshlrev_b32 {v(m+9)}, 7, {v(vR)}\nv_add_u32 {v(m+9)}, {s(sImg)}, {v(m+9)}")
        a(f"v_lshl_add_u32 {v(ra0)}, {v(ra0)}, 4, {v(m+9)}\nv_lshl_add_u32 {v(ra1)}, {v(ra1)}, 4, {v(m+9)}")
        p0, p1 = TT + 4, TT + 5
        xq = [TT + 6 + t for t in range(5)]
        a(f"v_lshrrev_b32 {v(p0)}, 1, {v(vG)}\nv_and_b32 {v(p1)}, 1, {v(vG)}\nv_lshl_add_u32 {v(p1)}, {v(p1)}, 3, {v(m+9)}")
        for t in range(5):
            a(f"s_mul_i32 {s(sA)}, {s(sJ)}, 10\ns_add_u32 {s(sA)}, {s(sA)}, {2*t}\ns_lshr_b32 {s(sB)}, {s(sA)}, 3\ns_and_b32 {s(sA)}, {s(sA)}, 7")
            a(f"s_add_u32 {s(sB)}, {s(sB)}, 10\ns_sub_u32 {s(sB)}, {s(sB)}, {s(sRho)}\ns_sub_u32 {s(sCc)}, {s(sB)}, 10\ns_cmp_ge_u32 {s(sB)}, 10\ns_cselect_b32 {s(sB)}, {s(sCc)}, {s(sB)}\ns_lshl_b32 {s(sB)}, {s(sB)}, 11")
            a(f"v_add_u32 {v(xq[t])}, {s(sA)}, {v(p0)}\nv_xor_b32 {v(xq[t])}, {v(xq[t])}, {v(fr_)}\nv_lshl_add_u32 {v(xq[t])}, {v(xq[t])}, 4, {v(p1)}\nv_add_u32 {v(xq[t])}, {s(sB)}, {v(xq[t])}")
        sm = [TT + 12, TT + 13, TT + 14, TT + 15]
        RSD = TT + 24
        inv = f2u(1.0 / 640)
        def xread(A, ln):
            for vv in range(2): A(f"ds_read_b128 {v(AF+8*ln+4*vv,4)}, {v(ra0+vv)} offset:{2048*ln}", tag=("xf", ln))
        def dots(A, ln):
            A.wait(ds=("xf", ln))
            for k in range(8):
                r_ = AF + 8 * ln + k
                A(f"v_dot2c_f32_bf16 {v(sm[2*(k&1)])}, {s(sOnes)}, {v(r_)}\nv_dot2c_f32_bf16 {v(sm[2*(k&1)+1])}, {v(r_)}, {v(r_)}")
        def stat_fin(A):
            A(f"v_add_f32 {v(sm[0])}, {v(sm[0])}, {v(sm[2])}\nv_add_f32 {v(sm[1])}, {v(sm[1])}, {v(sm[3])}")
            self.allreduce2(A, sm[0], sm[1], None)
            A(f"v_mul_f32 {v(sm[0])}, {inv:#x}, {v(sm[0])}\nv_mul_f32 {v(sm[1])}, {inv:#x}, {v(sm[1])}")
            A(f"v_fma_f32 {v(sm[1])}, -{v(sm[0])}, {v(sm[0])}, {v(sm[1])}\nv_max_f32 {v(sm[1])}, 0, {v(sm[1])}\nv_add_f32 {v(sm[1])}, {f2u(1e-5):#x}, {v(sm[1])}")
            A(f"v_rsq_f32 {v(RSD)}, {v(sm[1])}\nv_mul_f32_e64 {v(RSD+1)}, -{v(sm[0])}, {v(RSD)}\ns_mov_b32 {s(sD)}, 0xffff0000")
        tp = [TT + 16 + 2 * k for k in range(4)]
        def norm_ops(st):
            ops = []
            for k in range(4): ops += [f"v_lshlrev_b32 {v(tp[k])}, 16, {v(AF+4*st+k)}", f"v_and_b32 {v(tp[k]+1)}, {s(sD)}, {v(AF+4*st+k)}"]
            for k in range(4): ops += [f"v_fma_f32 {v(tp[k])}, {v(tp[k])}, {v(RSD)}, {v(RSD+1)}", f"v_fma_f32 {v(tp[k]+1)}, {v(tp[k]+1)}, {v(RSD)}, {v(RSD+1)}"]
            for k in range(4): ops.append(f"v_cvt_pk_bf16_f32 {v(AF+4*st+k)}, {v(tp[k])}, {v(tp[k]+1)}")
            return ops
        for r_ in sm: a(f"v_mov_b32 {v(r_)}, 0")
        for ln in range(10):
            a.wait(vm=("x", ln))
            if ln == 9: self.stamp(1)
            xread(a, ln)
            if ln >= 2: dots(a, ln - 2)
        for t in range(5): a(f"ds_read_b64 {v(X1P+2*t,2)}, {v(xq[t])}")
        self.publish(1)
        dots(a, 8); dots(a, 9)
        stat_fin(a)
        self.stamp(); self.stamp(1)
        fr = [(U_RAW + 5 * ps + st // 4, (st % 4) * 5120 + 1024 * t, "pk") for ps in range(3) for st in range(20) for t in range(5)]
        VAC = ACC + 20
        accs = [ACC, VAC, ACC]
        KPREV = KOWN + 10
        def pack5(acc, dst, A=None):
            A = A or a
            for t in range(5):
                A(f"v_cvt_pk_bf16_f32 {v(dst(t))}, {v(acc+4*t)}, {v(acc+4*t+1)}\nv_cvt_pk_bf16_f32 {v(dst(t)+1)}, {v(acc+4*t+2)}, {v(acc+4*t+3)}")
        def k_out(A):
            pack5(ACC, lambda t: KOWN + 2 * t, A)
            A(f"ds_write_b128 {v(xoK)}, {v(KOWN,4)}\nds_write_b128 {v(xoK)}, {v(KOWN+4,4)} offset:1024\nds_write_b64 {v(xoK8)}, {v(KOWN+8,2)} offset:2048")
        def xr_add(A, n):
            A(f"s_lshl_b32 {s(sB)}, {s(sPI)}, 2\ns_add_u32 {s(sB)}, {s(sB)}, {L_XR}\nv_mov_b32 {v(m+13)}, {s(sB)}\nv_mov_b32 {v(m+14)}, {n}")
            A(f"ds_write_b32 {v(m+13)}, {v(m+14)}")
        for st in range(20):
            for op in norm_ops(st): a(op)
        self.stamp(1)
        VF = TT
        VLO = 48
        MK = TT + 20
        BIAS = TT + 24
        sGE = lambda hh: 8 + 2 * (hh - 1)
        sCM = lambda t: 14 + 2 * (t - 1)
        tq = m + 14
        a(f"v_add_u32 {v(vWA)}, 0x10000, {v(vL16)}\nv_add_u32 {v(vPA)}, 0x20000, {v(vL16)}")
        a(f"v_and_b32 {v(tq)}, 1, {v(vR)}\nv_cmp_eq_u32 {s(sPar,2)}, 1, {v(tq)}")
        a(f"v_lshl_add_u32 {v(tq)}, {v(vG)}, 2, {v(tq)}\nv_cmp_le_u32 {s(sMa,2)}, {v(tq)}, {v(vR)}")
        a(f"v_add_u32 {v(tq)}, 2, {v(tq)}\nv_cmp_le_u32 {s(sMb,2)}, {v(tq)}, {v(vR)}")
        a(f"v_mov_b32 {v(tq)}, 0xffff\nv_mov_b32 {v(m+13)}, 0xffff0000\nv_cndmask_b32 {v(tq)}, {v(tq)}, {v(m+13)}, {s(sPar,2)}")
        a(f"v_cndmask_b32 {v(MK)}, 0, {v(tq)}, {s(sMa,2)}\nv_cndmask_b32 {v(MK+1)}, 0, {v(tq)}, {s(sMb,2)}")
        a(f"v_xor_b32 {v(MK+2)}, {v(MK)}, {v(tq)}\nv_xor_b32 {v(MK+3)}, {v(MK+1)}, {v(tq)}")
        a(f"s_cmp_eq_u32 {s(sT)}, 0\ns_cselect_b32 {s(sB)}, {f2u(-1e30):#x}, 0\ns_waitcnt vmcnt(0)")
        for k in range(4): a(f"v_mov_b32 {v(BIAS+k)}, {s(sB)}")
        for hh in range(1, 4):
            a(f"v_cmp_le_u32 {s(sGE(hh),2)}, {hh}, {v(vG)}\nv_cmp_gt_u32 {s(sCM(hh),2)}, {4*hh}, {v(vR)}")
        vXo, vXp, vKp, vVp, vOne, vTwo = m + 15, m + 6, m + 7, m + 9, 10, 11
        a(f"s_lshl_b32 {s(sB)}, {s(sWave)}, 8\ns_add_u32 {s(sB)}, {s(sB)}, {L_CW + 1024 - 256}\ns_cmp_eq_u32 {s(sWave)}, 0\ns_cselect_b32 {s(sB)}, {L_XR}, {s(sB)}\nv_mov_b32 {v(vXp)}, {s(sB)}\nv_add_u32 {v(vXo)}, 1024, {v(self.vCnt)}")
        a(f"v_subrev_u32 {v(vKp)}, 5120, {v(xoK)}\nv_subrev_u32 {v(vVp)}, 5120, {v(xoV)}\nv_mov_b32 {v(vOne)}, 1\nv_mov_b32 {v(vTwo)}, 2")
        self.get_tag(a, self.vTag)
        a(f"v_mov_b32 {v(self.vTag+1)}, {s(sTag+1)}")
        self.stream_init(fr, [WW + 4 * i for i in range(8)] + [48, 52, 56, 60]); self.prime()
        self.stamp(1)
        def pack_ops(acc, dst):
            return [f"v_cvt_pk_bf16_f32 {v(dst(t)+k)}, {v(acc+4*t+2*k)}, {v(acc+4*t+2*k+1)}" for t in range(5) for k in range(2)]
        for ps in range(3):
            for st in range(20):
                if ps == 1 and st == 1:
                    self.side += pack_ops(ACC, lambda t: KOWN + 2 * t)
                    self.side += [f"ds_write_b128 {v(xoK)}, {v(KOWN,4)}", f"ds_write_b128 {v(xoK)}, {v(KOWN+4,4)} offset:1024", f"ds_write_b64 {v(xoK8)}, {v(KOWN+8,2)} offset:2048", f"ds_write_b32 {v(vXo)}, {v(vOne)}"]
                if ps == 2 and st == 1:
                    self.side += pack_ops(VAC, lambda t: VF + 4 * t)
                    self.side += [f"ds_write_b64 {v(xoV)}, {v(VF+4*t,2)} offset:{2560+512*t}" for t in range(5)] + [f"ds_write_b32 {v(vXo)}, {v(vTwo)}"]
                if ps == 2 and st == 8:
                    rd, ck = self.async_check(vZ, L_MODE - L_CNT, 1, m + 14, "mode")
                    self.side += [rd] + [""] * 8 + [ck, f"v_readfirstlane_b32 {s(sMode)}, {v(m+14)}"]
                if ps == 2 and st == 12:
                    rd, ck = self.async_check(vXp, 0, 1, m + 13, "xr1")
                    self.side += [rd] + [""] * 8 + [ck, f"ds_read_b128 {v(KPREV,4)}, {v(vKp)}", f"ds_read_b128 {v(KPREV+4,4)}, {v(vKp)} offset:1024", (f"ds_read_b64 {v(KPREV+8,2)}, {v(vVp)} offset:2048", "kprev")]
                for t in range(5):
                    f = ps * 100 + st * 5 + t
                    self.mfma_w(f, accs[ps] + 4 * t, AF + 4 * st, first=(st == 0), swap=(ps == 1))
            self.stamp(1)
        assert not self.side
        self.stamp()
        QF, SC, SP, PF, QP = AF, AF + 16, AF + 32, AF + 48, AF + 64
        pack5(ACC, lambda t: QF if t == 0 else (QF + 14 if t == 4 else QP + 2 * t))
        for hh in range(4):
            for k in range(2):
                if hh > 0: a(f"v_cndmask_b32 {v(QF+4*hh+k)}, 0, {v(QP+2*hh+k)}, {s(sGE(hh),2)}")
                if hh < 3: a(f"v_cndmask_b32 {v(QF+4*hh+2+k)}, {v(QP+2*(hh+1)+k)}, 0, {s(sGE(hh+1),2)}")
        a.wait(ds="kprev")
        for hh in range(4):
            a(f"{MF} {v(SC+4*hh,4)}, {v(KOWN+2*hh,4)}, {v(QF+4*hh,4)}, 0")
            a(f"{MF} {v(SP+4*hh,4)}, {v(KPREV+2*hh,4)}, {v(QF+4*hh,4)}, {v(BIAS,4)}")
        self.lds_spin(a, vXp, 0, 2, m + 14)
        for t in range(5):
            a(f"ds_read_b64 {v(VF+4*t+2,2)}, {v(vVp)} offset:{2560+512*t}", tag="vprev")
        la = [AF + 64 + hh for hh in range(4)]; lb = [AF + 68 + hh for hh in range(4)]; mx = [AF + 72 + hh for hh in range(4)]
        a(f"s_mov_b32 {s(sB)}, {f2u(20 ** -0.5 * math.log2(math.e)):#x}")
        for hh in range(4):
            c_, p_ = SC + 4 * hh, SP + 4 * hh
            a(f"v_cndmask_b32 {v(c_)}, {v(c_)}, {v(c_+1)}, {s(sPar,2)}\nv_cndmask_b32 {v(p_)}, {v(p_)}, {v(p_+1)}, {s(sPar,2)}")
            a(f"v_cndmask_b32 {v(c_+2)}, {v(c_+2)}, {v(c_+3)}, {s(sPar,2)}\nv_cndmask_b32 {v(p_+2)}, {v(p_+2)}, {v(p_+3)}, {s(sPar,2)}")
            a(f"v_cndmask_b32 {v(la[hh])}, {v(p_)}, {v(c_)}, {s(sMa,2)}\nv_cndmask_b32 {v(lb[hh])}, {v(p_+2)}, {v(c_+2)}, {s(sMb,2)}")
            a(f"v_max_f32 {v(mx[hh])}, {v(la[hh])}, {v(lb[hh])}")
        self.rscatter4(a, mx, "v_max_f32")
        a(f"v_mul_f32 {v(mx[0])}, {s(sB)}, {v(mx[0])}")
        self.allgather4(a, mx)
        for hh in range(4):
            a(f"v_fma_f32 {v(la[hh])}, {v(la[hh])}, {s(sB)}, -{v(mx[hh])}\nv_fma_f32 {v(lb[hh])}, {v(lb[hh])}, {s(sB)}, -{v(mx[hh])}")
        for hh in range(4):
            a(f"v_exp_f32 {v(la[hh])}, {v(la[hh])}\nv_exp_f32 {v(lb[hh])}, {v(lb[hh])}")
        for hh in range(4):
            a(f"v_add_f32 {v(mx[hh])}, {v(la[hh])}, {v(lb[hh])}")
        a.wait(ds="vprev")
        for t in range(1, 4):
            for k in range(4): a(f"v_cndmask_b32 {v(VLO+4*(t-1)+k)}, 0, {v(VF+4*t+k)}, {s(sCM(t),2)}")
            for k in range(4): a(f"v_xor_b32 {v(VF+4*t+k)}, {v(VF+4*t+k)}, {v(VLO+4*(t-1)+k)}")
        self.rscatter4(a, mx, "v_add_f32")
        a(f"v_rcp_f32 {v(mx[0])}, {v(mx[0])}")
        self.allgather4(a, mx)
        for hh in range(4):
            a(f"v_mul_f32 {v(la[hh])}, {v(la[hh])}, {v(mx[hh])}\nv_mul_f32 {v(lb[hh])}, {v(lb[hh])}, {v(mx[hh])}")
            a(f"v_cvt_pk_bf16_f32 {v(la[hh])}, {v(la[hh])}, {v(la[hh])}\nv_cvt_pk_bf16_f32 {v(lb[hh])}, {v(lb[hh])}, {v(lb[hh])}")
            a(f"v_and_b32 {v(PF+4*hh)}, {v(la[hh])}, {v(MK)}\nv_and_b32 {v(PF+4*hh+1)}, {v(lb[hh])}, {v(MK+1)}")
            a(f"v_and_b32 {v(PF+4*hh+2)}, {v(la[hh])}, {v(MK+2)}\nv_and_b32 {v(PF+4*hh+3)}, {v(lb[hh])}, {v(MK+3)}")
        for hh in range(4):
            a(f"{MF} {v(ACC+4*hh,4)}, {v(VF+4*hh,4)}, {v(PF+4*hh,4)}, {'0' if hh == 0 else v(ACC+4*hh,4)}")
            lo = VF + 16 if hh == 3 else VLO + 4 * hh
            a(f"{MF} {v(ACC+4*hh+4,4)}, {v(lo,4)}, {v(PF+4*hh,4)}, 0")
        self.publish(U_X + 1)
        OP = TT
        pack5(ACC, lambda t: OP + 2 * t)
        self.handoff_store(OP, BUFA)
        vA16, vA8, vF8 = m + 6, m + 7, m + 8
        a(f"v_add_u32 {v(vA16)}, {s(sTile)}, {v(vL16)}\ns_add_u32 {s(sB)}, {s(sTile)}, 2048\nv_add_u32 {v(vA8)}, {s(sB)}, {v(vL8)}")
        a(f"v_and_b32 {v(vF8)}, 7, {v(vLane)}\nv_lshlrev_b32 {v(vF8)}, 3, {v(vF8)}\nv_add_u32 {v(vF8)}, {s(sTile)}, {v(vF8)}")
        a("s_waitcnt vmcnt(0)")
        self.flag_store(F1)
        self.stamp()

        def unpack_acc(src, fn=None):
            for t in range(5):
                for k in range(2):
                    a(f"v_lshlrev_b32 {v(ACC+4*t+2*k)}, 16, {v(src+2*t+k)}\nv_and_b32 {v(ACC+4*t+2*k+1)}, 0xffff0000, {v(src+2*t+k)}")
        def frags640(u0): return [(u0 + st // 5, (st % 5) * 5120 + 1024 * t, "pk") for st in range(20) for t in range(5)]
        def load_A(buf, v16=None, v8=None):
            self.stamp(self.ph)
            for i in range(4):
                a(f"s_mul_i32 {s(sA)}, {s(sRot+i)}, 5120\ns_add_u32 {s(sA)}, {s(sA)}, {buf}")
                a16 = vA16 if v16 is None else v16[i]; a8 = vA8 if v8 is None else v8[i]
                for uu, imm in enumerate((0, 1024, 2560, 3584)):
                    a(f"buffer_load_dwordx4 {v(AF+20*i+4*uu,4)}, {v(a16)}, {s(sWS,4)}, {s(sA)} offen offset:{imm} sc1", tag=("A", 5*i+uu))
                a(f"buffer_load_dwordx2 {v(AF+20*i+16,2)}, {v(a8)}, {s(sWS,4)}, {s(sA)} offen sc1")
                a(f"buffer_load_dwordx2 {v(AF+20*i+18,2)}, {v(a8)}, {s(sWS,4)}, {s(sA)} offen offset:2560 sc1", tag=("A", 5*i+4))
        def gemm640():
            for st in range(20):
                a.wait(vm=("A", st))
                if st in (0, 10, 19): self.stamp(self.ph)
                for t in range(5): self.mfma_w(st * 5 + t, ACC + 4 * t, AF + 4 * st)
            self.stamp(self.ph)
        def stats_store(src, off):
            x_, y_ = TT + 12, TT + 13
            a(f"v_mov_b32 {v(x_)}, 0\nv_mov_b32 {v(y_)}, 0")
            for k in range(10):
                a(f"v_dot2c_f32_bf16 {v(x_)}, {s(sOnes)}, {v(src+k)}\nv_dot2c_f32_bf16 {v(y_)}, {v(src+k)}, {v(src+k)}")
            self.allreduce2(a, x_, y_, None)
            a(f"v_mov_b32 {v(TT+14)}, {s(sTag)}\nv_mov_b32 {v(TT+15)}, {s(sTag+1)}")
            a(f"s_lshl_b32 {s(sA)}, {s(sJ)}, 8\ns_add_u32 {s(sA)}, {s(sA)}, {s(sTile)}\ns_add_u32 {s(sA)}, {s(sA)}, {off}")
            self.stamp(self.ph)
            a("s_waitcnt vmcnt(0)")
            self.stamp(self.ph)
            a("s_mov_b64 exec, 0xffff")
            self.moded([f"buffer_store_dwordx4 {v(TT+12,4)}, {v(vL16)}, {s(sWS,4)}, {s(sA)} offen"])
            a("s_mov_b64 exec, -1")
        def stats_poll(off):
            L = a.newlabel("Lp"); Lok = L + "_ok"
            e0, e1 = TT + 12, TT + 16
            a(f"s_mov_b32 {s(sA)}, {off}")
            a.label(L)
            a(f"buffer_load_dwordx4 {v(e0,4)}, {v(vA16)}, {s(sWS,4)}, {s(sA)} offen sc1")
            a(f"buffer_load_dwordx4 {v(e1,4)}, {v(vA16)}, {s(sWS,4)}, {s(sA)} offen offset:1024 sc1")
            a(f"s_waitcnt vmcnt(0)\nv_cmp_ne_u64 vcc, {s(sTag,2)}, {v(e0+2,2)}\nv_cmp_ne_u64 {s(sMk,2)}, {s(sTag,2)}, {v(e1+2,2)}")
            a(f"s_or_b64 vcc, vcc, {s(sMk,2)}\ns_cbranch_scc0 {Lok}")
            self.spin_tail(a, L, Lok)
            a.label(Lok)
        def stats_finish(mu, var):
            e0, e1 = TT + 12, TT + 16
            a(f"v_add_f32 {v(mu)}, {v(e0)}, {v(e1)}\nv_add_f32 {v(var)}, {v(e0+1)}, {v(e1+1)}")
            self.allreduce2(a, mu, var, None)
            a(f"v_mul_f32 {v(mu)}, {inv:#x}, {v(mu)}\nv_mul_f32 {v(var)}, {inv:#x}, {v(var)}")
            a(f"v_fma_f32 {v(var)}, -{v(mu)}, {v(mu)}, {v(var)}\nv_max_f32 {v(var)}, 0, {v(var)}")
        c0 = -2 * math.sqrt(2 / math.pi) * math.log2(math.e)
        GK = KOWN
        def gelu_consts(R):
            a(f"v_mul_f32 {v(GK)}, {f2u(c0):#x}, {v(R)}\nv_mul_f32 {v(GK+1)}, {v(R)}, {v(R)}\nv_mul_f32 {v(GK+1)}, {v(GK+1)}, {v(GK)}")
            a(f"v_mul_f32 {v(GK+1)}, {f2u(0.044715):#x}, {v(GK+1)}\nv_rcp_f32 {v(GK+2)}, {v(R)}")
        def gelu_ops(acc, n, dst, tmp, pk=True):
            ops = []
            for b in range(0, n, 4):
                P = [(acc + b, tmp), (acc + b + 2, tmp + 2)]
                if pk:
                    for x_, t_ in P: ops.append(f"v_pk_mul_f32 {v(t_,2)}, {v(x_,2)}, {v(x_,2)}")
                    for x_, t_ in P: ops.append(f"v_pk_fma_f32 {v(t_,2)}, {v(t_,2)}, {v(GK,2)}, {v(GK,2)} op_sel:[0,1,0] op_sel_hi:[1,1,0]")
                    for x_, t_ in P: ops.append(f"v_pk_mul_f32 {v(t_,2)}, {v(t_,2)}, {v(x_,2)}")
                    for k in range(4): ops.append(f"v_exp_f32 {v(tmp+k)}, {v(tmp+k)}")
                    for x_, t_ in P: ops.append(f"v_pk_fma_f32 {v(t_,2)}, {v(t_,2)}, {v(GK+2,2)}, {v(GK+2,2)} op_sel_hi:[1,0,0]")
                    for k in range(4): ops.append(f"v_rcp_f32 {v(tmp+k)}, {v(tmp+k)}")
                    for x_, t_ in P: ops.append(f"v_pk_mul_f32 {v(t_,2)}, {v(t_,2)}, {v(x_,2)}")
                else:
                    for k in range(4): ops.append(f"v_mul_f32 {v(tmp+k)}, {v(acc+b+k)}, {v(acc+b+k)}")
                    for k in range(4): ops.append(f"v_fma_f32 {v(tmp+k)}, {v(tmp+k)}, {v(GK+1)}, {v(GK)}")
                    for k in range(4): ops.append(f"v_mul_f32 {v(tmp+k)}, {v(tmp+k)}, {v(acc+b+k)}")
                    for k in range(4): ops.append(f"v_exp_f32 {v(tmp+k)}, {v(tmp+k)}")
                    for k in range(4): ops.append(f"v_fma_f32 {v(tmp+k)}, {v(tmp+k)}, {v(GK+2)}, {v(GK+2)}")
                    for k in range(4): ops.append(f"v_rcp_f32 {v(tmp+k)}, {v(tmp+k)}")
                    for k in range(4): ops.append(f"v_mul_f32 {v(tmp+k)}, {v(tmp+k)}, {v(acc+b+k)}")
                for i_, (x_, t_) in enumerate(P): ops.append(f"v_cvt_pk_bf16_f32 {v(dst+b//2+i_)}, {v(t_)}, {v(t_+1)}")
            return ops

        a.label("L_P2")
        self.ph = 2; self.stamp(2)
        self.stream_init(frags640(U_WO), SLOTS12, 4); self.prime()
        self.stamp(2)
        unpack_acc(X1P)
        a(f"s_mov_b32 {s(sB)}, {F1}")
        self.poll8(a, vF8, s(sB), TT + 12)
        load_A(BUFA); gemm640()
        pack5(ACC, lambda t: HP + 2 * t)
        self.handoff_store(HP, BUFB)
        stats_store(HP, S2)
        self.stamp()
        a.label("L_P3")
        self.ph = 3; self.stamp(3)
        self.stream_init(frags640(U_W1), SLOTS12, 4); self.prime()
        self.stamp(3)
        self.lds_spin(a, vZ, L_CSRDY - L_CNT, 1, vLC)
        vCS = m + 9
        a(f"v_lshlrev_b32 {v(vCS)}, 4, {v(vG)}\nv_add_u32 {v(vCS)}, {L_CS1}, {v(vCS)}")
        for t in range(5): a(f"ds_read_b128 {v(ACC+4*t,4)}, {v(vCS)} offset:{64*t}", tag="cs")
        stats_poll(S2)
        load_A(BUFB)
        MU, RS = KOWN + 4, KOWN + 5
        var, R = KOWN + 6, KOWN + 7
        stats_finish(MU, var)
        a.wait(ds="cs")
        for k in range(20): a(f"v_mul_f32_e64 {v(ACC+k)}, -{v(MU)}, {v(ACC+k)}")
        a(f"v_add_f32 {v(R)}, {f2u(1e-5):#x}, {v(var)}\nv_rsq_f32 {v(RS)}, {v(R)}")
        a(f"v_mul_f32 {v(R)}, {v(RS)}, {v(RS)}\nv_mul_f32 {v(R)}, {v(R)}, {v(var)}\nv_add_f32 {v(R)}, {f2u(1e-5):#x}, {v(R)}\nv_rsq_f32 {v(R)}, {v(R)}")
        a(f"v_mul_f32 {v(R)}, {v(R)}, {v(RS)}")
        gelu_consts(R)
        gemm640()
        for op in gelu_ops(ACC, 20, OP, TT + 12): a(op)
        self.stamp(3)
        self.handoff_store(OP, BUFA)
        Lsh = a.newlabel("Lsh"); Lshb = Lsh + "_b"
        a(f"s_bitcmp1_b32 {s(sJ)}, 1\ns_cselect_b32 {s(sB)}, 0, 3\ns_cmp_eq_u32 {s(sWave)}, {s(sB)}\ns_cbranch_scc1 {Lsh}")
        a("s_waitcnt vmcnt(0)")
        self.flag_store(F3)
        a.label(Lshb)
        self.stamp(3)
        t = self.t
        t.label(Lsh); t.reset_hist()
        t(f"s_bitcmp1_b32 {s(sJ)}, 1\ns_mov_b32 {s(sSh)}, 0xc000c000\ns_cselect_b32 {s(sSh)}, 0x00030003, {s(sSh)}\ns_mov_b32 {s(sSh+1)}, {s(sSh)}")
        t(f"s_add_u32 {s(sA)}, {s(sTJ)}, {SHAD}\ns_mov_b64 exec, {s(sSh,2)}")
        t(f"buffer_store_dwordx4 {v(OP,4)}, {v(vL16)}, {s(sWS,4)}, {s(sA)} offen sc1")
        t(f"buffer_store_dwordx4 {v(OP+4,4)}, {v(vL16)}, {s(sWS,4)}, {s(sA)} offen offset:1024 sc1")
        t(f"buffer_store_dwordx2 {v(OP+8,2)}, {v(vL8)}, {s(sWS,4)}, {s(sA)} offen offset:2048 sc1")
        t(f"s_lshl_b32 {s(sA)}, {s(sJ)}, 3\ns_add_u32 {s(sA)}, {s(sA)}, {s(sTile)}\ns_add_u32 {s(sA)}, {s(sA)}, {F3}\ns_mov_b64 exec, 1")
        t(f"s_waitcnt vmcnt(3)\ns_cmp_lg_u32 {s(sMode)}, 1\ns_cbranch_scc1 {Lsh}_s")
        t(f"buffer_store_dwordx2 {v(self.vTag,2)}, {v(self.vZero)}, {s(sWS,4)}, {s(sA)} offen\ns_branch {Lsh}_t")
        t.label(Lsh + "_s")
        t(f"buffer_store_dwordx2 {v(self.vTag,2)}, {v(self.vZero)}, {s(sWS,4)}, {s(sA)} offen sc1")
        t.label(Lsh + "_t")
        t(f"s_waitcnt vmcnt(1)\nbuffer_store_dwordx2 {v(self.vTag,2)}, {v(self.vZero)}, {s(sWS,4)}, {s(sA)} offen offset:{FH-F3} sc1")
        t(f"s_mov_b64 exec, -1\ns_branch {Lshb}")
        self.stamp()
        a.label("L_P4")
        self.ph = 4; self.stamp(4)
        self.stream_init(frags640(U_W2), SLOTS12, 4); self.prime()
        self.stamp(4)
        unpack_acc(HP)
        a(f"v_mul_f32_e64 {v(var)}, -{v(MU)}, {v(RS)}")
        for k in range(20): a(f"v_fma_f32 {v(ACC+k)}, {v(ACC+k)}, {v(RS)}, {v(var)}")
        sPv, sNx = sD, sE
        a(f"s_sub_u32 {s(sPv)}, {s(sTile)}, {TS}\ns_add_u32 {s(sA)}, {s(sPv)}, {SHAD}\ns_cmp_eq_u32 {s(sWave)}, 0\ns_cselect_b32 {s(sPv)}, {s(sA)}, {s(sPv)}")
        a(f"s_cmp_eq_u32 {s(sT)}, 0\ns_cselect_b32 {s(sPv)}, {OOB}, {s(sPv)}")
        a(f"s_add_u32 {s(sNx)}, {s(sTile)}, {TS}\ns_add_u32 {s(sA)}, {s(sNx)}, {SHAD}\ns_cmp_eq_u32 {s(sWave)}, 3\ns_cselect_b32 {s(sNx)}, {s(sA)}, {s(sNx)}")
        a(f"s_cmp_eq_u32 {s(sT)}, 127\ns_cselect_b32 {s(sNx)}, {OOB}, {s(sNx)}")
        v16 = [VFR + i for i in range(4)]; v8 = [VFR + 4 + i for i in range(4)]
        tb, tr_ = VFR + 8, VFR + 9
        for i in range(4):
            a(f"s_lshr_b32 {s(sA)}, {s(sRot+i)}, 1\ns_add_u32 {s(sA)}, {s(sA)}, 1\ns_sub_u32 {s(sB)}, 0, {s(sA)}\ns_bitcmp1_b32 {s(sRot+i)}, 0\ns_cselect_b32 {s(sA)}, {s(sA)}, {s(sB)}")
            a(f"s_cselect_b32 {s(sB)}, {s(sNx)}, {s(sPv)}")
            a(f"v_add_u32 {v(tr_)}, {s(sA)}, {v(vR)}\nv_cmp_lt_u32 vcc, 15, {v(tr_)}")
            a(f"v_mov_b32 {v(tb)}, {s(sTile)}\nv_mov_b32 {v(v8[i])}, {s(sB)}\nv_cndmask_b32 {v(tb)}, {v(tb)}, {v(v8[i])}, vcc")
            a(f"v_and_b32 {v(tr_)}, 15, {v(tr_)}\nv_lshl_add_u32 {v(tr_)}, {v(vG)}, 4, {v(tr_)}")
            a(f"v_lshl_add_u32 {v(v16[i])}, {v(tr_)}, 4, {v(tb)}\nv_lshl_add_u32 {v(v8[i])}, {v(tr_)}, 3, {v(tb)}\nv_add_u32 {v(v8[i])}, 2048, {v(v8[i])}")
        fa = VFR + 10
        a(f"s_sub_u32 {s(sA)}, {s(sTile)}, {TS}\ns_add_u32 {s(sB)}, {s(sA)}, {FH-F3}\ns_cmp_eq_u32 {s(sWave)}, 0\ns_cselect_b32 {s(sA)}, {s(sB)}, {s(sA)}")
        a(f"s_cmp_eq_u32 {s(sT)}, 0\ns_cselect_b32 {s(sA)}, {s(sTile)}, {s(sA)}")
        a(f"s_add_u32 {s(sCc)}, {s(sTile)}, {TS}\ns_add_u32 {s(sB)}, {s(sCc)}, {FH-F3}\ns_cmp_eq_u32 {s(sWave)}, 3\ns_cselect_b32 {s(sCc)}, {s(sB)}, {s(sCc)}")
        a(f"s_cmp_eq_u32 {s(sT)}, 127\ns_cselect_b32 {s(sCc)}, {s(sTile)}, {s(sCc)}")
        a(f"v_mov_b32 {v(tb)}, {s(sA)}\nv_mov_b32 {v(tr_)}, {s(sCc)}\nv_and_b32 {v(fa)}, 2, {v(vLane)}\nv_cmp_ne_u32 vcc, 0, {v(fa)}")
        a(f"v_cndmask_b32 {v(tb)}, {v(tb)}, {v(tr_)}, vcc\nv_mov_b32 {v(tr_)}, {s(sTile)}\nv_and_b32 {v(fa)}, 8, {v(vLane)}\nv_cmp_ne_u32 vcc, 0, {v(fa)}")
        a(f"v_cndmask_b32 {v(tb)}, {v(tr_)}, {v(tb)}, vcc\nv_and_b32 {v(fa)}, 7, {v(vLane)}\nv_lshl_add_u32 {v(fa)}, {v(fa)}, 3, {v(tb)}")
        a(f"s_mov_b32 {s(sB)}, {F3}")
        self.poll8(a, fa, s(sB), TT + 12)
        load_A(BUFA, v16, v8); gemm640()
        pack5(ACC, lambda t: X1P + 2 * t)
        self.handoff_store(X1P, BUFB)
        stats_store(X1P, S4)
        self.stamp()
        a.label("L_P5")
        fr5 = [(U_W3 + ch * 4 + st // 5, (st % 5) * 4096 + 1024 * tt, "pk") for ch in range(3) for st in range(20) for tt in range(4)]
        self.ph = 5; self.stamp(5)
        self.stream_init(fr5, SLOTS12, 4); self.prime()
        self.stamp(5)
        self.lds_spin(a, vZ, L_CSRDY - L_CNT, 2, vLC)
        for k in range(8): a(f"ds_read_b128 {v(ACC+4*k,4)}, {v(vCS)} offset:{L_CS3-L_CS1+64*k}", tag="cs")
        stats_poll(S4)
        load_A(BUFB)
        stats_finish(MU, var)
        a.wait(ds="cs")
        for k in range(32): a(f"v_mul_f32_e64 {v(ACC+k)}, -{v(MU)}, {v(ACC+k)}")
        a(f"v_add_f32 {v(R)}, {f2u(1e-5):#x}, {v(var)}\nv_rsq_f32 {v(R)}, {v(R)}")
        gelu_consts(R)
        GP = TT
        A6 = ACC + 16
        def g_store(ch):
            a(f"s_lshl_b32 {s(sA)}, {s(sJ)}, 11\ns_add_u32 {s(sA)}, {s(sA)}, {s(sTile)}\ns_add_u32 {s(sA)}, {s(sA)}, {GBUF[ch]}")
            self.moded([f"buffer_store_dwordx4 {v(GP,4)}, {v(vL16)}, {s(sWS,4)}, {s(sA)} offen",
                        f"buffer_store_dwordx4 {v(GP+4,4)}, {v(vL16)}, {s(sWS,4)}, {s(sA)} offen offset:1024"], tag=("gst", ch))
        def g_flag(ch):
            a.wait(vm=("gst", ch))
            self.flag_store(G0 + 128 * ch)
        PL = TT + 16
        def g_poll_issue(ch):
            a(f"s_mov_b32 {s(sB)}, {G0 + 128*ch}\nbuffer_load_dwordx2 {v(PL,2)}, {v(vF8)}, {s(sWS,4)}, {s(sB)} offen sc1", tag=("gp", ch))
        def g_poll_check(ch):
            L = a.newlabel("Lg"); Lok = L + "_ok"
            a.wait(vm=("gp", ch))
            a(f"v_cmp_ne_u64 vcc, {s(sTag,2)}, {v(PL,2)}\ns_cbranch_vccnz {L}")
            a.label(Lok)
            t = self.t
            t.label(L); t.reset_hist()
            t(f"s_mov_b32 {s(sB)}, {G0 + 128*ch}\nbuffer_load_dwordx2 {v(PL,2)}, {v(vF8)}, {s(sWS,4)}, {s(sB)} offen sc1")
            t(f"s_waitcnt vmcnt(0)\nv_cmp_ne_u64 vcc, {s(sTag,2)}, {v(PL,2)}\ns_cbranch_vccz {Lok}")
            self.spin_tail(t, L, Lok)
        sG = sD
        def loadG(st):
            if st % 4 == 0:
                ch, ui = st // 16, (st % 16) // 4
                a(f"s_lshl_b32 {s(sG)}, {s(sRot+ui)}, 12\ns_add_u32 {s(sG)}, {s(sG)}, {GBUF[ch]}")
            a(f"buffer_load_dwordx4 {v(AF+4*(st%20),4)}, {v(vA16)}, {s(sWS,4)}, {s(sG)} offen offset:{(st%4)*1024} sc1", tag=("G", st))
        for ch in range(3):
            acc = ACC + 16 * (ch & 1)
            self.stamp(5)
            side = gelu_ops(ACC + 16 * ((ch - 1) & 1), 16, GP, TT + 12, pk=False) if ch > 0 else []
            si = 0
            for st in range(20):
                if ch == 0: a.wait(vm=("A", st))
                for tt in range(4):
                    self.mfma_w(ch * 80 + st * 4 + tt, acc + 4 * tt, AF + 4 * st)
                    n = st * 4 + tt
                    if n >= 3:
                        while si < len(side) and si < (n - 2) * len(side) // 62:
                            a(side[si]); si += 1
                if ch > 0 and st == 16:
                    assert si == len(side)
                    if ch == 2: g_poll_check(0)
                    g_store(ch - 1)
                    if ch == 1:
                        for k in range(4): a(f"ds_read_b128 {v(ACC+4*k,4)}, {v(vCS)} offset:{L_CS3-L_CS1+64*(8+k)}", tag="cs")
                if ch == 1 and st == 18:
                    a.wait(ds="cs")
                    for k in range(16): a(f"v_mul_f32_e64 {v(ACC+k)}, -{v(MU)}, {v(ACC+k)}")
                if ch == 2 and st == 2: g_flag(0)
                if ch == 2 and st == 12: g_poll_issue(0)
        self.stamp(5)
        for st in range(16): loadG(st)
        g_flag(1)
        for op in gelu_ops(ACC, 16, GP, TT + 12): a(op)
        g_store(2)
        g_poll_issue(1)
        self.stamp(5)
        self.stamp()
        a.label("L_P6")
        fr6 = [(U_W4 + st // 4, (st % 4) * 5120 + 1024 * t, "pk") for st in range(48) for t in range(5)]
        self.stamp(6)
        self.stream_init(fr6, SLOTS12, 4); self.prime()
        self.stamp(6)
        unpack_acc(HP)
        for t in range(5):
            for k in range(2):
                a(f"v_lshlrev_b32 {v(TT+12)}, 16, {v(X1P+2*t+k)}\nv_and_b32 {v(TT+13)}, 0xffff0000, {v(X1P+2*t+k)}")
                a(f"v_pk_add_f32 {v(ACC+4*t+2*k,2)}, {v(ACC+4*t+2*k,2)}, {v(TT+12,2)}")
        self.stamp(6)
        nxt = 16
        for st in range(48):
            a.wait(vm=("G", st))
            if st in (0, 12, 24, 36, 47): self.stamp(6)
            for t in range(5): self.mfma_w(st * 5 + t, ACC + 4 * t, AF + 4 * (st % 20))
            if st == 1:
                g_flag(2); g_poll_check(1)
            if st == 8: g_poll_issue(2)
            if st == 12: g_poll_check(2)
            if st >= 1:
                while nxt < 48 and nxt <= st + 20 and nxt < 16 + 3 * st + 3:
                    loadG(nxt); nxt += 1
        self.stamp(6)
        pack5(ACC, lambda t: OP + 2 * t)
        sg, sr, so = VFR + 1, VFR + 2, VFR + 3
        a(f"s_mul_i32 {s(sB)}, {s(sWave)}, 2560\ns_add_u32 {s(sB)}, {s(sB)}, {STAGE}")
        a(f"v_mul_u32_u24 {v(sg)}, 160, {v(vR)}\nv_lshl_add_u32 {v(sg)}, {v(vG)}, 3, {v(sg)}\nv_add_u32 {v(sg)}, {s(sB)}, {v(sg)}\nv_add_u32 {v(sr)}, {s(sB)}, {v(vL16)}")
        for t in range(5): a(f"ds_write_b64 {v(sg)}, {v(OP+2*t,2)} offset:{32*t}")
        for k in range(3): a(f"ds_read_b128 {v(AF+4*k,4)}, {v(sr)} offset:{1024*k}", tag=("o", k))
        self.srd(a, sOUT, 20, 2048 * 1280)
        a(f"s_mul_i32 {s(sA)}, {s(sT)}, {16*1280}\ns_mul_i32 {s(sB)}, {s(sJ)}, 160\ns_add_u32 {s(sA)}, {s(sA)}, {s(sB)}")
        for k in range(3):
            a(f"v_add_u32 {v(so)}, {64*k}, {v(vLane)}\nv_mul_u32_u24 {v(so+1)}, 6554, {v(so)}\nv_lshrrev_b32 {v(so+1)}, 16, {v(so+1)}")
            a(f"v_mul_u32_u24 {v(so+1)}, 1120, {v(so+1)}\nv_lshl_add_u32 {v(so+2+k)}, {v(so)}, 4, {v(so+1)}")
        for k in range(3):
            a.wait(ds=("o", k))
            if k == 2: a("s_mov_b32 exec_hi, 0")
            a(f"buffer_store_dwordx4 {v(AF+4*k,4)}, {v(so+2+k)}, {s(sOUT,4)}, {s(sA)} offen")
        a("s_mov_b64 exec, -1")
        self.stamp()
        self.finish(a)

    def finish(self, a):
        if self.stamps and self.opt.get("enc"):
            L = a.newlabel("Len"); k = self.opt["enc"]
            a("s_waitcnt vmcnt(0) lgkmcnt(0)")
            a(f"{self.clk} {s(sSt+22,2)}\ns_waitcnt lgkmcnt(0)\ns_cmp_lg_u32 {s(sWave)}, 1\ns_cbranch_scc1 {L}_e\ns_cmp_lg_u32 s2, {self.opt.get('encb', 77)}\ns_cbranch_scc1 {L}_e")
            a(f"s_sub_u32 {s(sA)}, {s(sSt+2*k)}, {s(sSt)}\ns_lshl_b32 {s(sA)}, {s(sA)}, 1\ns_min_u32 {s(sA)}, {s(sA)}, 20000")
            a.label(L)
            a(f"{self.clk} s[4:5]\ns_waitcnt lgkmcnt(0)\ns_sub_u32 s4, s4, {s(sSt+22)}\ns_cmp_lt_u32 s4, {s(sA)}\ns_cbranch_scc1 {L}")
            a.label(L + "_e")
        elif self.stamps and self.opt.get("dbg"):
            L = a.newlabel("Ldb")
            a("s_waitcnt vmcnt(0) lgkmcnt(0)")
            a(f"{self.clk} {s(sSt+22,2)}\ns_load_dwordx2 s[4:5], s[0:1], 72\ns_waitcnt lgkmcnt(0)\ns_cmp_lg_u32 {s(sWave)}, {self.opt['dbg']-1}\ns_cbranch_scc1 {L}")
            a("v_mov_b32 v0, 0\ns_mov_b64 exec, 1")
            for k in range(12):
                a(f"v_mov_b32 v12, {s(sSt+2*k)}\nglobal_atomic_umax v0, v12, s[4:5] offset:{4*k}")
            a(f"s_not_b32 {s(sA)}, {s(sSt)}\nv_mov_b32 v12, {s(sA)}\nglobal_atomic_umax v0, v12, s[4:5] offset:60")
            a.label(L)
        elif self.stamps:
            a("s_waitcnt vmcnt(0) lgkmcnt(0)")
            a(f"{self.clk} {s(sSt+22,2)}\ns_waitcnt lgkmcnt(0)")
            a(f"s_lshl_b32 {s(sA)}, s2, 3\ns_add_u32 {s(sA)}, {s(sA)}, {s(sWave)}\ns_lshl_b32 {s(sA)}, {s(sA)}, 7\ns_add_u32 {s(sA)}, {s(sA)}, {WS_STAMP}")
            a("v_mov_b32 v0, 0\ns_mov_b64 exec, 1")
            for k in range(12):
                a(f"v_mov_b32 v12, {s(sSt+2*k)}\nv_mov_b32 v13, {s(sBud)}")
                a(f"buffer_store_dwordx2 v[12:13], v0, {s(sWS,4)}, {s(sA)} offen offset:{8*k}")
        a("s_endpgm")

    def pf_wait(self, a, base, n2, tmp):
        per = {20: 20, 30: 60, 48: 48}[n2]
        if n2 == 30: a(f"s_mul_i32 {s(sA)}, {s(sJ)}, {60*8}")
        else: a(f"s_mul_i32 {s(sA)}, {s(sJ)}, 5\ns_lshr_b32 {s(sA)}, {s(sA)}, 2\ns_mul_i32 {s(sA)}, {s(sA)}, {per*8}")
        a(f"s_add_u32 {s(sA)}, {s(sA)}, {WS_PF + base*8}")
        a(f"v_min_u32 {v(tmp)}, {n2-1}, {v(vLane)}\nv_lshlrev_b32 {v(tmp)}, 4, {v(tmp)}")
        L = a.newlabel("Lpf"); Lok = L + "_ok"
        a.label(L)
        a(f"buffer_load_dwordx4 {v(tmp+4,4)}, {v(tmp)}, {s(sWS,4)}, {s(sA)} offen sc1")
        a(f"s_waitcnt vmcnt(0)\nv_cmp_ne_u64 vcc, {s(sTag,2)}, {v(tmp+4,2)}\nv_cmp_ne_u64 {s(sMk,2)}, {s(sTag,2)}, {v(tmp+6,2)}")
        a(f"s_or_b64 vcc, vcc, {s(sMk,2)}\ns_cbranch_scc0 {Lok}\ns_sleep 8")
        self.spin_tail(a, L, Lok)
        a.label(Lok)

    def helper_start(self):
        a = self.a; c = self.PC
        a(f"s_lshl_b32 {s(sA)}, 1, {s(sWave)}\ns_and_b32 {s(sA)}, {s(sA)}, 0xb0\ns_cbranch_scc0 L_compute")
        a(f"s_setprio 3\ns_min_u32 {s(sA)}, {s(sWave)}, 6\ns_sub_u32 {s(sA)}, {s(sA)}, 4\ns_lshl_b32 s70, {s(sA)}, 11\ns_add_u32 s70, s70, {L_PSCR}")
        a(f"s_lshl_b32 s63, {s(sA)}, 8\ns_add_u32 s63, s63, s2\nv_mov_b32 {v(c+7)}, 0")
        self.pk_A(a, 0, 64, pre_wait=True)
        self.srd(a, sWS, 24, WS_SIZE)
        a(f"s_cmp_eq_u32 {s(sWave)}, 7\ns_cbranch_scc1 L_service\ns_branch L_loader")
        a.label("L_compute"); a.reset_hist(); a.reset_cnt()

    def loader(self):
        a = self.a
        a.label("L_loader"); a.reset_hist(); a.reset_cnt(); self.nst = 1; self.inhelper = True; a.vm = [("raw", 0)] * 4
        sL = sMode
        a(f"s_and_b32 {s(sL)}, {s(sWave)}, 1")
        self.srd(a, sIN, 20, 2048 * 1280)
        a(f"v_and_b32 v13, 15, {v(vLane)}\nv_lshlrev_b32 v46, 19, v13\nv_lshlrev_b32 v47, 20, v13\ns_mov_b64 exec, 0x3ff")
        a(f"buffer_load_dword v49, v47, {s(sWS,4)}, 0 offen offset:128 sc1\nbuffer_load_dword v50, v46, {s(sIN,4)}, 0 offen\ns_mov_b64 exec, -1")
        a(f"v_and_b32 v12, 3, {v(vLane)}\nv_mul_u32_u24 v12, 260, v12\nv_add_u32 v12, {L_CW}, v12")
        a(f"s_lshl_b32 {s(sA)}, {s(sL)}, 8\ns_add_u32 {s(sA)}, {s(sA)}, {L_LW}\nv_lshl_add_u32 v11, {v(vLane)}, 2, {s(sA)}")
        self.pack_seq(a)
        for k in (1, 2): self.pk_B(a, k, 64 + 16 * k, 192 + 16 * (k & 1), 224)
        self.stamp()
        pend = []
        MAXF = self.opt.get("maxf", 24)
        def publish_upto(u, A=None):
            (A or a)(f"v_mov_b32 v13, {u+1}\nds_max_u32 v11, v13")
        def throttle():
            if len(a.vm) > MAXF: a(f"s_waitcnt vmcnt({MAXF})")
            while pend and ("u", pend[0]) not in a.vm:
                publish_upto(pend.pop(0))
        def guarded_wait(addr, off, need, sleep, pre=False):
            L = a.newlabel("Lf"); Lok = L + "_ok"
            if pre: a(f"s_waitcnt lgkmcnt(0)\nv_cmp_gt_u32 vcc, {need}, v14\ns_cbranch_vccnz {L}")
            else: a(f"s_branch {L}")
            a.label(Lok)
            t = self.t
            t.label(L); t.reset_hist(); t.vm = list(a.vm)
            self.a = t
            t(f"ds_read_b32 v13, {v(addr)} offset:{off}\ns_waitcnt lgkmcnt(0)\nv_cmp_gt_u32 vcc, {need}, v13\ns_cbranch_vccz {Lok}")
            for pi_, pu in enumerate(pend):
                t.wait(vm=("u", pu)); publish_upto(pu, t)
                if pi_ < len(pend) - 1:
                    t(f"ds_read_b32 v13, {v(addr)} offset:{off}\ns_waitcnt lgkmcnt(0)\nv_cmp_gt_u32 vcc, {need}, v13\ns_cbranch_vccz {Lok}")
            self.lds_spin(t, addr, off, need, 13, sleep=sleep)
            t(f"s_branch {Lok}")
            self.a = a
        sJ1, sJ2, sH1, sH2 = 64, 65, 66, 67
        sR5, sR4a, sR4b = 8, 13, 68
        have = 0; pre = False
        todo = [u for u in range(U_RAW, len(UNITS)) if UNITS[u][1] != "pseudo"]
        def need_of(u):
            nd = UNEED[u]
            if nd in (U_W1, U_W2) and not self.opt.get("nodefer"): nd += 1
            while nd and nd not in PUBS: nd += 1
            assert nd <= u, (u, nd)
            return nd
        def consts():
            a(f"s_mul_i32 {s(sH1)}, {s(sL)}, 12288\ns_mul_i32 {s(sH2)}, {s(sL)}, 10240\ns_mul_i32 {s(sJ1)}, {s(sJ)}, 102400\ns_mul_i32 {s(sJ2)}, {s(sJ)}, 245760")
            for i in range(5):
                a(f"s_add_u32 {s(sB)}, {s(sQ)}, {i}\ns_sub_u32 {s(sA)}, {s(sB)}, 5\ns_cmp_ge_u32 {s(sB)}, 5\ns_cselect_b32 {s(sB)}, {s(sA)}, {s(sB)}\ns_mul_i32 {s(sB)}, {s(sB)}, 20480")
                a(f"s_add_u32 {s(sB)}, {s(sB)}, {s(sJ1)}\ns_add_u32 {s(sR5+i)}, {s(sB)}, {s(sH2)}")
            for i in range(4):
                a(f"s_mul_i32 {s(sB)}, {s(sRot+i)}, 25600\ns_add_u32 {s(sB)}, {s(sB)}, {s(sJ1)}\ns_add_u32 {s(sR4a+i)}, {s(sB)}, {s(sH1)}")
                a(f"s_mul_i32 {s(sB)}, {s(sRot+i)}, 20480\ns_add_u32 {s(sB)}, {s(sB)}, {s(sJ2)}\ns_add_u32 {s(sR4b+i)}, {s(sB)}, {s(sH2)}")
        consts()
        a("s_getpc_b64 s[18:19]")
        a.label("L_pc2")
        a(f"s_add_u32 s18, s18, L_table-L_pc2\ns_addc_u32 s19, s19, 0\ns_lshl_b32 s17, {s(sL)}, 8\ns_add_u32 s17, s17, {L_LW}\nv_mov_b32 v15, 0")
        a(f"s_setprio {self.opt.get('lprio', 3)}")
        for ti, u in enumerate(todo):
            size, kind, (wid, ch, i) = UNITS[u]
            if self.opt.get("fake") and u >= U_W1:
                a("s_waitcnt vmcnt(0)"); publish_upto(100); del pend[:]; break
            nd = need_of(u)
            if nd > have:
                have = nd; guarded_wait(12, 0, nd, self.opt.get('lsleep', 2), pre)
            if u == U_W1: MAXF = self.opt.get("maxf2", 8)
            if u == U_W3 + 7: MAXF = self.opt.get("maxf3", 24)
            if ch == 0 and i == 0 and wid in (0, 3):
                guarded_wait(vZ, L_PKR - L_CNT, wid + 1, 1)
            if ch == 0 and i == 0 and wid in (0, 3, 4, 5, 6, 7): self.stamp()
            n = 13 if size == 25600 else 10
            sH = sH1 if size == 25600 else sH2
            sR = (sR5 if wid < 3 else sR4a if wid < 6 else sR4b) + i
            pre = ti + 1 < len(todo) and need_of(todo[ti + 1]) > have
            for k in range(n):
                if k % 4 == 0:
                    a(f"s_add_u32 m0, {s(sH)}, {UADDR[u] + k*1024}\ns_add_u32 {s(sA)}, {s(sR)}, {WS_WP + WP_OFF[wid] + ch*81920 + k*1024}")
                a(f"buffer_load_dwordx4 {v(vL16)}, {s(sWS,4)}, {s(sA)} offen offset:{1024*(k%4)}{'' if self.opt.get('nosc') else ' sc1'} lds", tag=("u", u))
                if k == n - 5 and pre: a("ds_read_b32 v14, v12")
                if k == n - 1:
                    if self.opt.get("dsl"): pend.append(u)
                    else: a(f"s_sub_u32 m0, s17, {4*(u+1)}\nglobal_load_lds_dword v15, s[18:19] offset:{4*(u+1)}")
                if k == n - 1 or (MAXF < n and k % 4 == 3): throttle()
            if u == U_RAW + 2: self.pk_C(a, [1, 2])
        for pu in pend:
            a.wait(vm=("u", pu)); publish_upto(pu)
        self.finish(a)

    PC = 28
    PR, PFR, PCS = 144, 192, 208
    def pk_decode(self, a, k):
        sU, sS, sCl, sWid = 64, 65, 66, 71
        Ld = a.newlabel("Lpd")
        a(f"s_add_u32 {s(sU)}, s63, {768*k}")
        a(f"s_cmp_ge_u32 {s(sU)}, 1680\ns_cbranch_scc1 {Ld}_4")
        a(f"s_mul_hi_u32 {s(sCl)}, {s(sU)}, {(1<<32)//20+1}\ns_mul_i32 {s(sA)}, {s(sCl)}, 20\ns_sub_u32 {s(sS)}, {s(sU)}, {s(sA)}")
        a(f"s_mul_hi_u32 {s(sWid)}, {s(sCl)}, {(1<<32)//10+1}\ns_min_u32 {s(sWid)}, {s(sWid)}, 6\ns_mul_i32 {s(sA)}, {s(sWid)}, 10\ns_sub_u32 {s(sCl)}, {s(sCl)}, {s(sA)}\ns_branch {Ld}")
        a.label(Ld + "_4")
        a(f"s_sub_u32 {s(sA)}, {s(sU)}, 1680\ns_mul_hi_u32 {s(sCl)}, {s(sA)}, {(1<<32)//48+1}\ns_mul_i32 {s(sB)}, {s(sCl)}, 48\ns_sub_u32 {s(sS)}, {s(sA)}, {s(sB)}\ns_mov_b32 {s(sWid)}, 7")
        a.label(Ld)
    def pk_A(self, a, k, R, pre_wait=False):
        sU, sS, sCl, sB0, sB1, sRs, sWid = 64, 65, 66, 67, 68, 69, 71
        c = self.PC; sR = sOUT
        NT = '' if self.opt.get('nont') else ' nt'
        self.pk_decode(a, k)
        L = a.newlabel("Lpa")
        a(f"s_lshl_b32 {s(sCc)}, {s(sCl)}, 7\nv_lshrrev_b32 {v(c)}, 3, {v(vLane)}\nv_and_b32 {v(c+1)}, 7, {v(vLane)}")
        a(f"s_cmp_lt_u32 {s(sWid)}, 3\ns_cbranch_scc1 {L}_q\ns_cmp_eq_u32 {s(sWid)}, 7\ns_cbranch_scc1 {L}_4")
        a(f"s_mul_hi_u32 {s(sA)}, {s(sS)}, {(1<<32)//5+1}\ns_mul_i32 {s(sB)}, {s(sA)}, 5\ns_sub_u32 {s(sB)}, {s(sS)}, {s(sB)}\ns_mul_i32 {s(sA)}, {s(sA)}, 160")
        a(f"s_lshr_b32 {s(sD)}, {s(sB)}, 1\ns_mul_i32 {s(sD)}, {s(sD)}, 80\ns_and_b32 {s(sB1)}, {s(sB)}, 1\ns_lshl_b32 {s(sB1)}, {s(sB1)}, 5\ns_add_u32 {s(sD)}, {s(sD)}, {s(sB1)}")
        a(f"s_cmp_eq_u32 {s(sB)}, 4\ns_cselect_b32 {s(sD)}, 64, {s(sD)}\ns_cselect_b32 {s(sB1)}, 80, 16\ns_add_u32 {s(sB0)}, {s(sA)}, {s(sD)}\ns_add_u32 {s(sB1)}, {s(sB0)}, {s(sB1)}")
        a(f"s_cmp_eq_u32 {s(sWid)}, 6\ns_movk_i32 {s(sRs)}, 1280\ns_cselect_b32 {s(sRs)}, 3072, {s(sRs)}\ns_lshl_b32 {s(sD)}, {s(sRs)}, 3\ns_branch {L}")
        a.label(L + "_4")
        a(f"s_lshr_b32 {s(sA)}, {s(sS)}, 4\ns_lshl_b32 {s(sB0)}, {s(sA)}, 6\ns_bfe_u32 {s(sA)}, {s(sS)}, 0x30001\ns_mul_i32 {s(sA)}, {s(sA)}, 192\ns_add_u32 {s(sB0)}, {s(sB0)}, {s(sA)}")
        a(f"s_and_b32 {s(sA)}, {s(sS)}, 1\ns_lshl_b32 {s(sA)}, {s(sA)}, 5\ns_add_u32 {s(sB0)}, {s(sB0)}, {s(sA)}\ns_add_u32 {s(sB1)}, {s(sB0)}, 16")
        a(f"s_movk_i32 {s(sRs)}, 1280\ns_movk_i32 {s(sD)}, {8*1280}\ns_branch {L}")
        a.label(L + "_q")
        a(f"s_lshl_b32 {s(sB0)}, {s(sS)}, 5\ns_add_u32 {s(sB1)}, {s(sB0)}, 4\ns_movk_i32 {s(sRs)}, 3840\ns_mov_b32 {s(sD)}, {16*3840}")
        a(f"s_add_u32 {s(sA)}, {s(sWid)}, 1\ns_cmp_eq_u32 {s(sA)}, 3\ns_cselect_b32 {s(sA)}, 0, {s(sA)}\ns_mul_i32 {s(sA)}, {s(sA)}, 1280\ns_add_u32 {s(sCc)}, {s(sCc)}, {s(sA)}")
        a(f"v_and_b32 {v(c+2)}, 4, {v(c)}\nv_add_u32 {v(c)}, {v(c)}, {v(c+2)}")
        a.label(L)
        a(f"v_mul_lo_u32 {v(c+8)}, {s(sRs)}, {v(c)}\nv_lshl_add_u32 {v(c+8)}, {v(c+1)}, 4, {v(c+8)}\nv_add_u32 {v(c+9)}, {s(sD)}, {v(c+8)}")
        a(f"s_mul_i32 {s(sB0)}, {s(sB0)}, {s(sRs)}\ns_add_u32 {s(sB0)}, {s(sB0)}, {s(sCc)}\ns_mul_i32 {s(sB1)}, {s(sB1)}, {s(sRs)}\ns_add_u32 {s(sB1)}, {s(sB1)}, {s(sCc)}")
        a(f"s_cmp_ge_u32 {s(sU)}, 2160\ns_cselect_b32 {s(sB0)}, {OOB}, {s(sB0)}\ns_cselect_b32 {s(sB1)}, {OOB}, {s(sB1)}")
        if pre_wait: a("s_waitcnt lgkmcnt(0)")
        a(f"s_mov_b32 {s(sR)}, s6\ns_mov_b32 {s(sR+1)}, s7\ns_mov_b32 {s(sR+2)}, 819200\ns_mov_b32 {s(sR+3)}, 0x20000")
        for wid, lo in ((3, 8), (4, 12), (5, 14), (6, 16), (7, 18)):
            a(f"s_cmp_eq_u32 {s(sWid)}, {wid}\ns_cselect_b64 {s(sR,2)}, s[{lo}:{lo+1}], {s(sR,2)}")
        a(f"s_cmp_ge_u32 {s(sWid)}, 6\ns_cselect_b32 {s(sR+2)}, 1966080, {s(sR+2)}\ns_cmp_lt_u32 {s(sWid)}, 3\ns_cselect_b32 {s(sR+2)}, 2457600, {s(sR+2)}")
        a(f"buffer_load_dwordx4 {v(R,4)}, {v(c+8)}, {s(sR,4)}, {s(sB0)} offen{NT}\nbuffer_load_dwordx4 {v(R+4,4)}, {v(c+9)}, {s(sR,4)}, {s(sB0)} offen{NT}")
        a(f"buffer_load_dwordx4 {v(R+8,4)}, {v(c+8)}, {s(sR,4)}, {s(sB1)} offen{NT}")
        a(f"buffer_load_dwordx4 {v(R+12,4)}, {v(c+9)}, {s(sR,4)}, {s(sB1)} offen{NT}", tag=("raw", k))
    def pk_B(self, a, k_, R, FR, CS):
        sU, sS, sCl, sDst, sScr, sWid = 64, 65, 66, 69, 70, 71
        c = self.PC
        self.pk_decode(a, k_)
        if k_ == 0:
            a(f"v_add_u32 {v(c+4)}, {s(sScr)}, {v(vL16)}")
            a(f"v_lshrrev_b32 {v(c+5)}, 2, {v(vLane)}\nv_lshlrev_b32 {v(c+5)}, 7, {v(c+5)}\nv_and_b32 {v(c+3)}, 3, {v(vLane)}\nv_lshl_add_u32 {v(c+5)}, {v(c+3)}, 3, {v(c+5)}\nv_add_u32 {v(c+5)}, {s(sScr)}, {v(c+5)}")
            a(f"v_lshlrev_b32 {v(c+6)}, 2, {v(vLane)}")
        D = [67, 68, 74, 75]
        L3 = a.newlabel("Ld3"); Lc = L3 + "_c"
        a(f"s_cmp_eq_u32 {s(sWid)}, 6\ns_cbranch_scc1 {L3}")
        a(f"s_mul_i32 {s(sDst)}, {s(sWid)}, 819200\ns_cmp_eq_u32 {s(sWid)}, 7\ns_cselect_b32 {s(sDst)}, {WP_OFF[7]}, {s(sDst)}\ns_mov_b32 {s(sD)}, 102400\ns_cselect_b32 {s(sD)}, 245760, {s(sD)}")
        a(f"s_mul_i32 {s(sA)}, {s(sS)}, 5120\ns_add_u32 {s(sDst)}, {s(sDst)}, {s(sA)}\ns_add_u32 {s(sDst)}, {s(sDst)}, {WS_WP}")
        a(f"s_cmp_ge_u32 {s(sU)}, 2160\ns_cselect_b32 {s(sDst)}, {OOB}, {s(sDst)}")
        for tt in range(4):
            a(f"s_lshl_b32 {s(sA)}, {s(sCl)}, 2\ns_add_u32 {s(sA)}, {s(sA)}, {tt}\ns_mul_hi_u32 {s(sB)}, {s(sA)}, {(1<<32)//5+1}\ns_mul_i32 {s(sCc)}, {s(sB)}, 5\ns_sub_u32 {s(sA)}, {s(sA)}, {s(sCc)}")
            a(f"s_lshl_b32 {s(sA)}, {s(sA)}, 10\ns_mul_i32 {s(sB)}, {s(sB)}, {s(sD)}\ns_add_u32 {s(sA)}, {s(sA)}, {s(sB)}\ns_add_u32 {s(D[tt])}, {s(sA)}, {s(sDst)}")
        a(f"s_mul_i32 {s(sA)}, {s(sS)}, 2560\ns_add_u32 {s(sA)}, {s(sA)}, {WS_CS1}\ns_cmp_eq_u32 {s(sWid)}, 4\ns_cselect_b32 {s(sA)}, {s(sA)}, {OOB}\ns_branch {Lc}")
        a.label(L3)
        a(f"s_mul_i32 {s(sA)}, {s(sCl)}, 81920\ns_lshl_b32 {s(sB)}, {s(sS)}, 12\ns_add_u32 {s(sA)}, {s(sA)}, {s(sB)}")
        for tt in range(4): a(f"s_add_u32 {s(D[tt])}, {s(sA)}, {WS_WP + WP_OFF[6] + 1024*tt}")
        a(f"s_mul_i32 {s(sA)}, {s(sS)}, 6144\ns_add_u32 {s(sA)}, {s(sA)}, {WS_CS3}")
        a.label(Lc)
        a(f"s_lshl_b32 {s(sB)}, {s(sCl)}, 8\ns_add_u32 {s(sA)}, {s(sA)}, {s(sB)}")
        a.wait(vm=("raw", k_))
        for hb in range(2):
            for k in range(2): a(f"ds_write_b128 {v(c+4)}, {v(R+8*hb+4*k,4)} offset:{1024*k}")
            for tt in range(4): a(f"ds_read_b64_tr_b16 {v(FR+4*tt+2*hb,2)}, {v(c+5)} offset:{32*tt}")
        a("s_waitcnt lgkmcnt(0)")
        for tt in range(4):
            a(f"buffer_store_dwordx4 {v(FR+4*tt,4)}, {v(vL16)}, {s(sWS,4)}, {s(D[tt])} offen sc1", tag=("pst", k_))
        if k_ > 0:
            for tt in range(4): a(f"v_mov_b32 {v(CS+tt)}, 0")
            for k in range(4):
                for tt in range(4): a(f"v_dot2c_f32_bf16 {v(CS+tt)}, {s(sOnes)}, {v(FR+4*tt+k)}")
            self.rscatter4(a, [CS, CS + 1, CS + 2, CS + 3], "v_add_f32")
            a(f"buffer_store_dword {v(CS)}, {v(c+6)}, {s(sWS,4)}, {s(sA)} offen sc1", tag=("pst", k_))
    def pk_C(self, a, ks):
        c = self.PC
        a(f"s_lshl_b32 {s(sA)}, s63, 5\ns_add_u32 {s(sA)}, {s(sA)}, {WS_PF + 24576*ks[0]}")
        a.wait(vm=("pst", ks[-1]))
        a("s_mov_b64 exec, 1")
        for k in ks:
            a(f"buffer_store_dwordx2 {v(c+10,2)}, {v(c+7)}, {s(sWS,4)}, {s(sA)} offen sc1")
            if k != ks[-1]: a(f"s_add_u32 {s(sA)}, {s(sA)}, 24576")
        a("s_mov_b64 exec, -1")
    def pack_seq(self, a, mid=None):
        c = self.PC
        self.pk_B(a, 0, 64, 192, 224)
        self.stamp()
        if mid: mid()
        else:
            self.get_tag(a, c + 10); a(f"v_mov_b32 {v(c+11)}, {s(sTag+1)}")
        self.pk_C(a, [0])
        a(f"v_mov_b32 v13, 1\ns_mov_b64 exec, 1\nds_add_u32 {v(vZ)}, v13 offset:{L_C0-L_CNT}\ns_mov_b64 exec, -1")
        self.stamp()
        if not self.opt.get("noxi"): self.lds_spin(a, vZ, L_XI - L_CNT, 4, 13, sleep=1)
        for k in (1, 2): self.pk_A(a, k, 64 + 16 * k)
    def touch_addr(self, a, d):
        a(f"s_lshl_b32 s74, {s(sC)}, 2\ns_mul_i32 s74, s74, {TS}\ns_add_u32 s74, s74, {WS_TILE}")
        a(f"v_lshrrev_b32 {v(d+2)}, 4, {v(vLane)}\ns_mov_b32 {s(sB)}, {TS}\nv_mul_lo_u32 {v(d+2)}, {s(sB)}, {v(d+2)}\nv_and_b32 {v(d)}, 15, {v(vLane)}\nv_lshl_add_u32 {v(d)}, {v(d)}, 7, {v(d+2)}")
        a(f"v_and_b32 {v(d+1)}, 3, {v(vLane)}\nv_lshl_add_u32 {v(d+1)}, {v(d+1)}, 7, {v(d+2)}")

    def sweep(self, h, name, loads, val, sleep):
        h.label(name); h.reset_hist()
        for k, ld in enumerate(loads): h(f"buffer_load_dwordx2 {v(128+2*k,2)}, {ld} sc1")
        h(f"s_waitcnt vmcnt(0)\nv_cmp_ne_u64 vcc, {s(sTag,2)}, {v(128,2)}")
        for k in range(1, len(loads)): h(f"v_cmp_ne_u64 {s(sMk,2)}, {s(sTag,2)}, {v(128+2*k,2)}\ns_or_b64 vcc, vcc, {s(sMk,2)}")
        h(f"s_cbranch_vccz {name}_ok\ns_sleep {sleep}")
        self.spin_tail(h, name, name + "_ok")
        h.label(name + "_ok"); h.reset_hist()
        h(f"v_mov_b32 v56, {val}\ns_mov_b64 exec, 1\nds_write_b32 {v(vZ)}, v56 offset:{L_PKR-L_CNT}\ns_mov_b64 exec, -1")

    def prestore(self, h):
        h("v_mov_b32 v232, 0\nv_mov_b32 v233, 0\nv_mov_b32 v234, 0\nv_mov_b32 v235, 0")
        for w in range(4):
            h(f"s_mul_i32 {s(sA)}, {s(sJ)}, 2560\ns_add_u32 {s(sA)}, {s(sA)}, {s(sTile)}\ns_add_u32 {s(sA)}, {s(sA)}, {w*TS}")
            for buf in (BUFA, BUFB):
                h(f"s_add_u32 {s(sB)}, {s(sA)}, {buf}")
                h(f"buffer_store_dwordx4 v[232:235], {v(vL16)}, {s(sWS,4)}, {s(sB)} offen sc1\nbuffer_store_dwordx4 v[232:235], {v(vL16)}, {s(sWS,4)}, {s(sB)} offen offset:1024 sc1")
                h(f"buffer_store_dwordx2 v[232:233], {v(vL8)}, {s(sWS,4)}, {s(sB)} offen offset:2048 sc1")
            h(f"s_lshl_b32 {s(sA)}, {s(sJ)}, 11\ns_add_u32 {s(sA)}, {s(sA)}, {s(sTile)}\ns_add_u32 {s(sA)}, {s(sA)}, {w*TS + BUFG}")
            for ch in range(1):
                h(f"buffer_store_dwordx4 v[232:235], {v(vL16)}, {s(sWS,4)}, {s(sA)} offen sc1\nbuffer_store_dwordx4 v[232:235], {v(vL16)}, {s(sWS,4)}, {s(sA)} offen offset:1024 sc1\ns_add_u32 {s(sA)}, {s(sA)}, 16384")

    def relay(self):
        h = self.h
        h.label("L_relay"); h.reset_hist(); h.reset_cnt()
        self.a, sa = h, self.a; self.nst = 1; self.inhelper = True
        h("s_setprio 2\ns_waitcnt lgkmcnt(0)")
        self.srd(h, sWS, 24, WS_SIZE)
        h(f"s_mul_i32 {s(sA)}, {s(sJ)}, 5\ns_lshr_b32 {s(sA)}, {s(sA)}, 2\ns_mul_i32 {s(sTJ)}, {s(sA)}, 640\ns_add_u32 {s(sTJ)}, {s(sTJ)}, {WS_PF}")
        h(f"v_min_u32 v58, 39, {v(vLane)}\nv_lshlrev_b32 v58, 5, v58\nv_add_u32 v59, 6400, v58\nv_add_u32 v60, 12800, v58")
        if self.opt.get("pre") in (3, 4):
            h(f"s_lshl_b32 {s(sTile)}, {s(sC)}, 2\ns_mul_i32 {s(sTile)}, {s(sTile)}, {TS}\ns_add_u32 {s(sTile)}, {s(sTile)}, {WS_TILE}")
            if self.opt["pre"] == 4: self.lds_spin(h, vZ, L_C0 - L_CNT, 3, 13, sleep=2)
            self.prestore(h)
        self.get_tag(h, 28)
        self.lds_spin(h, vZ, L_C0 - L_CNT, 3, 13, sleep=2)
        h(f"s_sleep {self.opt.get('sw0', 8)}")
        self.stamp()
        self.sweep(h, "L_pfa", [f"v{58+k}, {s(sWS,4)}, {s(sTJ)} offen" for k in range(3)], 3, 4)
        self.stamp()
        if self.opt.get("t6"):
            self.touch_addr(h, 46)
            h(f"v_and_b32 {v(vLa)}, 1, {v(vLane)}\nv_mul_u32_u24 {v(vLa)}, 260, {v(vLa)}\nv_add_u32 {v(vLa)}, {L_LW}, {v(vLa)}")
            self.lds_spin(h, vLa, 0, self.opt["t6"], 13, sleep=2)
            for buf in (BUFA, BUFB)[:self.opt.get("t6n", 2)]:
                h(f"s_mul_i32 {s(sB)}, {s(sJ)}, 2560\ns_add_u32 {s(sB)}, {s(sB)}, s74\ns_add_u32 {s(sB)}, {s(sB)}, {buf}")
                h(f"buffer_load_dword v50, v46, {s(sWS,4)}, {s(sB)} offen sc1\nbuffer_load_dword v50, v47, {s(sWS,4)}, {s(sB)} offen offset:2048 sc1")
        h(f"s_lshl_b32 {s(sA)}, {s(sC)}, 3\ns_add_u32 {s(sA)}, {s(sA)}, {s(sJ)}\ns_mul_i32 {s(sA)}, {s(sA)}, 10240\ns_add_u32 {s(sD)}, {s(sA)}, {WS_KV}\ns_sub_u32 {s(sE)}, {s(sD)}, {8*10240}")
        h(f"v_add_u32 v40, {P1TMP + 4*5120}, {v(vL8)}\nv_add_u32 v41, {P1TMP}, {v(vL8)}")
        for k in range(5): h(f"v_mov_b32 {v(66+4*k)}, {s(sTag)}\nv_mov_b32 {v(67+4*k)}, {s(sTag+1)}")
        def out(part):
            self.lds_spin(h, vZ, L_CW + 1024 + 768 - L_CNT, part + 1, 13, sleep=1)
            for k in range(5): h(f"ds_read_b64 {v(64+4*k,2)}, v40 offset:{2560*part+512*k}")
            h(f"s_waitcnt lgkmcnt(0)\ns_add_u32 {s(sA)}, {s(sD)}, {5120*part}")
            for k in range(5):
                if k == 4: h(f"s_add_u32 {s(sA)}, {s(sA)}, 4096")
                h(f"buffer_store_dwordx4 {v(64+4*k,4)}, {v(vL16)}, {s(sWS,4)}, {s(sA)} offen offset:{1024*(k%4)} sc1")
        def inc(part):
            L = f"L_kv{part}"
            for k in range(5): h(f"v_mov_b32 {v(96+4*k)}, 0\nv_mov_b32 {v(97+4*k)}, 0")
            h(f"s_cmp_eq_u32 {s(sC)}, 0\ns_cbranch_scc1 {L}_ok")
            h(f"s_add_u32 {s(sA)}, {s(sE)}, {5120*part}\ns_add_u32 {s(sB)}, {s(sA)}, 4096")
            h.label(L); h.reset_hist()
            for k in range(5): h(f"buffer_load_dwordx4 {v(96+4*k,4)}, {v(vL16)}, {s(sWS,4)}, {s(sB if k == 4 else sA)} offen offset:{1024*(k%4)} sc1")
            h(f"s_waitcnt vmcnt(0)\nv_cmp_ne_u64 vcc, {s(sTag,2)}, {v(98,2)}")
            for k in range(1, 5): h(f"v_cmp_ne_u64 {s(sMk,2)}, {s(sTag,2)}, {v(98+4*k,2)}\ns_or_b64 vcc, vcc, {s(sMk,2)}")
            h(f"s_cbranch_vccz {L}_ok\ns_sleep 1")
            self.spin_tail(h, L, L + "_ok")
            h.label(L + "_ok"); h.reset_hist()
            for k in range(5): h(f"ds_write_b64 v41, {v(96+4*k,2)} offset:{2560*part+512*k}")
            h(f"v_mov_b32 v42, {part+1}\ns_mov_b64 exec, 1\nds_write_b32 {v(vZ)}, v42 offset:{L_XR-L_CNT}\ns_mov_b64 exec, -1")
        if self.opt.get("norelay"):
            h(f"v_mov_b32 v42, 2\nds_write_b32 {v(vZ)}, v42 offset:{L_XR-L_CNT}")
        else:
            out(0); inc(0); self.stamp(); out(1); self.stamp(); inc(1); self.stamp()
        self.finish(h)
        self.a = sa

    def service(self):
        h = self.h; c = self.PC
        h.label("L_service"); h.reset_hist(); h.reset_cnt()
        self.a, sa = h, self.a; self.nst = 1; self.inhelper = True
        h.vm = [("raw", 0)] * 4
        h(f"buffer_load_dword {v(c+10)}, {v(c+7)}, {s(sWS,4)}, 0 offen sc1", tag="ep")
        self.touch_addr(h, 44); h(f"s_mov_b32 {s(sTile)}, s74")
        h(f"v_and_b32 {v(vLa)}, 1, {v(vLane)}\nv_mul_u32_u24 {v(vLa)}, 260, {v(vLa)}\nv_add_u32 {v(vLa)}, {L_LW}, {v(vLa)}")
        h(f"s_mul_i32 {s(sA)}, {s(sJ)}, 5\ns_lshr_b32 {s(sA)}, {s(sA)}, 2\ns_mul_i32 {s(sTJ)}, {s(sA)}, 640\ns_add_u32 {s(sTJ)}, {s(sTJ)}, {WS_PF}")
        h(f"s_mul_i32 {s(sT)}, {s(sJ)}, 1920\ns_add_u32 {s(sT)}, {s(sT)}, {WS_PF + 32*PF_BASE[6]}\ns_mul_i32 {s(sE)}, {s(sA)}, 1536\ns_add_u32 {s(sE)}, {s(sE)}, {WS_PF + 32*PF_BASE[7]}")
        h(f"v_min_u32 v58, 39, {v(vLane)}\nv_lshlrev_b32 v58, 5, v58")
        for k in range(1, 6): h(f"v_add_u32 v{58+k}, {6400*k}, v58")
        h(f"v_min_u32 v53, 59, {v(vLane)}\nv_lshlrev_b32 v53, 5, v53\nv_min_u32 v54, 47, {v(vLane)}\nv_lshlrev_b32 v54, 5, v54")
        h.wait(vm="ep")
        h(f"v_add_u32 {v(c+10)}, 1, {v(c+10)}\nv_mov_b32 {v(c+11)}, 1\nds_write_b64 {v(vZ)}, {v(c+10,2)} offset:{L_TAG-L_CNT}")
        h(f"v_readfirstlane_b32 {s(sTag)}, {v(c+10)}")
        h(f"s_mul_i32 {s(sTag+1)}, {s(sTag)}, 0x9E3779B1\ns_xor_b32 {s(sTag+1)}, {s(sTag+1)}, 0x7F4A7C15\ns_waitcnt lgkmcnt(0)\nv_mov_b32 {v(c+11)}, {s(sTag+1)}")
        def xt_pub():
            h(f"s_getreg_b32 {s(sPI)}, hwreg(HW_REG_XCC_ID)\ns_and_b32 {s(sPI)}, {s(sPI)}, 15\nv_mov_b32 {v(c+12)}, {s(sPI)}\nv_mov_b32 {v(c+13)}, 0")
            h(f"s_lshl_b32 {s(sA)}, {s(sC)}, 3\ns_add_u32 {s(sA)}, {s(sA)}, {s(sJ)}\ns_lshl_b32 {s(sA)}, {s(sA)}, 4\ns_add_u32 {s(sA)}, {s(sA)}, {WS_XT}")
            h(f"s_mov_b64 exec, 1\nbuffer_store_dwordx4 {v(c+10,4)}, {v(c+7)}, {s(sWS,4)}, {s(sA)} offen sc1\ns_mov_b64 exec, -1")
        def touch20(buf):
            h(f"s_mul_i32 {s(sB)}, {s(sJ)}, 2560\ns_add_u32 {s(sB)}, {s(sB)}, {s(sTile)}\ns_add_u32 {s(sB)}, {s(sB)}, {buf}")
            h(f"buffer_load_dword v47, v44, {s(sWS,4)}, {s(sB)} offen sc1\nbuffer_load_dword v47, v45, {s(sWS,4)}, {s(sB)} offen offset:2048 sc1")
        def touch16(buf):
            h(f"s_lshl_b32 {s(sB)}, {s(sJ)}, 11\ns_add_u32 {s(sB)}, {s(sB)}, {s(sTile)}\ns_add_u32 {s(sB)}, {s(sB)}, {buf}")
            h(f"buffer_load_dword v47, v44, {s(sWS,4)}, {s(sB)} offen sc1")
        self.pack_seq(h, xt_pub)
        prestore = lambda: self.prestore(h)
        swa = [f"v{58+k}, {s(sWS,4)}, {s(sTJ)} offen" for k in range(3)]
        if self.opt.get("pre") == 1: prestore()
        for k in (1, 2): self.pk_B(h, k, 64 + 16 * k, 192 + 16 * (k & 1), 224)
        self.stamp()
        if self.opt.get("pre") == 2: prestore()
        h(f"s_lshl_b32 {s(sA)}, {s(sC)}, 7\ns_add_u32 {s(sA)}, {s(sA)}, {WS_XT}\nv_and_b32 v57, 7, {v(vLane)}\nv_lshlrev_b32 v57, 4, v57")
        h.label("L_xt"); h.reset_hist()
        h(f"buffer_load_dwordx4 v[48:51], v57, {s(sWS,4)}, {s(sA)} offen sc1\ns_waitcnt vmcnt(0)\nv_cmp_ne_u64 vcc, {s(sTag,2)}, v[48:49]\ns_cbranch_vccz L_xt_ok\ns_sleep 4")
        self.spin_tail(h, "L_xt", "L_xt_ok")
        h.label("L_xt_ok"); h.reset_hist()
        h(f"v_cmp_ne_u32 vcc, {s(sPI)}, v50\ns_cmp_eq_u64 vcc, 0\ns_cselect_b32 {s(sA)}, {2 if self.force_sc1 else 1}, 2\nv_mov_b32 v57, {s(sA)}")
        self.lds_spin(h, vZ, L_PKR - L_CNT, 1, 13, sleep=2)
        h(f"s_mov_b64 exec, 1\nds_write_b32 {v(vZ)}, v57 offset:{L_MODE-L_CNT}\ns_mov_b64 exec, -1")
        self.pk_C(h, [1, 2])
        self.stamp()
        self.lds_spin(h, vZ, L_PKR - L_CNT, 3, 13, sleep=2)
        self.lds_spin(h, vLa, 0, self.opt.get("gs", 10), 13, sleep=2)
        self.sweep(h, "L_pfb", [f"v{61+k}, {s(sWS,4)}, {s(sTJ)} offen" for k in range(3)] + [f"v53, {s(sWS,4)}, {s(sT)} offen", f"v54, {s(sWS,4)}, {s(sE)} offen", f"v54, {s(sWS,4)}, {s(sE)} offen offset:1536"], 8, 8)
        self.stamp()
        self.lds_spin(h, vLa, 0, self.opt.get("gt", 14), 13, sleep=2)
        if not self.opt.get("not") and not self.opt.get("t6"): touch20(BUFA); touch20(BUFB)
        if not self.opt.get("nog") and not self.opt.get("not"):
            touch16(BUFG)
        for (wsoff, rowb, jb, nl, R) in ((WS_CS1, 2560, 320, 20, 64), (WS_CS3, 6144, 768, 48, 144)):
            h(f"s_mul_i32 {s(sA)}, {s(sJ)}, {jb}\ns_add_u32 {s(sA)}, {s(sA)}, {wsoff}")
            h(f"s_mov_b64 exec, {(1 << nl) - 1:#x}" if nl <= 32 else f"s_mov_b32 exec_lo, -1\ns_mov_b32 exec_hi, {(1 << (nl-32)) - 1:#x}")
            for k in range(20):
                if not self.opt.get("nocs"): h(f"buffer_load_dwordx4 {v(R+4*k,4)}, {v(vL16)}, {s(sWS,4)}, {s(sA)} offen sc1")
                h(f"s_add_u32 {s(sA)}, {s(sA)}, {rowb}")
        h("s_waitcnt vmcnt(0)\ns_setprio 0")
        for (nl, R, ldst) in ((48, 144, L_CS3), (20, 64, L_CS1)):
            if nl == 20: h(f"s_mov_b64 exec, {(1 << nl) - 1:#x}")
            for k in range(1, 20):
                for e in range(4): h(f"v_add_f32 {v(R+e)}, {v(R+e)}, {v(R+4*k+e)}")
            h(f"v_add_u32 {v(TT)}, {ldst}, {v(vL16)}\nds_write_b128 {v(TT)}, {v(R,4)}")
        h(f"s_mov_b64 exec, -1\nv_mov_b32 {v(TT+1)}, 2\nds_write_b32 {v(vZ)}, {v(TT+1)} offset:{L_CSRDY-L_CNT}")
        self.stamp()
        h("s_cmp_lg_u32 s2, 0\ns_cbranch_scc1 L_sv_end")
        h(f"s_mov_b32 {s(sA)}, {WS_XT}")
        h.label("L_ep"); h.reset_hist()
        for k in range(4): h(f"buffer_load_dwordx2 v[{48+2*k}:{49+2*k}], {v(vL16)}, {s(sWS,4)}, {s(sA)} offen offset:{1024*k} sc1")
        h(f"s_waitcnt vmcnt(0)\nv_cmp_ne_u64 vcc, {s(sTag,2)}, v[48:49]")
        for k in range(1, 4):
            h(f"v_cmp_ne_u64 {s(sMk,2)}, {s(sTag,2)}, v[{48+2*k}:{49+2*k}]\ns_or_b64 vcc, vcc, {s(sMk,2)}")
        h("s_cbranch_scc0 L_ep_ok\ns_sleep 4")
        self.spin_tail(h, "L_ep", "L_ep_ok")
        h.label("L_ep_ok"); h.reset_hist()
        h(f"s_mov_b64 exec, 1\nbuffer_store_dword {v(c+10)}, {v(c+7)}, {s(sWS,4)}, 0 offen sc1\ns_mov_b64 exec, -1")
        h.label("L_sv_end"); h.reset_hist()
        self.finish(h)
        self.a = sa

    def build(self):
        self.prologue(); n0 = self.nst
        self.compute()
        self.relay(); self.service()
        self.loader()
        hdr = open("sequential_preLN__sliding_local_dilated__mixer_s_mlp__prompt.s.ref").read().split("; Override")[0]
        out = hdr + f"; @launch grid=(256,1,1) block=(512,1,1) lds={LDS_SIZE}\n"
        out += f'.amdgcn_target "amdgcn-amd-amdhsa--gfx950"\n.text\n.globl {KNAME}\n.p2align 8\n.type {KNAME},@function\n{KNAME}:\n'
        out += self.a.text() + self.h.text() + self.t.text() + "L_end:\n    s_endpgm\nL_code_end:\n.p2align 7\n.type L_table,@object\nL_table:\n" + "".join(f".long {i}\n" for i in range(64)) + ".size L_table, 256\n"
        out += f'''.section .rodata,"a"
.p2align 6
.amdhsa_kernel {KNAME}
  .amdhsa_next_free_vgpr 256
  .amdhsa_next_free_sgpr 102
  .amdhsa_accum_offset 256
  .amdhsa_group_segment_fixed_size 0
  .amdhsa_kernarg_size 88
  .amdhsa_user_sgpr_count 2
  .amdhsa_user_sgpr_kernarg_segment_ptr 1
  .amdhsa_system_sgpr_workgroup_id_x 1
  .amdhsa_float_denorm_mode_32 3
.end_amdhsa_kernel
'''
        return out

if __name__ == "__main__":
    import argparse
    p = argparse.ArgumentParser()
    p.add_argument("-o", default="sequential_preLN__sliding_local_dilated__mixer_s_mlp__prompt.s")
    p.add_argument("--stamps", action="store_true"); p.add_argument("--sc1", action="store_true"); p.add_argument("--opt", action="append", default=[])
    args = p.parse_args()
    opt = {}
    for kv in args.opt:
        k_, _, v_ = kv.partition("="); opt[k_] = int(v_) if v_ else 1
    g = Gen(stamps=args.stamps, force_sc1=args.sc1, opt=opt)
    open(args.o, "w").write(g.build())
    print("units:", [(u, UADDR.get(u), UNEED.get(u)) for u in range(len(UNITS))])
    print("nops inserted:", g.a.nops + g.t.nops)
```

```python
import sys, math, struct
from asmlib import Asm

KNAME = "sequential_preLN__sliding_local_dilated__mixer_s_mlp__prompt_kernel"

def f2u(x): return struct.unpack("<I", struct.pack("<f", x))[0]

WS_EPOCH = 0
WS_XT = 0x1000
WS_PF = 0x8B2000
WS_CS1 = 0x8000
WS_CS3 = 0x18000
WS_WP = 0x40000
WP_OFF = [819200 * k for k in range(7)] + [819200 * 6 + 1966080]
PF_BASE = [200 * k for k in range(7)] + [1680]
WS_TILE = 0x8C8000
TS = 115712
BUFA, BUFB, BUFG, SHAD, FLG = 0, 20480, 40960, 90112, 110592
GBUF = [BUFG, BUFA, BUFB]
F1, F3, FH, G0, S2, S4 = FLG, FLG + 128, FLG + 256, FLG + 384, FLG + 1024, FLG + 3072
WS_KV = WS_TILE + 128 * TS
WS_STAMP = WS_KV + 256 * 10240
WS_SIZE = WS_STAMP + 2048 * 128
OOB = 0x40000000

RING = 153600
P1TMP = 128000
STAGE = 143360
L_CNT = 153600
L_LANDED = L_CNT + 32
L_MODE = L_CNT + 40
L_CSRDY = L_CNT + 44
L_XI = L_CNT + 56
L_C0 = L_CNT + 60
L_PKR = L_CNT + 96
L_XR = L_CNT + 64
L_TAG = L_CNT + 48
L_CS1 = L_CNT + 256
L_CS3 = L_CS1 + 320
L_PSCR = L_CNT + 2048
L_CW = L_PSCR + 6144
L_LW = L_CS3 + 768 + 64
LDS_SIZE = 163840

XIMG = 71680
def plan_units():
    units = [(0, "pseudo", None)]
    for ps in range(3):
        for i in range(5): units.append((20480, "raw", (ps, 0, i)))
    units.append((0, "pseudo", None))
    for wid in range(3, 6):
        for i in range(4): units.append((25600, "pk", (wid, 0, i)))
    for wid in (6, 7):
        for ch in range(3):
            for i in range(4): units.append((20480, "pk", (wid, ch, i)))
    placed = [(XIMG, 81920, 0), (P1TMP, 25600, 16)]
    addr = {}; need = {}
    for u, (size, kind, arg) in enumerate(units):
        if kind == "pseudo": continue
        if kind == "raw": cands = [20480 * k for k in range(6)]
        elif size == 25600: cands = [25600 * k for k in range(6)]
        else: cands = [20480 * k for k in range(7)]
        best = None
        for a in cands:
            nd = 0
            for (pa, psz, pi) in placed:
                if pa < a + size and a < pa + psz: nd = max(nd, pi + 1)
            if best is None or nd < best[0]: best = (nd, a)
        need[u], addr[u] = best
        placed.append((best[1], size, u))
    return units, addr, need
UNITS, UADDR, UNEED = plan_units()
U_RAW, U_X, U_WO, U_W1, U_W2, U_W3, U_W4 = 1, 16, 17, 21, 25, 29, 41
PUBS = set()
HK, HV = 6, 7

vLane, vL16, vL8, vZ, vWA, vLa, vLC, vCV, vPA = 1, 2, 3, 4, 5, 6, 7, 8, 9
vM = 12
KOWN, VFR = 28, 44
AF, WW, ACC, HP, X1P, TT = 64, 144, 176, 208, 218, 228
SLOTS12 = [WW + 4 * i for i in range(8)] + [36, 40, 56, 60]
sWS, sIN, sOUT = 28, 32, 36
sWave, sX, sQ, sJ, sC, sT, sBud, sEp = 40, 41, 42, 43, 44, 45, 46, 47
sTag = 48
sMode = 50
sRot = 51
sTile = 55
sTJ = 56
sA, sB, sCc, sD, sE = 57, 58, 59, 60, 61
sPI = 62
sMa, sMb, sPar = 64, 66, 68
sSh = 70
sOnes = 72
sRho = 73
sSt = 76
sCk = 22
sMk = 26

def v(a, n=1): return f"v{a}" if n == 1 else f"v[{a}:{a+n-1}]"
def s(a, n=1): return f"s{a}" if n == 1 else f"s[{a}:{a+n-1}]"

class Gen:
    def __init__(self, stamps=False, force_sc1=False, budget=1 << 17, opt=None):
        self.opt = dict(sw0=20, pstep=2, pph=0, t6=5); self.opt.update(opt or {})
        step = self.opt.get("pstep", 2)
        mx = max(UNEED.values()) + step
        PUBS.update([1, U_X + 1] + [x for x in range(2, mx + 1) if x % step == self.opt.get("pph", 1) % step])
        self.clk = 's_memtime' if self.opt.get('cyc') else 's_memrealtime'
        self.a = Asm(); self.t = Asm(); self.h = Asm(); self.h.nlabel = 200000
        self.stamps = stamps; self.force_sc1 = force_sc1; self.budget = budget
        self.nst = 0; self.inhelper = False
        self.t.nlabel = 100000

    def stamp(self, grp=0):
        sp = self.opt.get("sp", 0)
        if grp != sp and not (grp == 0 and self.nst == 0) and not (grp == 0 and self.inhelper): return
        if self.stamps and self.nst < 11:
            self.a(f"{self.clk} {s(sSt + 2 * self.nst, 2)}"); self.nst += 1

    def srd(self, a, d, lo, size):
        a(f"s_mov_b32 {s(d)}, {s(lo)}\ns_mov_b32 {s(d+1)}, {s(lo+1)}\ns_mov_b32 {s(d+2)}, {size}\ns_mov_b32 {s(d+3)}, 0x20000")

    def spin_tail(self, a, Lretry, Lok):
        a(f"s_cmp_eq_u32 {s(sBud)}, 0\ns_cbranch_scc1 {Lok}\ns_sub_u32 {s(sBud)}, {s(sBud)}, 1\ns_branch {Lretry}")

    def lds_spin(self, a, addr_v, off, need, tmp, sleep=0):
        L = a.newlabel("Lsp"); Lok = L + "_ok"
        a.label(L)
        a(f"ds_read_b32 {v(tmp)}, {v(addr_v)} offset:{off}\ns_waitcnt lgkmcnt(0)\nv_cmp_gt_u32 vcc, {need}, {v(tmp)}\ns_cbranch_vccz {Lok}")
        if sleep: a(f"s_sleep {sleep}")
        self.spin_tail(a, L, Lok)
        a.label(Lok)

    def allreduce2(self, a, x, y, t, op="v_add_f32"):
        a(f"v_permlane32_swap_b32 {v(x)}, {v(y)}")
        a(f"{op} {v(x)}, {v(x)}, {v(y)}")
        a(f"v_mov_b32 {v(y)}, {v(x)}")
        a(f"v_permlane16_swap_b32 {v(x)}, {v(y)}")
        a(f"{op} {v(x)}, {v(x)}, {v(y)}")
        a(f"v_mov_b32 {v(y)}, {v(x)}")
        a(f"v_permlane32_swap_b32 {v(x)}, {v(y)}")

    def rscatter4(self, a, m, op):
        a(f"v_permlane32_swap_b32 {v(m[0])}, {v(m[2])}")
        a(f"v_permlane32_swap_b32 {v(m[1])}, {v(m[3])}")
        a(f"{op} {v(m[0])}, {v(m[0])}, {v(m[2])}")
        a(f"{op} {v(m[1])}, {v(m[1])}, {v(m[3])}")
        a(f"v_permlane16_swap_b32 {v(m[0])}, {v(m[1])}")
        a(f"{op} {v(m[0])}, {v(m[0])}, {v(m[1])}")

    def allgather4(self, a, m):
        a(f"v_mov_b32 {v(m[1])}, {v(m[0])}")
        a(f"v_permlane16_swap_b32 {v(m[0])}, {v(m[1])}")
        a(f"v_mov_b32 {v(m[2])}, {v(m[0])}")
        a(f"v_mov_b32 {v(m[3])}, {v(m[1])}")
        a(f"v_permlane32_swap_b32 {v(m[0])}, {v(m[2])}")
        a(f"v_permlane32_swap_b32 {v(m[1])}, {v(m[3])}")

    def moded(self, lines, tag=None):
        a, t = self.a, self.t
        L = a.newlabel("Lm"); Lb = L + "_b"
        a(f"s_cmp_lg_u32 {s(sMode)}, 1\ns_cbranch_scc1 {L}")
        for ln in lines: a(ln, tag)
        a.label(Lb)
        t.label(L); t.reset_hist()
        for ln in lines: t(ln + (" sc1" if ln.startswith("buffer_store") else ""))
        t(f"s_branch {Lb}")

    def handoff_store(self, r, buf):
        a = self.a
        a(f"s_add_u32 {s(sA)}, {s(sTJ)}, {buf}")
        self.moded([f"buffer_store_dwordx4 {v(r,4)}, {v(vL16)}, {s(sWS,4)}, {s(sA)} offen",
                    f"buffer_store_dwordx4 {v(r+4,4)}, {v(vL16)}, {s(sWS,4)}, {s(sA)} offen offset:1024",
                    f"buffer_store_dwordx2 {v(r+8,2)}, {v(vL8)}, {s(sWS,4)}, {s(sA)} offen offset:2048"])

    def flag_store(self, off):
        a = self.a
        a(f"s_lshl_b32 {s(sA)}, {s(sJ)}, 3\ns_add_u32 {s(sA)}, {s(sA)}, {s(sTile)}\ns_add_u32 {s(sA)}, {s(sA)}, {off}")
        a("s_mov_b64 exec, 1")
        self.moded([f"buffer_store_dwordx2 {v(self.vTag,2)}, {v(self.vZero)}, {s(sWS,4)}, {s(sA)} offen"])
        a("s_mov_b64 exec, -1")

    def poll8(self, a, voff, soff, tmp, imm=0):
        L = a.newlabel("Lp"); Lok = L + "_ok"
        a.label(L)
        a(f"buffer_load_dwordx2 {v(tmp,2)}, {v(voff)}, {s(sWS,4)}, {soff} offen offset:{imm} sc1")
        a(f"s_waitcnt vmcnt(0)\nv_cmp_ne_u64 vcc, {s(sTag,2)}, {v(tmp,2)}\ns_cbranch_vccz {Lok}")
        self.spin_tail(a, L, Lok)
        a.label(Lok)

    def stream_init(self, frags, slots, G=4):
        self.fr = frags; self.rp = 0; self.cur_unit = None; self.chk = {}
        self.slots = slots; self.G = G; self.side = []; self.rate = 1

    def stream_read(self):
        a = self.a
        if self.rp >= len(self.fr): return
        f = self.rp; u, off, kind = self.fr[f]
        prev = self.cur_unit
        if u != prev:
            u0 = self.opt.get("u0", 2)
            if u0 <= u < u0 + 5: self.stamp(7)
            if self.chk.get(u) == 2:
                L = a.newlabel("Lw"); Lok = L + "_ok"
                a(f"s_cmp_lg_u64 {s(sCk,2)}, 0\ns_cbranch_scc1 {L}")
                a.label(Lok)
                t = self.t
                t.label(L); t.reset_hist()
                t(f"ds_read_b32 {v(vLC)}, {v(vLa)}\ns_waitcnt lgkmcnt(0)\nv_cmp_gt_u32 {s(sCk,2)}, {u+1}, {v(vLC)}\ns_cmp_lg_u64 {s(sCk,2)}, 0\ns_cbranch_scc0 {Lok}")
                self.spin_tail(t, L, Lok)
            else:
                self.lds_spin(a, vLa, 0, u + 1, vLC)
            if u0 <= u < u0 + 5: self.stamp(7)
            self.cur_unit = u
        r = self.slots[f % len(self.slots)]
        A = UADDR[u] + off
        a(f"ds_read_b128 {v(r,4)}, {v((vL16, vWA, vPA)[A >> 16])} offset:{A & 0xffff}", tag=("w", f))
        self.rp += 1
        last = self.rp == len(self.fr)
        if u != prev and prev is not None and (prev + 1) in PUBS: a(f"ds_write_b32 {v(self.vCnt)}, {v(vCV)}")
        nxt = lambda d: self.fr[f + d][0] if f + d < len(self.fr) else None
        LA = self.opt.get("la", 9)
        if nxt(LA) not in (None, u) and nxt(LA) not in self.chk:
            a(f"ds_read_b32 {v(vLC)}, {v(vLa)}", tag=("chk", nxt(LA))); self.chk[nxt(LA)] = 1
        if nxt(2) not in (None, u) and self.chk.get(nxt(2)) == 1:
            a.wait(ds=("chk", nxt(2)))
            a(f"v_cmp_gt_u32 {s(sCk,2)}, {nxt(2)+1}, {v(vLC)}"); self.chk[nxt(2)] = 2
        if nxt(1) != u and not last and (u + 1) in PUBS: a(f"v_mov_b32 {v(vCV)}, {u+1}")
        if last and (u + 1) in PUBS: self.publish(u + 1)

    def publish(self, val):
        self.a(f"v_mov_b32 {v(vCV)}, {val}\nds_write_b32 {v(self.vCnt)}, {v(vCV)}")

    def prime(self):
        for _ in range(len(self.slots)): self.stream_read()

    def mfma_w(self, f, acc, af, first=False, swap=False):
        a = self.a
        if f % self.G == 0: a.wait(ds=("w", min(f + self.G - 1, len(self.fr) - 1)))
        r = self.slots[f % len(self.slots)]
        c = "0" if first else v(acc, 4)
        if swap: a(f"v_mfma_f32_16x16x32_bf16 {v(acc,4)}, {v(af,4)}, {v(r,4)}, {c}")
        else: a(f"v_mfma_f32_16x16x32_bf16 {v(acc,4)}, {v(r,4)}, {v(af,4)}, {c}")
        self.stream_read()
        for _ in range(self.rate):
            if self.side:
                op = self.side.pop(0)
                if callable(op): op()
                elif isinstance(op, tuple): a(op[0], tag=op[1])
                else: a(op)

    def async_check(self, addr, off, need, tmp, name):
        a = self.a
        def chk():
            L = a.newlabel("La"); Lok = L + "_ok"
            a.wait(ds=name)
            a(f"v_cmp_gt_u32 vcc, {need}, {v(tmp)}\ns_cbranch_vccnz {L}")
            a.label(Lok)
            t = self.t
            t.label(L); t.reset_hist()
            t(f"ds_read_b32 {v(tmp)}, {v(addr)} offset:{off}\ns_waitcnt lgkmcnt(0)\nv_cmp_gt_u32 vcc, {need}, {v(tmp)}\ns_cbranch_vccz {Lok}")
            self.spin_tail(t, L, Lok)
        return (f"ds_read_b32 {v(tmp)}, {v(addr)} offset:{off}", name), chk

    def prologue(self):
        a = self.a
        a("s_cmp_ge_u32 s2, 256\ns_cbranch_scc1 L_end")
        a("s_load_dwordx16 s[4:19], s[0:1], 0\ns_load_dwordx4 s[20:23], s[0:1], 64\ns_load_dwordx2 s[24:25], s[0:1], 80")
        self.stamp()
        a("s_getpc_b64 s[62:63]")
        a.label("L_pcref")
        a(f"s_lshr_b32 {s(sA)}, s2, 3\ns_lshl_b32 {s(sA)}, {s(sA)}, 12\nv_lshlrev_b32 v1, 7, v0\nv_add_u32 v1, {s(sA)}, v1")
        a(f"v_min_u32 v1, L_code_end-L_pcref-4, v1\nv_cmp_gt_u32 vcc, 32, v0\ns_and_saveexec_b64 {s(sMk,2)}, vcc\ns_cbranch_execz L_nopf")
        a("global_load_dword v255, v1, s[62:63]")
        a.label("L_nopf")
        a(f"s_mov_b64 exec, -1"); a.reset_cnt()
        a(f"v_and_b32 {v(vLane)}, 63, v0\nv_lshrrev_b32 v0, 6, v0")
        a(f"v_readfirstlane_b32 {s(sWave)}, v0")
        a(f"s_and_b32 {s(sX)}, s2, 7\ns_lshr_b32 {s(sA)}, s2, 3\ns_lshr_b32 {s(sQ)}, {s(sA)}, 3\ns_and_b32 {s(sJ)}, {s(sA)}, 7")
        a(f"s_lshl_b32 {s(sC)}, {s(sX)}, 2\ns_add_u32 {s(sC)}, {s(sC)}, {s(sQ)}")
        a(f"v_lshlrev_b32 {v(vL16)}, 4, {v(vLane)}\nv_lshlrev_b32 {v(vL8)}, 3, {v(vLane)}\nv_mov_b32 {v(vZ)}, {L_CNT}")
        a(f"s_mov_b32 {s(sBud)}, {self.budget}")
        for i in range(4):
            a(f"s_add_u32 {s(sRot+i)}, {s(sQ)}, {i}\ns_and_b32 {s(sRot+i)}, {s(sRot+i)}, 3")
        a(f"s_lshl_b32 {s(sRho)}, {s(sQ)}, 1")
        a(f"s_mov_b32 {s(sOnes)}, 0x3f803f80")
        a(f"s_cmp_lg_u32 {s(sWave)}, 4\ns_cbranch_scc1 L_noinit")
        a(f"v_lshl_add_u32 v12, {v(vLane)}, 2, {v(vZ)}\nv_mov_b32 v14, 0\nv_mov_b32 v15, 0\nv_mov_b32 v16, 0\nv_mov_b32 v17, 0\nv_add_u32 v13, {L_CW}, {v(vL16)}")
        a(f"ds_write_b32 v12, v14\nds_write_b32 v12, v14 offset:{L_LW-L_CNT}\nds_write_b32 v12, v14 offset:{L_LW-L_CNT+256}\nds_write_b128 v13, v[14:17]\nds_write_b128 v13, v[14:17] offset:1024\ns_waitcnt lgkmcnt(0)")
        a.label("L_noinit")
        a("s_barrier")
        self.helper_start()

    def get_tag(self, a, tmp):
        L = a.newlabel("Ltg"); Lok = L + "_ok"
        a.label(L)
        a(f"ds_read_b64 {v(tmp,2)}, {v(vZ)} offset:{L_TAG-L_CNT}\ns_waitcnt lgkmcnt(0)\nv_cmp_gt_u32 vcc, 1, {v(tmp+1)}\ns_cbranch_vccz {Lok}\ns_sleep 1")
        self.spin_tail(a, L, Lok)
        a.label(Lok)
        a(f"v_readfirstlane_b32 {s(sTag)}, {v(tmp)}")
        a(f"s_mul_i32 {s(sTag+1)}, {s(sTag)}, 0x9E3779B1\ns_xor_b32 {s(sTag+1)}, {s(sTag+1)}, 0x7F4A7C15")

    def compute(self):
        a = self.a; h = self.h
        m = vM
        self.vTag = m; self.vZero = m + 2; self.vCnt = m + 3
        vG, vR = m + 4, m + 5
        sImg = sE
        sXo = 75
        MF = "v_mfma_f32_16x16x32_bf16"
        a(f"s_cmp_eq_u32 {s(sWave)}, 6\ns_cbranch_scc1 L_relay")
        a(f"s_add_u32 {s(sPI)}, {s(sWave)}, 1\ns_lshl_b32 {s(sT)}, {s(sC)}, 2\ns_add_u32 {s(sT)}, {s(sT)}, {s(sWave)}")
        a(f"s_mul_i32 {s(sImg)}, {s(sWave)}, 20480\ns_add_u32 {s(sImg)}, {s(sImg)}, {XIMG}")
        t0, t1, x0, x1 = TT, TT + 1, TT + 2, TT + 3
        a(f"s_mul_i32 {s(sXo)}, {s(sT)}, {16*1280}")
        a(f"v_lshrrev_b32 {v(t0)}, 3, {v(vLane)}\nv_and_b32 {v(t1)}, 7, {v(vLane)}\nv_lshrrev_b32 {v(x1)}, 1, {v(t0)}\nv_xor_b32 {v(t1)}, {v(t1)}, {v(x1)}")
        a(f"v_mul_u32_u24 {v(t0)}, 1280, {v(t0)}\nv_add_u32 {v(t0)}, {s(sXo)}, {v(t0)}\nv_lshl_add_u32 {v(x0)}, {v(t1)}, 4, {v(t0)}")
        a(f"v_xor_b32 {v(t1)}, 4, {v(t1)}\nv_lshl_add_u32 {v(x1)}, {v(t1)}, 4, {v(t0)}\nv_add_u32 {v(x1)}, {8*1280-1024}, {v(x1)}")
        a(f"s_lshl_b32 {s(sB)}, {s(sRho)}, 7")
        a("s_waitcnt lgkmcnt(0)")
        self.srd(a, sIN, 4, 2048 * 1280)
        self.stamp(1)
        for ln in range(10):
            a(f"s_add_u32 m0, {s(sImg)}, {2048*ln}")
            a(f"buffer_load_dwordx4 {v(x0)}, {s(sIN,4)}, {s(sB)} offen lds")
            a(f"buffer_load_dwordx4 {v(x1)}, {s(sIN,4)}, {s(sB)} offen offset:1024 lds", tag=("x", ln))
            if ln < 9:
                a(f"s_add_u32 {s(sB)}, {s(sB)}, 128\ns_cmp_ge_u32 {s(sB)}, 1280\ns_cselect_b32 {s(sB)}, 0, {s(sB)}")
        a(f"v_mov_b32 {v(m+13)}, 1\ns_mov_b64 exec, 1\nds_add_u32 {v(vZ)}, {v(m+13)} offset:{L_XI-L_CNT}\ns_mov_b64 exec, -1")
        self.stamp(1)
        self.srd(a, sWS, 24, WS_SIZE)
        a(f"v_lshrrev_b32 {v(vG)}, 4, {v(vLane)}\nv_and_b32 {v(vR)}, 15, {v(vLane)}\nv_mov_b32 {v(self.vZero)}, 0")
        a(f"v_and_b32 {v(vLa)}, 1, {v(vLane)}\nv_mul_u32_u24 {v(vLa)}, 260, {v(vLa)}\nv_add_u32 {v(vLa)}, {L_LW}, {v(vLa)}")
        a(f"s_lshl_b32 {s(sB)}, {s(sWave)}, 8\ns_add_u32 {s(sB)}, {s(sB)}, {L_CW}\nv_lshl_add_u32 {v(self.vCnt)}, {v(vLane)}, 2, {s(sB)}")
        a(f"s_mul_i32 {s(sTile)}, {s(sT)}, {TS}\ns_add_u32 {s(sTile)}, {s(sTile)}, {WS_TILE}")
        a(f"s_mul_i32 {s(sTJ)}, {s(sJ)}, 2560\ns_add_u32 {s(sTJ)}, {s(sTJ)}, {s(sTile)}")
        xoK, xoK8, xoV = m + 10, m + 11, m + 12
        a(f"s_mul_i32 {s(sA)}, {s(sPI)}, 5120\ns_add_u32 {s(sA)}, {s(sA)}, {P1TMP}\nv_add_u32 {v(xoV)}, {s(sA)}, {v(vL8)}")
        a(f"v_add_u32 {v(xoK)}, {s(sA)}, {v(vL16)}\nv_add_u32 {v(xoK8)}, {s(sA)}, {v(vL8)}")
        ra0, ra1, fr_ = m + 6, m + 7, m + 8
        a(f"v_lshrrev_b32 {v(fr_)}, 1, {v(vR)}\nv_xor_b32 {v(ra0)}, {v(fr_)}, {v(vG)}\nv_xor_b32 {v(ra1)}, 4, {v(ra0)}")
        a(f"v_lshlrev_b32 {v(m+9)}, 7, {v(vR)}\nv_add_u32 {v(m+9)}, {s(sImg)}, {v(m+9)}")
        a(f"v_lshl_add_u32 {v(ra0)}, {v(ra0)}, 4, {v(m+9)}\nv_lshl_add_u32 {v(ra1)}, {v(ra1)}, 4, {v(m+9)}")
        p0, p1 = TT + 4, TT + 5
        xq = [TT + 6 + t for t in range(5)]
        a(f"v_lshrrev_b32 {v(p0)}, 1, {v(vG)}\nv_and_b32 {v(p1)}, 1, {v(vG)}\nv_lshl_add_u32 {v(p1)}, {v(p1)}, 3, {v(m+9)}")
        for t in range(5):
            a(f"s_mul_i32 {s(sA)}, {s(sJ)}, 10\ns_add_u32 {s(sA)}, {s(sA)}, {2*t}\ns_lshr_b32 {s(sB)}, {s(sA)}, 3\ns_and_b32 {s(sA)}, {s(sA)}, 7")
            a(f"s_add_u32 {s(sB)}, {s(sB)}, 10\ns_sub_u32 {s(sB)}, {s(sB)}, {s(sRho)}\ns_sub_u32 {s(sCc)}, {s(sB)}, 10\ns_cmp_ge_u32 {s(sB)}, 10\ns_cselect_b32 {s(sB)}, {s(sCc)}, {s(sB)}\ns_lshl_b32 {s(sB)}, {s(sB)}, 11")
            a(f"v_add_u32 {v(xq[t])}, {s(sA)}, {v(p0)}\nv_xor_b32 {v(xq[t])}, {v(xq[t])}, {v(fr_)}\nv_lshl_add_u32 {v(xq[t])}, {v(xq[t])}, 4, {v(p1)}\nv_add_u32 {v(xq[t])}, {s(sB)}, {v(xq[t])}")
        sm = [TT + 12, TT + 13, TT + 14, TT + 15]
        RSD = TT + 24
        inv = f2u(1.0 / 640)
        def xread(A, ln):
            for vv in range(2): A(f"ds_read_b128 {v(AF+8*ln+4*vv,4)}, {v(ra0+vv)} offset:{2048*ln}", tag=("xf", ln))
        def dots(A, ln):
            A.wait(ds=("xf", ln))
            for k in range(8):
                r_ = AF + 8 * ln + k
                A(f"v_dot2c_f32_bf16 {v(sm[2*(k&1)])}, {s(sOnes)}, {v(r_)}\nv_dot2c_f32_bf16 {v(sm[2*(k&1)+1])}, {v(r_)}, {v(r_)}")
        def stat_fin(A):
            A(f"v_add_f32 {v(sm[0])}, {v(sm[0])}, {v(sm[2])}\nv_add_f32 {v(sm[1])}, {v(sm[1])}, {v(sm[3])}")
            self.allreduce2(A, sm[0], sm[1], None)
            A(f"v_mul_f32 {v(sm[0])}, {inv:#x}, {v(sm[0])}\nv_mul_f32 {v(sm[1])}, {inv:#x}, {v(sm[1])}")
            A(f"v_fma_f32 {v(sm[1])}, -{v(sm[0])}, {v(sm[0])}, {v(sm[1])}\nv_max_f32 {v(sm[1])}, 0, {v(sm[1])}\nv_add_f32 {v(sm[1])}, {f2u(1e-5):#x}, {v(sm[1])}")
            A(f"v_rsq_f32 {v(RSD)}, {v(sm[1])}\nv_mul_f32_e64 {v(RSD+1)}, -{v(sm[0])}, {v(RSD)}\ns_mov_b32 {s(sD)}, 0xffff0000")
        tp = [TT + 16 + 2 * k for k in range(4)]
        def norm_ops(st):
            ops = []
            for k in range(4): ops += [f"v_lshlrev_b32 {v(tp[k])}, 16, {v(AF+4*st+k)}", f"v_and_b32 {v(tp[k]+1)}, {s(sD)}, {v(AF+4*st+k)}"]
            for k in range(4): ops += [f"v_fma_f32 {v(tp[k])}, {v(tp[k])}, {v(RSD)}, {v(RSD+1)}", f"v_fma_f32 {v(tp[k]+1)}, {v(tp[k]+1)}, {v(RSD)}, {v(RSD+1)}"]
            for k in range(4): ops.append(f"v_cvt_pk_bf16_f32 {v(AF+4*st+k)}, {v(tp[k])}, {v(tp[k]+1)}")
            return ops
        for r_ in sm: a(f"v_mov_b32 {v(r_)}, 0")
        for ln in range(10):
            a.wait(vm=("x", ln))
            if ln == 9: self.stamp(1)
            xread(a, ln)
            if ln >= 2: dots(a, ln - 2)
        for t in range(5): a(f"ds_read_b64 {v(X1P+2*t,2)}, {v(xq[t])}")
        self.publish(1)
        dots(a, 8); dots(a, 9)
        stat_fin(a)
        self.stamp(); self.stamp(1)
        fr = [(U_RAW + 5 * ps + st // 4, (st % 4) * 5120 + 1024 * t, "pk") for ps in range(3) for st in range(20) for t in range(5)]
        VAC = ACC + 20
        accs = [ACC, VAC, ACC]
        KPREV = KOWN + 10
        def pack5(acc, dst, A=None):
            A = A or a
            for t in range(5):
                A(f"v_cvt_pk_bf16_f32 {v(dst(t))}, {v(acc+4*t)}, {v(acc+4*t+1)}\nv_cvt_pk_bf16_f32 {v(dst(t)+1)}, {v(acc+4*t+2)}, {v(acc+4*t+3)}")
        def k_out(A):
            pack5(ACC, lambda t: KOWN + 2 * t, A)
            A(f"ds_write_b128 {v(xoK)}, {v(KOWN,4)}\nds_write_b128 {v(xoK)}, {v(KOWN+4,4)} offset:1024\nds_write_b64 {v(xoK8)}, {v(KOWN+8,2)} offset:2048")
        def xr_add(A, n):
            A(f"s_lshl_b32 {s(sB)}, {s(sPI)}, 2\ns_add_u32 {s(sB)}, {s(sB)}, {L_XR}\nv_mov_b32 {v(m+13)}, {s(sB)}\nv_mov_b32 {v(m+14)}, {n}")
            A(f"ds_write_b32 {v(m+13)}, {v(m+14)}")
        for st in range(20):
            for op in norm_ops(st): a(op)
        self.stamp(1)
        VF = TT
        VLO = 48
        MK = TT + 20
        BIAS = TT + 24
        sGE = lambda hh: 8 + 2 * (hh - 1)
        sCM = lambda t: 14 + 2 * (t - 1)
        tq = m + 14
        a(f"v_add_u32 {v(vWA)}, 0x10000, {v(vL16)}\nv_add_u32 {v(vPA)}, 0x20000, {v(vL16)}")
        a(f"v_and_b32 {v(tq)}, 1, {v(vR)}\nv_cmp_eq_u32 {s(sPar,2)}, 1, {v(tq)}")
        a(f"v_lshl_add_u32 {v(tq)}, {v(vG)}, 2, {v(tq)}\nv_cmp_le_u32 {s(sMa,2)}, {v(tq)}, {v(vR)}")
        a(f"v_add_u32 {v(tq)}, 2, {v(tq)}\nv_cmp_le_u32 {s(sMb,2)}, {v(tq)}, {v(vR)}")
        a(f"v_mov_b32 {v(tq)}, 0xffff\nv_mov_b32 {v(m+13)}, 0xffff0000\nv_cndmask_b32 {v(tq)}, {v(tq)}, {v(m+13)}, {s(sPar,2)}")
        a(f"v_cndmask_b32 {v(MK)}, 0, {v(tq)}, {s(sMa,2)}\nv_cndmask_b32 {v(MK+1)}, 0, {v(tq)}, {s(sMb,2)}")
        a(f"v_xor_b32 {v(MK+2)}, {v(MK)}, {v(tq)}\nv_xor_b32 {v(MK+3)}, {v(MK+1)}, {v(tq)}")
        a(f"s_cmp_eq_u32 {s(sT)}, 0\ns_cselect_b32 {s(sB)}, {f2u(-1e30):#x}, 0\ns_waitcnt vmcnt(0)")
        for k in range(4): a(f"v_mov_b32 {v(BIAS+k)}, {s(sB)}")
        for hh in range(1, 4):
            a(f"v_cmp_le_u32 {s(sGE(hh),2)}, {hh}, {v(vG)}\nv_cmp_gt_u32 {s(sCM(hh),2)}, {4*hh}, {v(vR)}")
        vXo, vXp, vKp, vVp, vOne, vTwo = m + 15, m + 6, m + 7, m + 9, 10, 11
        a(f"s_lshl_b32 {s(sB)}, {s(sWave)}, 8\ns_add_u32 {s(sB)}, {s(sB)}, {L_CW + 1024 - 256}\ns_cmp_eq_u32 {s(sWave)}, 0\ns_cselect_b32 {s(sB)}, {L_XR}, {s(sB)}\nv_mov_b32 {v(vXp)}, {s(sB)}\nv_add_u32 {v(vXo)}, 1024, {v(self.vCnt)}")
        a(f"v_subrev_u32 {v(vKp)}, 5120, {v(xoK)}\nv_subrev_u32 {v(vVp)}, 5120, {v(xoV)}\nv_mov_b32 {v(vOne)}, 1\nv_mov_b32 {v(vTwo)}, 2")
        self.get_tag(a, self.vTag)
        a(f"v_mov_b32 {v(self.vTag+1)}, {s(sTag+1)}")
        self.stream_init(fr, [WW + 4 * i for i in range(8)] + [48, 52, 56, 60]); self.prime()
        self.stamp(1)
        def pack_ops(acc, dst):
            return [f"v_cvt_pk_bf16_f32 {v(dst(t)+k)}, {v(acc+4*t+2*k)}, {v(acc+4*t+2*k+1)}" for t in range(5) for k in range(2)]
        for ps in range(3):
            for st in range(20):
                if ps == 1 and st == 1:
                    self.side += pack_ops(ACC, lambda t: KOWN + 2 * t)
                    self.side += [f"ds_write_b128 {v(xoK)}, {v(KOWN,4)}", f"ds_write_b128 {v(xoK)}, {v(KOWN+4,4)} offset:1024", f"ds_write_b64 {v(xoK8)}, {v(KOWN+8,2)} offset:2048", f"ds_write_b32 {v(vXo)}, {v(vOne)}"]
                if ps == 2 and st == 1:
                    self.side += pack_ops(VAC, lambda t: VF + 4 * t)
                    self.side += [f"ds_write_b64 {v(xoV)}, {v(VF+4*t,2)} offset:{2560+512*t}" for t in range(5)] + [f"ds_write_b32 {v(vXo)}, {v(vTwo)}"]
                if ps == 2 and st == 8:
                    rd, ck = self.async_check(vZ, L_MODE - L_CNT, 1, m + 14, "mode")
                    self.side += [rd] + [""] * 8 + [ck, f"v_readfirstlane_b32 {s(sMode)}, {v(m+14)}"]
                if ps == 2 and st == 12:
                    rd, ck = self.async_check(vXp, 0, 1, m + 13, "xr1")
                    self.side += [rd] + [""] * 8 + [ck, f"ds_read_b128 {v(KPREV,4)}, {v(vKp)}", f"ds_read_b128 {v(KPREV+4,4)}, {v(vKp)} offset:1024", (f"ds_read_b64 {v(KPREV+8,2)}, {v(vVp)} offset:2048", "kprev")]
                for t in range(5):
                    f = ps * 100 + st * 5 + t
                    self.mfma_w(f, accs[ps] + 4 * t, AF + 4 * st, first=(st == 0), swap=(ps == 1))
            self.stamp(1)
        assert not self.side
        self.stamp()
        QF, SC, SP, PF, QP = AF, AF + 16, AF + 32, AF + 48, AF + 64
        pack5(ACC, lambda t: QF if t == 0 else (QF + 14 if t == 4 else QP + 2 * t))
        for hh in range(4):
            for k in range(2):
                if hh > 0: a(f"v_cndmask_b32 {v(QF+4*hh+k)}, 0, {v(QP+2*hh+k)}, {s(sGE(hh),2)}")
                if hh < 3: a(f"v_cndmask_b32 {v(QF+4*hh+2+k)}, {v(QP+2*(hh+1)+k)}, 0, {s(sGE(hh+1),2)}")
        a.wait(ds="kprev")
        for hh in range(4):
            a(f"{MF} {v(SC+4*hh,4)}, {v(KOWN+2*hh,4)}, {v(QF+4*hh,4)}, 0")
            a(f"{MF} {v(SP+4*hh,4)}, {v(KPREV+2*hh,4)}, {v(QF+4*hh,4)}, {v(BIAS,4)}")
        self.lds_spin(a, vXp, 0, 2, m + 14)
        for t in range(5):
            a(f"ds_read_b64 {v(VF+4*t+2,2)}, {v(vVp)} offset:{2560+512*t}", tag="vprev")
        la = [AF + 64 + hh for hh in range(4)]; lb = [AF + 68 + hh for hh in range(4)]; mx = [AF + 72 + hh for hh in range(4)]
        a(f"s_mov_b32 {s(sB)}, {f2u(20 ** -0.5 * math.log2(math.e)):#x}")
        for hh in range(4):
            c_, p_ = SC + 4 * hh, SP + 4 * hh
            a(f"v_cndmask_b32 {v(c_)}, {v(c_)}, {v(c_+1)}, {s(sPar,2)}\nv_cndmask_b32 {v(p_)}, {v(p_)}, {v(p_+1)}, {s(sPar,2)}")
            a(f"v_cndmask_b32 {v(c_+2)}, {v(c_+2)}, {v(c_+3)}, {s(sPar,2)}\nv_cndmask_b32 {v(p_+2)}, {v(p_+2)}, {v(p_+3)}, {s(sPar,2)}")
            a(f"v_cndmask_b32 {v(la[hh])}, {v(p_)}, {v(c_)}, {s(sMa,2)}\nv_cndmask_b32 {v(lb[hh])}, {v(p_+2)}, {v(c_+2)}, {s(sMb,2)}")
            a(f"v_max_f32 {v(mx[hh])}, {v(la[hh])}, {v(lb[hh])}")
        self.rscatter4(a, mx, "v_max_f32")
        a(f"v_mul_f32 {v(mx[0])}, {s(sB)}, {v(mx[0])}")
        self.allgather4(a, mx)
        for hh in range(4):
            a(f"v_fma_f32 {v(la[hh])}, {v(la[hh])}, {s(sB)}, -{v(mx[hh])}\nv_fma_f32 {v(lb[hh])}, {v(lb[hh])}, {s(sB)}, -{v(mx[hh])}")
        for hh in range(4):
            a(f"v_exp_f32 {v(la[hh])}, {v(la[hh])}\nv_exp_f32 {v(lb[hh])}, {v(lb[hh])}")
        for hh in range(4):
            a(f"v_add_f32 {v(mx[hh])}, {v(la[hh])}, {v(lb[hh])}")
        a.wait(ds="vprev")
        for t in range(1, 4):
            for k in range(4): a(f"v_cndmask_b32 {v(VLO+4*(t-1)+k)}, 0, {v(VF+4*t+k)}, {s(sCM(t),2)}")
            for k in range(4): a(f"v_xor_b32 {v(VF+4*t+k)}, {v(VF+4*t+k)}, {v(VLO+4*(t-1)+k)}")
        self.rscatter4(a, mx, "v_add_f32")
        a(f"v_rcp_f32 {v(mx[0])}, {v(mx[0])}")
        self.allgather4(a, mx)
        for hh in range(4):
            a(f"v_mul_f32 {v(la[hh])}, {v(la[hh])}, {v(mx[hh])}\nv_mul_f32 {v(lb[hh])}, {v(lb[hh])}, {v(mx[hh])}")
            a(f"v_cvt_pk_bf16_f32 {v(la[hh])}, {v(la[hh])}, {v(la[hh])}\nv_cvt_pk_bf16_f32 {v(lb[hh])}, {v(lb[hh])}, {v(lb[hh])}")
            a(f"v_and_b32 {v(PF+4*hh)}, {v(la[hh])}, {v(MK)}\nv_and_b32 {v(PF+4*hh+1)}, {v(lb[hh])}, {v(MK+1)}")
            a(f"v_and_b32 {v(PF+4*hh+2)}, {v(la[hh])}, {v(MK+2)}\nv_and_b32 {v(PF+4*hh+3)}, {v(lb[hh])}, {v(MK+3)}")
        for hh in range(4):
            a(f"{MF} {v(ACC+4*hh,4)}, {v(VF+4*hh,4)}, {v(PF+4*hh,4)}, {'0' if hh == 0 else v(ACC+4*hh,4)}")
            lo = VF + 16 if hh == 3 else VLO + 4 * hh
            a(f"{MF} {v(ACC+4*hh+4,4)}, {v(lo,4)}, {v(PF+4*hh,4)}, 0")
        self.publish(U_X + 1)
        OP = TT
        pack5(ACC, lambda t: OP + 2 * t)
        self.handoff_store(OP, BUFA)
        vA16, vA8, vF8 = m + 6, m + 7, m + 8
        a(f"v_add_u32 {v(vA16)}, {s(sTile)}, {v(vL16)}\ns_add_u32 {s(sB)}, {s(sTile)}, 2048\nv_add_u32 {v(vA8)}, {s(sB)}, {v(vL8)}")
        a(f"v_and_b32 {v(vF8)}, 7, {v(vLane)}\nv_lshlrev_b32 {v(vF8)}, 3, {v(vF8)}\nv_add_u32 {v(vF8)}, {s(sTile)}, {v(vF8)}")
        a("s_waitcnt vmcnt(0)")
        self.flag_store(F1)
        self.stamp()

        def unpack_acc(src, fn=None):
            for t in range(5):
                for k in range(2):
                    a(f"v_lshlrev_b32 {v(ACC+4*t+2*k)}, 16, {v(src+2*t+k)}\nv_and_b32 {v(ACC+4*t+2*k+1)}, 0xffff0000, {v(src+2*t+k)}")
        def frags640(u0): return [(u0 + st // 5, (st % 5) * 5120 + 1024 * t, "pk") for st in range(20) for t in range(5)]
        def load_A(buf, v16=None, v8=None):
            self.stamp(self.ph)
            for i in range(4):
                a(f"s_mul_i32 {s(sA)}, {s(sRot+i)}, 5120\ns_add_u32 {s(sA)}, {s(sA)}, {buf}")
                a16 = vA16 if v16 is None else v16[i]; a8 = vA8 if v8 is None else v8[i]
                for uu, imm in enumerate((0, 1024, 2560, 3584)):
                    a(f"buffer_load_dwordx4 {v(AF+20*i+4*uu,4)}, {v(a16)}, {s(sWS,4)}, {s(sA)} offen offset:{imm} sc1", tag=("A", 5*i+uu))
                a(f"buffer_load_dwordx2 {v(AF+20*i+16,2)}, {v(a8)}, {s(sWS,4)}, {s(sA)} offen sc1")
                a(f"buffer_load_dwordx2 {v(AF+20*i+18,2)}, {v(a8)}, {s(sWS,4)}, {s(sA)} offen offset:2560 sc1", tag=("A", 5*i+4))
        def gemm640():
            for st in range(20):
                a.wait(vm=("A", st))
                if st in (0, 10, 19): self.stamp(self.ph)
                for t in range(5): self.mfma_w(st * 5 + t, ACC + 4 * t, AF + 4 * st)
            self.stamp(self.ph)
        def stats_store(src, off):
            x_, y_ = TT + 12, TT + 13
            a(f"v_mov_b32 {v(x_)}, 0\nv_mov_b32 {v(y_)}, 0")
            for k in range(10):
                a(f"v_dot2c_f32_bf16 {v(x_)}, {s(sOnes)}, {v(src+k)}\nv_dot2c_f32_bf16 {v(y_)}, {v(src+k)}, {v(src+k)}")
            self.allreduce2(a, x_, y_, None)
            a(f"v_mov_b32 {v(TT+14)}, {s(sTag)}\nv_mov_b32 {v(TT+15)}, {s(sTag+1)}")
            a(f"s_lshl_b32 {s(sA)}, {s(sJ)}, 8\ns_add_u32 {s(sA)}, {s(sA)}, {s(sTile)}\ns_add_u32 {s(sA)}, {s(sA)}, {off}")
            self.stamp(self.ph)
            a("s_waitcnt vmcnt(0)")
            self.stamp(self.ph)
            a("s_mov_b64 exec, 0xffff")
            self.moded([f"buffer_store_dwordx4 {v(TT+12,4)}, {v(vL16)}, {s(sWS,4)}, {s(sA)} offen"])
            a("s_mov_b64 exec, -1")
        def stats_poll(off):
            L = a.newlabel("Lp"); Lok = L + "_ok"
            e0, e1 = TT + 12, TT + 16
            a(f"s_mov_b32 {s(sA)}, {off}")
            a.label(L)
            a(f"buffer_load_dwordx4 {v(e0,4)}, {v(vA16)}, {s(sWS,4)}, {s(sA)} offen sc1")
            a(f"buffer_load_dwordx4 {v(e1,4)}, {v(vA16)}, {s(sWS,4)}, {s(sA)} offen offset:1024 sc1")
            a(f"s_waitcnt vmcnt(0)\nv_cmp_ne_u64 vcc, {s(sTag,2)}, {v(e0+2,2)}\nv_cmp_ne_u64 {s(sMk,2)}, {s(sTag,2)}, {v(e1+2,2)}")
            a(f"s_or_b64 vcc, vcc, {s(sMk,2)}\ns_cbranch_scc0 {Lok}")
            self.spin_tail(a, L, Lok)
            a.label(Lok)
        def stats_finish(mu, var):
            e0, e1 = TT + 12, TT + 16
            a(f"v_add_f32 {v(mu)}, {v(e0)}, {v(e1)}\nv_add_f32 {v(var)}, {v(e0+1)}, {v(e1+1)}")
            self.allreduce2(a, mu, var, None)
            a(f"v_mul_f32 {v(mu)}, {inv:#x}, {v(mu)}\nv_mul_f32 {v(var)}, {inv:#x}, {v(var)}")
            a(f"v_fma_f32 {v(var)}, -{v(mu)}, {v(mu)}, {v(var)}\nv_max_f32 {v(var)}, 0, {v(var)}")
        c0 = -2 * math.sqrt(2 / math.pi) * math.log2(math.e)
        GK = KOWN
        def gelu_consts(R):
            a(f"v_mul_f32 {v(GK)}, {f2u(c0):#x}, {v(R)}\nv_mul_f32 {v(GK+1)}, {v(R)}, {v(R)}\nv_mul_f32 {v(GK+1)}, {v(GK+1)}, {v(GK)}")
            a(f"v_mul_f32 {v(GK+1)}, {f2u(0.044715):#x}, {v(GK+1)}\nv_rcp_f32 {v(GK+2)}, {v(R)}")
        def gelu_ops(acc, n, dst, tmp, pk=True):
            ops = []
            for b in range(0, n, 4):
                P = [(acc + b, tmp), (acc + b + 2, tmp + 2)]
                if pk:
                    for x_, t_ in P: ops.append(f"v_pk_mul_f32 {v(t_,2)}, {v(x_,2)}, {v(x_,2)}")
                    for x_, t_ in P: ops.append(f"v_pk_fma_f32 {v(t_,2)}, {v(t_,2)}, {v(GK,2)}, {v(GK,2)} op_sel:[0,1,0] op_sel_hi:[1,1,0]")
                    for x_, t_ in P: ops.append(f"v_pk_mul_f32 {v(t_,2)}, {v(t_,2)}, {v(x_,2)}")
                    for k in range(4): ops.append(f"v_exp_f32 {v(tmp+k)}, {v(tmp+k)}")
                    for x_, t_ in P: ops.append(f"v_pk_fma_f32 {v(t_,2)}, {v(t_,2)}, {v(GK+2,2)}, {v(GK+2,2)} op_sel_hi:[1,0,0]")
                    for k in range(4): ops.append(f"v_rcp_f32 {v(tmp+k)}, {v(tmp+k)}")
                    for x_, t_ in P: ops.append(f"v_pk_mul_f32 {v(t_,2)}, {v(t_,2)}, {v(x_,2)}")
                else:
                    for k in range(4): ops.append(f"v_mul_f32 {v(tmp+k)}, {v(acc+b+k)}, {v(acc+b+k)}")
                    for k in range(4): ops.append(f"v_fma_f32 {v(tmp+k)}, {v(tmp+k)}, {v(GK+1)}, {v(GK)}")
                    for k in range(4): ops.append(f"v_mul_f32 {v(tmp+k)}, {v(tmp+k)}, {v(acc+b+k)}")
                    for k in range(4): ops.append(f"v_exp_f32 {v(tmp+k)}, {v(tmp+k)}")
                    for k in range(4): ops.append(f"v_fma_f32 {v(tmp+k)}, {v(tmp+k)}, {v(GK+2)}, {v(GK+2)}")
                    for k in range(4): ops.append(f"v_rcp_f32 {v(tmp+k)}, {v(tmp+k)}")
                    for k in range(4): ops.append(f"v_mul_f32 {v(tmp+k)}, {v(tmp+k)}, {v(acc+b+k)}")
                for i_, (x_, t_) in enumerate(P): ops.append(f"v_cvt_pk_bf16_f32 {v(dst+b//2+i_)}, {v(t_)}, {v(t_+1)}")
            return ops

        a.label("L_P2")
        self.ph = 2; self.stamp(2)
        self.stream_init(frags640(U_WO), SLOTS12, 4); self.prime()
        self.stamp(2)
        unpack_acc(X1P)
        a(f"s_mov_b32 {s(sB)}, {F1}")
        self.poll8(a, vF8, s(sB), TT + 12)
        load_A(BUFA); gemm640()
        pack5(ACC, lambda t: HP + 2 * t)
        self.handoff_store(HP, BUFB)
        stats_store(HP, S2)
        self.stamp()
        a.label("L_P3")
        self.ph = 3; self.stamp(3)
        self.stream_init(frags640(U_W1), SLOTS12, 4); self.prime()
        self.stamp(3)
        self.lds_spin(a, vZ, L_CSRDY - L_CNT, 1, vLC)
        vCS = m + 9
        a(f"v_lshlrev_b32 {v(vCS)}, 4, {v(vG)}\nv_add_u32 {v(vCS)}, {L_CS1}, {v(vCS)}")
        for t in range(5): a(f"ds_read_b128 {v(ACC+4*t,4)}, {v(vCS)} offset:{64*t}", tag="cs")
        stats_poll(S2)
        load_A(BUFB)
        MU, RS = KOWN + 4, KOWN + 5
        var, R = KOWN + 6, KOWN + 7
        stats_finish(MU, var)
        a.wait(ds="cs")
        for k in range(20): a(f"v_mul_f32_e64 {v(ACC+k)}, -{v(MU)}, {v(ACC+k)}")
        a(f"v_add_f32 {v(R)}, {f2u(1e-5):#x}, {v(var)}\nv_rsq_f32 {v(RS)}, {v(R)}")
        a(f"v_mul_f32 {v(R)}, {v(RS)}, {v(RS)}\nv_mul_f32 {v(R)}, {v(R)}, {v(var)}\nv_add_f32 {v(R)}, {f2u(1e-5):#x}, {v(R)}\nv_rsq_f32 {v(R)}, {v(R)}")
        a(f"v_mul_f32 {v(R)}, {v(R)}, {v(RS)}")
        gelu_consts(R)
        gemm640()
        for op in gelu_ops(ACC, 20, OP, TT + 12): a(op)
        self.stamp(3)
        self.handoff_store(OP, BUFA)
        Lsh = a.newlabel("Lsh"); Lshb = Lsh + "_b"
        a(f"s_bitcmp1_b32 {s(sJ)}, 1\ns_cselect_b32 {s(sB)}, 0, 3\ns_cmp_eq_u32 {s(sWave)}, {s(sB)}\ns_cbranch_scc1 {Lsh}")
        a("s_waitcnt vmcnt(0)")
        self.flag_store(F3)
        a.label(Lshb)
        self.stamp(3)
        t = self.t
        t.label(Lsh); t.reset_hist()
        t(f"s_bitcmp1_b32 {s(sJ)}, 1\ns_mov_b32 {s(sSh)}, 0xc000c000\ns_cselect_b32 {s(sSh)}, 0x00030003, {s(sSh)}\ns_mov_b32 {s(sSh+1)}, {s(sSh)}")
        t(f"s_add_u32 {s(sA)}, {s(sTJ)}, {SHAD}\ns_mov_b64 exec, {s(sSh,2)}")
        t(f"buffer_store_dwordx4 {v(OP,4)}, {v(vL16)}, {s(sWS,4)}, {s(sA)} offen sc1")
        t(f"buffer_store_dwordx4 {v(OP+4,4)}, {v(vL16)}, {s(sWS,4)}, {s(sA)} offen offset:1024 sc1")
        t(f"buffer_store_dwordx2 {v(OP+8,2)}, {v(vL8)}, {s(sWS,4)}, {s(sA)} offen offset:2048 sc1")
        t(f"s_lshl_b32 {s(sA)}, {s(sJ)}, 3\ns_add_u32 {s(sA)}, {s(sA)}, {s(sTile)}\ns_add_u32 {s(sA)}, {s(sA)}, {F3}\ns_mov_b64 exec, 1")
        t(f"s_waitcnt vmcnt(3)\ns_cmp_lg_u32 {s(sMode)}, 1\ns_cbranch_scc1 {Lsh}_s")
        t(f"buffer_store_dwordx2 {v(self.vTag,2)}, {v(self.vZero)}, {s(sWS,4)}, {s(sA)} offen\ns_branch {Lsh}_t")
        t.label(Lsh + "_s")
        t(f"buffer_store_dwordx2 {v(self.vTag,2)}, {v(self.vZero)}, {s(sWS,4)}, {s(sA)} offen sc1")
        t.label(Lsh + "_t")
        t(f"s_waitcnt vmcnt(1)\nbuffer_store_dwordx2 {v(self.vTag,2)}, {v(self.vZero)}, {s(sWS,4)}, {s(sA)} offen offset:{FH-F3} sc1")
        t(f"s_mov_b64 exec, -1\ns_branch {Lshb}")
        self.stamp()
        a.label("L_P4")
        self.ph = 4; self.stamp(4)
        self.stream_init(frags640(U_W2), SLOTS12, 4); self.prime()
        self.stamp(4)
        unpack_acc(HP)
        a(f"v_mul_f32_e64 {v(var)}, -{v(MU)}, {v(RS)}")
        for k in range(20): a(f"v_fma_f32 {v(ACC+k)}, {v(ACC+k)}, {v(RS)}, {v(var)}")
        sPv, sNx = sD, sE
        a(f"s_sub_u32 {s(sPv)}, {s(sTile)}, {TS}\ns_add_u32 {s(sA)}, {s(sPv)}, {SHAD}\ns_cmp_eq_u32 {s(sWave)}, 0\ns_cselect_b32 {s(sPv)}, {s(sA)}, {s(sPv)}")
        a(f"s_cmp_eq_u32 {s(sT)}, 0\ns_cselect_b32 {s(sPv)}, {OOB}, {s(sPv)}")
        a(f"s_add_u32 {s(sNx)}, {s(sTile)}, {TS}\ns_add_u32 {s(sA)}, {s(sNx)}, {SHAD}\ns_cmp_eq_u32 {s(sWave)}, 3\ns_cselect_b32 {s(sNx)}, {s(sA)}, {s(sNx)}")
        a(f"s_cmp_eq_u32 {s(sT)}, 127\ns_cselect_b32 {s(sNx)}, {OOB}, {s(sNx)}")
        v16 = [VFR + i for i in range(4)]; v8 = [VFR + 4 + i for i in range(4)]
        tb, tr_ = VFR + 8, VFR + 9
        for i in range(4):
            a(f"s_lshr_b32 {s(sA)}, {s(sRot+i)}, 1\ns_add_u32 {s(sA)}, {s(sA)}, 1\ns_sub_u32 {s(sB)}, 0, {s(sA)}\ns_bitcmp1_b32 {s(sRot+i)}, 0\ns_cselect_b32 {s(sA)}, {s(sA)}, {s(sB)}")
            a(f"s_cselect_b32 {s(sB)}, {s(sNx)}, {s(sPv)}")
            a(f"v_add_u32 {v(tr_)}, {s(sA)}, {v(vR)}\nv_cmp_lt_u32 vcc, 15, {v(tr_)}")
            a(f"v_mov_b32 {v(tb)}, {s(sTile)}\nv_mov_b32 {v(v8[i])}, {s(sB)}\nv_cndmask_b32 {v(tb)}, {v(tb)}, {v(v8[i])}, vcc")
            a(f"v_and_b32 {v(tr_)}, 15, {v(tr_)}\nv_lshl_add_u32 {v(tr_)}, {v(vG)}, 4, {v(tr_)}")
            a(f"v_lshl_add_u32 {v(v16[i])}, {v(tr_)}, 4, {v(tb)}\nv_lshl_add_u32 {v(v8[i])}, {v(tr_)}, 3, {v(tb)}\nv_add_u32 {v(v8[i])}, 2048, {v(v8[i])}")
        fa = VFR + 10
        a(f"s_sub_u32 {s(sA)}, {s(sTile)}, {TS}\ns_add_u32 {s(sB)}, {s(sA)}, {FH-F3}\ns_cmp_eq_u32 {s(sWave)}, 0\ns_cselect_b32 {s(sA)}, {s(sB)}, {s(sA)}")
        a(f"s_cmp_eq_u32 {s(sT)}, 0\ns_cselect_b32 {s(sA)}, {s(sTile)}, {s(sA)}")
        a(f"s_add_u32 {s(sCc)}, {s(sTile)}, {TS}\ns_add_u32 {s(sB)}, {s(sCc)}, {FH-F3}\ns_cmp_eq_u32 {s(sWave)}, 3\ns_cselect_b32 {s(sCc)}, {s(sB)}, {s(sCc)}")
        a(f"s_cmp_eq_u32 {s(sT)}, 127\ns_cselect_b32 {s(sCc)}, {s(sTile)}, {s(sCc)}")
        a(f"v_mov_b32 {v(tb)}, {s(sA)}\nv_mov_b32 {v(tr_)}, {s(sCc)}\nv_and_b32 {v(fa)}, 2, {v(vLane)}\nv_cmp_ne_u32 vcc, 0, {v(fa)}")
        a(f"v_cndmask_b32 {v(tb)}, {v(tb)}, {v(tr_)}, vcc\nv_mov_b32 {v(tr_)}, {s(sTile)}\nv_and_b32 {v(fa)}, 8, {v(vLane)}\nv_cmp_ne_u32 vcc, 0, {v(fa)}")
        a(f"v_cndmask_b32 {v(tb)}, {v(tr_)}, {v(tb)}, vcc\nv_and_b32 {v(fa)}, 7, {v(vLane)}\nv_lshl_add_u32 {v(fa)}, {v(fa)}, 3, {v(tb)}")
        a(f"s_mov_b32 {s(sB)}, {F3}")
        self.poll8(a, fa, s(sB), TT + 12)
        load_A(BUFA, v16, v8); gemm640()
        pack5(ACC, lambda t: X1P + 2 * t)
        self.handoff_store(X1P, BUFB)
        stats_store(X1P, S4)
        self.stamp()
        a.label("L_P5")
        fr5 = [(U_W3 + ch * 4 + st // 5, (st % 5) * 4096 + 1024 * tt, "pk") for ch in range(3) for st in range(20) for tt in range(4)]
        self.ph = 5; self.stamp(5)
        self.stream_init(fr5, SLOTS12, 4); self.prime()
        self.stamp(5)
        self.lds_spin(a, vZ, L_CSRDY - L_CNT, 2, vLC)
        for k in range(8): a(f"ds_read_b128 {v(ACC+4*k,4)}, {v(vCS)} offset:{L_CS3-L_CS1+64*k}", tag="cs")
        stats_poll(S4)
        load_A(BUFB)
        stats_finish(MU, var)
        a.wait(ds="cs")
        for k in range(32): a(f"v_mul_f32_e64 {v(ACC+k)}, -{v(MU)}, {v(ACC+k)}")
        a(f"v_add_f32 {v(R)}, {f2u(1e-5):#x}, {v(var)}\nv_rsq_f32 {v(R)}, {v(R)}")
        gelu_consts(R)
        GP = TT
        A6 = ACC + 16
        def g_store(ch):
            a(f"s_lshl_b32 {s(sA)}, {s(sJ)}, 11\ns_add_u32 {s(sA)}, {s(sA)}, {s(sTile)}\ns_add_u32 {s(sA)}, {s(sA)}, {GBUF[ch]}")
            self.moded([f"buffer_store_dwordx4 {v(GP,4)}, {v(vL16)}, {s(sWS,4)}, {s(sA)} offen",
                        f"buffer_store_dwordx4 {v(GP+4,4)}, {v(vL16)}, {s(sWS,4)}, {s(sA)} offen offset:1024"], tag=("gst", ch))
        def g_flag(ch):
            a.wait(vm=("gst", ch))
            self.flag_store(G0 + 128 * ch)
        PL = TT + 16
        def g_poll_issue(ch):
            a(f"s_mov_b32 {s(sB)}, {G0 + 128*ch}\nbuffer_load_dwordx2 {v(PL,2)}, {v(vF8)}, {s(sWS,4)}, {s(sB)} offen sc1", tag=("gp", ch))
        def g_poll_check(ch):
            L = a.newlabel("Lg"); Lok = L + "_ok"
            a.wait(vm=("gp", ch))
            a(f"v_cmp_ne_u64 vcc, {s(sTag,2)}, {v(PL,2)}\ns_cbranch_vccnz {L}")
            a.label(Lok)
            t = self.t
            t.label(L); t.reset_hist()
            t(f"s_mov_b32 {s(sB)}, {G0 + 128*ch}\nbuffer_load_dwordx2 {v(PL,2)}, {v(vF8)}, {s(sWS,4)}, {s(sB)} offen sc1")
            t(f"s_waitcnt vmcnt(0)\nv_cmp_ne_u64 vcc, {s(sTag,2)}, {v(PL,2)}\ns_cbranch_vccz {Lok}")
            self.spin_tail(t, L, Lok)
        sG = sD
        def loadG(st):
            if st % 4 == 0:
                ch, ui = st // 16, (st % 16) // 4
                a(f"s_lshl_b32 {s(sG)}, {s(sRot+ui)}, 12\ns_add_u32 {s(sG)}, {s(sG)}, {GBUF[ch]}")
            a(f"buffer_load_dwordx4 {v(AF+4*(st%20),4)}, {v(vA16)}, {s(sWS,4)}, {s(sG)} offen offset:{(st%4)*1024} sc1", tag=("G", st))
        for ch in range(3):
            acc = ACC + 16 * (ch & 1)
            self.stamp(5)
            side = gelu_ops(ACC + 16 * ((ch - 1) & 1), 16, GP, TT + 12, pk=False) if ch > 0 else []
            si = 0
            for st in range(20):
                if ch == 0: a.wait(vm=("A", st))
                for tt in range(4):
                    self.mfma_w(ch * 80 + st * 4 + tt, acc + 4 * tt, AF + 4 * st)
                    n = st * 4 + tt
                    if n >= 3:
                        while si < len(side) and si < (n - 2) * len(side) // 62:
                            a(side[si]); si += 1
                if ch > 0 and st == 16:
                    assert si == len(side)
                    if ch == 2: g_poll_check(0)
                    g_store(ch - 1)
                    if ch == 1:
                        for k in range(4): a(f"ds_read_b128 {v(ACC+4*k,4)}, {v(vCS)} offset:{L_CS3-L_CS1+64*(8+k)}", tag="cs")
                if ch == 1 and st == 18:
                    a.wait(ds="cs")
                    for k in range(16): a(f"v_mul_f32_e64 {v(ACC+k)}, -{v(MU)}, {v(ACC+k)}")
                if ch == 2 and st == 2: g_flag(0)
                if ch == 2 and st == 12: g_poll_issue(0)
        self.stamp(5)
        for st in range(16): loadG(st)
        g_flag(1)
        for op in gelu_ops(ACC, 16, GP, TT + 12): a(op)
        g_store(2)
        g_poll_issue(1)
        self.stamp(5)
        self.stamp()
        a.label("L_P6")
        fr6 = [(U_W4 + st // 4, (st % 4) * 5120 + 1024 * t, "pk") for st in range(48) for t in range(5)]
        self.stamp(6)
        self.stream_init(fr6, SLOTS12, 4); self.prime()
        self.stamp(6)
        unpack_acc(HP)
        for t in range(5):
            for k in range(2):
                a(f"v_lshlrev_b32 {v(TT+12)}, 16, {v(X1P+2*t+k)}\nv_and_b32 {v(TT+13)}, 0xffff0000, {v(X1P+2*t+k)}")
                a(f"v_pk_add_f32 {v(ACC+4*t+2*k,2)}, {v(ACC+4*t+2*k,2)}, {v(TT+12,2)}")
        self.stamp(6)
        nxt = 16
        for st in range(48):
            a.wait(vm=("G", st))
            if st in (0, 12, 24, 36, 47): self.stamp(6)
            for t in range(5): self.mfma_w(st * 5 + t, ACC + 4 * t, AF + 4 * (st % 20))
            if st == 1:
                g_flag(2); g_poll_check(1)
            if st == 8: g_poll_issue(2)
            if st == 12: g_poll_check(2)
            if st >= 1:
                while nxt < 48 and nxt <= st + 20 and nxt < 16 + 3 * st + 3:
                    loadG(nxt); nxt += 1
        self.stamp(6)
        pack5(ACC, lambda t: OP + 2 * t)
        sg, sr, so = VFR + 1, VFR + 2, VFR + 3
        a(f"s_mul_i32 {s(sB)}, {s(sWave)}, 2560\ns_add_u32 {s(sB)}, {s(sB)}, {STAGE}")
        a(f"v_mul_u32_u24 {v(sg)}, 160, {v(vR)}\nv_lshl_add_u32 {v(sg)}, {v(vG)}, 3, {v(sg)}\nv_add_u32 {v(sg)}, {s(sB)}, {v(sg)}\nv_add_u32 {v(sr)}, {s(sB)}, {v(vL16)}")
        for t in range(5): a(f"ds_write_b64 {v(sg)}, {v(OP+2*t,2)} offset:{32*t}")
        for k in range(3): a(f"ds_read_b128 {v(AF+4*k,4)}, {v(sr)} offset:{1024*k}", tag=("o", k))
        self.srd(a, sOUT, 20, 2048 * 1280)
        a(f"s_mul_i32 {s(sA)}, {s(sT)}, {16*1280}\ns_mul_i32 {s(sB)}, {s(sJ)}, 160\ns_add_u32 {s(sA)}, {s(sA)}, {s(sB)}")
        for k in range(3):
            a(f"v_add_u32 {v(so)}, {64*k}, {v(vLane)}\nv_mul_u32_u24 {v(so+1)}, 6554, {v(so)}\nv_lshrrev_b32 {v(so+1)}, 16, {v(so+1)}")
            a(f"v_mul_u32_u24 {v(so+1)}, 1120, {v(so+1)}\nv_lshl_add_u32 {v(so+2+k)}, {v(so)}, 4, {v(so+1)}")
        for k in range(3):
            a.wait(ds=("o", k))
            if k == 2: a("s_mov_b32 exec_hi, 0")
            a(f"buffer_store_dwordx4 {v(AF+4*k,4)}, {v(so+2+k)}, {s(sOUT,4)}, {s(sA)} offen{('', ' sc1', ' nt', ' sc0 sc1')[self.opt.get('osc', 0)]}")
        a("s_mov_b64 exec, -1")
        self.stamp()
        self.finish(a)

    def finish(self, a):
        if self.stamps and self.opt.get("enc"):
            L = a.newlabel("Len"); k = self.opt["enc"]
            a("s_waitcnt vmcnt(0) lgkmcnt(0)")
            a(f"{self.clk} {s(sSt+22,2)}\ns_waitcnt lgkmcnt(0)\ns_cmp_lg_u32 {s(sWave)}, 1\ns_cbranch_scc1 {L}_e\ns_cmp_lg_u32 s2, {self.opt.get('encb', 77)}\ns_cbranch_scc1 {L}_e")
            a(f"s_sub_u32 {s(sA)}, {s(sSt+2*k)}, {s(sSt)}\ns_lshl_b32 {s(sA)}, {s(sA)}, 1\ns_min_u32 {s(sA)}, {s(sA)}, 20000")
            a.label(L)
            a(f"{self.clk} s[4:5]\ns_waitcnt lgkmcnt(0)\ns_sub_u32 s4, s4, {s(sSt+22)}\ns_cmp_lt_u32 s4, {s(sA)}\ns_cbranch_scc1 {L}")
            a.label(L + "_e")
        elif self.stamps and self.opt.get("dbg"):
            L = a.newlabel("Ldb")
            a("s_waitcnt vmcnt(0) lgkmcnt(0)")
            a(f"{self.clk} {s(sSt+22,2)}\ns_load_dwordx2 s[4:5], s[0:1], 72\ns_waitcnt lgkmcnt(0)\ns_cmp_lg_u32 {s(sWave)}, {self.opt['dbg']-1}\ns_cbranch_scc1 {L}")
            a("v_mov_b32 v0, 0\ns_mov_b64 exec, 1")
            for k in range(12):
                a(f"v_mov_b32 v12, {s(sSt+2*k)}\nglobal_atomic_umax v0, v12, s[4:5] offset:{4*k}")
            a(f"s_not_b32 {s(sA)}, {s(sSt)}\nv_mov_b32 v12, {s(sA)}\nglobal_atomic_umax v0, v12, s[4:5] offset:60")
            a.label(L)
        elif self.stamps:
            a("s_waitcnt vmcnt(0) lgkmcnt(0)")
            a(f"{self.clk} {s(sSt+22,2)}\ns_waitcnt lgkmcnt(0)")
            a(f"s_lshl_b32 {s(sA)}, s2, 3\ns_add_u32 {s(sA)}, {s(sA)}, {s(sWave)}\ns_lshl_b32 {s(sA)}, {s(sA)}, 7\ns_add_u32 {s(sA)}, {s(sA)}, {WS_STAMP}")
            a("v_mov_b32 v0, 0\ns_mov_b64 exec, 1")
            for k in range(12):
                a(f"v_mov_b32 v12, {s(sSt+2*k)}\nv_mov_b32 v13, {s(sBud)}")
                a(f"buffer_store_dwordx2 v[12:13], v0, {s(sWS,4)}, {s(sA)} offen offset:{8*k}")
        a("s_endpgm")

    def pf_wait(self, a, base, n2, tmp):
        per = {20: 20, 30: 60, 48: 48}[n2]
        if n2 == 30: a(f"s_mul_i32 {s(sA)}, {s(sJ)}, {60*8}")
        else: a(f"s_mul_i32 {s(sA)}, {s(sJ)}, 5\ns_lshr_b32 {s(sA)}, {s(sA)}, 2\ns_mul_i32 {s(sA)}, {s(sA)}, {per*8}")
        a(f"s_add_u32 {s(sA)}, {s(sA)}, {WS_PF + base*8}")
        a(f"v_min_u32 {v(tmp)}, {n2-1}, {v(vLane)}\nv_lshlrev_b32 {v(tmp)}, 4, {v(tmp)}")
        L = a.newlabel("Lpf"); Lok = L + "_ok"
        a.label(L)
        a(f"buffer_load_dwordx4 {v(tmp+4,4)}, {v(tmp)}, {s(sWS,4)}, {s(sA)} offen sc1")
        a(f"s_waitcnt vmcnt(0)\nv_cmp_ne_u64 vcc, {s(sTag,2)}, {v(tmp+4,2)}\nv_cmp_ne_u64 {s(sMk,2)}, {s(sTag,2)}, {v(tmp+6,2)}")
        a(f"s_or_b64 vcc, vcc, {s(sMk,2)}\ns_cbranch_scc0 {Lok}\ns_sleep 8")
        self.spin_tail(a, L, Lok)
        a.label(Lok)

    def helper_start(self):
        a = self.a; c = self.PC
        a(f"s_lshl_b32 {s(sA)}, 1, {s(sWave)}\ns_and_b32 {s(sA)}, {s(sA)}, 0xb0\ns_cbranch_scc0 L_compute")
        a(f"s_setprio 3\ns_min_u32 {s(sA)}, {s(sWave)}, 6\ns_sub_u32 {s(sA)}, {s(sA)}, 4\ns_lshl_b32 s70, {s(sA)}, 11\ns_add_u32 s70, s70, {L_PSCR}")
        a(f"s_lshl_b32 s63, {s(sA)}, 8\ns_add_u32 s63, s63, s2\nv_mov_b32 {v(c+7)}, 0")
        self.pk_A(a, 0, 64, pre_wait=True)
        self.srd(a, sWS, 24, WS_SIZE)
        a(f"s_cmp_eq_u32 {s(sWave)}, 7\ns_cbranch_scc1 L_service\ns_branch L_loader")
        a.label("L_compute"); a.reset_hist(); a.reset_cnt()

    def loader(self):
        a = self.a
        a.label("L_loader"); a.reset_hist(); a.reset_cnt(); self.nst = 1; self.inhelper = True; a.vm = [("raw", 0)] * 4
        sL = sMode
        a(f"s_and_b32 {s(sL)}, {s(sWave)}, 1")
        self.srd(a, sIN, 20, 2048 * 1280)
        a(f"v_and_b32 v13, 15, {v(vLane)}\nv_lshlrev_b32 v46, 19, v13\nv_lshlrev_b32 v47, 20, v13\ns_mov_b64 exec, 0x3ff")
        a(f"buffer_load_dword v49, v47, {s(sWS,4)}, 0 offen offset:128 sc1\nbuffer_load_dword v50, v46, {s(sIN,4)}, 0 offen\ns_mov_b64 exec, -1")
        a(f"v_and_b32 v12, 3, {v(vLane)}\nv_mul_u32_u24 v12, 260, v12\nv_add_u32 v12, {L_CW}, v12")
        a(f"s_lshl_b32 {s(sA)}, {s(sL)}, 8\ns_add_u32 {s(sA)}, {s(sA)}, {L_LW}\nv_lshl_add_u32 v11, {v(vLane)}, 2, {s(sA)}")
        self.pack_seq(a)
        for k in (1, 2): self.pk_B(a, k, 64 + 16 * k, 192 + 16 * (k & 1), 224)
        self.stamp()
        pend = []
        MAXF = self.opt.get("maxf", 24)
        def publish_upto(u, A=None):
            (A or a)(f"v_mov_b32 v13, {u+1}\nds_max_u32 v11, v13")
        def throttle():
            if len(a.vm) > MAXF: a(f"s_waitcnt vmcnt({MAXF})")
            while pend and ("u", pend[0]) not in a.vm:
                publish_upto(pend.pop(0))
        def guarded_wait(addr, off, need, sleep, pre=False):
            L = a.newlabel("Lf"); Lok = L + "_ok"
            if pre: a(f"s_waitcnt lgkmcnt(0)\nv_cmp_gt_u32 vcc, {need}, v14\ns_cbranch_vccnz {L}")
            else: a(f"s_branch {L}")
            a.label(Lok)
            t = self.t
            t.label(L); t.reset_hist(); t.vm = list(a.vm)
            self.a = t
            t(f"ds_read_b32 v13, {v(addr)} offset:{off}\ns_waitcnt lgkmcnt(0)\nv_cmp_gt_u32 vcc, {need}, v13\ns_cbranch_vccz {Lok}")
            for pi_, pu in enumerate(pend):
                t.wait(vm=("u", pu)); publish_upto(pu, t)
                if pi_ < len(pend) - 1:
                    t(f"ds_read_b32 v13, {v(addr)} offset:{off}\ns_waitcnt lgkmcnt(0)\nv_cmp_gt_u32 vcc, {need}, v13\ns_cbranch_vccz {Lok}")
            self.lds_spin(t, addr, off, need, 13, sleep=sleep)
            t(f"s_branch {Lok}")
            self.a = a
        sJ1, sJ2, sH1, sH2 = 64, 65, 66, 67
        sR5, sR4a, sR4b = 8, 13, 68
        have = 0; pre = False
        todo = [u for u in range(U_RAW, len(UNITS)) if UNITS[u][1] != "pseudo"]
        def need_of(u):
            nd = UNEED[u]
            if nd in (U_W1, U_W2) and not self.opt.get("nodefer"): nd += 1
            while nd and nd not in PUBS: nd += 1
            assert nd <= u, (u, nd)
            return nd
        def consts():
            a(f"s_mul_i32 {s(sH1)}, {s(sL)}, 12288\ns_mul_i32 {s(sH2)}, {s(sL)}, 10240\ns_mul_i32 {s(sJ1)}, {s(sJ)}, 102400\ns_mul_i32 {s(sJ2)}, {s(sJ)}, 245760")
            for i in range(5):
                a(f"s_add_u32 {s(sB)}, {s(sQ)}, {i}\ns_sub_u32 {s(sA)}, {s(sB)}, 5\ns_cmp_ge_u32 {s(sB)}, 5\ns_cselect_b32 {s(sB)}, {s(sA)}, {s(sB)}\ns_mul_i32 {s(sB)}, {s(sB)}, 20480")
                a(f"s_add_u32 {s(sB)}, {s(sB)}, {s(sJ1)}\ns_add_u32 {s(sR5+i)}, {s(sB)}, {s(sH2)}")
            for i in range(4):
                a(f"s_mul_i32 {s(sB)}, {s(sRot+i)}, 25600\ns_add_u32 {s(sB)}, {s(sB)}, {s(sJ1)}\ns_add_u32 {s(sR4a+i)}, {s(sB)}, {s(sH1)}")
                a(f"s_mul_i32 {s(sB)}, {s(sRot+i)}, 20480\ns_add_u32 {s(sB)}, {s(sB)}, {s(sJ2)}\ns_add_u32 {s(sR4b+i)}, {s(sB)}, {s(sH2)}")
        consts()
        a("s_getpc_b64 s[18:19]")
        a.label("L_pc2")
        a(f"s_add_u32 s18, s18, L_table-L_pc2\ns_addc_u32 s19, s19, 0\ns_lshl_b32 s17, {s(sL)}, 8\ns_add_u32 s17, s17, {L_LW}\nv_mov_b32 v15, 0")
        a(f"s_setprio {self.opt.get('lprio', 3)}")
        for ti, u in enumerate(todo):
            size, kind, (wid, ch, i) = UNITS[u]
            if self.opt.get("fake") and u >= U_W1:
                a("s_waitcnt vmcnt(0)"); publish_upto(100); del pend[:]; break
            nd = need_of(u)
            if nd > have:
                have = nd; guarded_wait(12, 0, nd, self.opt.get('lsleep', 2), pre)
            if u == U_W1: MAXF = self.opt.get("maxf2", 8)
            if u == U_W3 + 7: MAXF = self.opt.get("maxf3", 24)
            if ch == 0 and i == 0 and wid in (0, 3):
                guarded_wait(vZ, L_PKR - L_CNT, wid + 1, 1)
            if ch == 0 and i == 0 and wid in (0, 3, 4, 5, 6, 7): self.stamp()
            n = 13 if size == 25600 else 10
            sH = sH1 if size == 25600 else sH2
            sR = (sR5 if wid < 3 else sR4a if wid < 6 else sR4b) + i
            pre = ti + 1 < len(todo) and need_of(todo[ti + 1]) > have
            for k in range(n):
                if k % 4 == 0:
                    a(f"s_add_u32 m0, {s(sH)}, {UADDR[u] + k*1024}\ns_add_u32 {s(sA)}, {s(sR)}, {WS_WP + WP_OFF[wid] + ch*81920 + k*1024}")
                a(f"buffer_load_dwordx4 {v(vL16)}, {s(sWS,4)}, {s(sA)} offen offset:{1024*(k%4)}{'' if self.opt.get('nosc') else ' sc1'} lds", tag=("u", u))
                if k == n - 5 and pre: a("ds_read_b32 v14, v12")
                if k == n - 1:
                    if self.opt.get("dsl"): pend.append(u)
                    else: a(f"s_sub_u32 m0, s17, {4*(u+1)}\nglobal_load_lds_dword v15, s[18:19] offset:{4*(u+1)}")
                if k == n - 1 or (MAXF < n and k % 4 == 3): throttle()
            if u == U_RAW + 2: self.pk_C(a, [1, 2])
        for pu in pend:
            a.wait(vm=("u", pu)); publish_upto(pu)
        self.finish(a)

    PC = 28
    PR, PFR, PCS = 144, 192, 208
    def pk_decode(self, a, k):
        sU, sS, sCl, sWid = 64, 65, 66, 71
        Ld = a.newlabel("Lpd")
        a(f"s_add_u32 {s(sU)}, s63, {768*k}")
        a(f"s_cmp_ge_u32 {s(sU)}, 1680\ns_cbranch_scc1 {Ld}_4")
        a(f"s_mul_hi_u32 {s(sCl)}, {s(sU)}, {(1<<32)//20+1}\ns_mul_i32 {s(sA)}, {s(sCl)}, 20\ns_sub_u32 {s(sS)}, {s(sU)}, {s(sA)}")
        a(f"s_mul_hi_u32 {s(sWid)}, {s(sCl)}, {(1<<32)//10+1}\ns_min_u32 {s(sWid)}, {s(sWid)}, 6\ns_mul_i32 {s(sA)}, {s(sWid)}, 10\ns_sub_u32 {s(sCl)}, {s(sCl)}, {s(sA)}\ns_branch {Ld}")
        a.label(Ld + "_4")
        a(f"s_sub_u32 {s(sA)}, {s(sU)}, 1680\ns_mul_hi_u32 {s(sCl)}, {s(sA)}, {(1<<32)//48+1}\ns_mul_i32 {s(sB)}, {s(sCl)}, 48\ns_sub_u32 {s(sS)}, {s(sA)}, {s(sB)}\ns_mov_b32 {s(sWid)}, 7")
        a.label(Ld)
    def pk_A(self, a, k, R, pre_wait=False):
        sU, sS, sCl, sB0, sB1, sRs, sWid = 64, 65, 66, 67, 68, 69, 71
        c = self.PC; sR = sOUT
        NT = '' if self.opt.get('nont') else ' nt'
        self.pk_decode(a, k)
        L = a.newlabel("Lpa")
        a(f"s_lshl_b32 {s(sCc)}, {s(sCl)}, 7\nv_lshrrev_b32 {v(c)}, 3, {v(vLane)}\nv_and_b32 {v(c+1)}, 7, {v(vLane)}")
        a(f"s_cmp_lt_u32 {s(sWid)}, 3\ns_cbranch_scc1 {L}_q\ns_cmp_eq_u32 {s(sWid)}, 7\ns_cbranch_scc1 {L}_4")
        a(f"s_mul_hi_u32 {s(sA)}, {s(sS)}, {(1<<32)//5+1}\ns_mul_i32 {s(sB)}, {s(sA)}, 5\ns_sub_u32 {s(sB)}, {s(sS)}, {s(sB)}\ns_mul_i32 {s(sA)}, {s(sA)}, 160")
        a(f"s_lshr_b32 {s(sD)}, {s(sB)}, 1\ns_mul_i32 {s(sD)}, {s(sD)}, 80\ns_and_b32 {s(sB1)}, {s(sB)}, 1\ns_lshl_b32 {s(sB1)}, {s(sB1)}, 5\ns_add_u32 {s(sD)}, {s(sD)}, {s(sB1)}")
        a(f"s_cmp_eq_u32 {s(sB)}, 4\ns_cselect_b32 {s(sD)}, 64, {s(sD)}\ns_cselect_b32 {s(sB1)}, 80, 16\ns_add_u32 {s(sB0)}, {s(sA)}, {s(sD)}\ns_add_u32 {s(sB1)}, {s(sB0)}, {s(sB1)}")
        a(f"s_cmp_eq_u32 {s(sWid)}, 6\ns_movk_i32 {s(sRs)}, 1280\ns_cselect_b32 {s(sRs)}, 3072, {s(sRs)}\ns_lshl_b32 {s(sD)}, {s(sRs)}, 3\ns_branch {L}")
        a.label(L + "_4")
        a(f"s_lshr_b32 {s(sA)}, {s(sS)}, 4\ns_lshl_b32 {s(sB0)}, {s(sA)}, 6\ns_bfe_u32 {s(sA)}, {s(sS)}, 0x30001\ns_mul_i32 {s(sA)}, {s(sA)}, 192\ns_add_u32 {s(sB0)}, {s(sB0)}, {s(sA)}")
        a(f"s_and_b32 {s(sA)}, {s(sS)}, 1\ns_lshl_b32 {s(sA)}, {s(sA)}, 5\ns_add_u32 {s(sB0)}, {s(sB0)}, {s(sA)}\ns_add_u32 {s(sB1)}, {s(sB0)}, 16")
        a(f"s_movk_i32 {s(sRs)}, 1280\ns_movk_i32 {s(sD)}, {8*1280}\ns_branch {L}")
        a.label(L + "_q")
        a(f"s_lshl_b32 {s(sB0)}, {s(sS)}, 5\ns_add_u32 {s(sB1)}, {s(sB0)}, 4\ns_movk_i32 {s(sRs)}, 3840\ns_mov_b32 {s(sD)}, {16*3840}")
        a(f"s_add_u32 {s(sA)}, {s(sWid)}, 1\ns_cmp_eq_u32 {s(sA)}, 3\ns_cselect_b32 {s(sA)}, 0, {s(sA)}\ns_mul_i32 {s(sA)}, {s(sA)}, 1280\ns_add_u32 {s(sCc)}, {s(sCc)}, {s(sA)}")
        a(f"v_and_b32 {v(c+2)}, 4, {v(c)}\nv_add_u32 {v(c)}, {v(c)}, {v(c+2)}")
        a.label(L)
        a(f"v_mul_lo_u32 {v(c+8)}, {s(sRs)}, {v(c)}\nv_lshl_add_u32 {v(c+8)}, {v(c+1)}, 4, {v(c+8)}\nv_add_u32 {v(c+9)}, {s(sD)}, {v(c+8)}")
        a(f"s_mul_i32 {s(sB0)}, {s(sB0)}, {s(sRs)}\ns_add_u32 {s(sB0)}, {s(sB0)}, {s(sCc)}\ns_mul_i32 {s(sB1)}, {s(sB1)}, {s(sRs)}\ns_add_u32 {s(sB1)}, {s(sB1)}, {s(sCc)}")
        a(f"s_cmp_ge_u32 {s(sU)}, 2160\ns_cselect_b32 {s(sB0)}, {OOB}, {s(sB0)}\ns_cselect_b32 {s(sB1)}, {OOB}, {s(sB1)}")
        if pre_wait: a("s_waitcnt lgkmcnt(0)")
        a(f"s_mov_b32 {s(sR)}, s6\ns_mov_b32 {s(sR+1)}, s7\ns_mov_b32 {s(sR+2)}, 819200\ns_mov_b32 {s(sR+3)}, 0x20000")
        for wid, lo in ((3, 8), (4, 12), (5, 14), (6, 16), (7, 18)):
            a(f"s_cmp_eq_u32 {s(sWid)}, {wid}\ns_cselect_b64 {s(sR,2)}, s[{lo}:{lo+1}], {s(sR,2)}")
        a(f"s_cmp_ge_u32 {s(sWid)}, 6\ns_cselect_b32 {s(sR+2)}, 1966080, {s(sR+2)}\ns_cmp_lt_u32 {s(sWid)}, 3\ns_cselect_b32 {s(sR+2)}, 2457600, {s(sR+2)}")
        a(f"buffer_load_dwordx4 {v(R,4)}, {v(c+8)}, {s(sR,4)}, {s(sB0)} offen{NT}\nbuffer_load_dwordx4 {v(R+4,4)}, {v(c+9)}, {s(sR,4)}, {s(sB0)} offen{NT}")
        a(f"buffer_load_dwordx4 {v(R+8,4)}, {v(c+8)}, {s(sR,4)}, {s(sB1)} offen{NT}")
        a(f"buffer_load_dwordx4 {v(R+12,4)}, {v(c+9)}, {s(sR,4)}, {s(sB1)} offen{NT}", tag=("raw", k))
    def pk_B(self, a, k_, R, FR, CS):
        sU, sS, sCl, sDst, sScr, sWid = 64, 65, 66, 69, 70, 71
        c = self.PC
        self.pk_decode(a, k_)
        if k_ == 0:
            a(f"v_add_u32 {v(c+4)}, {s(sScr)}, {v(vL16)}")
            a(f"v_lshrrev_b32 {v(c+5)}, 2, {v(vLane)}\nv_lshlrev_b32 {v(c+5)}, 7, {v(c+5)}\nv_and_b32 {v(c+3)}, 3, {v(vLane)}\nv_lshl_add_u32 {v(c+5)}, {v(c+3)}, 3, {v(c+5)}\nv_add_u32 {v(c+5)}, {s(sScr)}, {v(c+5)}")
            a(f"v_lshlrev_b32 {v(c+6)}, 2, {v(vLane)}")
        D = [67, 68, 74, 75]
        L3 = a.newlabel("Ld3"); Lc = L3 + "_c"
        a(f"s_cmp_eq_u32 {s(sWid)}, 6\ns_cbranch_scc1 {L3}")
        a(f"s_mul_i32 {s(sDst)}, {s(sWid)}, 819200\ns_cmp_eq_u32 {s(sWid)}, 7\ns_cselect_b32 {s(sDst)}, {WP_OFF[7]}, {s(sDst)}\ns_mov_b32 {s(sD)}, 102400\ns_cselect_b32 {s(sD)}, 245760, {s(sD)}")
        a(f"s_mul_i32 {s(sA)}, {s(sS)}, 5120\ns_add_u32 {s(sDst)}, {s(sDst)}, {s(sA)}\ns_add_u32 {s(sDst)}, {s(sDst)}, {WS_WP}")
        a(f"s_cmp_ge_u32 {s(sU)}, 2160\ns_cselect_b32 {s(sDst)}, {OOB}, {s(sDst)}")
        for tt in range(4):
            a(f"s_lshl_b32 {s(sA)}, {s(sCl)}, 2\ns_add_u32 {s(sA)}, {s(sA)}, {tt}\ns_mul_hi_u32 {s(sB)}, {s(sA)}, {(1<<32)//5+1}\ns_mul_i32 {s(sCc)}, {s(sB)}, 5\ns_sub_u32 {s(sA)}, {s(sA)}, {s(sCc)}")
            a(f"s_lshl_b32 {s(sA)}, {s(sA)}, 10\ns_mul_i32 {s(sB)}, {s(sB)}, {s(sD)}\ns_add_u32 {s(sA)}, {s(sA)}, {s(sB)}\ns_add_u32 {s(D[tt])}, {s(sA)}, {s(sDst)}")
        a(f"s_mul_i32 {s(sA)}, {s(sS)}, 2560\ns_add_u32 {s(sA)}, {s(sA)}, {WS_CS1}\ns_cmp_eq_u32 {s(sWid)}, 4\ns_cselect_b32 {s(sA)}, {s(sA)}, {OOB}\ns_branch {Lc}")
        a.label(L3)
        a(f"s_mul_i32 {s(sA)}, {s(sCl)}, 81920\ns_lshl_b32 {s(sB)}, {s(sS)}, 12\ns_add_u32 {s(sA)}, {s(sA)}, {s(sB)}")
        for tt in range(4): a(f"s_add_u32 {s(D[tt])}, {s(sA)}, {WS_WP + WP_OFF[6] + 1024*tt}")
        a(f"s_mul_i32 {s(sA)}, {s(sS)}, 6144\ns_add_u32 {s(sA)}, {s(sA)}, {WS_CS3}")
        a.label(Lc)
        a(f"s_lshl_b32 {s(sB)}, {s(sCl)}, 8\ns_add_u32 {s(sA)}, {s(sA)}, {s(sB)}")
        a.wait(vm=("raw", k_))
        for hb in range(2):
            for k in range(2): a(f"ds_write_b128 {v(c+4)}, {v(R+8*hb+4*k,4)} offset:{1024*k}")
            for tt in range(4): a(f"ds_read_b64_tr_b16 {v(FR+4*tt+2*hb,2)}, {v(c+5)} offset:{32*tt}")
        a("s_waitcnt lgkmcnt(0)")
        for tt in range(4):
            a(f"buffer_store_dwordx4 {v(FR+4*tt,4)}, {v(vL16)}, {s(sWS,4)}, {s(D[tt])} offen sc1", tag=("pst", k_))
        if k_ > 0:
            for tt in range(4): a(f"v_mov_b32 {v(CS+tt)}, 0")
            for k in range(4):
                for tt in range(4): a(f"v_dot2c_f32_bf16 {v(CS+tt)}, {s(sOnes)}, {v(FR+4*tt+k)}")
            self.rscatter4(a, [CS, CS + 1, CS + 2, CS + 3], "v_add_f32")
            a(f"buffer_store_dword {v(CS)}, {v(c+6)}, {s(sWS,4)}, {s(sA)} offen sc1", tag=("pst", k_))
    def pk_C(self, a, ks):
        c = self.PC
        a(f"s_lshl_b32 {s(sA)}, s63, 5\ns_add_u32 {s(sA)}, {s(sA)}, {WS_PF + 24576*ks[0]}")
        a.wait(vm=("pst", ks[-1]))
        a("s_mov_b64 exec, 1")
        for k in ks:
            a(f"buffer_store_dwordx2 {v(c+10,2)}, {v(c+7)}, {s(sWS,4)}, {s(sA)} offen sc1")
            if k != ks[-1]: a(f"s_add_u32 {s(sA)}, {s(sA)}, 24576")
        a("s_mov_b64 exec, -1")
    def pack_seq(self, a, mid=None):
        c = self.PC
        self.pk_B(a, 0, 64, 192, 224)
        self.stamp()
        if mid: mid()
        else:
            self.get_tag(a, c + 10); a(f"v_mov_b32 {v(c+11)}, {s(sTag+1)}")
        self.pk_C(a, [0])
        a(f"v_mov_b32 v13, 1\ns_mov_b64 exec, 1\nds_add_u32 {v(vZ)}, v13 offset:{L_C0-L_CNT}\ns_mov_b64 exec, -1")
        self.stamp()
        if not self.opt.get("noxi"): self.lds_spin(a, vZ, L_XI - L_CNT, 4, 13, sleep=1)
        for k in (1, 2): self.pk_A(a, k, 64 + 16 * k)
    def touch_addr(self, a, d):
        a(f"s_lshl_b32 s74, {s(sC)}, 2\ns_mul_i32 s74, s74, {TS}\ns_add_u32 s74, s74, {WS_TILE}")
        a(f"v_lshrrev_b32 {v(d+2)}, 4, {v(vLane)}\ns_mov_b32 {s(sB)}, {TS}\nv_mul_lo_u32 {v(d+2)}, {s(sB)}, {v(d+2)}\nv_and_b32 {v(d)}, 15, {v(vLane)}\nv_lshl_add_u32 {v(d)}, {v(d)}, 7, {v(d+2)}")
        a(f"v_and_b32 {v(d+1)}, 3, {v(vLane)}\nv_lshl_add_u32 {v(d+1)}, {v(d+1)}, 7, {v(d+2)}")

    def sweep(self, h, name, loads, val, sleep):
        h.label(name); h.reset_hist()
        for k, ld in enumerate(loads): h(f"buffer_load_dwordx2 {v(128+2*k,2)}, {ld} sc1")
        h(f"s_waitcnt vmcnt(0)\nv_cmp_ne_u64 vcc, {s(sTag,2)}, {v(128,2)}")
        for k in range(1, len(loads)): h(f"v_cmp_ne_u64 {s(sMk,2)}, {s(sTag,2)}, {v(128+2*k,2)}\ns_or_b64 vcc, vcc, {s(sMk,2)}")
        h(f"s_cbranch_vccz {name}_ok\ns_sleep {sleep}")
        self.spin_tail(h, name, name + "_ok")
        h.label(name + "_ok"); h.reset_hist()
        h(f"v_mov_b32 v56, {val}\ns_mov_b64 exec, 1\nds_write_b32 {v(vZ)}, v56 offset:{L_PKR-L_CNT}\ns_mov_b64 exec, -1")

    def prestore(self, h):
        h("v_mov_b32 v232, 0\nv_mov_b32 v233, 0\nv_mov_b32 v234, 0\nv_mov_b32 v235, 0")
        for w in range(4):
            h(f"s_mul_i32 {s(sA)}, {s(sJ)}, 2560\ns_add_u32 {s(sA)}, {s(sA)}, {s(sTile)}\ns_add_u32 {s(sA)}, {s(sA)}, {w*TS}")
            for buf in (BUFA, BUFB):
                h(f"s_add_u32 {s(sB)}, {s(sA)}, {buf}")
                h(f"buffer_store_dwordx4 v[232:235], {v(vL16)}, {s(sWS,4)}, {s(sB)} offen sc1\nbuffer_store_dwordx4 v[232:235], {v(vL16)}, {s(sWS,4)}, {s(sB)} offen offset:1024 sc1")
                h(f"buffer_store_dwordx2 v[232:233], {v(vL8)}, {s(sWS,4)}, {s(sB)} offen offset:2048 sc1")
            h(f"s_lshl_b32 {s(sA)}, {s(sJ)}, 11\ns_add_u32 {s(sA)}, {s(sA)}, {s(sTile)}\ns_add_u32 {s(sA)}, {s(sA)}, {w*TS + BUFG}")
            for ch in range(1):
                h(f"buffer_store_dwordx4 v[232:235], {v(vL16)}, {s(sWS,4)}, {s(sA)} offen sc1\nbuffer_store_dwordx4 v[232:235], {v(vL16)}, {s(sWS,4)}, {s(sA)} offen offset:1024 sc1\ns_add_u32 {s(sA)}, {s(sA)}, 16384")

    def relay(self):
        h = self.h
        h.label("L_relay"); h.reset_hist(); h.reset_cnt()
        self.a, sa = h, self.a; self.nst = 1; self.inhelper = True
        h("s_setprio 2\ns_waitcnt lgkmcnt(0)")
        self.srd(h, sWS, 24, WS_SIZE)
        h(f"s_mul_i32 {s(sA)}, {s(sJ)}, 5\ns_lshr_b32 {s(sA)}, {s(sA)}, 2\ns_mul_i32 {s(sTJ)}, {s(sA)}, 640\ns_add_u32 {s(sTJ)}, {s(sTJ)}, {WS_PF}")
        h(f"v_min_u32 v58, 39, {v(vLane)}\nv_lshlrev_b32 v58, 5, v58\nv_add_u32 v59, 6400, v58\nv_add_u32 v60, 12800, v58")
        if self.opt.get("pre") in (3, 4):
            h(f"s_lshl_b32 {s(sTile)}, {s(sC)}, 2\ns_mul_i32 {s(sTile)}, {s(sTile)}, {TS}\ns_add_u32 {s(sTile)}, {s(sTile)}, {WS_TILE}")
            if self.opt["pre"] == 4: self.lds_spin(h, vZ, L_C0 - L_CNT, 3, 13, sleep=2)
            self.prestore(h)
        self.get_tag(h, 28)
        self.lds_spin(h, vZ, L_C0 - L_CNT, 3, 13, sleep=2)
        h(f"s_sleep {self.opt.get('sw0', 8)}")
        self.stamp()
        self.sweep(h, "L_pfa", [f"v{58+k}, {s(sWS,4)}, {s(sTJ)} offen" for k in range(3)], 3, 4)
        self.stamp()
        if self.opt.get("t6"):
            self.touch_addr(h, 46)
            h(f"v_and_b32 {v(vLa)}, 1, {v(vLane)}\nv_mul_u32_u24 {v(vLa)}, 260, {v(vLa)}\nv_add_u32 {v(vLa)}, {L_LW}, {v(vLa)}")
            self.lds_spin(h, vLa, 0, self.opt["t6"], 13, sleep=2)
            for buf in (BUFA, BUFB)[:self.opt.get("t6n", 2)]:
                h(f"s_mul_i32 {s(sB)}, {s(sJ)}, 2560\ns_add_u32 {s(sB)}, {s(sB)}, s74\ns_add_u32 {s(sB)}, {s(sB)}, {buf}")
                h(f"buffer_load_dword v50, v46, {s(sWS,4)}, {s(sB)} offen sc1\nbuffer_load_dword v50, v47, {s(sWS,4)}, {s(sB)} offen offset:2048 sc1")
        h(f"s_lshl_b32 {s(sA)}, {s(sC)}, 3\ns_add_u32 {s(sA)}, {s(sA)}, {s(sJ)}\ns_mul_i32 {s(sA)}, {s(sA)}, 10240\ns_add_u32 {s(sD)}, {s(sA)}, {WS_KV}\ns_sub_u32 {s(sE)}, {s(sD)}, {8*10240}")
        h(f"v_add_u32 v40, {P1TMP + 4*5120}, {v(vL8)}\nv_add_u32 v41, {P1TMP}, {v(vL8)}")
        for k in range(5): h(f"v_mov_b32 {v(66+4*k)}, {s(sTag)}\nv_mov_b32 {v(67+4*k)}, {s(sTag+1)}")
        def out(part):
            self.lds_spin(h, vZ, L_CW + 1024 + 768 - L_CNT, part + 1, 13, sleep=1)
            for k in range(5): h(f"ds_read_b64 {v(64+4*k,2)}, v40 offset:{2560*part+512*k}")
            h(f"s_waitcnt lgkmcnt(0)\ns_add_u32 {s(sA)}, {s(sD)}, {5120*part}")
            for k in range(5):
                if k == 4: h(f"s_add_u32 {s(sA)}, {s(sA)}, 4096")
                h(f"buffer_store_dwordx4 {v(64+4*k,4)}, {v(vL16)}, {s(sWS,4)}, {s(sA)} offen offset:{1024*(k%4)} sc1")
        def inc(part):
            L = f"L_kv{part}"
            for k in range(5): h(f"v_mov_b32 {v(96+4*k)}, 0\nv_mov_b32 {v(97+4*k)}, 0")
            h(f"s_cmp_eq_u32 {s(sC)}, 0\ns_cbranch_scc1 {L}_ok")
            h(f"s_add_u32 {s(sA)}, {s(sE)}, {5120*part}\ns_add_u32 {s(sB)}, {s(sA)}, 4096")
            h.label(L); h.reset_hist()
            for k in range(5): h(f"buffer_load_dwordx4 {v(96+4*k,4)}, {v(vL16)}, {s(sWS,4)}, {s(sB if k == 4 else sA)} offen offset:{1024*(k%4)} sc1")
            h(f"s_waitcnt vmcnt(0)\nv_cmp_ne_u64 vcc, {s(sTag,2)}, {v(98,2)}")
            for k in range(1, 5): h(f"v_cmp_ne_u64 {s(sMk,2)}, {s(sTag,2)}, {v(98+4*k,2)}\ns_or_b64 vcc, vcc, {s(sMk,2)}")
            h(f"s_cbranch_vccz {L}_ok\ns_sleep 1")
            self.spin_tail(h, L, L + "_ok")
            h.label(L + "_ok"); h.reset_hist()
            for k in range(5): h(f"ds_write_b64 v41, {v(96+4*k,2)} offset:{2560*part+512*k}")
            h(f"v_mov_b32 v42, {part+1}\ns_mov_b64 exec, 1\nds_write_b32 {v(vZ)}, v42 offset:{L_XR-L_CNT}\ns_mov_b64 exec, -1")
        if self.opt.get("norelay"):
            h(f"v_mov_b32 v42, 2\nds_write_b32 {v(vZ)}, v42 offset:{L_XR-L_CNT}")
        else:
            out(0); inc(0); self.stamp(); out(1); self.stamp(); inc(1); self.stamp()
        self.finish(h)
        self.a = sa

    def service(self):
        h = self.h; c = self.PC
        h.label("L_service"); h.reset_hist(); h.reset_cnt()
        self.a, sa = h, self.a; self.nst = 1; self.inhelper = True
        h.vm = [("raw", 0)] * 4
        h(f"buffer_load_dword {v(c+10)}, {v(c+7)}, {s(sWS,4)}, 0 offen sc1", tag="ep")
        self.touch_addr(h, 44); h(f"s_mov_b32 {s(sTile)}, s74")
        h(f"v_and_b32 {v(vLa)}, 1, {v(vLane)}\nv_mul_u32_u24 {v(vLa)}, 260, {v(vLa)}\nv_add_u32 {v(vLa)}, {L_LW}, {v(vLa)}")
        h(f"s_mul_i32 {s(sA)}, {s(sJ)}, 5\ns_lshr_b32 {s(sA)}, {s(sA)}, 2\ns_mul_i32 {s(sTJ)}, {s(sA)}, 640\ns_add_u32 {s(sTJ)}, {s(sTJ)}, {WS_PF}")
        h(f"s_mul_i32 {s(sT)}, {s(sJ)}, 1920\ns_add_u32 {s(sT)}, {s(sT)}, {WS_PF + 32*PF_BASE[6]}\ns_mul_i32 {s(sE)}, {s(sA)}, 1536\ns_add_u32 {s(sE)}, {s(sE)}, {WS_PF + 32*PF_BASE[7]}")
        h(f"v_min_u32 v58, 39, {v(vLane)}\nv_lshlrev_b32 v58, 5, v58")
        for k in range(1, 6): h(f"v_add_u32 v{58+k}, {6400*k}, v58")
        h(f"v_min_u32 v53, 59, {v(vLane)}\nv_lshlrev_b32 v53, 5, v53\nv_min_u32 v54, 47, {v(vLane)}\nv_lshlrev_b32 v54, 5, v54")
        h.wait(vm="ep")
        h(f"v_add_u32 {v(c+10)}, 1, {v(c+10)}\nv_mov_b32 {v(c+11)}, 1\nds_write_b64 {v(vZ)}, {v(c+10,2)} offset:{L_TAG-L_CNT}")
        h(f"v_readfirstlane_b32 {s(sTag)}, {v(c+10)}")
        h(f"s_mul_i32 {s(sTag+1)}, {s(sTag)}, 0x9E3779B1\ns_xor_b32 {s(sTag+1)}, {s(sTag+1)}, 0x7F4A7C15\ns_waitcnt lgkmcnt(0)\nv_mov_b32 {v(c+11)}, {s(sTag+1)}")
        def xt_pub():
            h(f"s_getreg_b32 {s(sPI)}, hwreg(HW_REG_XCC_ID)\ns_and_b32 {s(sPI)}, {s(sPI)}, 15\nv_mov_b32 {v(c+12)}, {s(sPI)}\nv_mov_b32 {v(c+13)}, 0")
            h(f"s_lshl_b32 {s(sA)}, {s(sC)}, 3\ns_add_u32 {s(sA)}, {s(sA)}, {s(sJ)}\ns_lshl_b32 {s(sA)}, {s(sA)}, 4\ns_add_u32 {s(sA)}, {s(sA)}, {WS_XT}")
            h(f"s_mov_b64 exec, 1\nbuffer_store_dwordx4 {v(c+10,4)}, {v(c+7)}, {s(sWS,4)}, {s(sA)} offen sc1\ns_mov_b64 exec, -1")
        def touch20(buf):
            h(f"s_mul_i32 {s(sB)}, {s(sJ)}, 2560\ns_add_u32 {s(sB)}, {s(sB)}, {s(sTile)}\ns_add_u32 {s(sB)}, {s(sB)}, {buf}")
            h(f"buffer_load_dword v47, v44, {s(sWS,4)}, {s(sB)} offen sc1\nbuffer_load_dword v47, v45, {s(sWS,4)}, {s(sB)} offen offset:2048 sc1")
        def touch16(buf):
            h(f"s_lshl_b32 {s(sB)}, {s(sJ)}, 11\ns_add_u32 {s(sB)}, {s(sB)}, {s(sTile)}\ns_add_u32 {s(sB)}, {s(sB)}, {buf}")
            h(f"buffer_load_dword v47, v44, {s(sWS,4)}, {s(sB)} offen sc1")
        self.pack_seq(h, xt_pub)
        prestore = lambda: self.prestore(h)
        swa = [f"v{58+k}, {s(sWS,4)}, {s(sTJ)} offen" for k in range(3)]
        if self.opt.get("pre") == 1: prestore()
        for k in (1, 2): self.pk_B(h, k, 64 + 16 * k, 192 + 16 * (k & 1), 224)
        self.stamp()
        if self.opt.get("pre") == 2: prestore()
        h(f"s_lshl_b32 {s(sA)}, {s(sC)}, 7\ns_add_u32 {s(sA)}, {s(sA)}, {WS_XT}\nv_and_b32 v57, 7, {v(vLane)}\nv_lshlrev_b32 v57, 4, v57")
        h.label("L_xt"); h.reset_hist()
        h(f"buffer_load_dwordx4 v[48:51], v57, {s(sWS,4)}, {s(sA)} offen sc1\ns_waitcnt vmcnt(0)\nv_cmp_ne_u64 vcc, {s(sTag,2)}, v[48:49]\ns_cbranch_vccz L_xt_ok\ns_sleep 4")
        self.spin_tail(h, "L_xt", "L_xt_ok")
        h.label("L_xt_ok"); h.reset_hist()
        h(f"v_cmp_ne_u32 vcc, {s(sPI)}, v50\ns_cmp_eq_u64 vcc, 0\ns_cselect_b32 {s(sA)}, {2 if self.force_sc1 else 1}, 2\nv_mov_b32 v57, {s(sA)}")
        self.lds_spin(h, vZ, L_PKR - L_CNT, 1, 13, sleep=2)
        h(f"s_mov_b64 exec, 1\nds_write_b32 {v(vZ)}, v57 offset:{L_MODE-L_CNT}\ns_mov_b64 exec, -1")
        self.pk_C(h, [1, 2])
        self.stamp()
        self.lds_spin(h, vZ, L_PKR - L_CNT, 3, 13, sleep=2)
        self.lds_spin(h, vLa, 0, self.opt.get("gs", 10), 13, sleep=2)
        self.sweep(h, "L_pfb", [f"v{61+k}, {s(sWS,4)}, {s(sTJ)} offen" for k in range(3)] + [f"v53, {s(sWS,4)}, {s(sT)} offen", f"v54, {s(sWS,4)}, {s(sE)} offen", f"v54, {s(sWS,4)}, {s(sE)} offen offset:1536"], 8, 8)
        self.stamp()
        self.lds_spin(h, vLa, 0, self.opt.get("gt", 14), 13, sleep=2)
        if not self.opt.get("not") and not self.opt.get("t6"): touch20(BUFA); touch20(BUFB)
        if not self.opt.get("nog") and not self.opt.get("not"):
            touch16(BUFG)
        for (wsoff, rowb, jb, nl, R) in ((WS_CS1, 2560, 320, 20, 64), (WS_CS3, 6144, 768, 48, 144)):
            h(f"s_mul_i32 {s(sA)}, {s(sJ)}, {jb}\ns_add_u32 {s(sA)}, {s(sA)}, {wsoff}")
            h(f"s_mov_b64 exec, {(1 << nl) - 1:#x}" if nl <= 32 else f"s_mov_b32 exec_lo, -1\ns_mov_b32 exec_hi, {(1 << (nl-32)) - 1:#x}")
            for k in range(20):
                if not self.opt.get("nocs"): h(f"buffer_load_dwordx4 {v(R+4*k,4)}, {v(vL16)}, {s(sWS,4)}, {s(sA)} offen sc1")
                h(f"s_add_u32 {s(sA)}, {s(sA)}, {rowb}")
        h("s_waitcnt vmcnt(0)\ns_setprio 0")
        for (nl, R, ldst) in ((48, 144, L_CS3), (20, 64, L_CS1)):
            if nl == 20: h(f"s_mov_b64 exec, {(1 << nl) - 1:#x}")
            for k in range(1, 20):
                for e in range(4): h(f"v_add_f32 {v(R+e)}, {v(R+e)}, {v(R+4*k+e)}")
            h(f"v_add_u32 {v(TT)}, {ldst}, {v(vL16)}\nds_write_b128 {v(TT)}, {v(R,4)}")
        h(f"s_mov_b64 exec, -1\nv_mov_b32 {v(TT+1)}, 2\nds_write_b32 {v(vZ)}, {v(TT+1)} offset:{L_CSRDY-L_CNT}")
        self.stamp()
        h("s_cmp_lg_u32 s2, 0\ns_cbranch_scc1 L_sv_end")
        h(f"s_mov_b32 {s(sA)}, {WS_XT}")
        h.label("L_ep"); h.reset_hist()
        for k in range(4): h(f"buffer_load_dwordx2 v[{48+2*k}:{49+2*k}], {v(vL16)}, {s(sWS,4)}, {s(sA)} offen offset:{1024*k} sc1")
        h(f"s_waitcnt vmcnt(0)\nv_cmp_ne_u64 vcc, {s(sTag,2)}, v[48:49]")
        for k in range(1, 4):
            h(f"v_cmp_ne_u64 {s(sMk,2)}, {s(sTag,2)}, v[{48+2*k}:{49+2*k}]\ns_or_b64 vcc, vcc, {s(sMk,2)}")
        h("s_cbranch_scc0 L_ep_ok\ns_sleep 4")
        self.spin_tail(h, "L_ep", "L_ep_ok")
        h.label("L_ep_ok"); h.reset_hist()
        h(f"s_mov_b64 exec, 1\nbuffer_store_dword {v(c+10)}, {v(c+7)}, {s(sWS,4)}, 0 offen sc1\ns_mov_b64 exec, -1")
        h.label("L_sv_end"); h.reset_hist()
        if self.opt.get("wb"):
            h(f"s_cmp_lg_u32 {s(sJ)}, 0\ns_cbranch_scc1 L_sv_end2")
            h(f"v_and_b32 v12, 3, {v(vLane)}\nv_mul_u32_u24 v12, 260, v12\nv_add_u32 v12, {L_CW}, v12")
            self.lds_spin(h, 12, 0, self.opt["wb"], 13, sleep=16)
            h("buffer_wbl2 sc1\ns_waitcnt vmcnt(0)")
            h.label("L_sv_end2")
        self.finish(h)
        self.a = sa

    def build(self):
        self.prologue(); n0 = self.nst
        self.compute()
        self.relay(); self.service()
        self.loader()
        hdr = open("sequential_preLN__sliding_local_dilated__mixer_s_mlp__prompt.s.ref").read().split("; Override")[0]
        out = hdr + f"; @launch grid=(256,1,1) block=(512,1,1) lds={LDS_SIZE}\n"
        out += f'.amdgcn_target "amdgcn-amd-amdhsa--gfx950"\n.text\n.globl {KNAME}\n.p2align 8\n.type {KNAME},@function\n{KNAME}:\n'
        out += self.a.text() + self.h.text() + self.t.text() + "L_end:\n    s_endpgm\nL_code_end:\n.p2align 7\n.type L_table,@object\nL_table:\n" + "".join(f".long {i}\n" for i in range(64)) + ".size L_table, 256\n"
        out += f'''.section .rodata,"a"
.p2align 6
.amdhsa_kernel {KNAME}
  .amdhsa_next_free_vgpr 256
  .amdhsa_next_free_sgpr 102
  .amdhsa_accum_offset 256
  .amdhsa_group_segment_fixed_size 0
  .amdhsa_kernarg_size 88
  .amdhsa_user_sgpr_count 2
  .amdhsa_user_sgpr_kernarg_segment_ptr 1
  .amdhsa_system_sgpr_workgroup_id_x 1
  .amdhsa_float_denorm_mode_32 3
.end_amdhsa_kernel
'''
        return out

if __name__ == "__main__":
    import argparse
    p = argparse.ArgumentParser()
    p.add_argument("-o", default="sequential_preLN__sliding_local_dilated__mixer_s_mlp__prompt.s")
    p.add_argument("--stamps", action="store_true"); p.add_argument("--sc1", action="store_true"); p.add_argument("--opt", action="append", default=[])
    args = p.parse_args()
    opt = {}
    for kv in args.opt:
        k_, _, v_ = kv.partition("="); opt[k_] = int(v_) if v_ else 1
    g = Gen(stamps=args.stamps, force_sc1=args.sc1, opt=opt)
    open(args.o, "w").write(g.build())
    print("units:", [(u, UADDR.get(u), UNEED.get(u)) for u in range(len(UNITS))])
    print("nops inserted:", g.a.nops + g.t.nops)
```

```python
import sys, math, struct
from asmlib import Asm

KNAME = "sequential_preLN__sliding_local_dilated__mixer_s_mlp__prompt_kernel"

def f2u(x): return struct.unpack("<I", struct.pack("<f", x))[0]

WS_EPOCH = 0
WS_XT = 0x1000
WS_PF = 0x8B2000
WS_CS1 = 0x8000
WS_CS3 = 0x18000
WS_WP = 0x40000
WP_OFF = [819200 * k for k in range(7)] + [819200 * 6 + 1966080]
PF_BASE = [200 * k for k in range(7)] + [1680]
WS_TILE = 0x8C8000
TS = 115712
BUFA, BUFB, BUFG, SHAD, FLG = 0, 20480, 40960, 90112, 110592
GBUF = [BUFG, BUFA, BUFB]
F1, F3, FH, G0, S2, S4 = FLG, FLG + 128, FLG + 256, FLG + 384, FLG + 1024, FLG + 3072
WS_KV = WS_TILE + 128 * TS
WS_STAMP = WS_KV + 256 * 10240
WS_SIZE = WS_STAMP + 2048 * 128
OOB = 0x40000000

RING = 153600
P1TMP = 128000
STAGE = 143360
L_CNT = 153600
L_LANDED = L_CNT + 32
L_MODE = L_CNT + 40
L_CSRDY = L_CNT + 44
L_XI = L_CNT + 56
L_C0 = L_CNT + 60
L_PKR = L_CNT + 96
L_XR = L_CNT + 64
L_TAG = L_CNT + 48
L_CS1 = L_CNT + 256
L_CS3 = L_CS1 + 320
L_PSCR = L_CNT + 2048
L_CW = L_PSCR + 6144
L_LW = L_CS3 + 768 + 64
LDS_SIZE = 163840

XIMG = 71680
def plan_units():
    units = [(0, "pseudo", None)]
    for ps in range(3):
        for i in range(5): units.append((20480, "raw", (ps, 0, i)))
    units.append((0, "pseudo", None))
    for wid in range(3, 6):
        for i in range(4): units.append((25600, "pk", (wid, 0, i)))
    for wid in (6, 7):
        for ch in range(3):
            for i in range(4): units.append((20480, "pk", (wid, ch, i)))
    placed = [(XIMG, 81920, 0), (P1TMP, 25600, 16)]
    addr = {}; need = {}
    for u, (size, kind, arg) in enumerate(units):
        if kind == "pseudo": continue
        if kind == "raw": cands = [20480 * k for k in range(6)]
        elif size == 25600: cands = [25600 * k for k in range(6)]
        else: cands = [20480 * k for k in range(7)]
        best = None
        for a in cands:
            nd = 0
            for (pa, psz, pi) in placed:
                if pa < a + size and a < pa + psz: nd = max(nd, pi + 1)
            if best is None or nd < best[0]: best = (nd, a)
        need[u], addr[u] = best
        placed.append((best[1], size, u))
    return units, addr, need
UNITS, UADDR, UNEED = plan_units()
U_RAW, U_X, U_WO, U_W1, U_W2, U_W3, U_W4 = 1, 16, 17, 21, 25, 29, 41
PUBS = set()
HK, HV = 6, 7

vLane, vL16, vL8, vZ, vWA, vLa, vLC, vCV, vPA = 1, 2, 3, 4, 5, 6, 7, 8, 9
vM = 12
KOWN, VFR = 28, 44
AF, WW, ACC, HP, X1P, TT = 64, 144, 176, 208, 218, 228
SLOTS12 = [WW + 4 * i for i in range(8)] + [36, 40, 56, 60]
sWS, sIN, sOUT = 28, 32, 36
sWave, sX, sQ, sJ, sC, sT, sBud, sEp = 40, 41, 42, 43, 44, 45, 46, 47
sTag = 48
sMode = 50
sRot = 51
sTile = 55
sTJ = 56
sA, sB, sCc, sD, sE = 57, 58, 59, 60, 61
sPI = 62
sMa, sMb, sPar = 64, 66, 68
sSh = 70
sOnes = 72
sRho = 73
sSt = 76
sCk = 22
sMk = 26

def v(a, n=1): return f"v{a}" if n == 1 else f"v[{a}:{a+n-1}]"
def s(a, n=1): return f"s{a}" if n == 1 else f"s[{a}:{a+n-1}]"

class Gen:
    def __init__(self, stamps=False, force_sc1=False, budget=1 << 17, opt=None):
        self.opt = dict(sw0=20, pstep=2, pph=0, t6=5, cprio=3, lprio=2, g6=1, gs=9, gt=9, cps=2, rawk=0); self.opt.update(opt or {})
        step = self.opt.get("pstep", 2)
        mx = max(UNEED.values()) + step
        PUBS.update([1, U_X + 1] + [x for x in range(2, mx + 1) if x % step == self.opt.get("pph", 1) % step])
        self.clk = 's_memtime' if self.opt.get('cyc') else 's_memrealtime'
        self.a = Asm(); self.t = Asm(); self.h = Asm(); self.h.nlabel = 200000
        self.stamps = stamps; self.force_sc1 = force_sc1; self.budget = budget
        self.nst = 0; self.inhelper = False
        self.t.nlabel = 100000

    def stamp(self, grp=0):
        sp = self.opt.get("sp", 0)
        if grp != sp and not (grp == 0 and self.nst == 0) and not (grp == 0 and self.inhelper): return
        if self.stamps and self.nst < 11:
            self.a(f"{self.clk} {s(sSt + 2 * self.nst, 2)}"); self.nst += 1

    def srd(self, a, d, lo, size):
        a(f"s_mov_b32 {s(d)}, {s(lo)}\ns_mov_b32 {s(d+1)}, {s(lo+1)}\ns_mov_b32 {s(d+2)}, {size}\ns_mov_b32 {s(d+3)}, 0x20000")

    def spin_tail(self, a, Lretry, Lok):
        a(f"s_cmp_eq_u32 {s(sBud)}, 0\ns_cbranch_scc1 {Lok}\ns_sub_u32 {s(sBud)}, {s(sBud)}, 1\ns_branch {Lretry}")

    def lds_spin(self, a, addr_v, off, need, tmp, sleep=0):
        L = a.newlabel("Lsp"); Lok = L + "_ok"
        a.label(L)
        a(f"ds_read_b32 {v(tmp)}, {v(addr_v)} offset:{off}\ns_waitcnt lgkmcnt(0)\nv_cmp_gt_u32 vcc, {need}, {v(tmp)}\ns_cbranch_vccz {Lok}")
        if sleep: a(f"s_sleep {sleep}")
        self.spin_tail(a, L, Lok)
        a.label(Lok)

    def allreduce2(self, a, x, y, t, op="v_add_f32"):
        a(f"v_permlane32_swap_b32 {v(x)}, {v(y)}")
        a(f"{op} {v(x)}, {v(x)}, {v(y)}")
        a(f"v_mov_b32 {v(y)}, {v(x)}")
        a(f"v_permlane16_swap_b32 {v(x)}, {v(y)}")
        a(f"{op} {v(x)}, {v(x)}, {v(y)}")
        a(f"v_mov_b32 {v(y)}, {v(x)}")
        a(f"v_permlane32_swap_b32 {v(x)}, {v(y)}")

    def rscatter4(self, a, m, op):
        a(f"v_permlane32_swap_b32 {v(m[0])}, {v(m[2])}")
        a(f"v_permlane32_swap_b32 {v(m[1])}, {v(m[3])}")
        a(f"{op} {v(m[0])}, {v(m[0])}, {v(m[2])}")
        a(f"{op} {v(m[1])}, {v(m[1])}, {v(m[3])}")
        a(f"v_permlane16_swap_b32 {v(m[0])}, {v(m[1])}")
        a(f"{op} {v(m[0])}, {v(m[0])}, {v(m[1])}")

    def allgather4(self, a, m):
        a(f"v_mov_b32 {v(m[1])}, {v(m[0])}")
        a(f"v_permlane16_swap_b32 {v(m[0])}, {v(m[1])}")
        a(f"v_mov_b32 {v(m[2])}, {v(m[0])}")
        a(f"v_mov_b32 {v(m[3])}, {v(m[1])}")
        a(f"v_permlane32_swap_b32 {v(m[0])}, {v(m[2])}")
        a(f"v_permlane32_swap_b32 {v(m[1])}, {v(m[3])}")

    def moded(self, lines, tag=None):
        a, t = self.a, self.t
        L = a.newlabel("Lm"); Lb = L + "_b"
        a(f"s_cmp_lg_u32 {s(sMode)}, 1\ns_cbranch_scc1 {L}")
        for ln in lines: a(ln, tag)
        a.label(Lb)
        t.label(L); t.reset_hist()
        for ln in lines: t(ln + (" sc1" if ln.startswith("buffer_store") else ""))
        t(f"s_branch {Lb}")

    def handoff_store(self, r, buf):
        a = self.a
        a(f"s_add_u32 {s(sA)}, {s(sTJ)}, {buf}")
        self.moded([f"buffer_store_dwordx4 {v(r,4)}, {v(vL16)}, {s(sWS,4)}, {s(sA)} offen",
                    f"buffer_store_dwordx4 {v(r+4,4)}, {v(vL16)}, {s(sWS,4)}, {s(sA)} offen offset:1024",
                    f"buffer_store_dwordx2 {v(r+8,2)}, {v(vL8)}, {s(sWS,4)}, {s(sA)} offen offset:2048"])

    def flag_store(self, off):
        a = self.a
        a(f"s_lshl_b32 {s(sA)}, {s(sJ)}, 3\ns_add_u32 {s(sA)}, {s(sA)}, {s(sTile)}\ns_add_u32 {s(sA)}, {s(sA)}, {off}")
        a("s_mov_b64 exec, 1")
        self.moded([f"buffer_store_dwordx2 {v(self.vTag,2)}, {v(self.vZero)}, {s(sWS,4)}, {s(sA)} offen"])
        a("s_mov_b64 exec, -1")

    def poll8(self, a, voff, soff, tmp, imm=0):
        L = a.newlabel("Lp"); Lok = L + "_ok"
        a.label(L)
        a(f"buffer_load_dwordx2 {v(tmp,2)}, {v(voff)}, {s(sWS,4)}, {soff} offen offset:{imm} sc1")
        a(f"s_waitcnt vmcnt(0)\nv_cmp_ne_u64 vcc, {s(sTag,2)}, {v(tmp,2)}\ns_cbranch_vccz {Lok}")
        self.spin_tail(a, L, Lok)
        a.label(Lok)

    def stream_init(self, frags, slots, G=4):
        self.fr = frags; self.rp = 0; self.cur_unit = None; self.chk = {}
        self.slots = slots; self.G = G; self.side = []; self.rate = 1

    def stream_read(self):
        a = self.a
        if self.rp >= len(self.fr): return
        f = self.rp; u, off, kind = self.fr[f]
        prev = self.cur_unit
        if u != prev:
            u0 = self.opt.get("u0", 2)
            if u0 <= u < u0 + 5: self.stamp(7)
            if self.chk.get(u) == 2:
                L = a.newlabel("Lw"); Lok = L + "_ok"
                a(f"s_cmp_lg_u64 {s(sCk,2)}, 0\ns_cbranch_scc1 {L}")
                a.label(Lok)
                t = self.t
                t.label(L); t.reset_hist()
                t(f"ds_read_b32 {v(vLC)}, {v(vLa)}\ns_waitcnt lgkmcnt(0)\nv_cmp_gt_u32 {s(sCk,2)}, {u+1}, {v(vLC)}\ns_cmp_lg_u64 {s(sCk,2)}, 0\ns_cbranch_scc0 {Lok}")
                self.spin_tail(t, L, Lok)
            else:
                self.lds_spin(a, vLa, 0, u + 1, vLC)
            if u0 <= u < u0 + 5: self.stamp(7)
            self.cur_unit = u
        r = self.slots[f % len(self.slots)]
        A = UADDR[u] + off
        if kind == "tr":
            hi = A + 1280 >= 0x10000
            b_ = (self.vT0, self.vT1)[hi]; o_ = A - (0xf000 if hi else 0)
            a(f"ds_read_b64_tr_b16 {v(r,2)}, {v(b_)} offset:{o_}")
            a(f"ds_read_b64_tr_b16 {v(r+2,2)}, {v(b_)} offset:{o_+1280}", tag=("w", f))
        else:
            a(f"ds_read_b128 {v(r,4)}, {v((vL16, vWA, vPA)[A >> 16])} offset:{A & 0xffff}", tag=("w", f))
        self.rp += 1
        last = self.rp == len(self.fr)
        if u != prev and prev is not None and (prev + 1) in PUBS: a(f"ds_write_b32 {v(self.vCnt)}, {v(vCV)}")
        nxt = lambda d: self.fr[f + d][0] if f + d < len(self.fr) else None
        LA = self.opt.get("la", 9)
        if nxt(LA) not in (None, u) and nxt(LA) not in self.chk and not self.priming:
            a(f"ds_read_b32 {v(vLC)}, {v(vLa)}", tag=("chk", nxt(LA))); self.chk[nxt(LA)] = 1
        if nxt(2) not in (None, u) and self.chk.get(nxt(2)) == 1:
            a.wait(ds=("chk", nxt(2)))
            a(f"v_cmp_gt_u32 {s(sCk,2)}, {nxt(2)+1}, {v(vLC)}"); self.chk[nxt(2)] = 2
        if nxt(1) != u and not last and (u + 1) in PUBS: a(f"v_mov_b32 {v(vCV)}, {u+1}")
        if last and (u + 1) in PUBS: self.publish(u + 1)

    def publish(self, val):
        self.a(f"v_mov_b32 {v(vCV)}, {val}\nds_write_b32 {v(self.vCnt)}, {v(vCV)}")

    def prime(self):
        self.priming = True
        for _ in range(len(self.slots)): self.stream_read()
        self.priming = False

    def mfma_w(self, f, acc, af, first=False, swap=False):
        a = self.a
        if f % self.G == 0: a.wait(ds=("w", min(f + self.G - 1, len(self.fr) - 1)))
        r = self.slots[f % len(self.slots)]
        c = "0" if first else v(acc, 4)
        if swap: a(f"v_mfma_f32_16x16x32_bf16 {v(acc,4)}, {v(af,4)}, {v(r,4)}, {c}")
        else: a(f"v_mfma_f32_16x16x32_bf16 {v(acc,4)}, {v(r,4)}, {v(af,4)}, {c}")
        self.stream_read()
        for _ in range(self.rate):
            if self.side:
                op = self.side.pop(0)
                if callable(op): op()
                elif isinstance(op, tuple): a(op[0], tag=op[1])
                else: a(op)

    def async_check(self, addr, off, need, tmp, name):
        a = self.a
        def chk():
            L = a.newlabel("La"); Lok = L + "_ok"
            a.wait(ds=name)
            a(f"v_cmp_gt_u32 vcc, {need}, {v(tmp)}\ns_cbranch_vccnz {L}")
            a.label(Lok)
            t = self.t
            t.label(L); t.reset_hist()
            t(f"ds_read_b32 {v(tmp)}, {v(addr)} offset:{off}\ns_waitcnt lgkmcnt(0)\nv_cmp_gt_u32 vcc, {need}, {v(tmp)}\ns_cbranch_vccz {Lok}")
            self.spin_tail(t, L, Lok)
        return (f"ds_read_b32 {v(tmp)}, {v(addr)} offset:{off}", name), chk

    def prologue(self):
        a = self.a
        a("s_cmp_ge_u32 s2, 256\ns_cbranch_scc1 L_end")
        a("s_load_dwordx16 s[4:19], s[0:1], 0\ns_load_dwordx4 s[20:23], s[0:1], 64\ns_load_dwordx2 s[24:25], s[0:1], 80")
        self.stamp()
        a("s_getpc_b64 s[62:63]")
        a.label("L_pcref")
        a(f"s_lshr_b32 {s(sA)}, s2, 3\ns_lshl_b32 {s(sA)}, {s(sA)}, 12\nv_lshlrev_b32 v1, 7, v0\nv_add_u32 v1, {s(sA)}, v1")
        a(f"v_min_u32 v1, L_code_end-L_pcref-4, v1\nv_cmp_gt_u32 vcc, 32, v0\ns_and_saveexec_b64 {s(sMk,2)}, vcc\ns_cbranch_execz L_nopf")
        a("global_load_dword v255, v1, s[62:63]")
        a.label("L_nopf")
        a(f"s_mov_b64 exec, -1"); a.reset_cnt()
        a(f"v_and_b32 {v(vLane)}, 63, v0\nv_lshrrev_b32 v0, 6, v0")
        a(f"v_readfirstlane_b32 {s(sWave)}, v0")
        a(f"s_and_b32 {s(sX)}, s2, 7\ns_lshr_b32 {s(sA)}, s2, 3\ns_lshr_b32 {s(sQ)}, {s(sA)}, 3\ns_and_b32 {s(sJ)}, {s(sA)}, 7")
        a(f"s_lshl_b32 {s(sC)}, {s(sX)}, 2\ns_add_u32 {s(sC)}, {s(sC)}, {s(sQ)}")
        a(f"v_lshlrev_b32 {v(vL16)}, 4, {v(vLane)}\nv_lshlrev_b32 {v(vL8)}, 3, {v(vLane)}\nv_mov_b32 {v(vZ)}, {L_CNT}")
        a(f"s_mov_b32 {s(sBud)}, {self.budget}")
        for i in range(4):
            a(f"s_add_u32 {s(sRot+i)}, {s(sQ)}, {i}\ns_and_b32 {s(sRot+i)}, {s(sRot+i)}, 3")
        a(f"s_lshl_b32 {s(sRho)}, {s(sQ)}, 1")
        a(f"s_mov_b32 {s(sOnes)}, 0x3f803f80")
        a(f"s_cmp_lg_u32 {s(sWave)}, 4\ns_cbranch_scc1 L_noinit")
        a(f"v_lshl_add_u32 v12, {v(vLane)}, 2, {v(vZ)}\nv_mov_b32 v14, 0\nv_mov_b32 v15, 0\nv_mov_b32 v16, 0\nv_mov_b32 v17, 0\nv_add_u32 v13, {L_CW}, {v(vL16)}")
        a(f"v_cmp_eq_u32 vcc, {(L_XR-L_CNT)//4}, {v(vLane)}\nv_cndmask_b32_e64 v18, 0, 2, vcc")
        a(f"ds_write_b32 v12, v18\nds_write_b32 v12, v14 offset:{L_LW-L_CNT}\nds_write_b32 v12, v14 offset:{L_LW-L_CNT+256}\nds_write_b128 v13, v[14:17]\nds_write_b128 v13, v[14:17] offset:1024\ns_waitcnt lgkmcnt(0)")
        a.label("L_noinit")
        a("s_barrier")
        self.helper_start()

    def get_tag(self, a, tmp):
        L = a.newlabel("Ltg"); Lok = L + "_ok"
        a.label(L)
        a(f"ds_read_b64 {v(tmp,2)}, {v(vZ)} offset:{L_TAG-L_CNT}\ns_waitcnt lgkmcnt(0)\nv_cmp_gt_u32 vcc, 1, {v(tmp+1)}\ns_cbranch_vccz {Lok}\ns_sleep 1")
        self.spin_tail(a, L, Lok)
        a.label(Lok)
        a(f"v_readfirstlane_b32 {s(sTag)}, {v(tmp)}")
        a(f"s_mul_i32 {s(sTag+1)}, {s(sTag)}, 0x9E3779B1\ns_xor_b32 {s(sTag+1)}, {s(sTag+1)}, 0x7F4A7C15")

    def compute(self):
        a = self.a; h = self.h
        m = vM
        self.vTag = m; self.vZero = m + 2; self.vCnt = m + 3
        vG, vR = m + 4, m + 5
        sImg = sE
        sXo = 75
        MF = "v_mfma_f32_16x16x32_bf16"
        a(f"s_cmp_eq_u32 {s(sWave)}, 6\ns_cbranch_scc1 L_relay")
        a(f"s_add_u32 {s(sPI)}, {s(sWave)}, 1\ns_lshl_b32 {s(sT)}, {s(sC)}, 2\ns_add_u32 {s(sT)}, {s(sT)}, {s(sWave)}")
        a(f"s_mul_i32 {s(sImg)}, {s(sWave)}, 20480\ns_add_u32 {s(sImg)}, {s(sImg)}, {XIMG}")
        t0, t1, x0, x1 = TT, TT + 1, TT + 2, TT + 3
        a(f"s_mul_i32 {s(sXo)}, {s(sT)}, {16*1280}")
        a(f"v_lshrrev_b32 {v(t0)}, 3, {v(vLane)}\nv_and_b32 {v(t1)}, 7, {v(vLane)}\nv_lshrrev_b32 {v(x1)}, 1, {v(t0)}\nv_xor_b32 {v(t1)}, {v(t1)}, {v(x1)}")
        a(f"v_mul_u32_u24 {v(t0)}, 1280, {v(t0)}\nv_add_u32 {v(t0)}, {s(sXo)}, {v(t0)}\nv_lshl_add_u32 {v(x0)}, {v(t1)}, 4, {v(t0)}")
        a(f"v_xor_b32 {v(t1)}, 4, {v(t1)}\nv_lshl_add_u32 {v(x1)}, {v(t1)}, 4, {v(t0)}\nv_add_u32 {v(x1)}, {8*1280-1024}, {v(x1)}")
        a(f"s_lshl_b32 {s(sB)}, {s(sRho)}, 7")
        a("s_waitcnt lgkmcnt(0)")
        self.srd(a, sIN, 4, 2048 * 1280)
        self.stamp(1)
        XF = " nt" if self.opt.get("xnt") else ""
        for ln in range(10):
            a(f"s_add_u32 m0, {s(sImg)}, {2048*ln}")
            a(f"buffer_load_dwordx4 {v(x0)}, {s(sIN,4)}, {s(sB)} offen{XF} lds")
            a(f"buffer_load_dwordx4 {v(x1)}, {s(sIN,4)}, {s(sB)} offen offset:1024{XF} lds", tag=("x", ln))
            if ln < 9:
                a(f"s_add_u32 {s(sB)}, {s(sB)}, 128\ns_cmp_ge_u32 {s(sB)}, 1280\ns_cselect_b32 {s(sB)}, 0, {s(sB)}")
        a(f"v_mov_b32 {v(m+13)}, 1\ns_mov_b64 exec, 1\nds_add_u32 {v(vZ)}, {v(m+13)} offset:{L_XI-L_CNT}\ns_mov_b64 exec, -1")
        self.stamp(1)
        self.srd(a, sWS, 24, WS_SIZE)
        a(f"v_lshrrev_b32 {v(vG)}, 4, {v(vLane)}\nv_and_b32 {v(vR)}, 15, {v(vLane)}\nv_mov_b32 {v(self.vZero)}, 0")
        a(f"v_and_b32 {v(vLa)}, 1, {v(vLane)}\nv_mul_u32_u24 {v(vLa)}, 260, {v(vLa)}\nv_add_u32 {v(vLa)}, {L_LW}, {v(vLa)}")
        a(f"s_lshl_b32 {s(sB)}, {s(sWave)}, 8\ns_add_u32 {s(sB)}, {s(sB)}, {L_CW}\nv_lshl_add_u32 {v(self.vCnt)}, {v(vLane)}, 2, {s(sB)}")
        a(f"s_mul_i32 {s(sTile)}, {s(sT)}, {TS}\ns_add_u32 {s(sTile)}, {s(sTile)}, {WS_TILE}")
        a(f"s_mul_i32 {s(sTJ)}, {s(sJ)}, 2560\ns_add_u32 {s(sTJ)}, {s(sTJ)}, {s(sTile)}")
        xoK, xoK8, xoV = m + 10, m + 11, m + 12
        a(f"s_mul_i32 {s(sA)}, {s(sPI)}, 5120\ns_add_u32 {s(sA)}, {s(sA)}, {P1TMP}\nv_add_u32 {v(xoV)}, {s(sA)}, {v(vL8)}")
        a(f"v_add_u32 {v(xoK)}, {s(sA)}, {v(vL16)}\nv_add_u32 {v(xoK8)}, {s(sA)}, {v(vL8)}")
        ra0, ra1, fr_ = m + 6, m + 7, m + 8
        a(f"v_lshrrev_b32 {v(fr_)}, 1, {v(vR)}\nv_xor_b32 {v(ra0)}, {v(fr_)}, {v(vG)}\nv_xor_b32 {v(ra1)}, 4, {v(ra0)}")
        a(f"v_lshlrev_b32 {v(m+9)}, 7, {v(vR)}\nv_add_u32 {v(m+9)}, {s(sImg)}, {v(m+9)}")
        a(f"v_lshl_add_u32 {v(ra0)}, {v(ra0)}, 4, {v(m+9)}\nv_lshl_add_u32 {v(ra1)}, {v(ra1)}, 4, {v(m+9)}")
        p0, p1 = TT + 4, TT + 5
        xq = [TT + 6 + t for t in range(5)]
        a(f"v_lshrrev_b32 {v(p0)}, 1, {v(vG)}\nv_and_b32 {v(p1)}, 1, {v(vG)}\nv_lshl_add_u32 {v(p1)}, {v(p1)}, 3, {v(m+9)}")
        for t in range(5):
            a(f"s_mul_i32 {s(sA)}, {s(sJ)}, 10\ns_add_u32 {s(sA)}, {s(sA)}, {2*t}\ns_lshr_b32 {s(sB)}, {s(sA)}, 3\ns_and_b32 {s(sA)}, {s(sA)}, 7")
            a(f"s_add_u32 {s(sB)}, {s(sB)}, 10\ns_sub_u32 {s(sB)}, {s(sB)}, {s(sRho)}\ns_sub_u32 {s(sCc)}, {s(sB)}, 10\ns_cmp_ge_u32 {s(sB)}, 10\ns_cselect_b32 {s(sB)}, {s(sCc)}, {s(sB)}\ns_lshl_b32 {s(sB)}, {s(sB)}, 11")
            a(f"v_add_u32 {v(xq[t])}, {s(sA)}, {v(p0)}\nv_xor_b32 {v(xq[t])}, {v(xq[t])}, {v(fr_)}\nv_lshl_add_u32 {v(xq[t])}, {v(xq[t])}, 4, {v(p1)}\nv_add_u32 {v(xq[t])}, {s(sB)}, {v(xq[t])}")
        sm = [TT + 12, TT + 13, TT + 14, TT + 15]
        RSD = TT + 24
        inv = f2u(1.0 / 640)
        def xread(A, ln):
            for vv in range(2): A(f"ds_read_b128 {v(AF+8*ln+4*vv,4)}, {v(ra0+vv)} offset:{2048*ln}", tag=("xf", ln))
        def dots(A, ln):
            A.wait(ds=("xf", ln))
            for k in range(8):
                r_ = AF + 8 * ln + k
                A(f"v_dot2c_f32_bf16 {v(sm[2*(k&1)])}, {s(sOnes)}, {v(r_)}\nv_dot2c_f32_bf16 {v(sm[2*(k&1)+1])}, {v(r_)}, {v(r_)}")
        def stat_fin(A):
            A(f"v_add_f32 {v(sm[0])}, {v(sm[0])}, {v(sm[2])}\nv_add_f32 {v(sm[1])}, {v(sm[1])}, {v(sm[3])}")
            self.allreduce2(A, sm[0], sm[1], None)
            A(f"v_mul_f32 {v(sm[0])}, {inv:#x}, {v(sm[0])}\nv_mul_f32 {v(sm[1])}, {inv:#x}, {v(sm[1])}")
            A(f"v_fma_f32 {v(sm[1])}, -{v(sm[0])}, {v(sm[0])}, {v(sm[1])}\nv_max_f32 {v(sm[1])}, 0, {v(sm[1])}\nv_add_f32 {v(sm[1])}, {f2u(1e-5):#x}, {v(sm[1])}")
            A(f"v_rsq_f32 {v(RSD)}, {v(sm[1])}\nv_mul_f32_e64 {v(RSD+1)}, -{v(sm[0])}, {v(RSD)}\ns_mov_b32 {s(sD)}, 0xffff0000")
        tp = [TT + 16 + 2 * k for k in range(4)]
        def norm_ops(st):
            ops = []
            for k in range(4): ops += [f"v_lshlrev_b32 {v(tp[k])}, 16, {v(AF+4*st+k)}", f"v_and_b32 {v(tp[k]+1)}, {s(sD)}, {v(AF+4*st+k)}"]
            for k in range(4): ops += [f"v_fma_f32 {v(tp[k])}, {v(tp[k])}, {v(RSD)}, {v(RSD+1)}", f"v_fma_f32 {v(tp[k]+1)}, {v(tp[k]+1)}, {v(RSD)}, {v(RSD+1)}"]
            for k in range(4): ops.append(f"v_cvt_pk_bf16_f32 {v(AF+4*st+k)}, {v(tp[k])}, {v(tp[k]+1)}")
            return ops
        for r_ in sm: a(f"v_mov_b32 {v(r_)}, 0")
        for ln in range(10):
            a.wait(vm=("x", ln))
            if ln == 9: self.stamp(1)
            xread(a, ln)
            if ln >= 2: dots(a, ln - 2)
        for t in range(5): a(f"ds_read_b64 {v(X1P+2*t,2)}, {v(xq[t])}")
        self.publish(1)
        dots(a, 8); dots(a, 9)
        stat_fin(a)
        self.stamp(); self.stamp(1)
        RK = self.opt.get("rawk")
        fr = [(U_RAW + 5 * ps + st // 4, (st % 4) * 5120 + (32 if RK and ps == 0 else 1024) * t, "tr" if RK and ps == 0 else "pk") for ps in range(3) for st in range(20) for t in range(5)]
        VAC = ACC + 20
        accs = [ACC, VAC, ACC]
        KPREV = KOWN + 10
        def pack5(acc, dst, A=None):
            A = A or a
            for t in range(5):
                A(f"v_cvt_pk_bf16_f32 {v(dst(t))}, {v(acc+4*t)}, {v(acc+4*t+1)}\nv_cvt_pk_bf16_f32 {v(dst(t)+1)}, {v(acc+4*t+2)}, {v(acc+4*t+3)}")
        def k_out(A):
            pack5(ACC, lambda t: KOWN + 2 * t, A)
            A(f"ds_write_b128 {v(xoK)}, {v(KOWN,4)}\nds_write_b128 {v(xoK)}, {v(KOWN+4,4)} offset:1024\nds_write_b64 {v(xoK8)}, {v(KOWN+8,2)} offset:2048")
        def xr_add(A, n):
            A(f"s_lshl_b32 {s(sB)}, {s(sPI)}, 2\ns_add_u32 {s(sB)}, {s(sB)}, {L_XR}\nv_mov_b32 {v(m+13)}, {s(sB)}\nv_mov_b32 {v(m+14)}, {n}")
            A(f"ds_write_b32 {v(m+13)}, {v(m+14)}")
        for st in range(20):
            for op in norm_ops(st): a(op)
        self.stamp(1)
        VF = TT
        VLO = 48
        MK = TT + 20
        BIAS = TT + 24
        sGE = lambda hh: 8 + 2 * (hh - 1)
        sCM = lambda t: 14 + 2 * (t - 1)
        tq = m + 14
        a(f"v_add_u32 {v(vWA)}, 0x10000, {v(vL16)}\nv_add_u32 {v(vPA)}, 0x20000, {v(vL16)}")
        self.vT0, self.vT1 = 216, 217
        a(f"v_lshrrev_b32 {v(216)}, 1, {v(vG)}\nv_lshlrev_b32 {v(216)}, 4, {v(216)}\nv_and_b32 {v(217)}, 1, {v(vG)}\nv_lshl_add_u32 {v(216)}, {v(217)}, 2, {v(216)}")
        a(f"v_lshrrev_b32 {v(217)}, 2, {v(vR)}\nv_add_u32 {v(216)}, {v(216)}, {v(217)}\nv_mul_u32_u24 {v(216)}, 160, {v(216)}")
        a(f"v_and_b32 {v(217)}, 3, {v(vLane)}\nv_lshl_add_u32 {v(216)}, {v(217)}, 3, {v(216)}\nv_add_u32 {v(217)}, 0xf000, {v(216)}")
        a(f"v_and_b32 {v(tq)}, 1, {v(vR)}\nv_cmp_eq_u32 {s(sPar,2)}, 1, {v(tq)}")
        a(f"v_lshl_add_u32 {v(tq)}, {v(vG)}, 2, {v(tq)}\nv_cmp_le_u32 {s(sMa,2)}, {v(tq)}, {v(vR)}")
        a(f"v_add_u32 {v(tq)}, 2, {v(tq)}\nv_cmp_le_u32 {s(sMb,2)}, {v(tq)}, {v(vR)}")
        a(f"v_mov_b32 {v(tq)}, 0xffff\nv_mov_b32 {v(m+13)}, 0xffff0000\nv_cndmask_b32 {v(tq)}, {v(tq)}, {v(m+13)}, {s(sPar,2)}")
        a(f"v_cndmask_b32 {v(MK)}, 0, {v(tq)}, {s(sMa,2)}\nv_cndmask_b32 {v(MK+1)}, 0, {v(tq)}, {s(sMb,2)}")
        a(f"v_xor_b32 {v(MK+2)}, {v(MK)}, {v(tq)}\nv_xor_b32 {v(MK+3)}, {v(MK+1)}, {v(tq)}")
        a(f"s_cmp_eq_u32 {s(sT)}, 0\ns_cselect_b32 {s(sB)}, {f2u(-1e30):#x}, 0\ns_waitcnt vmcnt(0)")
        for k in range(4): a(f"v_mov_b32 {v(BIAS+k)}, {s(sB)}")
        for hh in range(1, 4):
            a(f"v_cmp_le_u32 {s(sGE(hh),2)}, {hh}, {v(vG)}\nv_cmp_gt_u32 {s(sCM(hh),2)}, {4*hh}, {v(vR)}")
        vXo, vXp, vKp, vVp, vOne, vTwo = m + 15, m + 6, m + 7, m + 9, 10, 11
        a(f"s_lshl_b32 {s(sB)}, {s(sWave)}, 8\ns_add_u32 {s(sB)}, {s(sB)}, {L_CW + 1024 - 256}\ns_cmp_eq_u32 {s(sWave)}, 0\ns_cselect_b32 {s(sB)}, {L_XR}, {s(sB)}\nv_mov_b32 {v(vXp)}, {s(sB)}\nv_add_u32 {v(vXo)}, 1024, {v(self.vCnt)}")
        a(f"v_subrev_u32 {v(vKp)}, 5120, {v(xoK)}\nv_subrev_u32 {v(vVp)}, 5120, {v(xoV)}\nv_mov_b32 {v(vOne)}, 1\nv_mov_b32 {v(vTwo)}, 2")
        self.get_tag(a, self.vTag)
        a(f"v_mov_b32 {v(self.vTag+1)}, {s(sTag+1)}")
        for t in range(5): a(f"v_mov_b32 {v(VF+4*t+2)}, {s(sTag)}\nv_mov_b32 {v(VF+4*t+3)}, {s(sTag+1)}")
        sKV = 4
        a(f"s_lshl_b32 {s(sA)}, {s(sC)}, 3\ns_add_u32 {s(sA)}, {s(sA)}, {s(sJ)}\ns_mul_i32 {s(sA)}, {s(sA)}, 10240\ns_add_u32 {s(sKV)}, {s(sA)}, {WS_KV}")
        a(f"s_sub_u32 {s(sA)}, {s(sKV)}, {8*10240}\ns_cmp_eq_u32 {s(sWave)}, 0\ns_cselect_b32 {s(sKV)}, {s(sA)}, {s(sKV)}")
        def only(wave, body):
            def f():
                L = a.newlabel("Lo"); t = self.t
                a(f"s_cmp_eq_u32 {s(sWave)}, {wave}\ns_cbranch_scc1 {L}")
                a.label(L + "_b")
                t.label(L); t.reset_hist(); t("s_nop 1"); body(t, L); t(f"s_nop 1\ns_branch {L}_b")
            return f
        def kv_out(part):
            def body(t, L):
                t(f"s_add_u32 {s(sA)}, {s(sKV)}, {5120*part}\ns_add_u32 {s(sB)}, {s(sA)}, 4096")
                for k in range(5): t(f"buffer_store_dwordx4 {v(VF+4*k,4)}, {v(vL16)}, {s(sWS,4)}, {s(sB if k == 4 else sA)} offen offset:{1024*(k%4)} sc1")
            return only(3, body)
        def kv_loads(t, part):
            t(f"s_add_u32 {s(sA)}, {s(sKV)}, {5120*part}\ns_add_u32 {s(sB)}, {s(sA)}, 4096")
            for k in range(5): t(f"buffer_load_dwordx4 {v(VAC+4*k,4)}, {v(vL16)}, {s(sWS,4)}, {s(sB if k == 4 else sA)} offen offset:{1024*(k%4)} sc1")
        def kv_issue(part): return only(0, lambda t, L: kv_loads(t, part))
        def kv_take(part, dst, nxt=None):
            def body(t, L):
                t(f"s_cmp_eq_u32 {s(sC)}, 0\ns_cbranch_scc1 {L}_z")
                t.label(L + "_r")
                t(f"s_waitcnt vmcnt(0)\nv_cmp_ne_u64 vcc, {s(sTag,2)}, {v(VAC+2,2)}")
                for k in range(1, 5): t(f"v_cmp_ne_u64 {s(sMk,2)}, {s(sTag,2)}, {v(VAC+4*k+2,2)}\ns_or_b64 vcc, vcc, {s(sMk,2)}")
                t(f"s_cbranch_vccz {L}_ok\ns_cmp_eq_u32 {s(sBud)}, 0\ns_cbranch_scc1 {L}_ok\ns_sub_u32 {s(sBud)}, {s(sBud)}, 1")
                kv_loads(t, part)
                t(f"s_branch {L}_r")
                t.label(L + "_z")
                t("s_waitcnt vmcnt(0)")
                for k in range(5): t(f"v_mov_b32 {v(VAC+4*k)}, 0\nv_mov_b32 {v(VAC+4*k+1)}, 0")
                t.label(L + "_ok")
                t("s_waitcnt lgkmcnt(0)")
                for k in range(5): t(f"v_mov_b32 {v(dst(k))}, {v(VAC+4*k)}\nv_mov_b32 {v(dst(k)+1)}, {v(VAC+4*k+1)}")
                if nxt is not None: kv_loads(t, nxt)
            return only(0, body)
        self.stream_init(fr, [WW + 4 * i for i in range(8)] + [48, 52, 56, 60]); self.prime()
        self.stamp(1)
        def pack_ops(acc, dst):
            return [f"v_cvt_pk_bf16_f32 {v(dst(t)+k)}, {v(acc+4*t+2*k)}, {v(acc+4*t+2*k+1)}" for t in range(5) for k in range(2)]
        for ps in range(3):
            if ps == self.opt.get("cps", 9): a(f"s_setprio {self.opt['cprio']}")
            for st in range(20):
                if ps == 1 and st == 1:
                    self.side += pack_ops(ACC, lambda t: VF + 4 * t) + [kv_out(0)] + pack_ops(ACC, lambda t: KOWN + 2 * t)
                    self.side += [f"ds_write_b128 {v(xoK)}, {v(KOWN,4)}", f"ds_write_b128 {v(xoK)}, {v(KOWN+4,4)} offset:1024", f"ds_write_b64 {v(xoK8)}, {v(KOWN+8,2)} offset:2048", f"ds_write_b32 {v(vXo)}, {v(vOne)}"]
                if ps == 2 and st == 1:
                    self.side += pack_ops(VAC, lambda t: VF + 4 * t) + [kv_out(1), kv_issue(0)]
                    self.side += [f"ds_write_b64 {v(xoV)}, {v(VF+4*t,2)} offset:{2560+512*t}" for t in range(5)] + [f"ds_write_b32 {v(vXo)}, {v(vTwo)}"]
                if ps == 2 and st == 8:
                    rd, ck = self.async_check(vZ, L_MODE - L_CNT, 1, m + 14, "mode")
                    self.side += [rd] + [""] * 8 + [ck, f"v_readfirstlane_b32 {s(sMode)}, {v(m+14)}"]
                if ps == 2 and st == 12:
                    rd, ck = self.async_check(vXp, 0, 1, m + 13, "xr1")
                    self.side += [rd] + [""] * 8 + [ck, f"ds_read_b128 {v(KPREV,4)}, {v(vKp)}", f"ds_read_b128 {v(KPREV+4,4)}, {v(vKp)} offset:1024", (f"ds_read_b64 {v(KPREV+8,2)}, {v(vVp)} offset:2048", "kprev")]
                if ps == 2 and st == self.opt.get("kvt", 18):
                    self.side += [kv_take(0, lambda k: KPREV + 2 * k, 1)]
                for t in range(5):
                    f = ps * 100 + st * 5 + t
                    self.mfma_w(f, accs[ps] + 4 * t, AF + 4 * st, first=(st == 0), swap=(ps == 1))
            self.stamp(1)
        assert not self.side
        self.stamp()
        QF, SC, SP, PF, QP = AF, AF + 16, AF + 32, AF + 48, AF + 64
        pack5(ACC, lambda t: QF if t == 0 else (QF + 14 if t == 4 else QP + 2 * t))
        for hh in range(4):
            for k in range(2):
                if hh > 0: a(f"v_cndmask_b32 {v(QF+4*hh+k)}, 0, {v(QP+2*hh+k)}, {s(sGE(hh),2)}")
                if hh < 3: a(f"v_cndmask_b32 {v(QF+4*hh+2+k)}, {v(QP+2*(hh+1)+k)}, 0, {s(sGE(hh+1),2)}")
        a.wait(ds="kprev")
        for hh in range(4):
            a(f"{MF} {v(SC+4*hh,4)}, {v(KOWN+2*hh,4)}, {v(QF+4*hh,4)}, 0")
            a(f"{MF} {v(SP+4*hh,4)}, {v(KPREV+2*hh,4)}, {v(QF+4*hh,4)}, {v(BIAS,4)}")
        self.lds_spin(a, vXp, 0, 2, m + 14)
        for t in range(5):
            a(f"ds_read_b64 {v(VF+4*t+2,2)}, {v(vVp)} offset:{2560+512*t}", tag="vprev")
        la = [AF + 64 + hh for hh in range(4)]; lb = [AF + 68 + hh for hh in range(4)]; mx = [AF + 72 + hh for hh in range(4)]
        a(f"s_mov_b32 {s(sB)}, {f2u(20 ** -0.5 * math.log2(math.e)):#x}")
        for hh in range(4):
            c_, p_ = SC + 4 * hh, SP + 4 * hh
            a(f"v_cndmask_b32 {v(c_)}, {v(c_)}, {v(c_+1)}, {s(sPar,2)}\nv_cndmask_b32 {v(p_)}, {v(p_)}, {v(p_+1)}, {s(sPar,2)}")
            a(f"v_cndmask_b32 {v(c_+2)}, {v(c_+2)}, {v(c_+3)}, {s(sPar,2)}\nv_cndmask_b32 {v(p_+2)}, {v(p_+2)}, {v(p_+3)}, {s(sPar,2)}")
            a(f"v_cndmask_b32 {v(la[hh])}, {v(p_)}, {v(c_)}, {s(sMa,2)}\nv_cndmask_b32 {v(lb[hh])}, {v(p_+2)}, {v(c_+2)}, {s(sMb,2)}")
            a(f"v_max_f32 {v(mx[hh])}, {v(la[hh])}, {v(lb[hh])}")
        self.rscatter4(a, mx, "v_max_f32")
        a(f"v_mul_f32 {v(mx[0])}, {s(sB)}, {v(mx[0])}")
        self.allgather4(a, mx)
        for hh in range(4):
            a(f"v_fma_f32 {v(la[hh])}, {v(la[hh])}, {s(sB)}, -{v(mx[hh])}\nv_fma_f32 {v(lb[hh])}, {v(lb[hh])}, {s(sB)}, -{v(mx[hh])}")
        for hh in range(4):
            a(f"v_exp_f32 {v(la[hh])}, {v(la[hh])}\nv_exp_f32 {v(lb[hh])}, {v(lb[hh])}")
        for hh in range(4):
            a(f"v_add_f32 {v(mx[hh])}, {v(la[hh])}, {v(lb[hh])}")
        a.wait(ds="vprev")
        kv_take(1, lambda k: VF + 4 * k + 2)()
        for t in range(1, 4):
            for k in range(4): a(f"v_cndmask_b32 {v(VLO+4*(t-1)+k)}, 0, {v(VF+4*t+k)}, {s(sCM(t),2)}")
            for k in range(4): a(f"v_xor_b32 {v(VF+4*t+k)}, {v(VF+4*t+k)}, {v(VLO+4*(t-1)+k)}")
        self.rscatter4(a, mx, "v_add_f32")
        a(f"v_rcp_f32 {v(mx[0])}, {v(mx[0])}")
        self.allgather4(a, mx)
        for hh in range(4):
            a(f"v_mul_f32 {v(la[hh])}, {v(la[hh])}, {v(mx[hh])}\nv_mul_f32 {v(lb[hh])}, {v(lb[hh])}, {v(mx[hh])}")
            a(f"v_cvt_pk_bf16_f32 {v(la[hh])}, {v(la[hh])}, {v(la[hh])}\nv_cvt_pk_bf16_f32 {v(lb[hh])}, {v(lb[hh])}, {v(lb[hh])}")
            a(f"v_and_b32 {v(PF+4*hh)}, {v(la[hh])}, {v(MK)}\nv_and_b32 {v(PF+4*hh+1)}, {v(lb[hh])}, {v(MK+1)}")
            a(f"v_and_b32 {v(PF+4*hh+2)}, {v(la[hh])}, {v(MK+2)}\nv_and_b32 {v(PF+4*hh+3)}, {v(lb[hh])}, {v(MK+3)}")
        for hh in range(4):
            a(f"{MF} {v(ACC+4*hh,4)}, {v(VF+4*hh,4)}, {v(PF+4*hh,4)}, {'0' if hh == 0 else v(ACC+4*hh,4)}")
            lo = VF + 16 if hh == 3 else VLO + 4 * hh
            a(f"{MF} {v(ACC+4*hh+4,4)}, {v(lo,4)}, {v(PF+4*hh,4)}, 0")
        self.publish(U_X + 1)
        OP = TT
        pack5(ACC, lambda t: OP + 2 * t)
        self.handoff_store(OP, BUFA)
        vA16, vA8, vF8 = m + 6, m + 7, m + 8
        a(f"v_add_u32 {v(vA16)}, {s(sTile)}, {v(vL16)}\ns_add_u32 {s(sB)}, {s(sTile)}, 2048\nv_add_u32 {v(vA8)}, {s(sB)}, {v(vL8)}")
        a(f"v_and_b32 {v(vF8)}, 7, {v(vLane)}\nv_lshlrev_b32 {v(vF8)}, 3, {v(vF8)}\nv_add_u32 {v(vF8)}, {s(sTile)}, {v(vF8)}")
        a("s_waitcnt vmcnt(0)")
        self.flag_store(F1)
        self.stamp()

        def unpack_acc(src, fn=None):
            for t in range(5):
                for k in range(2):
                    a(f"v_lshlrev_b32 {v(ACC+4*t+2*k)}, 16, {v(src+2*t+k)}\nv_and_b32 {v(ACC+4*t+2*k+1)}, 0xffff0000, {v(src+2*t+k)}")
        def frags640(u0): return [(u0 + st // 5, (st % 5) * 5120 + 1024 * t, "pk") for st in range(20) for t in range(5)]
        def load_A(buf, v16=None, v8=None):
            self.stamp(self.ph)
            for i in range(4):
                a(f"s_mul_i32 {s(sA)}, {s(sRot+i)}, 5120\ns_add_u32 {s(sA)}, {s(sA)}, {buf}")
                a16 = vA16 if v16 is None else v16[i]; a8 = vA8 if v8 is None else v8[i]
                for uu, imm in enumerate((0, 1024, 2560, 3584)):
                    a(f"buffer_load_dwordx4 {v(AF+20*i+4*uu,4)}, {v(a16)}, {s(sWS,4)}, {s(sA)} offen offset:{imm} sc1", tag=("A", 5*i+uu))
                a(f"buffer_load_dwordx2 {v(AF+20*i+16,2)}, {v(a8)}, {s(sWS,4)}, {s(sA)} offen sc1")
                a(f"buffer_load_dwordx2 {v(AF+20*i+18,2)}, {v(a8)}, {s(sWS,4)}, {s(sA)} offen offset:2560 sc1", tag=("A", 5*i+4))
        def gemm640():
            for st in range(20):
                a.wait(vm=("A", st))
                if st in (0, 10, 19): self.stamp(self.ph)
                for t in range(5): self.mfma_w(st * 5 + t, ACC + 4 * t, AF + 4 * st)
            self.stamp(self.ph)
        def stats_store(src, off):
            x_, y_ = TT + 12, TT + 13
            a(f"v_mov_b32 {v(x_)}, 0\nv_mov_b32 {v(y_)}, 0")
            for k in range(10):
                a(f"v_dot2c_f32_bf16 {v(x_)}, {s(sOnes)}, {v(src+k)}\nv_dot2c_f32_bf16 {v(y_)}, {v(src+k)}, {v(src+k)}")
            self.allreduce2(a, x_, y_, None)
            a(f"v_mov_b32 {v(TT+14)}, {s(sTag)}\nv_mov_b32 {v(TT+15)}, {s(sTag+1)}")
            a(f"s_lshl_b32 {s(sA)}, {s(sJ)}, 8\ns_add_u32 {s(sA)}, {s(sA)}, {s(sTile)}\ns_add_u32 {s(sA)}, {s(sA)}, {off}")
            self.stamp(self.ph)
            a("s_waitcnt vmcnt(0)")
            self.stamp(self.ph)
            a("s_mov_b64 exec, 0xffff")
            self.moded([f"buffer_store_dwordx4 {v(TT+12,4)}, {v(vL16)}, {s(sWS,4)}, {s(sA)} offen"])
            a("s_mov_b64 exec, -1")
        def stats_poll(off):
            L = a.newlabel("Lp"); Lok = L + "_ok"
            e0, e1 = TT + 12, TT + 16
            a(f"s_mov_b32 {s(sA)}, {off}")
            a.label(L)
            a(f"buffer_load_dwordx4 {v(e0,4)}, {v(vA16)}, {s(sWS,4)}, {s(sA)} offen sc1")
            a(f"buffer_load_dwordx4 {v(e1,4)}, {v(vA16)}, {s(sWS,4)}, {s(sA)} offen offset:1024 sc1")
            a(f"s_waitcnt vmcnt(0)\nv_cmp_ne_u64 vcc, {s(sTag,2)}, {v(e0+2,2)}\nv_cmp_ne_u64 {s(sMk,2)}, {s(sTag,2)}, {v(e1+2,2)}")
            a(f"s_or_b64 vcc, vcc, {s(sMk,2)}\ns_cbranch_scc0 {Lok}")
            self.spin_tail(a, L, Lok)
            a.label(Lok)
        def stats_finish(mu, var):
            e0, e1 = TT + 12, TT + 16
            a(f"v_add_f32 {v(mu)}, {v(e0)}, {v(e1)}\nv_add_f32 {v(var)}, {v(e0+1)}, {v(e1+1)}")
            self.allreduce2(a, mu, var, None)
            a(f"v_mul_f32 {v(mu)}, {f2u(-1.0/640):#x}, {v(mu)}")
            return [f"v_mul_f32 {v(var)}, {inv:#x}, {v(var)}", f"v_fma_f32 {v(var)}, -{v(mu)}, {v(mu)}, {v(var)}", f"v_max_f32 {v(var)}, 0, {v(var)}"]
        c0 = -2 * math.sqrt(2 / math.pi) * math.log2(math.e)
        GK = KOWN
        def gelu_consts(R):
            return [f"v_mul_f32 {v(GK)}, {f2u(c0):#x}, {v(R)}", f"v_mul_f32 {v(GK+1)}, {v(R)}, {v(R)}", f"v_mul_f32 {v(GK+1)}, {v(GK+1)}, {v(GK)}",
                    f"v_mul_f32 {v(GK+1)}, {f2u(0.044715):#x}, {v(GK+1)}", f"v_rcp_f32 {v(GK+2)}, {v(R)}"]
        def gelu_ops(acc, n, dst, tmp, pk=True):
            ops = []
            for b in range(0, n, 4):
                P = [(acc + b, tmp), (acc + b + 2, tmp + 2)]
                if pk:
                    for x_, t_ in P: ops.append(f"v_pk_mul_f32 {v(t_,2)}, {v(x_,2)}, {v(x_,2)}")
                    for x_, t_ in P: ops.append(f"v_pk_fma_f32 {v(t_,2)}, {v(t_,2)}, {v(GK,2)}, {v(GK,2)} op_sel:[0,1,0] op_sel_hi:[1,1,0]")
                    for x_, t_ in P: ops.append(f"v_pk_mul_f32 {v(t_,2)}, {v(t_,2)}, {v(x_,2)}")
                    for k in range(4): ops.append(f"v_exp_f32 {v(tmp+k)}, {v(tmp+k)}")
                    for x_, t_ in P: ops.append(f"v_pk_fma_f32 {v(t_,2)}, {v(t_,2)}, {v(GK+2,2)}, {v(GK+2,2)} op_sel_hi:[1,0,0]")
                    for k in range(4): ops.append(f"v_rcp_f32 {v(tmp+k)}, {v(tmp+k)}")
                    for x_, t_ in P: ops.append(f"v_pk_mul_f32 {v(t_,2)}, {v(t_,2)}, {v(x_,2)}")
                else:
                    for k in range(4): ops.append(f"v_mul_f32 {v(tmp+k)}, {v(acc+b+k)}, {v(acc+b+k)}")
                    for k in range(4): ops.append(f"v_fma_f32 {v(tmp+k)}, {v(tmp+k)}, {v(GK+1)}, {v(GK)}")
                    for k in range(4): ops.append(f"v_mul_f32 {v(tmp+k)}, {v(tmp+k)}, {v(acc+b+k)}")
                    for k in range(4): ops.append(f"v_exp_f32 {v(tmp+k)}, {v(tmp+k)}")
                    for k in range(4): ops.append(f"v_fma_f32 {v(tmp+k)}, {v(tmp+k)}, {v(GK+2)}, {v(GK+2)}")
                    for k in range(4): ops.append(f"v_rcp_f32 {v(tmp+k)}, {v(tmp+k)}")
                    for k in range(4): ops.append(f"v_mul_f32 {v(tmp+k)}, {v(tmp+k)}, {v(acc+b+k)}")
                for i_, (x_, t_) in enumerate(P): ops.append(f"v_cvt_pk_bf16_f32 {v(dst+b//2+i_)}, {v(t_)}, {v(t_+1)}")
            return ops

        a.label("L_P2")
        if self.opt.get("cprio"): a(f"s_setprio {self.opt['cprio']}")
        self.ph = 2; self.stamp(2)
        self.stream_init(frags640(U_WO), SLOTS12, 4); self.prime()
        self.stamp(2)
        unpack_acc(X1P)
        a(f"s_mov_b32 {s(sB)}, {F1}")
        self.poll8(a, vF8, s(sB), TT + 12)
        load_A(BUFA); gemm640()
        pack5(ACC, lambda t: HP + 2 * t)
        self.handoff_store(HP, BUFB)
        stats_store(HP, S2)
        self.stamp()
        a.label("L_P3")
        self.ph = 3; self.stamp(3)
        self.stream_init(frags640(U_W1), SLOTS12, 4); self.prime()
        self.stamp(3)
        self.lds_spin(a, vZ, L_CSRDY - L_CNT, 2, vLC)
        vCS = m + 9
        a(f"v_lshlrev_b32 {v(vCS)}, 4, {v(vG)}\nv_add_u32 {v(vCS)}, {L_CS1}, {v(vCS)}")
        for t in range(5): a(f"ds_read_b128 {v(ACC+4*t,4)}, {v(vCS)} offset:{64*t}", tag="cs")
        stats_poll(S2)
        load_A(BUFB)
        MU, RS = KOWN + 4, KOWN + 5
        var, R = KOWN + 6, KOWN + 7
        rest = stats_finish(MU, var)
        a.wait(ds="cs")
        for k in range(20): a(f"v_mul_f32 {v(ACC+k)}, {v(MU)}, {v(ACC+k)}")
        eps = f"{f2u(1e-5):#x}"
        self.side += rest + [f"v_add_f32 {v(R)}, {eps}, {v(var)}", f"v_rsq_f32 {v(RS)}, {v(R)}", f"v_mul_f32 {v(R)}, {v(RS)}, {v(RS)}", f"v_mul_f32 {v(R)}, {v(R)}, {v(var)}",
                             f"v_add_f32 {v(R)}, {eps}, {v(R)}", f"v_rsq_f32 {v(R)}, {v(R)}", f"v_mul_f32 {v(R)}, {v(R)}, {v(RS)}"] + gelu_consts(R)
        gemm640()
        for op in gelu_ops(ACC, 20, OP, TT + 12): a(op)
        self.stamp(3)
        self.handoff_store(OP, BUFA)
        Lsh = a.newlabel("Lsh"); Lshb = Lsh + "_b"
        a(f"s_bitcmp1_b32 {s(sJ)}, 1\ns_cselect_b32 {s(sB)}, 0, 3\ns_cmp_eq_u32 {s(sWave)}, {s(sB)}\ns_cbranch_scc1 {Lsh}")
        a("s_waitcnt vmcnt(0)")
        self.flag_store(F3)
        a.label(Lshb)
        self.stamp(3)
        t = self.t
        t.label(Lsh); t.reset_hist()
        t(f"s_bitcmp1_b32 {s(sJ)}, 1\ns_mov_b32 {s(sSh)}, 0xc000c000\ns_cselect_b32 {s(sSh)}, 0x00030003, {s(sSh)}\ns_mov_b32 {s(sSh+1)}, {s(sSh)}")
        t(f"s_add_u32 {s(sA)}, {s(sTJ)}, {SHAD}\ns_mov_b64 exec, {s(sSh,2)}")
        t(f"buffer_store_dwordx4 {v(OP,4)}, {v(vL16)}, {s(sWS,4)}, {s(sA)} offen sc1")
        t(f"buffer_store_dwordx4 {v(OP+4,4)}, {v(vL16)}, {s(sWS,4)}, {s(sA)} offen offset:1024 sc1")
        t(f"buffer_store_dwordx2 {v(OP+8,2)}, {v(vL8)}, {s(sWS,4)}, {s(sA)} offen offset:2048 sc1")
        t(f"s_lshl_b32 {s(sA)}, {s(sJ)}, 3\ns_add_u32 {s(sA)}, {s(sA)}, {s(sTile)}\ns_add_u32 {s(sA)}, {s(sA)}, {F3}\ns_mov_b64 exec, 1")
        t(f"s_waitcnt vmcnt(3)\ns_cmp_lg_u32 {s(sMode)}, 1\ns_cbranch_scc1 {Lsh}_s")
        t(f"buffer_store_dwordx2 {v(self.vTag,2)}, {v(self.vZero)}, {s(sWS,4)}, {s(sA)} offen\ns_branch {Lsh}_t")
        t.label(Lsh + "_s")
        t(f"buffer_store_dwordx2 {v(self.vTag,2)}, {v(self.vZero)}, {s(sWS,4)}, {s(sA)} offen sc1")
        t.label(Lsh + "_t")
        t(f"s_waitcnt vmcnt(1)\nbuffer_store_dwordx2 {v(self.vTag,2)}, {v(self.vZero)}, {s(sWS,4)}, {s(sA)} offen offset:{FH-F3} sc1")
        t(f"s_mov_b64 exec, -1\ns_branch {Lshb}")
        self.stamp()
        a.label("L_P4")
        self.ph = 4; self.stamp(4)
        self.stream_init(frags640(U_W2), SLOTS12, 4); self.prime()
        self.stamp(4)
        unpack_acc(HP)
        a(f"v_mul_f32 {v(var)}, {v(MU)}, {v(RS)}")
        for k in range(20): a(f"v_fma_f32 {v(ACC+k)}, {v(ACC+k)}, {v(RS)}, {v(var)}")
        sPv, sNx = sD, sE
        a(f"s_sub_u32 {s(sPv)}, {s(sTile)}, {TS}\ns_add_u32 {s(sA)}, {s(sPv)}, {SHAD}\ns_cmp_eq_u32 {s(sWave)}, 0\ns_cselect_b32 {s(sPv)}, {s(sA)}, {s(sPv)}")
        a(f"s_cmp_eq_u32 {s(sT)}, 0\ns_cselect_b32 {s(sPv)}, {OOB}, {s(sPv)}")
        a(f"s_add_u32 {s(sNx)}, {s(sTile)}, {TS}\ns_add_u32 {s(sA)}, {s(sNx)}, {SHAD}\ns_cmp_eq_u32 {s(sWave)}, 3\ns_cselect_b32 {s(sNx)}, {s(sA)}, {s(sNx)}")
        a(f"s_cmp_eq_u32 {s(sT)}, 127\ns_cselect_b32 {s(sNx)}, {OOB}, {s(sNx)}")
        v16 = [VFR + i for i in range(4)]; v8 = [VFR + 4 + i for i in range(4)]
        tb, tr_ = VFR + 8, VFR + 9
        for i in range(4):
            a(f"s_lshr_b32 {s(sA)}, {s(sRot+i)}, 1\ns_add_u32 {s(sA)}, {s(sA)}, 1\ns_sub_u32 {s(sB)}, 0, {s(sA)}\ns_bitcmp1_b32 {s(sRot+i)}, 0\ns_cselect_b32 {s(sA)}, {s(sA)}, {s(sB)}")
            a(f"s_cselect_b32 {s(sB)}, {s(sNx)}, {s(sPv)}")
            a(f"v_add_u32 {v(tr_)}, {s(sA)}, {v(vR)}\nv_cmp_lt_u32 vcc, 15, {v(tr_)}")
            a(f"v_mov_b32 {v(tb)}, {s(sTile)}\nv_mov_b32 {v(v8[i])}, {s(sB)}\nv_cndmask_b32 {v(tb)}, {v(tb)}, {v(v8[i])}, vcc")
            a(f"v_and_b32 {v(tr_)}, 15, {v(tr_)}\nv_lshl_add_u32 {v(tr_)}, {v(vG)}, 4, {v(tr_)}")
            a(f"v_lshl_add_u32 {v(v16[i])}, {v(tr_)}, 4, {v(tb)}\nv_lshl_add_u32 {v(v8[i])}, {v(tr_)}, 3, {v(tb)}\nv_add_u32 {v(v8[i])}, 2048, {v(v8[i])}")
        fa = VFR + 10
        a(f"s_sub_u32 {s(sA)}, {s(sTile)}, {TS}\ns_add_u32 {s(sB)}, {s(sA)}, {FH-F3}\ns_cmp_eq_u32 {s(sWave)}, 0\ns_cselect_b32 {s(sA)}, {s(sB)}, {s(sA)}")
        a(f"s_cmp_eq_u32 {s(sT)}, 0\ns_cselect_b32 {s(sA)}, {s(sTile)}, {s(sA)}")
        a(f"s_add_u32 {s(sCc)}, {s(sTile)}, {TS}\ns_add_u32 {s(sB)}, {s(sCc)}, {FH-F3}\ns_cmp_eq_u32 {s(sWave)}, 3\ns_cselect_b32 {s(sCc)}, {s(sB)}, {s(sCc)}")
        a(f"s_cmp_eq_u32 {s(sT)}, 127\ns_cselect_b32 {s(sCc)}, {s(sTile)}, {s(sCc)}")
        a(f"v_mov_b32 {v(tb)}, {s(sA)}\nv_mov_b32 {v(tr_)}, {s(sCc)}\nv_and_b32 {v(fa)}, 2, {v(vLane)}\nv_cmp_ne_u32 vcc, 0, {v(fa)}")
        a(f"v_cndmask_b32 {v(tb)}, {v(tb)}, {v(tr_)}, vcc\nv_mov_b32 {v(tr_)}, {s(sTile)}\nv_and_b32 {v(fa)}, 8, {v(vLane)}\nv_cmp_ne_u32 vcc, 0, {v(fa)}")
        a(f"v_cndmask_b32 {v(tb)}, {v(tr_)}, {v(tb)}, vcc\nv_and_b32 {v(fa)}, 7, {v(vLane)}\nv_lshl_add_u32 {v(fa)}, {v(fa)}, 3, {v(tb)}")
        a(f"s_mov_b32 {s(sB)}, {F3}")
        self.poll8(a, fa, s(sB), TT + 12)
        load_A(BUFA, v16, v8); gemm640()
        pack5(ACC, lambda t: X1P + 2 * t)
        self.handoff_store(X1P, BUFB)
        stats_store(X1P, S4)
        self.stamp()
        a.label("L_P5")
        fr5 = [(U_W3 + ch * 4 + st // 5, (st % 5) * 4096 + 1024 * tt, "pk") for ch in range(3) for st in range(20) for tt in range(4)]
        self.ph = 5; self.stamp(5)
        self.stream_init(fr5, SLOTS12, 4); self.prime()
        self.stamp(5)
        for k in range(8): a(f"ds_read_b128 {v(ACC+4*k,4)}, {v(vCS)} offset:{L_CS3-L_CS1+64*k}", tag="cs")
        stats_poll(S4)
        load_A(BUFB)
        rest = stats_finish(MU, var)
        a.wait(ds="cs")
        for k in range(16): a(f"v_mul_f32 {v(ACC+k)}, {v(MU)}, {v(ACC+k)}")
        self.side += [f"v_mul_f32 {v(ACC+k)}, {v(MU)}, {v(ACC+k)}" for k in range(16, 32)] + rest + [f"v_add_f32 {v(R)}, {eps}, {v(var)}", f"v_rsq_f32 {v(R)}, {v(R)}"] + gelu_consts(R)
        GP = TT
        A6 = ACC + 16
        def g_store(ch):
            a(f"s_lshl_b32 {s(sA)}, {s(sJ)}, 11\ns_add_u32 {s(sA)}, {s(sA)}, {s(sTile)}\ns_add_u32 {s(sA)}, {s(sA)}, {GBUF[ch]}")
            self.moded([f"buffer_store_dwordx4 {v(GP,4)}, {v(vL16)}, {s(sWS,4)}, {s(sA)} offen",
                        f"buffer_store_dwordx4 {v(GP+4,4)}, {v(vL16)}, {s(sWS,4)}, {s(sA)} offen offset:1024"], tag=("gst", ch))
        def g_flag(ch):
            a.wait(vm=("gst", ch))
            self.flag_store(G0 + 128 * ch)
        PL = TT + 16
        def g_poll_issue(ch):
            a(f"s_mov_b32 {s(sB)}, {G0 + 128*ch}\nbuffer_load_dwordx2 {v(PL,2)}, {v(vF8)}, {s(sWS,4)}, {s(sB)} offen sc1", tag=("gp", ch))
        def g_poll_check(ch):
            L = a.newlabel("Lg"); Lok = L + "_ok"
            a.wait(vm=("gp", ch))
            a(f"v_cmp_ne_u64 vcc, {s(sTag,2)}, {v(PL,2)}\ns_cbranch_vccnz {L}")
            a.label(Lok)
            t = self.t
            t.label(L); t.reset_hist()
            t(f"s_mov_b32 {s(sB)}, {G0 + 128*ch}\nbuffer_load_dwordx2 {v(PL,2)}, {v(vF8)}, {s(sWS,4)}, {s(sB)} offen sc1")
            t(f"s_waitcnt vmcnt(0)\nv_cmp_ne_u64 vcc, {s(sTag,2)}, {v(PL,2)}\ns_cbranch_vccz {Lok}")
            self.spin_tail(t, L, Lok)
        sG = sD
        def loadG(st):
            if st % 4 == 0:
                ch, ui = st // 16, (st % 16) // 4
                a(f"s_lshl_b32 {s(sG)}, {s(sRot+ui)}, 12\ns_add_u32 {s(sG)}, {s(sG)}, {GBUF[ch]}")
            a(f"buffer_load_dwordx4 {v(AF+4*(st%20),4)}, {v(vA16)}, {s(sWS,4)}, {s(sG)} offen offset:{(st%4)*1024} sc1", tag=("G", st))
        for ch in range(3):
            acc = ACC + 16 * (ch & 1)
            self.stamp(5)
            side = gelu_ops(ACC + 16 * ((ch - 1) & 1), 16, GP, TT + 12, pk=False) if ch > 0 else []
            si = 0
            for st in range(20):
                if ch == 0: a.wait(vm=("A", st))
                for tt in range(4):
                    self.mfma_w(ch * 80 + st * 4 + tt, acc + 4 * tt, AF + 4 * st)
                    n = st * 4 + tt
                    if n >= 3:
                        while si < len(side) and si < (n - 2) * len(side) // 62:
                            a(side[si]); si += 1
                if ch > 0 and st == 16:
                    assert si == len(side)
                    if ch == 2: g_poll_check(0)
                    g_store(ch - 1)
                    if ch == 1:
                        for k in range(4): a(f"ds_read_b128 {v(ACC+4*k,4)}, {v(vCS)} offset:{L_CS3-L_CS1+64*(8+k)}", tag="cs")
                if ch == 1 and st == 18:
                    a.wait(ds="cs")
                    for k in range(16): a(f"v_mul_f32 {v(ACC+k)}, {v(MU)}, {v(ACC+k)}")
                if ch == 2 and st == 2: g_flag(0)
                if ch == 2 and st == 12: g_poll_issue(0)
        self.stamp(5)
        for st in range(16): loadG(st)
        g_flag(1)
        for op in gelu_ops(ACC, 16, GP, TT + 12): a(op)
        g_store(2)
        g_poll_issue(1)
        self.stamp(5)
        self.stamp()
        a.label("L_P6")
        fr6 = [(U_W4 + st // 4, (st % 4) * 5120 + 1024 * t, "pk") for st in range(48) for t in range(5)]
        self.stamp(6)
        self.stream_init(fr6, SLOTS12, 4); self.prime()
        self.stamp(6)
        unpack_acc(HP)
        for t in range(5):
            for k in range(2):
                a(f"v_lshlrev_b32 {v(TT+12)}, 16, {v(X1P+2*t+k)}\nv_and_b32 {v(TT+13)}, 0xffff0000, {v(X1P+2*t+k)}")
                a(f"v_pk_add_f32 {v(ACC+4*t+2*k,2)}, {v(ACC+4*t+2*k,2)}, {v(TT+12,2)}")
        self.stamp(6)
        nxt = 16
        for st in range(48):
            a.wait(vm=("G", st))
            if st in (0, 12, 24, 36, 47): self.stamp(6)
            for t in range(5): self.mfma_w(st * 5 + t, ACC + 4 * t, AF + 4 * (st % 20))
            if st == 1:
                g_flag(2); g_poll_check(1)
            PI2, PC2 = self.opt.get("pi2", 13), self.opt.get("pc2", 18)
            if st == PI2: g_poll_issue(2)
            if st == PC2: g_poll_check(2)
            if st >= 1:
                cnt = 0
                while nxt < 48 and nxt <= st + 20 and cnt < 3 and (nxt < 32 or st >= PC2):
                    cnt += 1
                    loadG(nxt); nxt += 1
        self.stamp(6)
        pack5(ACC, lambda t: OP + 2 * t)
        sg, sr, so = VFR + 1, VFR + 2, VFR + 3
        a(f"s_mul_i32 {s(sB)}, {s(sWave)}, 2560\ns_add_u32 {s(sB)}, {s(sB)}, {STAGE}")
        a(f"v_mul_u32_u24 {v(sg)}, 160, {v(vR)}\nv_lshl_add_u32 {v(sg)}, {v(vG)}, 3, {v(sg)}\nv_add_u32 {v(sg)}, {s(sB)}, {v(sg)}\nv_add_u32 {v(sr)}, {s(sB)}, {v(vL16)}")
        for t in range(5): a(f"ds_write_b64 {v(sg)}, {v(OP+2*t,2)} offset:{32*t}")
        for k in range(3): a(f"ds_read_b128 {v(AF+4*k,4)}, {v(sr)} offset:{1024*k}", tag=("o", k))
        self.srd(a, sOUT, 20, 2048 * 1280)
        a(f"s_mul_i32 {s(sA)}, {s(sT)}, {16*1280}\ns_mul_i32 {s(sB)}, {s(sJ)}, 160\ns_add_u32 {s(sA)}, {s(sA)}, {s(sB)}")
        for k in range(3):
            a(f"v_add_u32 {v(so)}, {64*k}, {v(vLane)}\nv_mul_u32_u24 {v(so+1)}, 6554, {v(so)}\nv_lshrrev_b32 {v(so+1)}, 16, {v(so+1)}")
            a(f"v_mul_u32_u24 {v(so+1)}, 1120, {v(so+1)}\nv_lshl_add_u32 {v(so+2+k)}, {v(so)}, 4, {v(so+1)}")
        for k in range(3):
            a.wait(ds=("o", k))
            if k == 2: a("s_mov_b32 exec_hi, 0")
            a(f"buffer_store_dwordx4 {v(AF+4*k,4)}, {v(so+2+k)}, {s(sOUT,4)}, {s(sA)} offen{('', ' sc1', ' nt', ' sc0 sc1')[self.opt.get('osc', 0)]}")
        a("s_mov_b64 exec, -1")
        self.stamp()
        self.finish(a)

    def finish(self, a):
        if self.stamps and self.opt.get("enc"):
            L = a.newlabel("Len"); k = self.opt["enc"]
            a("s_waitcnt vmcnt(0) lgkmcnt(0)")
            a(f"{self.clk} {s(sSt+22,2)}\ns_waitcnt lgkmcnt(0)\ns_cmp_lg_u32 {s(sWave)}, 1\ns_cbranch_scc1 {L}_e\ns_cmp_lg_u32 s2, {self.opt.get('encb', 77)}\ns_cbranch_scc1 {L}_e")
            a(f"s_sub_u32 {s(sA)}, {s(sSt+2*k)}, {s(sSt)}\ns_lshl_b32 {s(sA)}, {s(sA)}, 1\ns_min_u32 {s(sA)}, {s(sA)}, 20000")
            a.label(L)
            a(f"{self.clk} s[4:5]\ns_waitcnt lgkmcnt(0)\ns_sub_u32 s4, s4, {s(sSt+22)}\ns_cmp_lt_u32 s4, {s(sA)}\ns_cbranch_scc1 {L}")
            a.label(L + "_e")
        elif self.stamps and self.opt.get("dbg"):
            L = a.newlabel("Ldb")
            a("s_waitcnt vmcnt(0) lgkmcnt(0)")
            a(f"{self.clk} {s(sSt+22,2)}\ns_load_dwordx2 s[4:5], s[0:1], 72\ns_waitcnt lgkmcnt(0)\ns_cmp_lg_u32 {s(sWave)}, {self.opt['dbg']-1}\ns_cbranch_scc1 {L}")
            a("v_mov_b32 v0, 0\ns_mov_b64 exec, 1")
            for k in range(12):
                a(f"v_mov_b32 v12, {s(sSt+2*k)}\nglobal_atomic_umax v0, v12, s[4:5] offset:{4*k}")
            a(f"s_not_b32 {s(sA)}, {s(sSt)}\nv_mov_b32 v12, {s(sA)}\nglobal_atomic_umax v0, v12, s[4:5] offset:60")
            a.label(L)
        elif self.stamps:
            a("s_waitcnt vmcnt(0) lgkmcnt(0)")
            a(f"{self.clk} {s(sSt+22,2)}\ns_waitcnt lgkmcnt(0)")
            a(f"s_lshl_b32 {s(sA)}, s2, 3\ns_add_u32 {s(sA)}, {s(sA)}, {s(sWave)}\ns_lshl_b32 {s(sA)}, {s(sA)}, 7\ns_add_u32 {s(sA)}, {s(sA)}, {WS_STAMP}")
            a("v_mov_b32 v0, 0\ns_mov_b64 exec, 1")
            for k in range(12):
                a(f"v_mov_b32 v12, {s(sSt+2*k)}\nv_mov_b32 v13, {s(sBud)}")
                a(f"buffer_store_dwordx2 v[12:13], v0, {s(sWS,4)}, {s(sA)} offen offset:{8*k}")
        a("s_endpgm")

    def pf_wait(self, a, base, n2, tmp):
        per = {20: 20, 30: 60, 48: 48}[n2]
        if n2 == 30: a(f"s_mul_i32 {s(sA)}, {s(sJ)}, {60*8}")
        else: a(f"s_mul_i32 {s(sA)}, {s(sJ)}, 5\ns_lshr_b32 {s(sA)}, {s(sA)}, 2\ns_mul_i32 {s(sA)}, {s(sA)}, {per*8}")
        a(f"s_add_u32 {s(sA)}, {s(sA)}, {WS_PF + base*8}")
        a(f"v_min_u32 {v(tmp)}, {n2-1}, {v(vLane)}\nv_lshlrev_b32 {v(tmp)}, 4, {v(tmp)}")
        L = a.newlabel("Lpf"); Lok = L + "_ok"
        a.label(L)
        a(f"buffer_load_dwordx4 {v(tmp+4,4)}, {v(tmp)}, {s(sWS,4)}, {s(sA)} offen sc1")
        a(f"s_waitcnt vmcnt(0)\nv_cmp_ne_u64 vcc, {s(sTag,2)}, {v(tmp+4,2)}\nv_cmp_ne_u64 {s(sMk,2)}, {s(sTag,2)}, {v(tmp+6,2)}")
        a(f"s_or_b64 vcc, vcc, {s(sMk,2)}\ns_cbranch_scc0 {Lok}\ns_sleep 8")
        self.spin_tail(a, L, Lok)
        a.label(Lok)

    def helper_start(self):
        a = self.a; c = self.PC
        a(f"s_lshl_b32 {s(sA)}, 1, {s(sWave)}\ns_and_b32 {s(sA)}, {s(sA)}, 0xb0\ns_cbranch_scc0 L_compute")
        a(f"s_setprio 3\ns_min_u32 {s(sA)}, {s(sWave)}, 6\ns_sub_u32 {s(sA)}, {s(sA)}, 4\ns_lshl_b32 s70, {s(sA)}, 11\ns_add_u32 s70, s70, {L_PSCR}")
        a(f"s_lshl_b32 s63, {s(sA)}, 8\ns_add_u32 s63, s63, s2\ns_add_u32 s63, s63, {200 if self.opt.get('rawk') else 0}\nv_mov_b32 {v(c+7)}, 0")
        self.pk_A(a, 0, 64, pre_wait=True)
        self.srd(a, sWS, 24, WS_SIZE)
        a(f"s_cmp_eq_u32 {s(sWave)}, 7\ns_cbranch_scc1 L_service\ns_branch L_loader")
        a.label("L_compute"); a.reset_hist(); a.reset_cnt()

    def loader(self):
        a = self.a
        a.label("L_loader"); a.reset_hist(); a.reset_cnt(); self.nst = 1; self.inhelper = True; a.vm = [("raw", 0)] * 4
        sL = sMode
        a(f"s_and_b32 {s(sL)}, {s(sWave)}, 1")
        self.srd(a, sIN, 20, 2048 * 1280)
        a(f"v_and_b32 v13, 15, {v(vLane)}\nv_lshlrev_b32 v46, 19, v13\nv_lshlrev_b32 v47, 20, v13\ns_mov_b64 exec, 0x3ff")
        a(f"buffer_load_dword v49, v47, {s(sWS,4)}, 0 offen offset:128 sc1\nbuffer_load_dword v50, v46, {s(sIN,4)}, 0 offen\ns_mov_b64 exec, -1")
        a(f"v_and_b32 v12, 3, {v(vLane)}\nv_mul_u32_u24 v12, 260, v12\nv_add_u32 v12, {L_CW}, v12")
        a(f"s_lshl_b32 {s(sA)}, {s(sL)}, 8\ns_add_u32 {s(sA)}, {s(sA)}, {L_LW}\nv_lshl_add_u32 v11, {v(vLane)}, 2, {s(sA)}")
        self.pack_seq(a)
        for k in (1, 2): self.pk_B(a, k, 64 + 16 * k, 192 + 16 * (k & 1), 224)
        self.stamp()
        pend = []
        MAXF = self.opt.get("maxf", 24)
        def publish_upto(u, A=None):
            (A or a)(f"v_mov_b32 v13, {u+1}\nds_max_u32 v11, v13")
        def throttle():
            if len(a.vm) > MAXF: a(f"s_waitcnt vmcnt({MAXF})")
            while pend and ("u", pend[0]) not in a.vm:
                publish_upto(pend.pop(0))
        def guarded_wait(addr, off, need, sleep, pre=False):
            L = a.newlabel("Lf"); Lok = L + "_ok"
            if pre: a(f"s_waitcnt lgkmcnt(0)\nv_cmp_gt_u32 vcc, {need}, v14\ns_cbranch_vccnz {L}")
            else: a(f"s_branch {L}")
            a.label(Lok)
            t = self.t
            t.label(L); t.reset_hist(); t.vm = list(a.vm)
            self.a = t
            t(f"ds_read_b32 v13, {v(addr)} offset:{off}\ns_waitcnt lgkmcnt(0)\nv_cmp_gt_u32 vcc, {need}, v13\ns_cbranch_vccz {Lok}")
            for pi_, pu in enumerate(pend):
                t.wait(vm=("u", pu)); publish_upto(pu, t)
                if pi_ < len(pend) - 1:
                    t(f"ds_read_b32 v13, {v(addr)} offset:{off}\ns_waitcnt lgkmcnt(0)\nv_cmp_gt_u32 vcc, {need}, v13\ns_cbranch_vccz {Lok}")
            self.lds_spin(t, addr, off, need, 13, sleep=sleep)
            t(f"s_branch {Lok}")
            self.a = a
        sJ1, sJ2, sH1, sH2 = 64, 65, 66, 67
        sR5, sR4a, sR4b = 8, 13, 68
        have = 0; pre = False
        U0 = U_RAW + (5 if self.opt.get("rawk") else 0)
        todo = [u for u in range(U0, len(UNITS)) if UNITS[u][1] != "pseudo"]
        def need_of(u):
            nd = UNEED[u]
            if nd in (U_W1, U_W2) and not self.opt.get("nodefer"): nd += 1
            while nd and nd not in PUBS: nd += 1
            assert nd <= u, (u, nd)
            return nd
        def consts():
            a(f"s_mul_i32 {s(sH1)}, {s(sL)}, 12288\ns_mul_i32 {s(sH2)}, {s(sL)}, 10240\ns_mul_i32 {s(sJ1)}, {s(sJ)}, 102400\ns_mul_i32 {s(sJ2)}, {s(sJ)}, 245760")
            for i in range(5):
                a(f"s_add_u32 {s(sB)}, {s(sQ)}, {i}\ns_sub_u32 {s(sA)}, {s(sB)}, 5\ns_cmp_ge_u32 {s(sB)}, 5\ns_cselect_b32 {s(sB)}, {s(sA)}, {s(sB)}\ns_mul_i32 {s(sB)}, {s(sB)}, 20480")
                a(f"s_add_u32 {s(sB)}, {s(sB)}, {s(sJ1)}\ns_add_u32 {s(sR5+i)}, {s(sB)}, {s(sH2)}")
            for i in range(4):
                a(f"s_mul_i32 {s(sB)}, {s(sRot+i)}, 25600\ns_add_u32 {s(sB)}, {s(sB)}, {s(sJ1)}\ns_add_u32 {s(sR4a+i)}, {s(sB)}, {s(sH1)}")
                a(f"s_mul_i32 {s(sB)}, {s(sRot+i)}, 20480\ns_add_u32 {s(sB)}, {s(sB)}, {s(sJ2)}\ns_add_u32 {s(sR4b+i)}, {s(sB)}, {s(sH2)}")
        consts()
        a("s_getpc_b64 s[18:19]")
        a.label("L_pc2")
        a(f"s_add_u32 s18, s18, L_table-L_pc2\ns_addc_u32 s19, s19, 0\ns_lshl_b32 s17, {s(sL)}, 8\ns_add_u32 s17, s17, {L_LW}\nv_mov_b32 v15, 0")
        a(f"s_setprio {self.opt.get('lprio', 3)}")
        for ti, u in enumerate(todo):
            size, kind, (wid, ch, i) = UNITS[u]
            if self.opt.get("fake") and u >= U_W1:
                a("s_waitcnt vmcnt(0)"); publish_upto(100); del pend[:]; break
            nd = need_of(u)
            if nd > have:
                have = nd; guarded_wait(12, 0, nd, self.opt.get('lsleep', 2), pre)
            if u == U_W1: MAXF = self.opt.get("maxf2", 8)
            if u == U_W3 + 7: MAXF = self.opt.get("maxf3", 24)
            if u == U0 or u == U_WO:
                guarded_wait(vZ, L_PKR - L_CNT, wid + 1, 1)
            if u == U0 or (ch == 0 and i == 0 and wid >= 3): self.stamp()
            n = 13 if size == 25600 else 10
            sH = sH1 if size == 25600 else sH2
            sR = (sR5 if wid < 3 else sR4a if wid < 6 else sR4b) + i
            pre = ti + 1 < len(todo) and need_of(todo[ti + 1]) > have
            for k in range(n):
                if k % 4 == 0:
                    a(f"s_add_u32 m0, {s(sH)}, {UADDR[u] + k*1024}\ns_add_u32 {s(sA)}, {s(sR)}, {WS_WP + WP_OFF[wid] + ch*81920 + k*1024}")
                a(f"buffer_load_dwordx4 {v(vL16)}, {s(sWS,4)}, {s(sA)} offen offset:{1024*(k%4)}{'' if self.opt.get('nosc') else ' sc1'} lds", tag=("u", u))
                if k == n - 5 and pre: a("ds_read_b32 v14, v12")
                if k == n - 1:
                    if self.opt.get("dsl"): pend.append(u)
                    else: a(f"s_sub_u32 m0, s17, {4*(u+1)}\nglobal_load_lds_dword v15, s[18:19] offset:{4*(u+1)}")
                if k == n - 1 or (MAXF < n and k % 4 == 3): throttle()
            if u == U0 + self.opt.get('lc', 2): self.pk_C(a, [1, 2])
        for pu in pend:
            a.wait(vm=("u", pu)); publish_upto(pu)
        self.finish(a)

    PC = 28
    PR, PFR, PCS = 144, 192, 208
    def pk_decode(self, a, k):
        sU, sS, sCl, sWid = 64, 65, 66, 71
        Ld = a.newlabel("Lpd")
        a(f"s_add_u32 {s(sU)}, s63, {768*k}")
        a(f"s_cmp_ge_u32 {s(sU)}, 1680\ns_cbranch_scc1 {Ld}_4")
        a(f"s_mul_hi_u32 {s(sCl)}, {s(sU)}, {(1<<32)//20+1}\ns_mul_i32 {s(sA)}, {s(sCl)}, 20\ns_sub_u32 {s(sS)}, {s(sU)}, {s(sA)}")
        a(f"s_mul_hi_u32 {s(sWid)}, {s(sCl)}, {(1<<32)//10+1}\ns_min_u32 {s(sWid)}, {s(sWid)}, 6\ns_mul_i32 {s(sA)}, {s(sWid)}, 10\ns_sub_u32 {s(sCl)}, {s(sCl)}, {s(sA)}\ns_branch {Ld}")
        a.label(Ld + "_4")
        a(f"s_sub_u32 {s(sA)}, {s(sU)}, 1680\ns_mul_hi_u32 {s(sCl)}, {s(sA)}, {(1<<32)//48+1}\ns_mul_i32 {s(sB)}, {s(sCl)}, 48\ns_sub_u32 {s(sS)}, {s(sA)}, {s(sB)}\ns_mov_b32 {s(sWid)}, 7")
        a.label(Ld)
    def pk_A(self, a, k, R, pre_wait=False):
        sU, sS, sCl, sB0, sB1, sRs, sWid = 64, 65, 66, 67, 68, 69, 71
        c = self.PC; sR = sOUT
        NT = '' if self.opt.get('nont') else ' nt'
        self.pk_decode(a, k)
        L = a.newlabel("Lpa")
        a(f"s_lshl_b32 {s(sCc)}, {s(sCl)}, 7\nv_lshrrev_b32 {v(c)}, 3, {v(vLane)}\nv_and_b32 {v(c+1)}, 7, {v(vLane)}")
        a(f"s_cmp_lt_u32 {s(sWid)}, 3\ns_cbranch_scc1 {L}_q\ns_cmp_eq_u32 {s(sWid)}, 7\ns_cbranch_scc1 {L}_4")
        a(f"s_mul_hi_u32 {s(sA)}, {s(sS)}, {(1<<32)//5+1}\ns_mul_i32 {s(sB)}, {s(sA)}, 5\ns_sub_u32 {s(sB)}, {s(sS)}, {s(sB)}\ns_mul_i32 {s(sA)}, {s(sA)}, 160")
        a(f"s_lshr_b32 {s(sD)}, {s(sB)}, 1\ns_mul_i32 {s(sD)}, {s(sD)}, 80\ns_and_b32 {s(sB1)}, {s(sB)}, 1\ns_lshl_b32 {s(sB1)}, {s(sB1)}, 5\ns_add_u32 {s(sD)}, {s(sD)}, {s(sB1)}")
        a(f"s_cmp_eq_u32 {s(sB)}, 4\ns_cselect_b32 {s(sD)}, 64, {s(sD)}\ns_cselect_b32 {s(sB1)}, 80, 16\ns_add_u32 {s(sB0)}, {s(sA)}, {s(sD)}\ns_add_u32 {s(sB1)}, {s(sB0)}, {s(sB1)}")
        a(f"s_cmp_eq_u32 {s(sWid)}, 6\ns_movk_i32 {s(sRs)}, 1280\ns_cselect_b32 {s(sRs)}, 3072, {s(sRs)}\ns_lshl_b32 {s(sD)}, {s(sRs)}, 3\ns_branch {L}")
        a.label(L + "_4")
        a(f"s_lshr_b32 {s(sA)}, {s(sS)}, 4\ns_lshl_b32 {s(sB0)}, {s(sA)}, 6\ns_bfe_u32 {s(sA)}, {s(sS)}, 0x30001\ns_mul_i32 {s(sA)}, {s(sA)}, 192\ns_add_u32 {s(sB0)}, {s(sB0)}, {s(sA)}")
        a(f"s_and_b32 {s(sA)}, {s(sS)}, 1\ns_lshl_b32 {s(sA)}, {s(sA)}, 5\ns_add_u32 {s(sB0)}, {s(sB0)}, {s(sA)}\ns_add_u32 {s(sB1)}, {s(sB0)}, 16")
        a(f"s_movk_i32 {s(sRs)}, 1280\ns_movk_i32 {s(sD)}, {8*1280}\ns_branch {L}")
        a.label(L + "_q")
        a(f"s_lshl_b32 {s(sB0)}, {s(sS)}, 5\ns_add_u32 {s(sB1)}, {s(sB0)}, 4\ns_movk_i32 {s(sRs)}, 3840\ns_mov_b32 {s(sD)}, {16*3840}")
        a(f"s_add_u32 {s(sA)}, {s(sWid)}, 1\ns_cmp_eq_u32 {s(sA)}, 3\ns_cselect_b32 {s(sA)}, 0, {s(sA)}\ns_mul_i32 {s(sA)}, {s(sA)}, 1280\ns_add_u32 {s(sCc)}, {s(sCc)}, {s(sA)}")
        a(f"v_and_b32 {v(c+2)}, 4, {v(c)}\nv_add_u32 {v(c)}, {v(c)}, {v(c+2)}")
        a.label(L)
        a(f"v_mul_lo_u32 {v(c+8)}, {s(sRs)}, {v(c)}\nv_lshl_add_u32 {v(c+8)}, {v(c+1)}, 4, {v(c+8)}\nv_add_u32 {v(c+9)}, {s(sD)}, {v(c+8)}")
        a(f"s_mul_i32 {s(sB0)}, {s(sB0)}, {s(sRs)}\ns_add_u32 {s(sB0)}, {s(sB0)}, {s(sCc)}\ns_mul_i32 {s(sB1)}, {s(sB1)}, {s(sRs)}\ns_add_u32 {s(sB1)}, {s(sB1)}, {s(sCc)}")
        a(f"s_cmp_ge_u32 {s(sU)}, 2160\ns_cselect_b32 {s(sB0)}, {OOB}, {s(sB0)}\ns_cselect_b32 {s(sB1)}, {OOB}, {s(sB1)}")
        if pre_wait: a("s_waitcnt lgkmcnt(0)")
        a(f"s_mov_b32 {s(sR)}, s6\ns_mov_b32 {s(sR+1)}, s7\ns_mov_b32 {s(sR+2)}, 819200\ns_mov_b32 {s(sR+3)}, 0x20000")
        for wid, lo in ((3, 8), (4, 12), (5, 14), (6, 16), (7, 18)):
            a(f"s_cmp_eq_u32 {s(sWid)}, {wid}\ns_cselect_b64 {s(sR,2)}, s[{lo}:{lo+1}], {s(sR,2)}")
        a(f"s_cmp_ge_u32 {s(sWid)}, 6\ns_cselect_b32 {s(sR+2)}, 1966080, {s(sR+2)}\ns_cmp_lt_u32 {s(sWid)}, 3\ns_cselect_b32 {s(sR+2)}, 2457600, {s(sR+2)}")
        a(f"buffer_load_dwordx4 {v(R,4)}, {v(c+8)}, {s(sR,4)}, {s(sB0)} offen{NT}\nbuffer_load_dwordx4 {v(R+4,4)}, {v(c+9)}, {s(sR,4)}, {s(sB0)} offen{NT}")
        a(f"buffer_load_dwordx4 {v(R+8,4)}, {v(c+8)}, {s(sR,4)}, {s(sB1)} offen{NT}")
        a(f"buffer_load_dwordx4 {v(R+12,4)}, {v(c+9)}, {s(sR,4)}, {s(sB1)} offen{NT}", tag=("raw", k))
    def pk_B(self, a, k_, R, FR, CS):
        sU, sS, sCl, sDst, sScr, sWid = 64, 65, 66, 69, 70, 71
        c = self.PC
        self.pk_decode(a, k_)
        if k_ == 0:
            a(f"v_add_u32 {v(c+4)}, {s(sScr)}, {v(vL16)}")
            a(f"v_lshrrev_b32 {v(c+5)}, 2, {v(vLane)}\nv_lshlrev_b32 {v(c+5)}, 7, {v(c+5)}\nv_and_b32 {v(c+3)}, 3, {v(vLane)}\nv_lshl_add_u32 {v(c+5)}, {v(c+3)}, 3, {v(c+5)}\nv_add_u32 {v(c+5)}, {s(sScr)}, {v(c+5)}")
            a(f"v_lshlrev_b32 {v(c+6)}, 2, {v(vLane)}")
        D = [67, 68, 74, 75]
        L3 = a.newlabel("Ld3"); Lc = L3 + "_c"
        a(f"s_cmp_eq_u32 {s(sWid)}, 6\ns_cbranch_scc1 {L3}")
        a(f"s_mul_i32 {s(sDst)}, {s(sWid)}, 819200\ns_cmp_eq_u32 {s(sWid)}, 7\ns_cselect_b32 {s(sDst)}, {WP_OFF[7]}, {s(sDst)}\ns_mov_b32 {s(sD)}, 102400\ns_cselect_b32 {s(sD)}, 245760, {s(sD)}")
        a(f"s_mul_i32 {s(sA)}, {s(sS)}, 5120\ns_add_u32 {s(sDst)}, {s(sDst)}, {s(sA)}\ns_add_u32 {s(sDst)}, {s(sDst)}, {WS_WP}")
        a(f"s_cmp_ge_u32 {s(sU)}, 2160\ns_cselect_b32 {s(sDst)}, {OOB}, {s(sDst)}")
        for tt in range(4):
            a(f"s_lshl_b32 {s(sA)}, {s(sCl)}, 2\ns_add_u32 {s(sA)}, {s(sA)}, {tt}\ns_mul_hi_u32 {s(sB)}, {s(sA)}, {(1<<32)//5+1}\ns_mul_i32 {s(sCc)}, {s(sB)}, 5\ns_sub_u32 {s(sA)}, {s(sA)}, {s(sCc)}")
            a(f"s_lshl_b32 {s(sA)}, {s(sA)}, 10\ns_mul_i32 {s(sB)}, {s(sB)}, {s(sD)}\ns_add_u32 {s(sA)}, {s(sA)}, {s(sB)}\ns_add_u32 {s(D[tt])}, {s(sA)}, {s(sDst)}")
        a(f"s_mul_i32 {s(sA)}, {s(sS)}, 2560\ns_add_u32 {s(sA)}, {s(sA)}, {WS_CS1}\ns_cmp_eq_u32 {s(sWid)}, 4\ns_cselect_b32 {s(sA)}, {s(sA)}, {OOB}\ns_branch {Lc}")
        a.label(L3)
        a(f"s_mul_i32 {s(sA)}, {s(sCl)}, 81920\ns_lshl_b32 {s(sB)}, {s(sS)}, 12\ns_add_u32 {s(sA)}, {s(sA)}, {s(sB)}")
        for tt in range(4): a(f"s_add_u32 {s(D[tt])}, {s(sA)}, {WS_WP + WP_OFF[6] + 1024*tt}")
        a(f"s_mul_i32 {s(sA)}, {s(sS)}, 6144\ns_add_u32 {s(sA)}, {s(sA)}, {WS_CS3}")
        a.label(Lc)
        a(f"s_lshl_b32 {s(sB)}, {s(sCl)}, 8\ns_add_u32 {s(sA)}, {s(sA)}, {s(sB)}")
        a.wait(vm=("raw", k_))
        for hb in range(2):
            for k in range(2): a(f"ds_write_b128 {v(c+4)}, {v(R+8*hb+4*k,4)} offset:{1024*k}")
            for tt in range(4): a(f"ds_read_b64_tr_b16 {v(FR+4*tt+2*hb,2)}, {v(c+5)} offset:{32*tt}")
        a("s_waitcnt lgkmcnt(0)")
        for tt in range(4):
            a(f"buffer_store_dwordx4 {v(FR+4*tt,4)}, {v(vL16)}, {s(sWS,4)}, {s(D[tt])} offen sc1{' nt' if self.opt.get('pnt') else ''}", tag=("pst", k_))
        if k_ > 0 or self.opt.get('rawk'):
            for tt in range(4): a(f"v_mov_b32 {v(CS+tt)}, 0")
            for k in range(4):
                for tt in range(4): a(f"v_dot2c_f32_bf16 {v(CS+tt)}, {s(sOnes)}, {v(FR+4*tt+k)}")
            self.rscatter4(a, [CS, CS + 1, CS + 2, CS + 3], "v_add_f32")
            a(f"buffer_store_dword {v(CS)}, {v(c+6)}, {s(sWS,4)}, {s(sA)} offen sc1", tag=("pst", k_))
    def pk_C(self, a, ks):
        c = self.PC
        a(f"s_lshl_b32 {s(sA)}, s63, 5\ns_add_u32 {s(sA)}, {s(sA)}, {WS_PF + 24576*ks[0]}")
        a.wait(vm=("pst", ks[-1]))
        a("s_mov_b64 exec, 1")
        for k in ks:
            a(f"buffer_store_dwordx2 {v(c+10,2)}, {v(c+7)}, {s(sWS,4)}, {s(sA)} offen sc1")
            if k != ks[-1]: a(f"s_add_u32 {s(sA)}, {s(sA)}, 24576")
        a("s_mov_b64 exec, -1")
    def pack_seq(self, a, mid=None):
        c = self.PC
        self.pk_B(a, 0, 64, 192, 224)
        self.stamp()
        if mid: mid()
        else:
            self.get_tag(a, c + 10); a(f"v_mov_b32 {v(c+11)}, {s(sTag+1)}")
        self.pk_C(a, [0])
        a(f"v_mov_b32 v13, 1\ns_mov_b64 exec, 1\nds_add_u32 {v(vZ)}, v13 offset:{L_C0-L_CNT}\ns_mov_b64 exec, -1")
        self.stamp()
        if not self.opt.get("noxi"): self.lds_spin(a, vZ, L_XI - L_CNT, 4, 13, sleep=1)
        for k in (1, 2): self.pk_A(a, k, 64 + 16 * k)
    def touch_addr(self, a, d):
        a(f"s_lshl_b32 s74, {s(sC)}, 2\ns_mul_i32 s74, s74, {TS}\ns_add_u32 s74, s74, {WS_TILE}")
        a(f"v_lshrrev_b32 {v(d+2)}, 4, {v(vLane)}\ns_mov_b32 {s(sB)}, {TS}\nv_mul_lo_u32 {v(d+2)}, {s(sB)}, {v(d+2)}\nv_and_b32 {v(d)}, 15, {v(vLane)}\nv_lshl_add_u32 {v(d)}, {v(d)}, 7, {v(d+2)}")
        a(f"v_and_b32 {v(d+1)}, 3, {v(vLane)}\nv_lshl_add_u32 {v(d+1)}, {v(d+1)}, 7, {v(d+2)}")

    def sweep(self, h, name, loads, val, sleep):
        h.label(name); h.reset_hist()
        for k, ld in enumerate(loads): h(f"buffer_load_dwordx2 {v(128+2*k,2)}, {ld} sc1")
        h(f"s_waitcnt vmcnt(0)\nv_cmp_ne_u64 vcc, {s(sTag,2)}, {v(128,2)}")
        for k in range(1, len(loads)): h(f"v_cmp_ne_u64 {s(sMk,2)}, {s(sTag,2)}, {v(128+2*k,2)}\ns_or_b64 vcc, vcc, {s(sMk,2)}")
        h(f"s_cbranch_vccz {name}_ok\ns_sleep {sleep}")
        self.spin_tail(h, name, name + "_ok")
        h.label(name + "_ok"); h.reset_hist()
        h(f"v_mov_b32 v56, {val}\ns_mov_b64 exec, 1\nds_write_b32 {v(vZ)}, v56 offset:{L_PKR-L_CNT}\ns_mov_b64 exec, -1")

    def prestore(self, h):
        h("v_mov_b32 v232, 0\nv_mov_b32 v233, 0\nv_mov_b32 v234, 0\nv_mov_b32 v235, 0")
        for w in range(4):
            h(f"s_mul_i32 {s(sA)}, {s(sJ)}, 2560\ns_add_u32 {s(sA)}, {s(sA)}, {s(sTile)}\ns_add_u32 {s(sA)}, {s(sA)}, {w*TS}")
            for buf in (BUFA, BUFB):
                h(f"s_add_u32 {s(sB)}, {s(sA)}, {buf}")
                h(f"buffer_store_dwordx4 v[232:235], {v(vL16)}, {s(sWS,4)}, {s(sB)} offen sc1\nbuffer_store_dwordx4 v[232:235], {v(vL16)}, {s(sWS,4)}, {s(sB)} offen offset:1024 sc1")
                h(f"buffer_store_dwordx2 v[232:233], {v(vL8)}, {s(sWS,4)}, {s(sB)} offen offset:2048 sc1")
            h(f"s_lshl_b32 {s(sA)}, {s(sJ)}, 11\ns_add_u32 {s(sA)}, {s(sA)}, {s(sTile)}\ns_add_u32 {s(sA)}, {s(sA)}, {w*TS + BUFG}")
            for ch in range(1):
                h(f"buffer_store_dwordx4 v[232:235], {v(vL16)}, {s(sWS,4)}, {s(sA)} offen sc1\nbuffer_store_dwordx4 v[232:235], {v(vL16)}, {s(sWS,4)}, {s(sA)} offen offset:1024 sc1\ns_add_u32 {s(sA)}, {s(sA)}, 16384")

    def relay(self):
        h = self.h
        h.label("L_relay"); h.reset_hist(); h.reset_cnt()
        self.a, sa = h, self.a; self.nst = 1; self.inhelper = True
        h("s_setprio 2\ns_waitcnt lgkmcnt(0)")
        self.srd(h, sWS, 24, WS_SIZE)
        h(f"s_mul_i32 {s(sA)}, {s(sJ)}, 5\ns_lshr_b32 {s(sA)}, {s(sA)}, 2\ns_mul_i32 {s(sTJ)}, {s(sA)}, 640\ns_add_u32 {s(sTJ)}, {s(sTJ)}, {WS_PF}")
        h(f"v_min_u32 v58, 39, {v(vLane)}\nv_lshlrev_b32 v58, 5, v58\nv_add_u32 v59, 6400, v58\nv_add_u32 v60, 12800, v58")
        if self.opt.get("pre") in (3, 4):
            h(f"s_lshl_b32 {s(sTile)}, {s(sC)}, 2\ns_mul_i32 {s(sTile)}, {s(sTile)}, {TS}\ns_add_u32 {s(sTile)}, {s(sTile)}, {WS_TILE}")
            if self.opt["pre"] == 4: self.lds_spin(h, vZ, L_C0 - L_CNT, 3, 13, sleep=2)
            self.prestore(h)
        if not self.opt.get("nofl"):
            self.touch_addr(h, 46)
            h(f"v_and_b32 v49, 1, {v(vLane)}\nv_lshlrev_b32 v49, 7, v49\nv_bfe_u32 v50, {v(vLane)}, 1, 1\nv_mul_u32_u24 v50, {S4-S2}, v50\nv_add_u32 v49, v49, v50")
            h(f"s_lshl_b32 {s(sA)}, {s(sJ)}, 8\ns_add_u32 {s(sA)}, {s(sA)}, {S2}\nv_add_u32 v49, {s(sA)}, v49")
            h(f"s_min_u32 {s(sA)}, {s(sJ)}, 5\ns_lshl_b32 {s(sA)}, {s(sA)}, 7\ns_add_u32 {s(sA)}, {s(sA)}, {FLG}\nv_mov_b32 v50, {s(sA)}")
            h(f"v_and_b32 v51, 12, {v(vLane)}\nv_cmp_eq_u32 vcc, 0, v51\nv_cndmask_b32 v49, v50, v49, vcc\nv_add_u32 v52, v49, v48")
        if self.opt.get("rawk"):
            self.srd(h, sIN, 6, 640 * 3840)
            for i in range(5):
                h(f"v_add_u32 v13, {64*i}, {v(vLane)}\nv_mul_u32_u24 v14, 6554, v13\nv_lshrrev_b32 v14, 16, v14")
                h(f"v_mul_u32_u24 v15, 10, v14\nv_sub_u32 v13, v13, v15")
                h(f"v_and_b32 v15, 0x13, v14\nv_bfe_u32 v21, v14, 2, 1\nv_lshl_or_b32 v15, v21, 3, v15\nv_bfe_u32 v21, v14, 3, 1\nv_lshl_or_b32 v15, v21, 2, v15")
                h(f"v_mul_u32_u24 v15, 3840, v15\nv_lshl_add_u32 v{16+i}, v13, 4, v15")
                if 0 < i < 4: h(f"v_subrev_u32 v{16+i}, {1024*i}, v{16+i}")
            h("s_getpc_b64 s[18:19]")
            h.label("L_pc3")
            h(f"s_add_u32 s18, s18, L_table-L_pc3\ns_addc_u32 s19, s19, 0\nv_mov_b32 v15, 0")
            h(f"v_and_b32 v12, 3, {v(vLane)}\nv_mul_u32_u24 v12, 260, v12\nv_add_u32 v12, {L_CW}, v12")
            h(f"s_mul_i32 {s(sE)}, {s(sJ)}, 160\ns_add_u32 {s(sE)}, {s(sE)}, 1280\ns_mul_i32 {s(sD)}, {s(sRho)}, {64*3840}")
            self.lds_spin(h, vZ, L_XI - L_CNT, 4, 13, sleep=1)
            waited = False
            for st in range(20):
                u = U_RAW + st // 4
                if UNEED[u] and not waited:
                    waited = True; self.lds_spin(h, 12, 0, 1, 13, sleep=1)
                D = UADDR[u] + (st % 4) * 5120
                h(f"s_mov_b32 m0, {D}\ns_add_u32 {s(sA)}, {s(sD)}, {s(sE)}")
                for k in range(4): h(f"buffer_load_dwordx4 v{16+k}, {s(sIN,4)}, {s(sA)} offen offset:{1024*k} lds")
                h(f"s_mov_b32 m0, {D+4096}\ns_add_u32 {s(sD)}, {s(sD)}, {32*3840}")
                h(f"buffer_load_dwordx4 v20, {s(sIN,4)}, {s(sA)} offen lds")
                h(f"s_cmp_ge_u32 {s(sD)}, {640*3840}\ns_cselect_b32 {s(sD)}, 0, {s(sD)}")
                if st % 4 == 3:
                    for row in range(2): h(f"s_mov_b32 m0, {L_LW + 256*row - 4*(u+1)}\nglobal_load_lds_dword v15, s[18:19] offset:{4*(u+1)}")
                if len(h.vm) > self.opt.get("maxr", 30): h(f"s_waitcnt vmcnt({self.opt.get('maxr', 30)})")
        self.get_tag(h, 28)
        self.lds_spin(h, vZ, L_C0 - L_CNT, 3, 13, sleep=2)
        if self.opt.get('sw0'): h(f"s_sleep {self.opt['sw0']}")
        self.stamp()
        self.sweep(h, "L_pfa", [f"v{58+k}, {s(sWS,4)}, {s(sTJ)} offen" for k in range(1 if self.opt.get("rawk") else 0, 3)], 3, 4)
        self.stamp()
        TF = "nt" if self.opt.get("tnt") else "sc1"
        if self.opt.get("t6"):
            self.touch_addr(h, 46)
            h(f"v_and_b32 {v(vLa)}, 1, {v(vLane)}\nv_mul_u32_u24 {v(vLa)}, 260, {v(vLa)}\nv_add_u32 {v(vLa)}, {L_LW}, {v(vLa)}")
            self.lds_spin(h, vLa, 0, self.opt["t6"], 13, sleep=2)
            if not self.opt.get("nofl"): h(f"buffer_load_dword v50, v52, {s(sWS,4)}, s74 offen sc1")
            for buf in (BUFA, BUFB)[:self.opt.get("t6n", 2)]:
                h(f"s_mul_i32 {s(sB)}, {s(sJ)}, 2560\ns_add_u32 {s(sB)}, {s(sB)}, s74\ns_add_u32 {s(sB)}, {s(sB)}, {buf}")
                h(f"buffer_load_dword v50, v46, {s(sWS,4)}, {s(sB)} offen {TF}\nbuffer_load_dword v50, v47, {s(sWS,4)}, {s(sB)} offen offset:2048 {TF}")
            if self.opt.get("g6"):
                if self.opt["g6"] > 1:
                    h(f"v_and_b32 v12, 3, {v(vLane)}\nv_mul_u32_u24 v12, 260, v12\nv_add_u32 v12, {L_CW}, v12")
                    self.lds_spin(h, 12, 0, self.opt["g6"], 13, sleep=8)
                h(f"s_lshl_b32 {s(sB)}, {s(sJ)}, 11\ns_add_u32 {s(sB)}, {s(sB)}, s74\ns_add_u32 {s(sB)}, {s(sB)}, {BUFG}\nbuffer_load_dword v50, v46, {s(sWS,4)}, {s(sB)} offen {TF}")
        self.finish(h)
        self.a = sa

    def service(self):
        h = self.h; c = self.PC
        h.label("L_service"); h.reset_hist(); h.reset_cnt()
        self.a, sa = h, self.a; self.nst = 1; self.inhelper = True
        h.vm = [("raw", 0)] * 4
        h(f"buffer_load_dword {v(c+10)}, {v(c+7)}, {s(sWS,4)}, 0 offen sc1", tag="ep")
        self.touch_addr(h, 44); h(f"s_mov_b32 {s(sTile)}, s74")
        h(f"v_and_b32 {v(vLa)}, 1, {v(vLane)}\nv_mul_u32_u24 {v(vLa)}, 260, {v(vLa)}\nv_add_u32 {v(vLa)}, {L_LW}, {v(vLa)}")
        h(f"s_mul_i32 {s(sA)}, {s(sJ)}, 5\ns_lshr_b32 {s(sA)}, {s(sA)}, 2\ns_mul_i32 {s(sTJ)}, {s(sA)}, 640\ns_add_u32 {s(sTJ)}, {s(sTJ)}, {WS_PF}")
        h(f"s_mul_i32 {s(sT)}, {s(sJ)}, 1920\ns_add_u32 {s(sT)}, {s(sT)}, {WS_PF + 32*PF_BASE[6]}\ns_mul_i32 {s(sE)}, {s(sA)}, 1536\ns_add_u32 {s(sE)}, {s(sE)}, {WS_PF + 32*PF_BASE[7]}")
        h(f"v_min_u32 v58, 39, {v(vLane)}\nv_lshlrev_b32 v58, 5, v58")
        for k in range(1, 6): h(f"v_add_u32 v{58+k}, {6400*k}, v58")
        h(f"v_min_u32 v53, 59, {v(vLane)}\nv_lshlrev_b32 v53, 5, v53\nv_min_u32 v54, 47, {v(vLane)}\nv_lshlrev_b32 v54, 5, v54")
        h.wait(vm="ep")
        h(f"v_add_u32 {v(c+10)}, 1, {v(c+10)}\nv_mov_b32 {v(c+11)}, 1\nds_write_b64 {v(vZ)}, {v(c+10,2)} offset:{L_TAG-L_CNT}")
        h(f"v_readfirstlane_b32 {s(sTag)}, {v(c+10)}")
        h(f"s_mul_i32 {s(sTag+1)}, {s(sTag)}, 0x9E3779B1\ns_xor_b32 {s(sTag+1)}, {s(sTag+1)}, 0x7F4A7C15\ns_waitcnt lgkmcnt(0)\nv_mov_b32 {v(c+11)}, {s(sTag+1)}")
        def xt_pub():
            h(f"s_getreg_b32 {s(sPI)}, hwreg(HW_REG_XCC_ID)\ns_and_b32 {s(sPI)}, {s(sPI)}, 15\nv_mov_b32 {v(c+12)}, {s(sPI)}\nv_mov_b32 {v(c+13)}, 0")
            h(f"s_lshl_b32 {s(sA)}, {s(sC)}, 3\ns_add_u32 {s(sA)}, {s(sA)}, {s(sJ)}\ns_lshl_b32 {s(sA)}, {s(sA)}, 4\ns_add_u32 {s(sA)}, {s(sA)}, {WS_XT}")
            h(f"s_mov_b64 exec, 1\nbuffer_store_dwordx4 {v(c+10,4)}, {v(c+7)}, {s(sWS,4)}, {s(sA)} offen sc1\ns_mov_b64 exec, -1")
        def touch20(buf):
            h(f"s_mul_i32 {s(sB)}, {s(sJ)}, 2560\ns_add_u32 {s(sB)}, {s(sB)}, {s(sTile)}\ns_add_u32 {s(sB)}, {s(sB)}, {buf}")
            h(f"buffer_load_dword v47, v44, {s(sWS,4)}, {s(sB)} offen sc1\nbuffer_load_dword v47, v45, {s(sWS,4)}, {s(sB)} offen offset:2048 sc1")
        def touch16(buf):
            h(f"s_lshl_b32 {s(sB)}, {s(sJ)}, 11\ns_add_u32 {s(sB)}, {s(sB)}, {s(sTile)}\ns_add_u32 {s(sB)}, {s(sB)}, {buf}")
            h(f"buffer_load_dword v47, v44, {s(sWS,4)}, {s(sB)} offen sc1")
        self.pack_seq(h, xt_pub)
        prestore = lambda: self.prestore(h)
        swa = [f"v{58+k}, {s(sWS,4)}, {s(sTJ)} offen" for k in range(3)]
        if self.opt.get("pre") == 1: prestore()
        for k in (1, 2): self.pk_B(h, k, 64 + 16 * k, 192 + 16 * (k & 1), 224)
        self.stamp()
        if self.opt.get("pre") == 2: prestore()
        h(f"s_lshl_b32 {s(sA)}, {s(sC)}, 7\ns_add_u32 {s(sA)}, {s(sA)}, {WS_XT}\nv_and_b32 v57, 7, {v(vLane)}\nv_lshlrev_b32 v57, 4, v57")
        h.label("L_xt"); h.reset_hist()
        h(f"buffer_load_dwordx4 v[48:51], v57, {s(sWS,4)}, {s(sA)} offen sc1\ns_waitcnt vmcnt(0)\nv_cmp_ne_u64 vcc, {s(sTag,2)}, v[48:49]\ns_cbranch_vccz L_xt_ok\ns_sleep 4")
        self.spin_tail(h, "L_xt", "L_xt_ok")
        h.label("L_xt_ok"); h.reset_hist()
        h(f"v_cmp_ne_u32 vcc, {s(sPI)}, v50\ns_cmp_eq_u64 vcc, 0\ns_cselect_b32 {s(sA)}, {2 if self.force_sc1 else 1}, 2\nv_mov_b32 v57, {s(sA)}")
        self.lds_spin(h, vZ, L_PKR - L_CNT, 1, 13, sleep=2)
        h(f"s_mov_b64 exec, 1\nds_write_b32 {v(vZ)}, v57 offset:{L_MODE-L_CNT}\ns_mov_b64 exec, -1")
        self.pk_C(h, [1, 2])
        self.stamp()
        self.lds_spin(h, vZ, L_PKR - L_CNT, 3, 13, sleep=2)
        self.lds_spin(h, vLa, 0, self.opt.get("gs", 10), 13, sleep=2)
        self.sweep(h, "L_pfb", [f"v{61+k}, {s(sWS,4)}, {s(sTJ)} offen" for k in range(3)] + [f"v53, {s(sWS,4)}, {s(sT)} offen", f"v54, {s(sWS,4)}, {s(sE)} offen", f"v54, {s(sWS,4)}, {s(sE)} offen offset:1536"], 8, 8)
        self.stamp()
        self.lds_spin(h, vLa, 0, self.opt.get("gt", 14), 13, sleep=2)
        if not self.opt.get("not") and not self.opt.get("t6"): touch20(BUFA); touch20(BUFB)
        if not self.opt.get("nog") and not self.opt.get("not") and not self.opt.get("g6"):
            touch16(BUFG)
        for (wsoff, rowb, jb, nl, R) in ((WS_CS1, 2560, 320, 20, 64), (WS_CS3, 6144, 768, 48, 144)):
            h(f"s_mul_i32 {s(sA)}, {s(sJ)}, {jb}\ns_add_u32 {s(sA)}, {s(sA)}, {wsoff}")
            h(f"s_mov_b64 exec, {(1 << nl) - 1:#x}" if nl <= 32 else f"s_mov_b32 exec_lo, -1\ns_mov_b32 exec_hi, {(1 << (nl-32)) - 1:#x}")
            for k in range(20):
                if not self.opt.get("nocs"): h(f"buffer_load_dwordx4 {v(R+4*k,4)}, {v(vL16)}, {s(sWS,4)}, {s(sA)} offen sc1")
                h(f"s_add_u32 {s(sA)}, {s(sA)}, {rowb}")
        h("s_waitcnt vmcnt(0)\ns_setprio 0")
        for (nl, R, ldst) in ((48, 144, L_CS3), (20, 64, L_CS1)):
            if nl == 20: h(f"s_mov_b64 exec, {(1 << nl) - 1:#x}")
            for k in range(1, 20):
                for e in range(4): h(f"v_add_f32 {v(R+e)}, {v(R+e)}, {v(R+4*k+e)}")
            h(f"v_add_u32 {v(TT)}, {ldst}, {v(vL16)}\nds_write_b128 {v(TT)}, {v(R,4)}")
        h(f"s_mov_b64 exec, -1\nv_mov_b32 {v(TT+1)}, 2\nds_write_b32 {v(vZ)}, {v(TT+1)} offset:{L_CSRDY-L_CNT}")
        self.stamp()
        h("s_cmp_lg_u32 s2, 0\ns_cbranch_scc1 L_sv_end")
        h(f"s_mov_b32 {s(sA)}, {WS_XT}")
        h.label("L_ep"); h.reset_hist()
        for k in range(4): h(f"buffer_load_dwordx2 v[{48+2*k}:{49+2*k}], {v(vL16)}, {s(sWS,4)}, {s(sA)} offen offset:{1024*k} sc1")
        h(f"s_waitcnt vmcnt(0)\nv_cmp_ne_u64 vcc, {s(sTag,2)}, v[48:49]")
        for k in range(1, 4):
            h(f"v_cmp_ne_u64 {s(sMk,2)}, {s(sTag,2)}, v[{48+2*k}:{49+2*k}]\ns_or_b64 vcc, vcc, {s(sMk,2)}")
        h("s_cbranch_scc0 L_ep_ok\ns_sleep 4")
        self.spin_tail(h, "L_ep", "L_ep_ok")
        h.label("L_ep_ok"); h.reset_hist()
        h(f"s_mov_b64 exec, 1\nbuffer_store_dword {v(c+10)}, {v(c+7)}, {s(sWS,4)}, 0 offen sc1\ns_mov_b64 exec, -1")
        h.label("L_sv_end"); h.reset_hist()
        if self.opt.get("wb"):
            h(f"s_cmp_lg_u32 {s(sJ)}, 0\ns_cbranch_scc1 L_sv_end2")
            h(f"v_and_b32 v12, 3, {v(vLane)}\nv_mul_u32_u24 v12, 260, v12\nv_add_u32 v12, {L_CW}, v12")
            self.lds_spin(h, 12, 0, self.opt["wb"], 13, sleep=16)
            h("buffer_wbl2 sc1\ns_waitcnt vmcnt(0)")
            h.label("L_sv_end2")
        self.finish(h)
        self.a = sa

    def build(self):
        self.prologue(); n0 = self.nst
        self.compute()
        self.relay(); self.service()
        self.loader()
        hdr = open("sequential_preLN__sliding_local_dilated__mixer_s_mlp__prompt.s.ref").read().split("; Override")[0]
        out = hdr + f"; @launch grid=(256,1,1) block=(512,1,1) lds={LDS_SIZE}\n"
        out += f'.amdgcn_target "amdgcn-amd-amdhsa--gfx950"\n.text\n.globl {KNAME}\n.p2align 8\n.type {KNAME},@function\n{KNAME}:\n'
        out += self.a.text() + self.h.text() + self.t.text() + "L_end:\n    s_endpgm\nL_code_end:\n.p2align 7\n.type L_table,@object\nL_table:\n" + "".join(f".long {i}\n" for i in range(64)) + ".size L_table, 256\n"
        out += f'''.section .rodata,"a"
.p2align 6
.amdhsa_kernel {KNAME}
  .amdhsa_next_free_vgpr 256
  .amdhsa_next_free_sgpr 102
  .amdhsa_accum_offset 256
  .amdhsa_group_segment_fixed_size 0
  .amdhsa_kernarg_size 88
  .amdhsa_user_sgpr_count 2
  .amdhsa_user_sgpr_kernarg_segment_ptr 1
  .amdhsa_system_sgpr_workgroup_id_x 1
  .amdhsa_float_denorm_mode_32 3
.end_amdhsa_kernel
'''
        return out

if __name__ == "__main__":
    import argparse
    p = argparse.ArgumentParser()
    p.add_argument("-o", default="sequential_preLN__sliding_local_dilated__mixer_s_mlp__prompt.s")
    p.add_argument("--stamps", action="store_true"); p.add_argument("--sc1", action="store_true"); p.add_argument("--opt", action="append", default=[])
    args = p.parse_args()
    opt = {}
    for kv in args.opt:
        k_, _, v_ = kv.partition("="); opt[k_] = int(v_) if v_ else 1
    g = Gen(stamps=args.stamps, force_sc1=args.sc1, opt=opt)
    open(args.o, "w").write(g.build())
    print("units:", [(u, UADDR.get(u), UNEED.get(u)) for u in range(len(UNITS))])
    print("nops inserted:", g.a.nops + g.t.nops)
```

```python
import sys, math, struct
from asmlib import Asm

KNAME = "sequential_preLN__sliding_local_dilated__mixer_s_mlp__prompt_kernel"

def f2u(x): return struct.unpack("<I", struct.pack("<f", x))[0]

WS_EPOCH = 0
WS_XT = 0x1000
WS_PF = 0x8B2000
WS_CS1 = 0x8000
WS_CS3 = 0x18000
WS_WP = 0x40000
WP_OFF = [819200 * k for k in range(7)] + [819200 * 6 + 1966080]
PF_BASE = [200 * k for k in range(7)] + [1680]
WS_TILE = 0x8C8000
TS = 115712
BUFA, BUFB, BUFG, SHAD, FLG = 0, 20480, 40960, 90112, 110592
GBUF = [BUFG, BUFA, BUFB]
F1, F3, FH, G0, S2, S4 = FLG, FLG + 128, FLG + 256, FLG + 384, FLG + 1024, FLG + 3072
WS_KV = WS_TILE + 128 * TS
WS_STAMP = WS_KV + 256 * 10240
WS_SIZE = WS_STAMP + 2048 * 128
OOB = 0x40000000

RING = 153600
P1TMP = 128000
STAGE = 143360
L_CNT = 153600
L_LANDED = L_CNT + 32
L_MODE = L_CNT + 40
L_CSRDY = L_CNT + 44
L_XI = L_CNT + 56
L_C0 = L_CNT + 60
L_PKR = L_CNT + 96
L_XR = L_CNT + 64
L_TAG = L_CNT + 48
L_CS1 = L_CNT + 256
L_CS3 = L_CS1 + 320
L_PSCR = L_CNT + 2048
L_CW = L_PSCR + 6144
L_LW = L_CS3 + 768 + 64
LDS_SIZE = 163840

XIMG = 71680
def plan_units():
    units = [(0, "pseudo", None)]
    for ps in range(3):
        for i in range(5): units.append((20480, "raw", (ps, 0, i)))
    units.append((0, "pseudo", None))
    for wid in range(3, 6):
        for i in range(4): units.append((25600, "pk", (wid, 0, i)))
    for wid in (6, 7):
        for ch in range(3):
            for i in range(4): units.append((20480, "pk", (wid, ch, i)))
    placed = [(XIMG, 81920, 0), (P1TMP, 25600, 16)]
    addr = {}; need = {}
    for u, (size, kind, arg) in enumerate(units):
        if kind == "pseudo": continue
        if kind == "raw": cands = [20480 * k for k in range(6)]
        elif size == 25600: cands = [25600 * k for k in range(6)]
        else: cands = [20480 * k for k in range(7)]
        best = None
        for a in cands:
            nd = 0
            for (pa, psz, pi) in placed:
                if pa < a + size and a < pa + psz: nd = max(nd, pi + 1)
            if best is None or nd < best[0]: best = (nd, a)
        need[u], addr[u] = best
        placed.append((best[1], size, u))
    return units, addr, need
UNITS, UADDR, UNEED = plan_units()
U_RAW, U_X, U_WO, U_W1, U_W2, U_W3, U_W4 = 1, 16, 17, 21, 25, 29, 41
PUBS = set()
HK, HV = 6, 7

vLane, vL16, vL8, vZ, vWA, vLa, vLC, vCV, vPA = 1, 2, 3, 4, 5, 6, 7, 8, 9
vM = 12
KOWN, VFR = 28, 44
AF, WW, ACC, HP, X1P, TT = 64, 144, 176, 208, 218, 228
SLOTS12 = [WW + 4 * i for i in range(8)] + [36, 40, 56, 60]
sWS, sIN, sOUT = 28, 32, 36
sWave, sX, sQ, sJ, sC, sT, sBud, sEp = 40, 41, 42, 43, 44, 45, 46, 47
sTag = 48
sMode = 50
sRot = 51
sTile = 55
sTJ = 56
sA, sB, sCc, sD, sE = 57, 58, 59, 60, 61
sPI = 62
sMa, sMb, sPar = 64, 66, 68
sSh = 70
sOnes = 72
sRho = 73
sSt = 76
sCk = 22
sMk = 26

def v(a, n=1): return f"v{a}" if n == 1 else f"v[{a}:{a+n-1}]"
def s(a, n=1): return f"s{a}" if n == 1 else f"s[{a}:{a+n-1}]"

class Gen:
    def __init__(self, stamps=False, force_sc1=False, budget=1 << 17, opt=None):
        self.opt = dict(sw0=20, pstep=2, pph=0, t6=5, cprio=3, lprio=2, g6=1, gs=9, gt=9, cps=2, rawk=0, xnt=1); self.opt.update(opt or {})
        step = self.opt.get("pstep", 2)
        mx = max(UNEED.values()) + step
        PUBS.update([1, U_X + 1] + [x for x in range(2, mx + 1) if x % step == self.opt.get("pph", 1) % step])
        self.clk = 's_memtime' if self.opt.get('cyc') else 's_memrealtime'
        self.a = Asm(); self.t = Asm(); self.h = Asm(); self.h.nlabel = 200000
        self.stamps = stamps; self.force_sc1 = force_sc1; self.budget = budget
        self.nst = 0; self.inhelper = False
        self.t.nlabel = 100000

    def stamp(self, grp=0):
        sp = self.opt.get("sp", 0)
        if grp != sp and not (grp == 0 and self.nst == 0) and not (grp == 0 and self.inhelper): return
        if self.stamps and self.nst < 11:
            self.a(f"{self.clk} {s(sSt + 2 * self.nst, 2)}"); self.nst += 1

    def srd(self, a, d, lo, size):
        a(f"s_mov_b32 {s(d)}, {s(lo)}\ns_mov_b32 {s(d+1)}, {s(lo+1)}\ns_mov_b32 {s(d+2)}, {size}\ns_mov_b32 {s(d+3)}, 0x20000")

    def spin_tail(self, a, Lretry, Lok):
        a(f"s_cmp_eq_u32 {s(sBud)}, 0\ns_cbranch_scc1 {Lok}\ns_sub_u32 {s(sBud)}, {s(sBud)}, 1\ns_branch {Lretry}")

    def lds_spin(self, a, addr_v, off, need, tmp, sleep=0):
        L = a.newlabel("Lsp"); Lok = L + "_ok"
        a.label(L)
        a(f"ds_read_b32 {v(tmp)}, {v(addr_v)} offset:{off}\ns_waitcnt lgkmcnt(0)\nv_cmp_gt_u32 vcc, {need}, {v(tmp)}\ns_cbranch_vccz {Lok}")
        if sleep: a(f"s_sleep {sleep}")
        self.spin_tail(a, L, Lok)
        a.label(Lok)

    def allreduce2(self, a, x, y, t, op="v_add_f32"):
        a(f"v_permlane32_swap_b32 {v(x)}, {v(y)}")
        a(f"{op} {v(x)}, {v(x)}, {v(y)}")
        a(f"v_mov_b32 {v(y)}, {v(x)}")
        a(f"v_permlane16_swap_b32 {v(x)}, {v(y)}")
        a(f"{op} {v(x)}, {v(x)}, {v(y)}")
        a(f"v_mov_b32 {v(y)}, {v(x)}")
        a(f"v_permlane32_swap_b32 {v(x)}, {v(y)}")

    def rscatter4(self, a, m, op):
        a(f"v_permlane32_swap_b32 {v(m[0])}, {v(m[2])}")
        a(f"v_permlane32_swap_b32 {v(m[1])}, {v(m[3])}")
        a(f"{op} {v(m[0])}, {v(m[0])}, {v(m[2])}")
        a(f"{op} {v(m[1])}, {v(m[1])}, {v(m[3])}")
        a(f"v_permlane16_swap_b32 {v(m[0])}, {v(m[1])}")
        a(f"{op} {v(m[0])}, {v(m[0])}, {v(m[1])}")

    def allgather4(self, a, m):
        a(f"v_mov_b32 {v(m[1])}, {v(m[0])}")
        a(f"v_permlane16_swap_b32 {v(m[0])}, {v(m[1])}")
        a(f"v_mov_b32 {v(m[2])}, {v(m[0])}")
        a(f"v_mov_b32 {v(m[3])}, {v(m[1])}")
        a(f"v_permlane32_swap_b32 {v(m[0])}, {v(m[2])}")
        a(f"v_permlane32_swap_b32 {v(m[1])}, {v(m[3])}")

    def moded(self, lines, tag=None):
        a, t = self.a, self.t
        L = a.newlabel("Lm"); Lb = L + "_b"
        a(f"s_cmp_lg_u32 {s(sMode)}, 1\ns_cbranch_scc1 {L}")
        for ln in lines: a(ln, tag)
        a.label(Lb)
        t.label(L); t.reset_hist()
        for ln in lines: t(ln + (" sc1" if ln.startswith("buffer_store") else ""))
        t(f"s_branch {Lb}")

    def handoff_store(self, r, buf):
        a = self.a
        a(f"s_add_u32 {s(sA)}, {s(sTJ)}, {buf}")
        self.moded([f"buffer_store_dwordx4 {v(r,4)}, {v(vL16)}, {s(sWS,4)}, {s(sA)} offen",
                    f"buffer_store_dwordx4 {v(r+4,4)}, {v(vL16)}, {s(sWS,4)}, {s(sA)} offen offset:1024",
                    f"buffer_store_dwordx2 {v(r+8,2)}, {v(vL8)}, {s(sWS,4)}, {s(sA)} offen offset:2048"])

    def flag_store(self, off):
        a = self.a
        a(f"s_lshl_b32 {s(sA)}, {s(sJ)}, 3\ns_add_u32 {s(sA)}, {s(sA)}, {s(sTile)}\ns_add_u32 {s(sA)}, {s(sA)}, {off}")
        a("s_mov_b64 exec, 1")
        self.moded([f"buffer_store_dwordx2 {v(self.vTag,2)}, {v(self.vZero)}, {s(sWS,4)}, {s(sA)} offen"])
        a("s_mov_b64 exec, -1")

    def poll8(self, a, voff, soff, tmp, imm=0):
        L = a.newlabel("Lp"); Lok = L + "_ok"
        a.label(L)
        a(f"buffer_load_dwordx2 {v(tmp,2)}, {v(voff)}, {s(sWS,4)}, {soff} offen offset:{imm} sc1")
        a(f"s_waitcnt vmcnt(0)\nv_cmp_ne_u64 vcc, {s(sTag,2)}, {v(tmp,2)}\ns_cbranch_vccz {Lok}")
        self.spin_tail(a, L, Lok)
        a.label(Lok)

    def stream_init(self, frags, slots, G=4):
        self.fr = frags; self.rp = 0; self.cur_unit = None; self.chk = {}
        self.slots = slots; self.G = G; self.side = []; self.rate = 1

    def stream_read(self):
        a = self.a
        if self.rp >= len(self.fr): return
        f = self.rp; u, off, kind = self.fr[f]
        prev = self.cur_unit
        if u != prev:
            u0 = self.opt.get("u0", 2)
            if u0 <= u < u0 + 5: self.stamp(7)
            if self.chk.get(u) == 2:
                L = a.newlabel("Lw"); Lok = L + "_ok"
                a(f"s_cmp_lg_u64 {s(sCk,2)}, 0\ns_cbranch_scc1 {L}")
                a.label(Lok)
                t = self.t
                t.label(L); t.reset_hist()
                t(f"ds_read_b32 {v(vLC)}, {v(vLa)}\ns_waitcnt lgkmcnt(0)\nv_cmp_gt_u32 {s(sCk,2)}, {u+1}, {v(vLC)}\ns_cmp_lg_u64 {s(sCk,2)}, 0\ns_cbranch_scc0 {Lok}")
                self.spin_tail(t, L, Lok)
            else:
                self.lds_spin(a, vLa, 0, u + 1, vLC)
            if u0 <= u < u0 + 5: self.stamp(7)
            self.cur_unit = u
        r = self.slots[f % len(self.slots)]
        A = UADDR[u] + off
        if kind == "tr":
            hi = A + 1280 >= 0x10000
            b_ = (self.vT0, self.vT1)[hi]; o_ = A - (0xf000 if hi else 0)
            a(f"ds_read_b64_tr_b16 {v(r,2)}, {v(b_)} offset:{o_}")
            a(f"ds_read_b64_tr_b16 {v(r+2,2)}, {v(b_)} offset:{o_+1280}", tag=("w", f))
        else:
            a(f"ds_read_b128 {v(r,4)}, {v((vL16, vWA, vPA)[A >> 16])} offset:{A & 0xffff}", tag=("w", f))
        self.rp += 1
        last = self.rp == len(self.fr)
        if u != prev and prev is not None and (prev + 1) in PUBS: a(f"ds_write_b32 {v(self.vCnt)}, {v(vCV)}")
        nxt = lambda d: self.fr[f + d][0] if f + d < len(self.fr) else None
        LA = self.opt.get("la", 9)
        if nxt(LA) not in (None, u) and nxt(LA) not in self.chk and not self.priming:
            a(f"ds_read_b32 {v(vLC)}, {v(vLa)}", tag=("chk", nxt(LA))); self.chk[nxt(LA)] = 1
        if nxt(2) not in (None, u) and self.chk.get(nxt(2)) == 1:
            a.wait(ds=("chk", nxt(2)))
            a(f"v_cmp_gt_u32 {s(sCk,2)}, {nxt(2)+1}, {v(vLC)}"); self.chk[nxt(2)] = 2
        if nxt(1) != u and not last and (u + 1) in PUBS: a(f"v_mov_b32 {v(vCV)}, {u+1}")
        if last and (u + 1) in PUBS: self.publish(u + 1)

    def publish(self, val):
        self.a(f"v_mov_b32 {v(vCV)}, {val}\nds_write_b32 {v(self.vCnt)}, {v(vCV)}")

    def prime(self):
        self.priming = True
        for _ in range(len(self.slots)): self.stream_read()
        self.priming = False

    def mfma_w(self, f, acc, af, first=False, swap=False):
        a = self.a
        if f % self.G == 0: a.wait(ds=("w", min(f + self.G - 1, len(self.fr) - 1)))
        r = self.slots[f % len(self.slots)]
        c = "0" if first else v(acc, 4)
        if swap: a(f"v_mfma_f32_16x16x32_bf16 {v(acc,4)}, {v(af,4)}, {v(r,4)}, {c}")
        else: a(f"v_mfma_f32_16x16x32_bf16 {v(acc,4)}, {v(r,4)}, {v(af,4)}, {c}")
        self.stream_read()
        for _ in range(self.rate):
            if self.side:
                op = self.side.pop(0)
                if callable(op): op()
                elif isinstance(op, tuple): a(op[0], tag=op[1])
                else: a(op)

    def async_check(self, addr, off, need, tmp, name):
        a = self.a
        def chk():
            L = a.newlabel("La"); Lok = L + "_ok"
            a.wait(ds=name)
            a(f"v_cmp_gt_u32 vcc, {need}, {v(tmp)}\ns_cbranch_vccnz {L}")
            a.label(Lok)
            t = self.t
            t.label(L); t.reset_hist()
            t(f"ds_read_b32 {v(tmp)}, {v(addr)} offset:{off}\ns_waitcnt lgkmcnt(0)\nv_cmp_gt_u32 vcc, {need}, {v(tmp)}\ns_cbranch_vccz {Lok}")
            self.spin_tail(t, L, Lok)
        return (f"ds_read_b32 {v(tmp)}, {v(addr)} offset:{off}", name), chk

    def prologue(self):
        a = self.a
        a("s_cmp_ge_u32 s2, 256\ns_cbranch_scc1 L_end")
        a("s_load_dwordx16 s[4:19], s[0:1], 0\ns_load_dwordx4 s[20:23], s[0:1], 64\ns_load_dwordx2 s[24:25], s[0:1], 80")
        self.stamp()
        a("s_getpc_b64 s[62:63]")
        a.label("L_pcref")
        a(f"s_lshr_b32 {s(sA)}, s2, 3\ns_lshl_b32 {s(sA)}, {s(sA)}, 12\nv_lshlrev_b32 v1, 7, v0\nv_add_u32 v1, {s(sA)}, v1")
        a(f"v_min_u32 v1, L_code_end-L_pcref-4, v1\nv_cmp_gt_u32 vcc, 32, v0\ns_and_saveexec_b64 {s(sMk,2)}, vcc\ns_cbranch_execz L_nopf")
        a("global_load_dword v255, v1, s[62:63]")
        a.label("L_nopf")
        a(f"s_mov_b64 exec, -1"); a.reset_cnt()
        a(f"v_and_b32 {v(vLane)}, 63, v0\nv_lshrrev_b32 v0, 6, v0")
        a(f"v_readfirstlane_b32 {s(sWave)}, v0")
        a(f"s_and_b32 {s(sX)}, s2, 7\ns_lshr_b32 {s(sA)}, s2, 3\ns_lshr_b32 {s(sQ)}, {s(sA)}, 3\ns_and_b32 {s(sJ)}, {s(sA)}, 7")
        a(f"s_lshl_b32 {s(sC)}, {s(sX)}, 2\ns_add_u32 {s(sC)}, {s(sC)}, {s(sQ)}")
        a(f"v_lshlrev_b32 {v(vL16)}, 4, {v(vLane)}\nv_lshlrev_b32 {v(vL8)}, 3, {v(vLane)}\nv_mov_b32 {v(vZ)}, {L_CNT}")
        a(f"s_mov_b32 {s(sBud)}, {self.budget}")
        for i in range(4):
            a(f"s_add_u32 {s(sRot+i)}, {s(sQ)}, {i}\ns_and_b32 {s(sRot+i)}, {s(sRot+i)}, 3")
        a(f"s_lshl_b32 {s(sRho)}, {s(sQ)}, 1")
        a(f"s_mov_b32 {s(sOnes)}, 0x3f803f80")
        a(f"s_cmp_lg_u32 {s(sWave)}, 4\ns_cbranch_scc1 L_noinit")
        a(f"v_lshl_add_u32 v12, {v(vLane)}, 2, {v(vZ)}\nv_mov_b32 v14, 0\nv_mov_b32 v15, 0\nv_mov_b32 v16, 0\nv_mov_b32 v17, 0\nv_add_u32 v13, {L_CW}, {v(vL16)}")
        a(f"v_cmp_eq_u32 vcc, {(L_XR-L_CNT)//4}, {v(vLane)}\nv_cndmask_b32_e64 v18, 0, 2, vcc")
        a(f"ds_write_b32 v12, v18\nds_write_b32 v12, v14 offset:{L_LW-L_CNT}\nds_write_b32 v12, v14 offset:{L_LW-L_CNT+256}\nds_write_b128 v13, v[14:17]\nds_write_b128 v13, v[14:17] offset:1024\ns_waitcnt lgkmcnt(0)")
        a.label("L_noinit")
        a("s_barrier")
        self.helper_start()

    def get_tag(self, a, tmp):
        L = a.newlabel("Ltg"); Lok = L + "_ok"
        a.label(L)
        a(f"ds_read_b64 {v(tmp,2)}, {v(vZ)} offset:{L_TAG-L_CNT}\ns_waitcnt lgkmcnt(0)\nv_cmp_gt_u32 vcc, 1, {v(tmp+1)}\ns_cbranch_vccz {Lok}\ns_sleep 1")
        self.spin_tail(a, L, Lok)
        a.label(Lok)
        a(f"v_readfirstlane_b32 {s(sTag)}, {v(tmp)}")
        a(f"s_mul_i32 {s(sTag+1)}, {s(sTag)}, 0x9E3779B1\ns_xor_b32 {s(sTag+1)}, {s(sTag+1)}, 0x7F4A7C15")

    def compute(self):
        a = self.a; h = self.h
        m = vM
        self.vTag = m; self.vZero = m + 2; self.vCnt = m + 3
        vG, vR = m + 4, m + 5
        sImg = sE
        sXo = 75
        MF = "v_mfma_f32_16x16x32_bf16"
        a(f"s_cmp_eq_u32 {s(sWave)}, 6\ns_cbranch_scc1 L_relay")
        a(f"s_add_u32 {s(sPI)}, {s(sWave)}, 1\ns_lshl_b32 {s(sT)}, {s(sC)}, 2\ns_add_u32 {s(sT)}, {s(sT)}, {s(sWave)}")
        a(f"s_mul_i32 {s(sImg)}, {s(sWave)}, 20480\ns_add_u32 {s(sImg)}, {s(sImg)}, {XIMG}")
        t0, t1, x0, x1 = TT, TT + 1, TT + 2, TT + 3
        a(f"s_mul_i32 {s(sXo)}, {s(sT)}, {16*1280}")
        a(f"v_lshrrev_b32 {v(t0)}, 3, {v(vLane)}\nv_and_b32 {v(t1)}, 7, {v(vLane)}\nv_lshrrev_b32 {v(x1)}, 1, {v(t0)}\nv_xor_b32 {v(t1)}, {v(t1)}, {v(x1)}")
        a(f"v_mul_u32_u24 {v(t0)}, 1280, {v(t0)}\nv_add_u32 {v(t0)}, {s(sXo)}, {v(t0)}\nv_lshl_add_u32 {v(x0)}, {v(t1)}, 4, {v(t0)}")
        a(f"v_xor_b32 {v(t1)}, 4, {v(t1)}\nv_lshl_add_u32 {v(x1)}, {v(t1)}, 4, {v(t0)}\nv_add_u32 {v(x1)}, {8*1280-1024}, {v(x1)}")
        a(f"s_lshl_b32 {s(sB)}, {s(sRho)}, 7")
        a("s_waitcnt lgkmcnt(0)")
        self.srd(a, sIN, 4, 2048 * 1280)
        self.stamp(1)
        XF = " nt" if self.opt.get("xnt") else ""
        for ln in range(10):
            a(f"s_add_u32 m0, {s(sImg)}, {2048*ln}")
            a(f"buffer_load_dwordx4 {v(x0)}, {s(sIN,4)}, {s(sB)} offen{XF} lds")
            a(f"buffer_load_dwordx4 {v(x1)}, {s(sIN,4)}, {s(sB)} offen offset:1024{XF} lds", tag=("x", ln))
            if ln < 9:
                a(f"s_add_u32 {s(sB)}, {s(sB)}, 128\ns_cmp_ge_u32 {s(sB)}, 1280\ns_cselect_b32 {s(sB)}, 0, {s(sB)}")
        a(f"v_mov_b32 {v(m+13)}, 1\ns_mov_b64 exec, 1\nds_add_u32 {v(vZ)}, {v(m+13)} offset:{L_XI-L_CNT}\ns_mov_b64 exec, -1")
        self.stamp(1)
        self.srd(a, sWS, 24, WS_SIZE)
        a(f"v_lshrrev_b32 {v(vG)}, 4, {v(vLane)}\nv_and_b32 {v(vR)}, 15, {v(vLane)}\nv_mov_b32 {v(self.vZero)}, 0")
        a(f"v_and_b32 {v(vLa)}, 1, {v(vLane)}\nv_mul_u32_u24 {v(vLa)}, 260, {v(vLa)}\nv_add_u32 {v(vLa)}, {L_LW}, {v(vLa)}")
        a(f"s_lshl_b32 {s(sB)}, {s(sWave)}, 8\ns_add_u32 {s(sB)}, {s(sB)}, {L_CW}\nv_lshl_add_u32 {v(self.vCnt)}, {v(vLane)}, 2, {s(sB)}")
        a(f"s_mul_i32 {s(sTile)}, {s(sT)}, {TS}\ns_add_u32 {s(sTile)}, {s(sTile)}, {WS_TILE}")
        a(f"s_mul_i32 {s(sTJ)}, {s(sJ)}, 2560\ns_add_u32 {s(sTJ)}, {s(sTJ)}, {s(sTile)}")
        xoK, xoK8, xoV = m + 10, m + 11, m + 12
        a(f"s_mul_i32 {s(sA)}, {s(sPI)}, 5120\ns_add_u32 {s(sA)}, {s(sA)}, {P1TMP}\nv_add_u32 {v(xoV)}, {s(sA)}, {v(vL8)}")
        a(f"v_add_u32 {v(xoK)}, {s(sA)}, {v(vL16)}\nv_add_u32 {v(xoK8)}, {s(sA)}, {v(vL8)}")
        ra0, ra1, fr_ = m + 6, m + 7, m + 8
        a(f"v_lshrrev_b32 {v(fr_)}, 1, {v(vR)}\nv_xor_b32 {v(ra0)}, {v(fr_)}, {v(vG)}\nv_xor_b32 {v(ra1)}, 4, {v(ra0)}")
        a(f"v_lshlrev_b32 {v(m+9)}, 7, {v(vR)}\nv_add_u32 {v(m+9)}, {s(sImg)}, {v(m+9)}")
        a(f"v_lshl_add_u32 {v(ra0)}, {v(ra0)}, 4, {v(m+9)}\nv_lshl_add_u32 {v(ra1)}, {v(ra1)}, 4, {v(m+9)}")
        p0, p1 = TT + 4, TT + 5
        xq = [TT + 6 + t for t in range(5)]
        a(f"v_lshrrev_b32 {v(p0)}, 1, {v(vG)}\nv_and_b32 {v(p1)}, 1, {v(vG)}\nv_lshl_add_u32 {v(p1)}, {v(p1)}, 3, {v(m+9)}")
        for t in range(5):
            a(f"s_mul_i32 {s(sA)}, {s(sJ)}, 10\ns_add_u32 {s(sA)}, {s(sA)}, {2*t}\ns_lshr_b32 {s(sB)}, {s(sA)}, 3\ns_and_b32 {s(sA)}, {s(sA)}, 7")
            a(f"s_add_u32 {s(sB)}, {s(sB)}, 10\ns_sub_u32 {s(sB)}, {s(sB)}, {s(sRho)}\ns_sub_u32 {s(sCc)}, {s(sB)}, 10\ns_cmp_ge_u32 {s(sB)}, 10\ns_cselect_b32 {s(sB)}, {s(sCc)}, {s(sB)}\ns_lshl_b32 {s(sB)}, {s(sB)}, 11")
            a(f"v_add_u32 {v(xq[t])}, {s(sA)}, {v(p0)}\nv_xor_b32 {v(xq[t])}, {v(xq[t])}, {v(fr_)}\nv_lshl_add_u32 {v(xq[t])}, {v(xq[t])}, 4, {v(p1)}\nv_add_u32 {v(xq[t])}, {s(sB)}, {v(xq[t])}")
        sm = [TT + 12, TT + 13, TT + 14, TT + 15]
        RSD = TT + 24
        inv = f2u(1.0 / 640)
        def xread(A, ln):
            for vv in range(2): A(f"ds_read_b128 {v(AF+8*ln+4*vv,4)}, {v(ra0+vv)} offset:{2048*ln}", tag=("xf", ln))
        def dots(A, ln):
            A.wait(ds=("xf", ln))
            for k in range(8):
                r_ = AF + 8 * ln + k
                A(f"v_dot2c_f32_bf16 {v(sm[2*(k&1)])}, {s(sOnes)}, {v(r_)}\nv_dot2c_f32_bf16 {v(sm[2*(k&1)+1])}, {v(r_)}, {v(r_)}")
        def stat_fin(A):
            A(f"v_add_f32 {v(sm[0])}, {v(sm[0])}, {v(sm[2])}\nv_add_f32 {v(sm[1])}, {v(sm[1])}, {v(sm[3])}")
            self.allreduce2(A, sm[0], sm[1], None)
            A(f"v_mul_f32 {v(sm[0])}, {inv:#x}, {v(sm[0])}\nv_mul_f32 {v(sm[1])}, {inv:#x}, {v(sm[1])}")
            A(f"v_fma_f32 {v(sm[1])}, -{v(sm[0])}, {v(sm[0])}, {v(sm[1])}\nv_max_f32 {v(sm[1])}, 0, {v(sm[1])}\nv_add_f32 {v(sm[1])}, {f2u(1e-5):#x}, {v(sm[1])}")
            A(f"v_rsq_f32 {v(RSD)}, {v(sm[1])}\nv_mul_f32_e64 {v(RSD+1)}, -{v(sm[0])}, {v(RSD)}\ns_mov_b32 {s(sD)}, 0xffff0000")
        tp = [TT + 16 + 2 * k for k in range(4)]
        def norm_ops(st):
            ops = []
            for k in range(4): ops += [f"v_lshlrev_b32 {v(tp[k])}, 16, {v(AF+4*st+k)}", f"v_and_b32 {v(tp[k]+1)}, {s(sD)}, {v(AF+4*st+k)}"]
            for k in range(4): ops += [f"v_fma_f32 {v(tp[k])}, {v(tp[k])}, {v(RSD)}, {v(RSD+1)}", f"v_fma_f32 {v(tp[k]+1)}, {v(tp[k]+1)}, {v(RSD)}, {v(RSD+1)}"]
            for k in range(4): ops.append(f"v_cvt_pk_bf16_f32 {v(AF+4*st+k)}, {v(tp[k])}, {v(tp[k]+1)}")
            return ops
        for r_ in sm: a(f"v_mov_b32 {v(r_)}, 0")
        for ln in range(10):
            a.wait(vm=("x", ln))
            if ln == 9: self.stamp(1)
            xread(a, ln)
            if ln >= 2: dots(a, ln - 2)
        for t in range(5): a(f"ds_read_b64 {v(X1P+2*t,2)}, {v(xq[t])}")
        self.publish(1)
        dots(a, 8); dots(a, 9)
        stat_fin(a)
        self.stamp(); self.stamp(1)
        RK = self.opt.get("rawk")
        fr = [(U_RAW + 5 * ps + st // 4, (st % 4) * 5120 + (32 if RK and ps == 0 else 1024) * t, "tr" if RK and ps == 0 else "pk") for ps in range(3) for st in range(20) for t in range(5)]
        VAC = ACC + 20
        accs = [ACC, VAC, ACC]
        KPREV = KOWN + 10
        def pack5(acc, dst, A=None):
            A = A or a
            for t in range(5):
                A(f"v_cvt_pk_bf16_f32 {v(dst(t))}, {v(acc+4*t)}, {v(acc+4*t+1)}\nv_cvt_pk_bf16_f32 {v(dst(t)+1)}, {v(acc+4*t+2)}, {v(acc+4*t+3)}")
        def k_out(A):
            pack5(ACC, lambda t: KOWN + 2 * t, A)
            A(f"ds_write_b128 {v(xoK)}, {v(KOWN,4)}\nds_write_b128 {v(xoK)}, {v(KOWN+4,4)} offset:1024\nds_write_b64 {v(xoK8)}, {v(KOWN+8,2)} offset:2048")
        def xr_add(A, n):
            A(f"s_lshl_b32 {s(sB)}, {s(sPI)}, 2\ns_add_u32 {s(sB)}, {s(sB)}, {L_XR}\nv_mov_b32 {v(m+13)}, {s(sB)}\nv_mov_b32 {v(m+14)}, {n}")
            A(f"ds_write_b32 {v(m+13)}, {v(m+14)}")
        for st in range(20):
            for op in norm_ops(st): a(op)
        self.stamp(1)
        VF = TT
        VLO = 48
        MK = TT + 20
        BIAS = TT + 24
        sGE = lambda hh: 8 + 2 * (hh - 1)
        sCM = lambda t: 14 + 2 * (t - 1)
        tq = m + 14
        a(f"v_add_u32 {v(vWA)}, 0x10000, {v(vL16)}\nv_add_u32 {v(vPA)}, 0x20000, {v(vL16)}")
        self.vT0, self.vT1 = 216, 217
        a(f"v_lshrrev_b32 {v(216)}, 1, {v(vG)}\nv_lshlrev_b32 {v(216)}, 4, {v(216)}\nv_and_b32 {v(217)}, 1, {v(vG)}\nv_lshl_add_u32 {v(216)}, {v(217)}, 2, {v(216)}")
        a(f"v_lshrrev_b32 {v(217)}, 2, {v(vR)}\nv_add_u32 {v(216)}, {v(216)}, {v(217)}\nv_mul_u32_u24 {v(216)}, 160, {v(216)}")
        a(f"v_and_b32 {v(217)}, 3, {v(vLane)}\nv_lshl_add_u32 {v(216)}, {v(217)}, 3, {v(216)}\nv_add_u32 {v(217)}, 0xf000, {v(216)}")
        a(f"v_and_b32 {v(tq)}, 1, {v(vR)}\nv_cmp_eq_u32 {s(sPar,2)}, 1, {v(tq)}")
        a(f"v_lshl_add_u32 {v(tq)}, {v(vG)}, 2, {v(tq)}\nv_cmp_le_u32 {s(sMa,2)}, {v(tq)}, {v(vR)}")
        a(f"v_add_u32 {v(tq)}, 2, {v(tq)}\nv_cmp_le_u32 {s(sMb,2)}, {v(tq)}, {v(vR)}")
        a(f"v_mov_b32 {v(tq)}, 0xffff\nv_mov_b32 {v(m+13)}, 0xffff0000\nv_cndmask_b32 {v(tq)}, {v(tq)}, {v(m+13)}, {s(sPar,2)}")
        a(f"v_cndmask_b32 {v(MK)}, 0, {v(tq)}, {s(sMa,2)}\nv_cndmask_b32 {v(MK+1)}, 0, {v(tq)}, {s(sMb,2)}")
        a(f"v_xor_b32 {v(MK+2)}, {v(MK)}, {v(tq)}\nv_xor_b32 {v(MK+3)}, {v(MK+1)}, {v(tq)}")
        a(f"s_cmp_eq_u32 {s(sT)}, 0\ns_cselect_b32 {s(sB)}, {f2u(-1e30):#x}, 0\ns_waitcnt vmcnt(0)")
        for k in range(4): a(f"v_mov_b32 {v(BIAS+k)}, {s(sB)}")
        for hh in range(1, 4):
            a(f"v_cmp_le_u32 {s(sGE(hh),2)}, {hh}, {v(vG)}")
        vXo, vXp, vKp, vVp, vOne, vTwo = m + 15, m + 6, m + 7, m + 9, 10, 11
        a(f"s_lshl_b32 {s(sB)}, {s(sWave)}, 8\ns_add_u32 {s(sB)}, {s(sB)}, {L_CW + 1024 - 256}\ns_cmp_eq_u32 {s(sWave)}, 0\ns_cselect_b32 {s(sB)}, {L_XR}, {s(sB)}\nv_mov_b32 {v(vXp)}, {s(sB)}\nv_add_u32 {v(vXo)}, 1024, {v(self.vCnt)}")
        a(f"v_subrev_u32 {v(vKp)}, 5120, {v(xoK)}\nv_subrev_u32 {v(vVp)}, 5120, {v(xoV)}\nv_mov_b32 {v(vOne)}, 1\nv_mov_b32 {v(vTwo)}, 2")
        self.get_tag(a, self.vTag)
        a(f"v_mov_b32 {v(self.vTag+1)}, {s(sTag+1)}")
        for t in range(5): a(f"v_mov_b32 {v(VF+4*t+2)}, {s(sTag)}\nv_mov_b32 {v(VF+4*t+3)}, {s(sTag+1)}")
        sKV = 4
        a(f"s_lshl_b32 {s(sA)}, {s(sC)}, 3\ns_add_u32 {s(sA)}, {s(sA)}, {s(sJ)}\ns_mul_i32 {s(sA)}, {s(sA)}, 10240\ns_add_u32 {s(sKV)}, {s(sA)}, {WS_KV}")
        a(f"s_sub_u32 {s(sA)}, {s(sKV)}, {8*10240}\ns_cmp_eq_u32 {s(sWave)}, 0\ns_cselect_b32 {s(sKV)}, {s(sA)}, {s(sKV)}")
        def only(wave, body):
            def f():
                L = a.newlabel("Lo"); t = self.t
                a(f"s_cmp_eq_u32 {s(sWave)}, {wave}\ns_cbranch_scc1 {L}")
                a.label(L + "_b")
                t.label(L); t.reset_hist(); t("s_nop 1"); body(t, L); t(f"s_nop 1\ns_branch {L}_b")
            return f
        def kv_out(part):
            def body(t, L):
                t(f"s_add_u32 {s(sA)}, {s(sKV)}, {5120*part}\ns_add_u32 {s(sB)}, {s(sA)}, 4096")
                for k in range(5): t(f"buffer_store_dwordx4 {v(VF+4*k,4)}, {v(vL16)}, {s(sWS,4)}, {s(sB if k == 4 else sA)} offen offset:{1024*(k%4)} sc1")
            return only(3, body)
        def kv_loads(t, part):
            t(f"s_add_u32 {s(sA)}, {s(sKV)}, {5120*part}\ns_add_u32 {s(sB)}, {s(sA)}, 4096")
            for k in range(5): t(f"buffer_load_dwordx4 {v(VAC+4*k,4)}, {v(vL16)}, {s(sWS,4)}, {s(sB if k == 4 else sA)} offen offset:{1024*(k%4)} sc1")
        def kv_issue(part): return only(0, lambda t, L: kv_loads(t, part))
        def kv_take(part, dst, nxt=None):
            def body(t, L):
                t(f"s_cmp_eq_u32 {s(sC)}, 0\ns_cbranch_scc1 {L}_z")
                t.label(L + "_r")
                t(f"s_waitcnt vmcnt(0)\nv_cmp_ne_u64 vcc, {s(sTag,2)}, {v(VAC+2,2)}")
                for k in range(1, 5): t(f"v_cmp_ne_u64 {s(sMk,2)}, {s(sTag,2)}, {v(VAC+4*k+2,2)}\ns_or_b64 vcc, vcc, {s(sMk,2)}")
                t(f"s_cbranch_vccz {L}_ok\ns_cmp_eq_u32 {s(sBud)}, 0\ns_cbranch_scc1 {L}_ok\ns_sub_u32 {s(sBud)}, {s(sBud)}, 1")
                kv_loads(t, part)
                t(f"s_branch {L}_r")
                t.label(L + "_z")
                t("s_waitcnt vmcnt(0)")
                for k in range(5): t(f"v_mov_b32 {v(VAC+4*k)}, 0\nv_mov_b32 {v(VAC+4*k+1)}, 0")
                t.label(L + "_ok")
                t("s_waitcnt lgkmcnt(0)")
                for k in range(5): t(f"v_mov_b32 {v(dst(k))}, {v(VAC+4*k)}\nv_mov_b32 {v(dst(k)+1)}, {v(VAC+4*k+1)}")
                if nxt is not None: kv_loads(t, nxt)
            return only(0, body)
        self.stream_init(fr, [WW + 4 * i for i in range(8)] + [48, 52, 56, 60]); self.prime()
        self.stamp(1)
        def pack_ops(acc, dst):
            return [f"v_cvt_pk_bf16_f32 {v(dst(t)+k)}, {v(acc+4*t+2*k)}, {v(acc+4*t+2*k+1)}" for t in range(5) for k in range(2)]
        for ps in range(3):
            if ps == self.opt.get("cps", 9): a(f"s_setprio {self.opt['cprio']}")
            for st in range(20):
                if ps == 1 and st == 1:
                    self.side += pack_ops(ACC, lambda t: VF + 4 * t) + [kv_out(0)] + pack_ops(ACC, lambda t: KOWN + 2 * t)
                    self.side += [f"ds_write_b128 {v(xoK)}, {v(KOWN,4)}", f"ds_write_b128 {v(xoK)}, {v(KOWN+4,4)} offset:1024", f"ds_write_b64 {v(xoK8)}, {v(KOWN+8,2)} offset:2048", f"ds_write_b32 {v(vXo)}, {v(vOne)}"]
                if ps == 2 and st == 1:
                    self.side += pack_ops(VAC, lambda t: VF + 4 * t) + [kv_out(1), kv_issue(0)]
                    self.side += [f"ds_write_b64 {v(xoV)}, {v(VF+4*t,2)} offset:{2560+512*t}" for t in range(5)] + [f"ds_write_b32 {v(vXo)}, {v(vTwo)}"]
                if ps == 2 and st == 8:
                    rd, ck = self.async_check(vZ, L_MODE - L_CNT, 1, m + 14, "mode")
                    self.side += [rd] + [""] * 8 + [ck, f"v_readfirstlane_b32 {s(sMode)}, {v(m+14)}"]
                if ps == 2 and st == 12:
                    rd, ck = self.async_check(vXp, 0, 2, m + 13, "xr1")
                    self.side += [rd] + [""] * 8 + [ck, f"ds_read_b128 {v(KPREV,4)}, {v(vKp)}", f"ds_read_b128 {v(KPREV+4,4)}, {v(vKp)} offset:1024", f"ds_read_b64 {v(KPREV+8,2)}, {v(vVp)} offset:2048"]
                    self.side += [(f"ds_read_b64 {v(VF+4*t+2,2)}, {v(vVp)} offset:{2560+512*t}", "kprev") for t in range(5)]
                if ps == 2 and st == self.opt.get("kvt", 18):
                    self.side += [kv_take(0, lambda k: KPREV + 2 * k, 1)]
                for t in range(5):
                    f = ps * 100 + st * 5 + t
                    self.mfma_w(f, accs[ps] + 4 * t, AF + 4 * st, first=(st == 0), swap=(ps == 1))
            self.stamp(1)
        assert not self.side
        self.stamp()
        QF, SC, SP, PF, QP = AF, AF + 16, AF + 32, AF + 48, AF + 64
        pack5(ACC, lambda t: QF if t == 0 else (QF + 14 if t == 4 else QP + 2 * t))
        for hh in range(4):
            for k in range(2):
                if hh > 0: a(f"v_cndmask_b32 {v(QF+4*hh+k)}, 0, {v(QP+2*hh+k)}, {s(sGE(hh),2)}")
                if hh < 3: a(f"v_cndmask_b32 {v(QF+4*hh+2+k)}, {v(QP+2*(hh+1)+k)}, 0, {s(sGE(hh+1),2)}")
        a.wait(ds="kprev")
        for hh in range(4):
            a(f"{MF} {v(SC+4*hh,4)}, {v(KOWN+2*hh,4)}, {v(QF+4*hh,4)}, 0")
            a(f"{MF} {v(SP+4*hh,4)}, {v(KPREV+2*hh,4)}, {v(QF+4*hh,4)}, {v(BIAS,4)}")
        la = [AF + 64 + hh for hh in range(4)]; lb = [AF + 68 + hh for hh in range(4)]; mx = [AF + 72 + hh for hh in range(4)]
        a(f"s_mov_b32 {s(sB)}, {f2u(20 ** -0.5 * math.log2(math.e)):#x}")
        for hh in range(4):
            c_, p_ = SC + 4 * hh, SP + 4 * hh
            a(f"v_cndmask_b32 {v(c_)}, {v(c_)}, {v(c_+1)}, {s(sPar,2)}\nv_cndmask_b32 {v(p_)}, {v(p_)}, {v(p_+1)}, {s(sPar,2)}")
            a(f"v_cndmask_b32 {v(c_+2)}, {v(c_+2)}, {v(c_+3)}, {s(sPar,2)}\nv_cndmask_b32 {v(p_+2)}, {v(p_+2)}, {v(p_+3)}, {s(sPar,2)}")
            a(f"v_cndmask_b32 {v(la[hh])}, {v(p_)}, {v(c_)}, {s(sMa,2)}\nv_cndmask_b32 {v(lb[hh])}, {v(p_+2)}, {v(c_+2)}, {s(sMb,2)}")
            a(f"v_max_f32 {v(mx[hh])}, {v(la[hh])}, {v(lb[hh])}")
        self.rscatter4(a, mx, "v_max_f32")
        a(f"v_mul_f32 {v(mx[0])}, {s(sB)}, {v(mx[0])}")
        self.allgather4(a, mx)
        for hh in range(4):
            a(f"v_fma_f32 {v(la[hh])}, {v(la[hh])}, {s(sB)}, -{v(mx[hh])}\nv_fma_f32 {v(lb[hh])}, {v(lb[hh])}, {s(sB)}, -{v(mx[hh])}")
        for hh in range(4):
            a(f"v_exp_f32 {v(la[hh])}, {v(la[hh])}\nv_exp_f32 {v(lb[hh])}, {v(lb[hh])}")
        for hh in range(4):
            a(f"v_add_f32 {v(mx[hh])}, {v(la[hh])}, {v(lb[hh])}")
        self.rscatter4(a, mx, "v_add_f32")
        a(f"v_rcp_f32 {v(mx[0])}, {v(mx[0])}")
        self.allgather4(a, mx)
        for hh in range(4):
            a(f"v_mul_f32 {v(la[hh])}, {v(la[hh])}, {v(mx[hh])}\nv_mul_f32 {v(lb[hh])}, {v(lb[hh])}, {v(mx[hh])}")
            a(f"v_cvt_pk_bf16_f32 {v(la[hh])}, {v(la[hh])}, {v(la[hh])}\nv_cvt_pk_bf16_f32 {v(lb[hh])}, {v(lb[hh])}, {v(lb[hh])}")
            a(f"v_and_b32 {v(PF+4*hh)}, {v(la[hh])}, {v(MK)}\nv_and_b32 {v(PF+4*hh+1)}, {v(lb[hh])}, {v(MK+1)}")
            a(f"v_and_b32 {v(PF+4*hh+2)}, {v(la[hh])}, {v(MK+2)}\nv_and_b32 {v(PF+4*hh+3)}, {v(lb[hh])}, {v(MK+3)}")
        kv_take(1, lambda k: VF + 4 * k + 2)()
        OB = SC
        for hh in range(4):
            a(f"{MF} {v(ACC+4*hh,4)}, {v(VF+4*hh,4)}, {v(PF+4*hh,4)}, 0")
            a(f"{MF} {v(ACC+16 if hh == 3 else OB+4*hh,4)}, {v(VF+4*hh+4,4)}, {v(PF+4*hh,4)}, 0")
        self.publish(U_X + 1)
        OP = TT
        for t in range(5):
            if 1 <= t <= 3:
                for i in range(4): a(f"v_cndmask_b32 {v(ACC+4*t+i)}, {v(OB+4*(t-1)+i)}, {v(ACC+4*t+i)}, {s(sGE(t),2)}")
            a(f"v_cvt_pk_bf16_f32 {v(OP+2*t)}, {v(ACC+4*t)}, {v(ACC+4*t+1)}\nv_cvt_pk_bf16_f32 {v(OP+2*t+1)}, {v(ACC+4*t+2)}, {v(ACC+4*t+3)}")
        self.handoff_store(OP, BUFA)
        vA16, vA8, vF8 = m + 6, m + 7, m + 8
        a(f"v_add_u32 {v(vA16)}, {s(sTile)}, {v(vL16)}\ns_add_u32 {s(sB)}, {s(sTile)}, 2048\nv_add_u32 {v(vA8)}, {s(sB)}, {v(vL8)}")
        a(f"v_and_b32 {v(vF8)}, 7, {v(vLane)}\nv_lshlrev_b32 {v(vF8)}, 3, {v(vF8)}\nv_add_u32 {v(vF8)}, {s(sTile)}, {v(vF8)}")
        a("s_waitcnt vmcnt(0)")
        self.flag_store(F1)
        self.stamp()

        def unpack_acc(src, fn=None):
            for t in range(5):
                for k in range(2):
                    a(f"v_lshlrev_b32 {v(ACC+4*t+2*k)}, 16, {v(src+2*t+k)}\nv_and_b32 {v(ACC+4*t+2*k+1)}, 0xffff0000, {v(src+2*t+k)}")
        def frags640(u0): return [(u0 + st // 5, (st % 5) * 5120 + 1024 * t, "pk") for st in range(20) for t in range(5)]
        def load_A(buf, v16=None, v8=None):
            self.stamp(self.ph)
            for i in range(4):
                a(f"s_mul_i32 {s(sA)}, {s(sRot+i)}, 5120\ns_add_u32 {s(sA)}, {s(sA)}, {buf}")
                a16 = vA16 if v16 is None else v16[i]; a8 = vA8 if v8 is None else v8[i]
                for uu, imm in enumerate((0, 1024, 2560, 3584)):
                    a(f"buffer_load_dwordx4 {v(AF+20*i+4*uu,4)}, {v(a16)}, {s(sWS,4)}, {s(sA)} offen offset:{imm} sc1", tag=("A", 5*i+uu))
                a(f"buffer_load_dwordx2 {v(AF+20*i+16,2)}, {v(a8)}, {s(sWS,4)}, {s(sA)} offen sc1")
                a(f"buffer_load_dwordx2 {v(AF+20*i+18,2)}, {v(a8)}, {s(sWS,4)}, {s(sA)} offen offset:2560 sc1", tag=("A", 5*i+4))
        def gemm640():
            for st in range(20):
                a.wait(vm=("A", st))
                if st in (0, 10, 19): self.stamp(self.ph)
                for t in range(5): self.mfma_w(st * 5 + t, ACC + 4 * t, AF + 4 * st)
            self.stamp(self.ph)
        def stats_store(src, off):
            x_, y_ = TT + 12, TT + 13
            a(f"v_mov_b32 {v(x_)}, 0\nv_mov_b32 {v(y_)}, 0")
            for k in range(10):
                a(f"v_dot2c_f32_bf16 {v(x_)}, {s(sOnes)}, {v(src+k)}\nv_dot2c_f32_bf16 {v(y_)}, {v(src+k)}, {v(src+k)}")
            self.allreduce2(a, x_, y_, None)
            a(f"v_mov_b32 {v(TT+14)}, {s(sTag)}\nv_mov_b32 {v(TT+15)}, {s(sTag+1)}")
            a(f"s_lshl_b32 {s(sA)}, {s(sJ)}, 8\ns_add_u32 {s(sA)}, {s(sA)}, {s(sTile)}\ns_add_u32 {s(sA)}, {s(sA)}, {off}")
            self.stamp(self.ph)
            a("s_waitcnt vmcnt(0)")
            self.stamp(self.ph)
            a("s_mov_b64 exec, 0xffff")
            self.moded([f"buffer_store_dwordx4 {v(TT+12,4)}, {v(vL16)}, {s(sWS,4)}, {s(sA)} offen"])
            a("s_mov_b64 exec, -1")
        def stats_poll(off):
            L = a.newlabel("Lp"); Lok = L + "_ok"
            e0, e1 = TT + 12, TT + 16
            a(f"s_mov_b32 {s(sA)}, {off}")
            a.label(L)
            a(f"buffer_load_dwordx4 {v(e0,4)}, {v(vA16)}, {s(sWS,4)}, {s(sA)} offen sc1")
            a(f"buffer_load_dwordx4 {v(e1,4)}, {v(vA16)}, {s(sWS,4)}, {s(sA)} offen offset:1024 sc1")
            a(f"s_waitcnt vmcnt(0)\nv_cmp_ne_u64 vcc, {s(sTag,2)}, {v(e0+2,2)}\nv_cmp_ne_u64 {s(sMk,2)}, {s(sTag,2)}, {v(e1+2,2)}")
            a(f"s_or_b64 vcc, vcc, {s(sMk,2)}\ns_cbranch_scc0 {Lok}")
            self.spin_tail(a, L, Lok)
            a.label(Lok)
        def stats_finish(mu, var):
            e0, e1 = TT + 12, TT + 16
            a(f"v_add_f32 {v(mu)}, {v(e0)}, {v(e1)}\nv_add_f32 {v(var)}, {v(e0+1)}, {v(e1+1)}")
            self.allreduce2(a, mu, var, None)
            a(f"v_mul_f32 {v(mu)}, {f2u(-1.0/640):#x}, {v(mu)}")
            return [f"v_mul_f32 {v(var)}, {inv:#x}, {v(var)}", f"v_fma_f32 {v(var)}, -{v(mu)}, {v(mu)}, {v(var)}", f"v_max_f32 {v(var)}, 0, {v(var)}"]
        c0 = -2 * math.sqrt(2 / math.pi) * math.log2(math.e)
        GK = KOWN
        def gelu_consts(R):
            return [f"v_mul_f32 {v(GK)}, {f2u(c0):#x}, {v(R)}", f"v_mul_f32 {v(GK+1)}, {v(R)}, {v(R)}", f"v_mul_f32 {v(GK+1)}, {v(GK+1)}, {v(GK)}",
                    f"v_mul_f32 {v(GK+1)}, {f2u(0.044715):#x}, {v(GK+1)}", f"v_rcp_f32 {v(GK+2)}, {v(R)}"]
        def gelu_ops(acc, n, dst, tmp, pk=True):
            ops = []
            for b in range(0, n, 4):
                P = [(acc + b, tmp), (acc + b + 2, tmp + 2)]
                if pk:
                    for x_, t_ in P: ops.append(f"v_pk_mul_f32 {v(t_,2)}, {v(x_,2)}, {v(x_,2)}")
                    for x_, t_ in P: ops.append(f"v_pk_fma_f32 {v(t_,2)}, {v(t_,2)}, {v(GK,2)}, {v(GK,2)} op_sel:[0,1,0] op_sel_hi:[1,1,0]")
                    for x_, t_ in P: ops.append(f"v_pk_mul_f32 {v(t_,2)}, {v(t_,2)}, {v(x_,2)}")
                    for k in range(4): ops.append(f"v_exp_f32 {v(tmp+k)}, {v(tmp+k)}")
                    for x_, t_ in P: ops.append(f"v_pk_fma_f32 {v(t_,2)}, {v(t_,2)}, {v(GK+2,2)}, {v(GK+2,2)} op_sel_hi:[1,0,0]")
                    for k in range(4): ops.append(f"v_rcp_f32 {v(tmp+k)}, {v(tmp+k)}")
                    for x_, t_ in P: ops.append(f"v_pk_mul_f32 {v(t_,2)}, {v(t_,2)}, {v(x_,2)}")
                else:
                    for k in range(4): ops.append(f"v_mul_f32 {v(tmp+k)}, {v(acc+b+k)}, {v(acc+b+k)}")
                    for k in range(4): ops.append(f"v_fma_f32 {v(tmp+k)}, {v(tmp+k)}, {v(GK+1)}, {v(GK)}")
                    for k in range(4): ops.append(f"v_mul_f32 {v(tmp+k)}, {v(tmp+k)}, {v(acc+b+k)}")
                    for k in range(4): ops.append(f"v_exp_f32 {v(tmp+k)}, {v(tmp+k)}")
                    for k in range(4): ops.append(f"v_fma_f32 {v(tmp+k)}, {v(tmp+k)}, {v(GK+2)}, {v(GK+2)}")
                    for k in range(4): ops.append(f"v_rcp_f32 {v(tmp+k)}, {v(tmp+k)}")
                    for k in range(4): ops.append(f"v_mul_f32 {v(tmp+k)}, {v(tmp+k)}, {v(acc+b+k)}")
                for i_, (x_, t_) in enumerate(P): ops.append(f"v_cvt_pk_bf16_f32 {v(dst+b//2+i_)}, {v(t_)}, {v(t_+1)}")
            return ops

        a.label("L_P2")
        if self.opt.get("cprio"): a(f"s_setprio {self.opt['cprio']}")
        self.ph = 2; self.stamp(2)
        self.stream_init(frags640(U_WO), SLOTS12, 4); self.prime()
        self.stamp(2)
        unpack_acc(X1P)
        a(f"s_mov_b32 {s(sB)}, {F1}")
        self.poll8(a, vF8, s(sB), TT + 12)
        load_A(BUFA); gemm640()
        pack5(ACC, lambda t: HP + 2 * t)
        self.handoff_store(HP, BUFB)
        stats_store(HP, S2)
        self.stamp()
        a.label("L_P3")
        self.ph = 3; self.stamp(3)
        self.stream_init(frags640(U_W1), SLOTS12, 4); self.prime()
        self.stamp(3)
        self.lds_spin(a, vZ, L_CSRDY - L_CNT, 2, vLC)
        vCS = m + 9
        a(f"v_lshlrev_b32 {v(vCS)}, 4, {v(vG)}\nv_add_u32 {v(vCS)}, {L_CS1}, {v(vCS)}")
        for t in range(5): a(f"ds_read_b128 {v(ACC+4*t,4)}, {v(vCS)} offset:{64*t}", tag="cs")
        stats_poll(S2)
        load_A(BUFB)
        MU, RS = KOWN + 4, KOWN + 5
        var, R = KOWN + 6, KOWN + 7
        rest = stats_finish(MU, var)
        a.wait(ds="cs")
        for k in range(20): a(f"v_mul_f32 {v(ACC+k)}, {v(MU)}, {v(ACC+k)}")
        eps = f"{f2u(1e-5):#x}"
        self.side += rest + [f"v_add_f32 {v(R)}, {eps}, {v(var)}", f"v_rsq_f32 {v(RS)}, {v(R)}", f"v_mul_f32 {v(R)}, {v(RS)}, {v(RS)}", f"v_mul_f32 {v(R)}, {v(R)}, {v(var)}",
                             f"v_add_f32 {v(R)}, {eps}, {v(R)}", f"v_rsq_f32 {v(R)}, {v(R)}", f"v_mul_f32 {v(R)}, {v(R)}, {v(RS)}"] + gelu_consts(R)
        gemm640()
        for op in gelu_ops(ACC, 20, OP, TT + 12): a(op)
        self.stamp(3)
        self.handoff_store(OP, BUFA)
        Lsh = a.newlabel("Lsh"); Lshb = Lsh + "_b"
        a(f"s_bitcmp1_b32 {s(sJ)}, 1\ns_cselect_b32 {s(sB)}, 0, 3\ns_cmp_eq_u32 {s(sWave)}, {s(sB)}\ns_cbranch_scc1 {Lsh}")
        a("s_waitcnt vmcnt(0)")
        self.flag_store(F3)
        a.label(Lshb)
        self.stamp(3)
        t = self.t
        t.label(Lsh); t.reset_hist()
        t(f"s_bitcmp1_b32 {s(sJ)}, 1\ns_mov_b32 {s(sSh)}, 0xc000c000\ns_cselect_b32 {s(sSh)}, 0x00030003, {s(sSh)}\ns_mov_b32 {s(sSh+1)}, {s(sSh)}")
        t(f"s_add_u32 {s(sA)}, {s(sTJ)}, {SHAD}\ns_mov_b64 exec, {s(sSh,2)}")
        t(f"buffer_store_dwordx4 {v(OP,4)}, {v(vL16)}, {s(sWS,4)}, {s(sA)} offen sc1")
        t(f"buffer_store_dwordx4 {v(OP+4,4)}, {v(vL16)}, {s(sWS,4)}, {s(sA)} offen offset:1024 sc1")
        t(f"buffer_store_dwordx2 {v(OP+8,2)}, {v(vL8)}, {s(sWS,4)}, {s(sA)} offen offset:2048 sc1")
        t(f"s_lshl_b32 {s(sA)}, {s(sJ)}, 3\ns_add_u32 {s(sA)}, {s(sA)}, {s(sTile)}\ns_add_u32 {s(sA)}, {s(sA)}, {F3}\ns_mov_b64 exec, 1")
        t(f"s_waitcnt vmcnt(3)\ns_cmp_lg_u32 {s(sMode)}, 1\ns_cbranch_scc1 {Lsh}_s")
        t(f"buffer_store_dwordx2 {v(self.vTag,2)}, {v(self.vZero)}, {s(sWS,4)}, {s(sA)} offen\ns_branch {Lsh}_t")
        t.label(Lsh + "_s")
        t(f"buffer_store_dwordx2 {v(self.vTag,2)}, {v(self.vZero)}, {s(sWS,4)}, {s(sA)} offen sc1")
        t.label(Lsh + "_t")
        t(f"s_waitcnt vmcnt(1)\nbuffer_store_dwordx2 {v(self.vTag,2)}, {v(self.vZero)}, {s(sWS,4)}, {s(sA)} offen offset:{FH-F3} sc1")
        t(f"s_mov_b64 exec, -1\ns_branch {Lshb}")
        self.stamp()
        a.label("L_P4")
        self.ph = 4; self.stamp(4)
        self.stream_init(frags640(U_W2), SLOTS12, 4); self.prime()
        self.stamp(4)
        unpack_acc(HP)
        a(f"v_mul_f32 {v(var)}, {v(MU)}, {v(RS)}")
        for k in range(20): a(f"v_fma_f32 {v(ACC+k)}, {v(ACC+k)}, {v(RS)}, {v(var)}")
        sPv, sNx = sD, sE
        a(f"s_sub_u32 {s(sPv)}, {s(sTile)}, {TS}\ns_add_u32 {s(sA)}, {s(sPv)}, {SHAD}\ns_cmp_eq_u32 {s(sWave)}, 0\ns_cselect_b32 {s(sPv)}, {s(sA)}, {s(sPv)}")
        a(f"s_cmp_eq_u32 {s(sT)}, 0\ns_cselect_b32 {s(sPv)}, {OOB}, {s(sPv)}")
        a(f"s_add_u32 {s(sNx)}, {s(sTile)}, {TS}\ns_add_u32 {s(sA)}, {s(sNx)}, {SHAD}\ns_cmp_eq_u32 {s(sWave)}, 3\ns_cselect_b32 {s(sNx)}, {s(sA)}, {s(sNx)}")
        a(f"s_cmp_eq_u32 {s(sT)}, 127\ns_cselect_b32 {s(sNx)}, {OOB}, {s(sNx)}")
        v16 = [VFR + i for i in range(4)]; v8 = [VFR + 4 + i for i in range(4)]
        tb, tr_ = VFR + 8, VFR + 9
        for i in range(4):
            a(f"s_lshr_b32 {s(sA)}, {s(sRot+i)}, 1\ns_add_u32 {s(sA)}, {s(sA)}, 1\ns_sub_u32 {s(sB)}, 0, {s(sA)}\ns_bitcmp1_b32 {s(sRot+i)}, 0\ns_cselect_b32 {s(sA)}, {s(sA)}, {s(sB)}")
            a(f"s_cselect_b32 {s(sB)}, {s(sNx)}, {s(sPv)}")
            a(f"v_add_u32 {v(tr_)}, {s(sA)}, {v(vR)}\nv_cmp_lt_u32 vcc, 15, {v(tr_)}")
            a(f"v_mov_b32 {v(tb)}, {s(sTile)}\nv_mov_b32 {v(v8[i])}, {s(sB)}\nv_cndmask_b32 {v(tb)}, {v(tb)}, {v(v8[i])}, vcc")
            a(f"v_and_b32 {v(tr_)}, 15, {v(tr_)}\nv_lshl_add_u32 {v(tr_)}, {v(vG)}, 4, {v(tr_)}")
            a(f"v_lshl_add_u32 {v(v16[i])}, {v(tr_)}, 4, {v(tb)}\nv_lshl_add_u32 {v(v8[i])}, {v(tr_)}, 3, {v(tb)}\nv_add_u32 {v(v8[i])}, 2048, {v(v8[i])}")
        fa = VFR + 10
        a(f"s_sub_u32 {s(sA)}, {s(sTile)}, {TS}\ns_add_u32 {s(sB)}, {s(sA)}, {FH-F3}\ns_cmp_eq_u32 {s(sWave)}, 0\ns_cselect_b32 {s(sA)}, {s(sB)}, {s(sA)}")
        a(f"s_cmp_eq_u32 {s(sT)}, 0\ns_cselect_b32 {s(sA)}, {s(sTile)}, {s(sA)}")
        a(f"s_add_u32 {s(sCc)}, {s(sTile)}, {TS}\ns_add_u32 {s(sB)}, {s(sCc)}, {FH-F3}\ns_cmp_eq_u32 {s(sWave)}, 3\ns_cselect_b32 {s(sCc)}, {s(sB)}, {s(sCc)}")
        a(f"s_cmp_eq_u32 {s(sT)}, 127\ns_cselect_b32 {s(sCc)}, {s(sTile)}, {s(sCc)}")
        a(f"v_mov_b32 {v(tb)}, {s(sA)}\nv_mov_b32 {v(tr_)}, {s(sCc)}\nv_and_b32 {v(fa)}, 2, {v(vLane)}\nv_cmp_ne_u32 vcc, 0, {v(fa)}")
        a(f"v_cndmask_b32 {v(tb)}, {v(tb)}, {v(tr_)}, vcc\nv_mov_b32 {v(tr_)}, {s(sTile)}\nv_and_b32 {v(fa)}, 8, {v(vLane)}\nv_cmp_ne_u32 vcc, 0, {v(fa)}")
        a(f"v_cndmask_b32 {v(tb)}, {v(tr_)}, {v(tb)}, vcc\nv_and_b32 {v(fa)}, 7, {v(vLane)}\nv_lshl_add_u32 {v(fa)}, {v(fa)}, 3, {v(tb)}")
        a(f"s_mov_b32 {s(sB)}, {F3}")
        self.poll8(a, fa, s(sB), TT + 12)
        load_A(BUFA, v16, v8); gemm640()
        pack5(ACC, lambda t: X1P + 2 * t)
        self.handoff_store(X1P, BUFB)
        stats_store(X1P, S4)
        self.stamp()
        a.label("L_P5")
        fr5 = [(U_W3 + ch * 4 + st // 5, (st % 5) * 4096 + 1024 * tt, "pk") for ch in range(3) for st in range(20) for tt in range(4)]
        self.ph = 5; self.stamp(5)
        fr6 = [(U_W4 + st // 4, (st % 4) * 5120 + 1024 * t, "pk") for st in range(48) for t in range(5)]
        self.stream_init(fr5 + fr6, SLOTS12, 4); self.prime()
        self.stamp(5)
        for k in range(8): a(f"ds_read_b128 {v(ACC+4*k,4)}, {v(vCS)} offset:{L_CS3-L_CS1+64*k}", tag="cs")
        stats_poll(S4)
        load_A(BUFB)
        rest = stats_finish(MU, var)
        a.wait(ds="cs")
        for k in range(16): a(f"v_mul_f32 {v(ACC+k)}, {v(MU)}, {v(ACC+k)}")
        self.side += [f"v_mul_f32 {v(ACC+k)}, {v(MU)}, {v(ACC+k)}" for k in range(16, 32)] + rest + [f"v_add_f32 {v(R)}, {eps}, {v(var)}", f"v_rsq_f32 {v(R)}, {v(R)}"] + gelu_consts(R)
        GP = TT
        A6 = ACC + 16
        def g_store(ch):
            a(f"s_lshl_b32 {s(sA)}, {s(sJ)}, 11\ns_add_u32 {s(sA)}, {s(sA)}, {s(sTile)}\ns_add_u32 {s(sA)}, {s(sA)}, {GBUF[ch]}")
            self.moded([f"buffer_store_dwordx4 {v(GP,4)}, {v(vL16)}, {s(sWS,4)}, {s(sA)} offen",
                        f"buffer_store_dwordx4 {v(GP+4,4)}, {v(vL16)}, {s(sWS,4)}, {s(sA)} offen offset:1024"], tag=("gst", ch))
        def g_flag(ch):
            a.wait(vm=("gst", ch))
            self.flag_store(G0 + 128 * ch)
        PL = TT + 16
        def g_poll_issue(ch):
            a(f"s_mov_b32 {s(sB)}, {G0 + 128*ch}\nbuffer_load_dwordx2 {v(PL,2)}, {v(vF8)}, {s(sWS,4)}, {s(sB)} offen sc1", tag=("gp", ch))
        def g_poll_check(ch):
            L = a.newlabel("Lg"); Lok = L + "_ok"
            a.wait(vm=("gp", ch))
            a(f"v_cmp_ne_u64 vcc, {s(sTag,2)}, {v(PL,2)}\ns_cbranch_vccnz {L}")
            a.label(Lok)
            t = self.t
            t.label(L); t.reset_hist()
            t(f"s_mov_b32 {s(sB)}, {G0 + 128*ch}\nbuffer_load_dwordx2 {v(PL,2)}, {v(vF8)}, {s(sWS,4)}, {s(sB)} offen sc1")
            t(f"s_waitcnt vmcnt(0)\nv_cmp_ne_u64 vcc, {s(sTag,2)}, {v(PL,2)}\ns_cbranch_vccz {Lok}")
            self.spin_tail(t, L, Lok)
        sG = sD
        def loadG(st):
            if st % 4 == 0:
                ch, ui = st // 16, (st % 16) // 4
                a(f"s_lshl_b32 {s(sG)}, {s(sRot+ui)}, 12\ns_add_u32 {s(sG)}, {s(sG)}, {GBUF[ch]}")
            a(f"buffer_load_dwordx4 {v(AF+4*(st%20),4)}, {v(vA16)}, {s(sWS,4)}, {s(sG)} offen offset:{(st%4)*1024} sc1", tag=("G", st))
        A6 = [ACC + 16, ACC + 20, ACC + 24, ACC + 28, 44]
        def spread(ops, n0, n1, n, state):
            while state[0] < len(ops) and n >= n0 and state[0] < (n - n0 + 1) * len(ops) // (n1 - n0 + 1):
                a(ops[state[0]]); state[0] += 1
        PCK = self.opt.get("pck", 11)
        nxt = 0
        for ch in range(3):
            acc = ACC + 16 * (ch & 1)
            self.stamp(5)
            side = gelu_ops(ACC + 16 * ((ch - 1) & 1), 16, GP, TT + 12, pk=False) if ch > 0 else []
            stt = [0]
            init6 = []
            if ch == 2:
                for t in range(5):
                    for k in range(2):
                        d = A6[t] + 2 * k
                        init6 += [f"v_lshlrev_b32 {v(d)}, 16, {v(HP+2*t+k)}", f"v_and_b32 {v(d+1)}, 0xffff0000, {v(HP+2*t+k)}",
                                  f"v_lshlrev_b32 {v(TT+12)}, 16, {v(X1P+2*t+k)}", f"v_and_b32 {v(TT+13)}, 0xffff0000, {v(X1P+2*t+k)}",
                                  f"v_add_f32 {v(d)}, {v(d)}, {v(TT+12)}", f"v_add_f32 {v(d+1)}, {v(d+1)}, {v(TT+13)}"]
            st6 = [0]
            E = 63 if ch == 1 else 55
            for st in range(20):
                if ch == 0: a.wait(vm=("A", st))
                for tt in range(4):
                    self.mfma_w(ch * 80 + st * 4 + tt, acc + 4 * tt, AF + 4 * st)
                    n = st * 4 + tt
                    spread(side, 3, E, n, stt)
                    spread(init6, E + 1, 79, n, st6)
                if ch > 0 and 4 * st + 3 == E:
                    assert stt[0] == len(side)
                    g_store(ch - 1)
                    if ch == 1:
                        for k in range(4): a(f"ds_read_b128 {v(ACC+4*k,4)}, {v(vCS)} offset:{L_CS3-L_CS1+64*(8+k)}", tag="cs")
                if ch == 1 and st == 17:
                    a.wait(ds="cs")
                    self.side += [f"v_mul_f32 {v(ACC+k)}, {v(MU)}, {v(ACC+k)}\nv_mul_f32 {v(ACC+k+1)}, {v(MU)}, {v(ACC+k+1)}" for k in range(0, 16, 2)]
                if ch == 2:
                    if st == 1: g_flag(0)
                    if st == PCK - 4: g_poll_issue(0)
                    if st == PCK: g_poll_check(0)
                    if st >= PCK:
                        cnt = 0
                        while nxt < 16 and nxt <= st and cnt < 2:
                            loadG(nxt); nxt += 1; cnt += 1
            assert not self.side
        self.stamp(5)
        self.stamp()
        a.label("L_P6")
        side = gelu_ops(ACC, 16, GP, TT + 12, pk=False); stt = [0]
        PC1, GS2, PI2, PC2 = self.opt.get("pc1", 5), self.opt.get("gs2", 11), self.opt.get("pi2", 21), self.opt.get("pc2", 25)
        for st in range(48):
            a.wait(vm=("G", st))
            if st in (0, 12, 24, 36, 47): self.stamp(6)
            for t in range(5):
                self.mfma_w(240 + st * 5 + t, A6[t], AF + 4 * (st % 20))
                spread(side, 3, 5 * GS2 + 4, 5 * st + t, stt)
            if st == 0: g_flag(1)
            if st == PC1 - 3: g_poll_issue(1)
            if st == PC1: g_poll_check(1)
            if st == GS2: g_store(2)
            if st == GS2 + 4: g_flag(2)
            if st == PI2: g_poll_issue(2)
            if st == PC2: g_poll_check(2)
            lim = 16 if st < PC1 else (32 if st < PC2 else 48)
            cnt = 0
            while nxt < lim and nxt <= st + 20 and cnt < 4:
                loadG(nxt); nxt += 1; cnt += 1
        self.stamp(6)
        for t in range(5):
            a(f"v_cvt_pk_bf16_f32 {v(OP+2*t)}, {v(A6[t])}, {v(A6[t]+1)}\nv_cvt_pk_bf16_f32 {v(OP+2*t+1)}, {v(A6[t]+2)}, {v(A6[t]+3)}")
        sg, sr, so = VFR + 4, VFR + 5, VFR + 6
        a(f"s_mul_i32 {s(sB)}, {s(sWave)}, 2560\ns_add_u32 {s(sB)}, {s(sB)}, {STAGE}")
        a(f"v_mul_u32_u24 {v(sg)}, 160, {v(vR)}\nv_lshl_add_u32 {v(sg)}, {v(vG)}, 3, {v(sg)}\nv_add_u32 {v(sg)}, {s(sB)}, {v(sg)}\nv_add_u32 {v(sr)}, {s(sB)}, {v(vL16)}")
        for t in range(5): a(f"ds_write_b64 {v(sg)}, {v(OP+2*t,2)} offset:{32*t}")
        for k in range(3): a(f"ds_read_b128 {v(AF+4*k,4)}, {v(sr)} offset:{1024*k}", tag=("o", k))
        self.srd(a, sOUT, 20, 2048 * 1280)
        a(f"s_mul_i32 {s(sA)}, {s(sT)}, {16*1280}\ns_mul_i32 {s(sB)}, {s(sJ)}, 160\ns_add_u32 {s(sA)}, {s(sA)}, {s(sB)}")
        for k in range(3):
            a(f"v_add_u32 {v(so)}, {64*k}, {v(vLane)}\nv_mul_u32_u24 {v(so+1)}, 6554, {v(so)}\nv_lshrrev_b32 {v(so+1)}, 16, {v(so+1)}")
            a(f"v_mul_u32_u24 {v(so+1)}, 1120, {v(so+1)}\nv_lshl_add_u32 {v(so+2+k)}, {v(so)}, 4, {v(so+1)}")
        for k in range(3):
            a.wait(ds=("o", k))
            if k == 2: a("s_mov_b32 exec_hi, 0")
            a(f"buffer_store_dwordx4 {v(AF+4*k,4)}, {v(so+2+k)}, {s(sOUT,4)}, {s(sA)} offen{('', ' sc1', ' nt', ' sc0 sc1')[self.opt.get('osc', 0)]}")
        a("s_mov_b64 exec, -1")
        self.stamp()
        self.finish(a)

    def finish(self, a):
        if self.stamps and self.opt.get("enc"):
            L = a.newlabel("Len"); k = self.opt["enc"]
            a("s_waitcnt vmcnt(0) lgkmcnt(0)")
            a(f"{self.clk} {s(sSt+22,2)}\ns_waitcnt lgkmcnt(0)\ns_cmp_lg_u32 {s(sWave)}, 1\ns_cbranch_scc1 {L}_e\ns_cmp_lg_u32 s2, {self.opt.get('encb', 77)}\ns_cbranch_scc1 {L}_e")
            a(f"s_sub_u32 {s(sA)}, {s(sSt+2*k)}, {s(sSt)}\ns_lshl_b32 {s(sA)}, {s(sA)}, 1\ns_min_u32 {s(sA)}, {s(sA)}, 20000")
            a.label(L)
            a(f"{self.clk} s[4:5]\ns_waitcnt lgkmcnt(0)\ns_sub_u32 s4, s4, {s(sSt+22)}\ns_cmp_lt_u32 s4, {s(sA)}\ns_cbranch_scc1 {L}")
            a.label(L + "_e")
        elif self.stamps and self.opt.get("dbg"):
            L = a.newlabel("Ldb")
            a("s_waitcnt vmcnt(0) lgkmcnt(0)")
            a(f"{self.clk} {s(sSt+22,2)}\ns_load_dwordx2 s[4:5], s[0:1], 72\ns_waitcnt lgkmcnt(0)\ns_cmp_lg_u32 {s(sWave)}, {self.opt['dbg']-1}\ns_cbranch_scc1 {L}")
            a("v_mov_b32 v0, 0\ns_mov_b64 exec, 1")
            for k in range(12):
                a(f"v_mov_b32 v12, {s(sSt+2*k)}\nglobal_atomic_umax v0, v12, s[4:5] offset:{4*k}")
            a(f"s_not_b32 {s(sA)}, {s(sSt)}\nv_mov_b32 v12, {s(sA)}\nglobal_atomic_umax v0, v12, s[4:5] offset:60")
            a.label(L)
        elif self.stamps:
            a("s_waitcnt vmcnt(0) lgkmcnt(0)")
            a(f"{self.clk} {s(sSt+22,2)}\ns_waitcnt lgkmcnt(0)")
            a(f"s_lshl_b32 {s(sA)}, s2, 3\ns_add_u32 {s(sA)}, {s(sA)}, {s(sWave)}\ns_lshl_b32 {s(sA)}, {s(sA)}, 7\ns_add_u32 {s(sA)}, {s(sA)}, {WS_STAMP}")
            a("v_mov_b32 v0, 0\ns_mov_b64 exec, 1")
            for k in range(12):
                a(f"v_mov_b32 v12, {s(sSt+2*k)}\nv_mov_b32 v13, {s(sBud)}")
                a(f"buffer_store_dwordx2 v[12:13], v0, {s(sWS,4)}, {s(sA)} offen offset:{8*k}")
        a("s_endpgm")

    def pf_wait(self, a, base, n2, tmp):
        per = {20: 20, 30: 60, 48: 48}[n2]
        if n2 == 30: a(f"s_mul_i32 {s(sA)}, {s(sJ)}, {60*8}")
        else: a(f"s_mul_i32 {s(sA)}, {s(sJ)}, 5\ns_lshr_b32 {s(sA)}, {s(sA)}, 2\ns_mul_i32 {s(sA)}, {s(sA)}, {per*8}")
        a(f"s_add_u32 {s(sA)}, {s(sA)}, {WS_PF + base*8}")
        a(f"v_min_u32 {v(tmp)}, {n2-1}, {v(vLane)}\nv_lshlrev_b32 {v(tmp)}, 4, {v(tmp)}")
        L = a.newlabel("Lpf"); Lok = L + "_ok"
        a.label(L)
        a(f"buffer_load_dwordx4 {v(tmp+4,4)}, {v(tmp)}, {s(sWS,4)}, {s(sA)} offen sc1")
        a(f"s_waitcnt vmcnt(0)\nv_cmp_ne_u64 vcc, {s(sTag,2)}, {v(tmp+4,2)}\nv_cmp_ne_u64 {s(sMk,2)}, {s(sTag,2)}, {v(tmp+6,2)}")
        a(f"s_or_b64 vcc, vcc, {s(sMk,2)}\ns_cbranch_scc0 {Lok}\ns_sleep 8")
        self.spin_tail(a, L, Lok)
        a.label(Lok)

    def helper_start(self):
        a = self.a; c = self.PC
        a(f"s_lshl_b32 {s(sA)}, 1, {s(sWave)}\ns_and_b32 {s(sA)}, {s(sA)}, 0xb0\ns_cbranch_scc0 L_compute")
        a(f"s_setprio 3\ns_min_u32 {s(sA)}, {s(sWave)}, 6\ns_sub_u32 {s(sA)}, {s(sA)}, 4\ns_lshl_b32 s70, {s(sA)}, 11\ns_add_u32 s70, s70, {L_PSCR}")
        a(f"s_lshl_b32 s63, {s(sA)}, 8\ns_add_u32 s63, s63, s2\ns_add_u32 s63, s63, {200 if self.opt.get('rawk') else 0}\nv_mov_b32 {v(c+7)}, 0")
        self.pk_A(a, 0, 64, pre_wait=True)
        self.srd(a, sWS, 24, WS_SIZE)
        a(f"s_cmp_eq_u32 {s(sWave)}, 7\ns_cbranch_scc1 L_service\ns_branch L_loader")
        a.label("L_compute"); a.reset_hist(); a.reset_cnt()

    def loader(self):
        a = self.a
        a.label("L_loader"); a.reset_hist(); a.reset_cnt(); self.nst = 1; self.inhelper = True; a.vm = [("raw", 0)] * 4
        sL = sMode
        a(f"s_and_b32 {s(sL)}, {s(sWave)}, 1")
        self.srd(a, sIN, 20, 2048 * 1280)
        a(f"v_and_b32 v13, 15, {v(vLane)}\nv_lshlrev_b32 v46, 19, v13\nv_lshlrev_b32 v47, 20, v13\ns_mov_b64 exec, 0x3ff")
        a(f"buffer_load_dword v49, v47, {s(sWS,4)}, 0 offen offset:128 sc1\nbuffer_load_dword v50, v46, {s(sIN,4)}, 0 offen\ns_mov_b64 exec, -1")
        a(f"v_and_b32 v12, 3, {v(vLane)}\nv_mul_u32_u24 v12, 260, v12\nv_add_u32 v12, {L_CW}, v12")
        a(f"s_lshl_b32 {s(sA)}, {s(sL)}, 8\ns_add_u32 {s(sA)}, {s(sA)}, {L_LW}\nv_lshl_add_u32 v11, {v(vLane)}, 2, {s(sA)}")
        self.pack_seq(a)
        for k in (1, 2): self.pk_B(a, k, 64 + 16 * k, 192 + 16 * (k & 1), 224)
        self.stamp()
        pend = []
        MAXF = self.opt.get("maxf", 24)
        def publish_upto(u, A=None):
            (A or a)(f"v_mov_b32 v13, {u+1}\nds_max_u32 v11, v13")
        def throttle():
            if len(a.vm) > MAXF: a(f"s_waitcnt vmcnt({MAXF})")
            while pend and ("u", pend[0]) not in a.vm:
                publish_upto(pend.pop(0))
        def guarded_wait(addr, off, need, sleep, pre=False):
            L = a.newlabel("Lf"); Lok = L + "_ok"
            if pre: a(f"s_waitcnt lgkmcnt(0)\nv_cmp_gt_u32 vcc, {need}, v14\ns_cbranch_vccnz {L}")
            else: a(f"s_branch {L}")
            a.label(Lok)
            t = self.t
            t.label(L); t.reset_hist(); t.vm = list(a.vm)
            self.a = t
            t(f"ds_read_b32 v13, {v(addr)} offset:{off}\ns_waitcnt lgkmcnt(0)\nv_cmp_gt_u32 vcc, {need}, v13\ns_cbranch_vccz {Lok}")
            for pi_, pu in enumerate(pend):
                t.wait(vm=("u", pu)); publish_upto(pu, t)
                if pi_ < len(pend) - 1:
                    t(f"ds_read_b32 v13, {v(addr)} offset:{off}\ns_waitcnt lgkmcnt(0)\nv_cmp_gt_u32 vcc, {need}, v13\ns_cbranch_vccz {Lok}")
            self.lds_spin(t, addr, off, need, 13, sleep=sleep)
            t(f"s_branch {Lok}")
            self.a = a
        sJ1, sJ2, sH1, sH2 = 64, 65, 66, 67
        sR5, sR4a, sR4b = 8, 13, 68
        have = 0; pre = False
        U0 = U_RAW + (5 if self.opt.get("rawk") else 0)
        todo = [u for u in range(U0, len(UNITS)) if UNITS[u][1] != "pseudo"]
        def need_of(u):
            nd = UNEED[u]
            if nd in (U_W1, U_W2) and not self.opt.get("nodefer"): nd += 1
            while nd and nd not in PUBS: nd += 1
            assert nd <= u, (u, nd)
            return nd
        def consts():
            a(f"s_mul_i32 {s(sH1)}, {s(sL)}, 12288\ns_mul_i32 {s(sH2)}, {s(sL)}, 10240\ns_mul_i32 {s(sJ1)}, {s(sJ)}, 102400\ns_mul_i32 {s(sJ2)}, {s(sJ)}, 245760")
            for i in range(5):
                a(f"s_add_u32 {s(sB)}, {s(sQ)}, {i}\ns_sub_u32 {s(sA)}, {s(sB)}, 5\ns_cmp_ge_u32 {s(sB)}, 5\ns_cselect_b32 {s(sB)}, {s(sA)}, {s(sB)}\ns_mul_i32 {s(sB)}, {s(sB)}, 20480")
                a(f"s_add_u32 {s(sB)}, {s(sB)}, {s(sJ1)}\ns_add_u32 {s(sR5+i)}, {s(sB)}, {s(sH2)}")
            for i in range(4):
                a(f"s_mul_i32 {s(sB)}, {s(sRot+i)}, 25600\ns_add_u32 {s(sB)}, {s(sB)}, {s(sJ1)}\ns_add_u32 {s(sR4a+i)}, {s(sB)}, {s(sH1)}")
                a(f"s_mul_i32 {s(sB)}, {s(sRot+i)}, 20480\ns_add_u32 {s(sB)}, {s(sB)}, {s(sJ2)}\ns_add_u32 {s(sR4b+i)}, {s(sB)}, {s(sH2)}")
        consts()
        a("s_getpc_b64 s[18:19]")
        a.label("L_pc2")
        a(f"s_add_u32 s18, s18, L_table-L_pc2\ns_addc_u32 s19, s19, 0\ns_lshl_b32 s17, {s(sL)}, 8\ns_add_u32 s17, s17, {L_LW}\nv_mov_b32 v15, 0")
        a(f"s_setprio {self.opt.get('lprio', 3)}")
        for ti, u in enumerate(todo):
            size, kind, (wid, ch, i) = UNITS[u]
            if self.opt.get("fake") and u >= U_W1:
                a("s_waitcnt vmcnt(0)"); publish_upto(100); del pend[:]; break
            nd = need_of(u)
            if nd > have:
                have = nd; guarded_wait(12, 0, nd, self.opt.get('lsleep', 2), pre)
            if u == U_W1: MAXF = self.opt.get("maxf2", 8)
            if u == U_W3 + 7: MAXF = self.opt.get("maxf3", 24)
            if u == U0 or u == U_WO:
                guarded_wait(vZ, L_PKR - L_CNT, wid + 1, 1)
            if u == U0 or (ch == 0 and i == 0 and wid >= 3): self.stamp()
            n = 13 if size == 25600 else 10
            sH = sH1 if size == 25600 else sH2
            sR = (sR5 if wid < 3 else sR4a if wid < 6 else sR4b) + i
            pre = ti + 1 < len(todo) and need_of(todo[ti + 1]) > have
            for k in range(n):
                if k % 4 == 0:
                    a(f"s_add_u32 m0, {s(sH)}, {UADDR[u] + k*1024}\ns_add_u32 {s(sA)}, {s(sR)}, {WS_WP + WP_OFF[wid] + ch*81920 + k*1024}")
                a(f"buffer_load_dwordx4 {v(vL16)}, {s(sWS,4)}, {s(sA)} offen offset:{1024*(k%4)}{'' if self.opt.get('nosc') else ' sc1'} lds", tag=("u", u))
                if k == n - 5 and pre: a("ds_read_b32 v14, v12")
                if k == n - 1:
                    if self.opt.get("dsl"): pend.append(u)
                    else: a(f"s_sub_u32 m0, s17, {4*(u+1)}\nglobal_load_lds_dword v15, s[18:19] offset:{4*(u+1)}")
                if k == n - 1 or (MAXF < n and k % 4 == 3): throttle()
            if u == U0 + self.opt.get('lc', 2): self.pk_C(a, [1, 2])
        for pu in pend:
            a.wait(vm=("u", pu)); publish_upto(pu)
        self.finish(a)

    PC = 28
    PR, PFR, PCS = 144, 192, 208
    def pk_decode(self, a, k):
        sU, sS, sCl, sWid = 64, 65, 66, 71
        Ld = a.newlabel("Lpd")
        a(f"s_add_u32 {s(sU)}, s63, {768*k}")
        a(f"s_cmp_ge_u32 {s(sU)}, 1680\ns_cbranch_scc1 {Ld}_4")
        a(f"s_mul_hi_u32 {s(sCl)}, {s(sU)}, {(1<<32)//20+1}\ns_mul_i32 {s(sA)}, {s(sCl)}, 20\ns_sub_u32 {s(sS)}, {s(sU)}, {s(sA)}")
        a(f"s_mul_hi_u32 {s(sWid)}, {s(sCl)}, {(1<<32)//10+1}\ns_min_u32 {s(sWid)}, {s(sWid)}, 6\ns_mul_i32 {s(sA)}, {s(sWid)}, 10\ns_sub_u32 {s(sCl)}, {s(sCl)}, {s(sA)}\ns_branch {Ld}")
        a.label(Ld + "_4")
        a(f"s_sub_u32 {s(sA)}, {s(sU)}, 1680\ns_mul_hi_u32 {s(sCl)}, {s(sA)}, {(1<<32)//48+1}\ns_mul_i32 {s(sB)}, {s(sCl)}, 48\ns_sub_u32 {s(sS)}, {s(sA)}, {s(sB)}\ns_mov_b32 {s(sWid)}, 7")
        a.label(Ld)
    def pk_A(self, a, k, R, pre_wait=False):
        sU, sS, sCl, sB0, sB1, sRs, sWid = 64, 65, 66, 67, 68, 69, 71
        c = self.PC; sR = sOUT
        NT = '' if self.opt.get('nont') else ' nt'
        self.pk_decode(a, k)
        L = a.newlabel("Lpa")
        a(f"s_lshl_b32 {s(sCc)}, {s(sCl)}, 7\nv_lshrrev_b32 {v(c)}, 3, {v(vLane)}\nv_and_b32 {v(c+1)}, 7, {v(vLane)}")
        a(f"s_cmp_lt_u32 {s(sWid)}, 3\ns_cbranch_scc1 {L}_q\ns_cmp_eq_u32 {s(sWid)}, 7\ns_cbranch_scc1 {L}_4")
        a(f"s_mul_hi_u32 {s(sA)}, {s(sS)}, {(1<<32)//5+1}\ns_mul_i32 {s(sB)}, {s(sA)}, 5\ns_sub_u32 {s(sB)}, {s(sS)}, {s(sB)}\ns_mul_i32 {s(sA)}, {s(sA)}, 160")
        a(f"s_lshr_b32 {s(sD)}, {s(sB)}, 1\ns_mul_i32 {s(sD)}, {s(sD)}, 80\ns_and_b32 {s(sB1)}, {s(sB)}, 1\ns_lshl_b32 {s(sB1)}, {s(sB1)}, 5\ns_add_u32 {s(sD)}, {s(sD)}, {s(sB1)}")
        a(f"s_cmp_eq_u32 {s(sB)}, 4\ns_cselect_b32 {s(sD)}, 64, {s(sD)}\ns_cselect_b32 {s(sB1)}, 80, 16\ns_add_u32 {s(sB0)}, {s(sA)}, {s(sD)}\ns_add_u32 {s(sB1)}, {s(sB0)}, {s(sB1)}")
        a(f"s_cmp_eq_u32 {s(sWid)}, 6\ns_movk_i32 {s(sRs)}, 1280\ns_cselect_b32 {s(sRs)}, 3072, {s(sRs)}\ns_lshl_b32 {s(sD)}, {s(sRs)}, 3\ns_branch {L}")
        a.label(L + "_4")
        a(f"s_lshr_b32 {s(sA)}, {s(sS)}, 4\ns_lshl_b32 {s(sB0)}, {s(sA)}, 6\ns_bfe_u32 {s(sA)}, {s(sS)}, 0x30001\ns_mul_i32 {s(sA)}, {s(sA)}, 192\ns_add_u32 {s(sB0)}, {s(sB0)}, {s(sA)}")
        a(f"s_and_b32 {s(sA)}, {s(sS)}, 1\ns_lshl_b32 {s(sA)}, {s(sA)}, 5\ns_add_u32 {s(sB0)}, {s(sB0)}, {s(sA)}\ns_add_u32 {s(sB1)}, {s(sB0)}, 16")
        a(f"s_movk_i32 {s(sRs)}, 1280\ns_movk_i32 {s(sD)}, {8*1280}\ns_branch {L}")
        a.label(L + "_q")
        a(f"s_lshl_b32 {s(sB0)}, {s(sS)}, 5\ns_add_u32 {s(sB1)}, {s(sB0)}, 4\ns_movk_i32 {s(sRs)}, 3840\ns_mov_b32 {s(sD)}, {16*3840}")
        a(f"s_add_u32 {s(sA)}, {s(sWid)}, 1\ns_cmp_eq_u32 {s(sA)}, 3\ns_cselect_b32 {s(sA)}, 0, {s(sA)}\ns_mul_i32 {s(sA)}, {s(sA)}, 1280\ns_add_u32 {s(sCc)}, {s(sCc)}, {s(sA)}")
        a(f"v_and_b32 {v(c+2)}, 4, {v(c)}\nv_add_u32 {v(c)}, {v(c)}, {v(c+2)}")
        a.label(L)
        a(f"v_mul_lo_u32 {v(c+8)}, {s(sRs)}, {v(c)}\nv_lshl_add_u32 {v(c+8)}, {v(c+1)}, 4, {v(c+8)}\nv_add_u32 {v(c+9)}, {s(sD)}, {v(c+8)}")
        a(f"s_mul_i32 {s(sB0)}, {s(sB0)}, {s(sRs)}\ns_add_u32 {s(sB0)}, {s(sB0)}, {s(sCc)}\ns_mul_i32 {s(sB1)}, {s(sB1)}, {s(sRs)}\ns_add_u32 {s(sB1)}, {s(sB1)}, {s(sCc)}")
        a(f"s_cmp_ge_u32 {s(sU)}, 2160\ns_cselect_b32 {s(sB0)}, {OOB}, {s(sB0)}\ns_cselect_b32 {s(sB1)}, {OOB}, {s(sB1)}")
        if pre_wait: a("s_waitcnt lgkmcnt(0)")
        a(f"s_mov_b32 {s(sR)}, s6\ns_mov_b32 {s(sR+1)}, s7\ns_mov_b32 {s(sR+2)}, 819200\ns_mov_b32 {s(sR+3)}, 0x20000")
        for wid, lo in ((3, 8), (4, 12), (5, 14), (6, 16), (7, 18)):
            a(f"s_cmp_eq_u32 {s(sWid)}, {wid}\ns_cselect_b64 {s(sR,2)}, s[{lo}:{lo+1}], {s(sR,2)}")
        a(f"s_cmp_ge_u32 {s(sWid)}, 6\ns_cselect_b32 {s(sR+2)}, 1966080, {s(sR+2)}\ns_cmp_lt_u32 {s(sWid)}, 3\ns_cselect_b32 {s(sR+2)}, 2457600, {s(sR+2)}")
        a(f"buffer_load_dwordx4 {v(R,4)}, {v(c+8)}, {s(sR,4)}, {s(sB0)} offen{NT}\nbuffer_load_dwordx4 {v(R+4,4)}, {v(c+9)}, {s(sR,4)}, {s(sB0)} offen{NT}")
        a(f"buffer_load_dwordx4 {v(R+8,4)}, {v(c+8)}, {s(sR,4)}, {s(sB1)} offen{NT}")
        a(f"buffer_load_dwordx4 {v(R+12,4)}, {v(c+9)}, {s(sR,4)}, {s(sB1)} offen{NT}", tag=("raw", k))
    def pk_B(self, a, k_, R, FR, CS):
        sU, sS, sCl, sDst, sScr, sWid = 64, 65, 66, 69, 70, 71
        c = self.PC
        self.pk_decode(a, k_)
        if k_ == 0:
            a(f"v_add_u32 {v(c+4)}, {s(sScr)}, {v(vL16)}")
            a(f"v_lshrrev_b32 {v(c+5)}, 2, {v(vLane)}\nv_lshlrev_b32 {v(c+5)}, 7, {v(c+5)}\nv_and_b32 {v(c+3)}, 3, {v(vLane)}\nv_lshl_add_u32 {v(c+5)}, {v(c+3)}, 3, {v(c+5)}\nv_add_u32 {v(c+5)}, {s(sScr)}, {v(c+5)}")
            a(f"v_lshlrev_b32 {v(c+6)}, 2, {v(vLane)}")
        D = [67, 68, 74, 75]
        L3 = a.newlabel("Ld3"); Lc = L3 + "_c"
        a(f"s_cmp_eq_u32 {s(sWid)}, 6\ns_cbranch_scc1 {L3}")
        a(f"s_mul_i32 {s(sDst)}, {s(sWid)}, 819200\ns_cmp_eq_u32 {s(sWid)}, 7\ns_cselect_b32 {s(sDst)}, {WP_OFF[7]}, {s(sDst)}\ns_mov_b32 {s(sD)}, 102400\ns_cselect_b32 {s(sD)}, 245760, {s(sD)}")
        a(f"s_mul_i32 {s(sA)}, {s(sS)}, 5120\ns_add_u32 {s(sDst)}, {s(sDst)}, {s(sA)}\ns_add_u32 {s(sDst)}, {s(sDst)}, {WS_WP}")
        a(f"s_cmp_ge_u32 {s(sU)}, 2160\ns_cselect_b32 {s(sDst)}, {OOB}, {s(sDst)}")
        for tt in range(4):
            a(f"s_lshl_b32 {s(sA)}, {s(sCl)}, 2\ns_add_u32 {s(sA)}, {s(sA)}, {tt}\ns_mul_hi_u32 {s(sB)}, {s(sA)}, {(1<<32)//5+1}\ns_mul_i32 {s(sCc)}, {s(sB)}, 5\ns_sub_u32 {s(sA)}, {s(sA)}, {s(sCc)}")
            a(f"s_lshl_b32 {s(sA)}, {s(sA)}, 10\ns_mul_i32 {s(sB)}, {s(sB)}, {s(sD)}\ns_add_u32 {s(sA)}, {s(sA)}, {s(sB)}\ns_add_u32 {s(D[tt])}, {s(sA)}, {s(sDst)}")
        a(f"s_mul_i32 {s(sA)}, {s(sS)}, 2560\ns_add_u32 {s(sA)}, {s(sA)}, {WS_CS1}\ns_cmp_eq_u32 {s(sWid)}, 4\ns_cselect_b32 {s(sA)}, {s(sA)}, {OOB}\ns_branch {Lc}")
        a.label(L3)
        a(f"s_mul_i32 {s(sA)}, {s(sCl)}, 81920\ns_lshl_b32 {s(sB)}, {s(sS)}, 12\ns_add_u32 {s(sA)}, {s(sA)}, {s(sB)}")
        for tt in range(4): a(f"s_add_u32 {s(D[tt])}, {s(sA)}, {WS_WP + WP_OFF[6] + 1024*tt}")
        a(f"s_mul_i32 {s(sA)}, {s(sS)}, 6144\ns_add_u32 {s(sA)}, {s(sA)}, {WS_CS3}")
        a.label(Lc)
        a(f"s_lshl_b32 {s(sB)}, {s(sCl)}, 8\ns_add_u32 {s(sA)}, {s(sA)}, {s(sB)}")
        a.wait(vm=("raw", k_))
        for hb in range(2):
            for k in range(2): a(f"ds_write_b128 {v(c+4)}, {v(R+8*hb+4*k,4)} offset:{1024*k}")
            for tt in range(4): a(f"ds_read_b64_tr_b16 {v(FR+4*tt+2*hb,2)}, {v(c+5)} offset:{32*tt}")
        a("s_waitcnt lgkmcnt(0)")
        for tt in range(4):
            a(f"buffer_store_dwordx4 {v(FR+4*tt,4)}, {v(vL16)}, {s(sWS,4)}, {s(D[tt])} offen sc1{' nt' if self.opt.get('pnt') else ''}", tag=("pst", k_))
        if k_ > 0 or self.opt.get('rawk'):
            for tt in range(4): a(f"v_mov_b32 {v(CS+tt)}, 0")
            for k in range(4):
                for tt in range(4): a(f"v_dot2c_f32_bf16 {v(CS+tt)}, {s(sOnes)}, {v(FR+4*tt+k)}")
            self.rscatter4(a, [CS, CS + 1, CS + 2, CS + 3], "v_add_f32")
            a(f"buffer_store_dword {v(CS)}, {v(c+6)}, {s(sWS,4)}, {s(sA)} offen sc1", tag=("pst", k_))
    def pk_C(self, a, ks):
        c = self.PC
        a(f"s_lshl_b32 {s(sA)}, s63, 5\ns_add_u32 {s(sA)}, {s(sA)}, {WS_PF + 24576*ks[0]}")
        a.wait(vm=("pst", ks[-1]))
        a("s_mov_b64 exec, 1")
        for k in ks:
            a(f"buffer_store_dwordx2 {v(c+10,2)}, {v(c+7)}, {s(sWS,4)}, {s(sA)} offen sc1")
            if k != ks[-1]: a(f"s_add_u32 {s(sA)}, {s(sA)}, 24576")
        a("s_mov_b64 exec, -1")
    def pack_seq(self, a, mid=None):
        c = self.PC
        self.pk_B(a, 0, 64, 192, 224)
        self.stamp()
        if mid: mid()
        else:
            self.get_tag(a, c + 10); a(f"v_mov_b32 {v(c+11)}, {s(sTag+1)}")
        self.pk_C(a, [0])
        a(f"v_mov_b32 v13, 1\ns_mov_b64 exec, 1\nds_add_u32 {v(vZ)}, v13 offset:{L_C0-L_CNT}\ns_mov_b64 exec, -1")
        self.stamp()
        if not self.opt.get("noxi"): self.lds_spin(a, vZ, L_XI - L_CNT, 4, 13, sleep=1)
        for k in (1, 2): self.pk_A(a, k, 64 + 16 * k)
    def touch_addr(self, a, d):
        a(f"s_lshl_b32 s74, {s(sC)}, 2\ns_mul_i32 s74, s74, {TS}\ns_add_u32 s74, s74, {WS_TILE}")
        a(f"v_lshrrev_b32 {v(d+2)}, 4, {v(vLane)}\ns_mov_b32 {s(sB)}, {TS}\nv_mul_lo_u32 {v(d+2)}, {s(sB)}, {v(d+2)}\nv_and_b32 {v(d)}, 15, {v(vLane)}\nv_lshl_add_u32 {v(d)}, {v(d)}, 7, {v(d+2)}")
        a(f"v_and_b32 {v(d+1)}, 3, {v(vLane)}\nv_lshl_add_u32 {v(d+1)}, {v(d+1)}, 7, {v(d+2)}")

    def sweep(self, h, name, loads, val, sleep):
        h.label(name); h.reset_hist()
        for k, ld in enumerate(loads): h(f"buffer_load_dwordx2 {v(128+2*k,2)}, {ld} sc1")
        h(f"s_waitcnt vmcnt(0)\nv_cmp_ne_u64 vcc, {s(sTag,2)}, {v(128,2)}")
        for k in range(1, len(loads)): h(f"v_cmp_ne_u64 {s(sMk,2)}, {s(sTag,2)}, {v(128+2*k,2)}\ns_or_b64 vcc, vcc, {s(sMk,2)}")
        h(f"s_cbranch_vccz {name}_ok\ns_sleep {sleep}")
        self.spin_tail(h, name, name + "_ok")
        h.label(name + "_ok"); h.reset_hist()
        h(f"v_mov_b32 v56, {val}\ns_mov_b64 exec, 1\nds_write_b32 {v(vZ)}, v56 offset:{L_PKR-L_CNT}\ns_mov_b64 exec, -1")

    def prestore(self, h):
        h("v_mov_b32 v232, 0\nv_mov_b32 v233, 0\nv_mov_b32 v234, 0\nv_mov_b32 v235, 0")
        for w in range(4):
            h(f"s_mul_i32 {s(sA)}, {s(sJ)}, 2560\ns_add_u32 {s(sA)}, {s(sA)}, {s(sTile)}\ns_add_u32 {s(sA)}, {s(sA)}, {w*TS}")
            for buf in (BUFA, BUFB):
                h(f"s_add_u32 {s(sB)}, {s(sA)}, {buf}")
                h(f"buffer_store_dwordx4 v[232:235], {v(vL16)}, {s(sWS,4)}, {s(sB)} offen sc1\nbuffer_store_dwordx4 v[232:235], {v(vL16)}, {s(sWS,4)}, {s(sB)} offen offset:1024 sc1")
                h(f"buffer_store_dwordx2 v[232:233], {v(vL8)}, {s(sWS,4)}, {s(sB)} offen offset:2048 sc1")
            h(f"s_lshl_b32 {s(sA)}, {s(sJ)}, 11\ns_add_u32 {s(sA)}, {s(sA)}, {s(sTile)}\ns_add_u32 {s(sA)}, {s(sA)}, {w*TS + BUFG}")
            for ch in range(1):
                h(f"buffer_store_dwordx4 v[232:235], {v(vL16)}, {s(sWS,4)}, {s(sA)} offen sc1\nbuffer_store_dwordx4 v[232:235], {v(vL16)}, {s(sWS,4)}, {s(sA)} offen offset:1024 sc1\ns_add_u32 {s(sA)}, {s(sA)}, 16384")

    def relay(self):
        h = self.h
        h.label("L_relay"); h.reset_hist(); h.reset_cnt()
        self.a, sa = h, self.a; self.nst = 1; self.inhelper = True
        h("s_setprio 2\ns_waitcnt lgkmcnt(0)")
        self.srd(h, sWS, 24, WS_SIZE)
        h(f"s_mul_i32 {s(sA)}, {s(sJ)}, 5\ns_lshr_b32 {s(sA)}, {s(sA)}, 2\ns_mul_i32 {s(sTJ)}, {s(sA)}, 640\ns_add_u32 {s(sTJ)}, {s(sTJ)}, {WS_PF}")
        h(f"v_min_u32 v58, 39, {v(vLane)}\nv_lshlrev_b32 v58, 5, v58\nv_add_u32 v59, 6400, v58\nv_add_u32 v60, 12800, v58")
        if self.opt.get("pre") in (3, 4):
            h(f"s_lshl_b32 {s(sTile)}, {s(sC)}, 2\ns_mul_i32 {s(sTile)}, {s(sTile)}, {TS}\ns_add_u32 {s(sTile)}, {s(sTile)}, {WS_TILE}")
            if self.opt["pre"] == 4: self.lds_spin(h, vZ, L_C0 - L_CNT, 3, 13, sleep=2)
            self.prestore(h)
        if not self.opt.get("nofl"):
            self.touch_addr(h, 46)
            h(f"v_and_b32 v49, 1, {v(vLane)}\nv_lshlrev_b32 v49, 7, v49\nv_bfe_u32 v50, {v(vLane)}, 1, 1\nv_mul_u32_u24 v50, {S4-S2}, v50\nv_add_u32 v49, v49, v50")
            h(f"s_lshl_b32 {s(sA)}, {s(sJ)}, 8\ns_add_u32 {s(sA)}, {s(sA)}, {S2}\nv_add_u32 v49, {s(sA)}, v49")
            h(f"s_min_u32 {s(sA)}, {s(sJ)}, 5\ns_lshl_b32 {s(sA)}, {s(sA)}, 7\ns_add_u32 {s(sA)}, {s(sA)}, {FLG}\nv_mov_b32 v50, {s(sA)}")
            h(f"v_and_b32 v51, 12, {v(vLane)}\nv_cmp_eq_u32 vcc, 0, v51\nv_cndmask_b32 v49, v50, v49, vcc\nv_add_u32 v52, v49, v48")
        if self.opt.get("rawk"):
            self.srd(h, sIN, 6, 640 * 3840)
            for i in range(5):
                h(f"v_add_u32 v13, {64*i}, {v(vLane)}\nv_mul_u32_u24 v14, 6554, v13\nv_lshrrev_b32 v14, 16, v14")
                h(f"v_mul_u32_u24 v15, 10, v14\nv_sub_u32 v13, v13, v15")
                h(f"v_and_b32 v15, 0x13, v14\nv_bfe_u32 v21, v14, 2, 1\nv_lshl_or_b32 v15, v21, 3, v15\nv_bfe_u32 v21, v14, 3, 1\nv_lshl_or_b32 v15, v21, 2, v15")
                h(f"v_mul_u32_u24 v15, 3840, v15\nv_lshl_add_u32 v{16+i}, v13, 4, v15")
                if 0 < i < 4: h(f"v_subrev_u32 v{16+i}, {1024*i}, v{16+i}")
            h("s_getpc_b64 s[18:19]")
            h.label("L_pc3")
            h(f"s_add_u32 s18, s18, L_table-L_pc3\ns_addc_u32 s19, s19, 0\nv_mov_b32 v15, 0")
            h(f"v_and_b32 v12, 3, {v(vLane)}\nv_mul_u32_u24 v12, 260, v12\nv_add_u32 v12, {L_CW}, v12")
            h(f"s_mul_i32 {s(sE)}, {s(sJ)}, 160\ns_add_u32 {s(sE)}, {s(sE)}, 1280\ns_mul_i32 {s(sD)}, {s(sRho)}, {64*3840}")
            self.lds_spin(h, vZ, L_XI - L_CNT, 4, 13, sleep=1)
            waited = False
            for st in range(20):
                u = U_RAW + st // 4
                if UNEED[u] and not waited:
                    waited = True; self.lds_spin(h, 12, 0, 1, 13, sleep=1)
                D = UADDR[u] + (st % 4) * 5120
                h(f"s_mov_b32 m0, {D}\ns_add_u32 {s(sA)}, {s(sD)}, {s(sE)}")
                for k in range(4): h(f"buffer_load_dwordx4 v{16+k}, {s(sIN,4)}, {s(sA)} offen offset:{1024*k} lds")
                h(f"s_mov_b32 m0, {D+4096}\ns_add_u32 {s(sD)}, {s(sD)}, {32*3840}")
                h(f"buffer_load_dwordx4 v20, {s(sIN,4)}, {s(sA)} offen lds")
                h(f"s_cmp_ge_u32 {s(sD)}, {640*3840}\ns_cselect_b32 {s(sD)}, 0, {s(sD)}")
                if st % 4 == 3:
                    for row in range(2): h(f"s_mov_b32 m0, {L_LW + 256*row - 4*(u+1)}\nglobal_load_lds_dword v15, s[18:19] offset:{4*(u+1)}")
                if len(h.vm) > self.opt.get("maxr", 30): h(f"s_waitcnt vmcnt({self.opt.get('maxr', 30)})")
        self.get_tag(h, 28)
        self.lds_spin(h, vZ, L_C0 - L_CNT, 3, 13, sleep=2)
        if self.opt.get('sw0'): h(f"s_sleep {self.opt['sw0']}")
        self.stamp()
        self.sweep(h, "L_pfa", [f"v{58+k}, {s(sWS,4)}, {s(sTJ)} offen" for k in range(1 if self.opt.get("rawk") else 0, 3)], 3, 4)
        self.stamp()
        TF = "nt" if self.opt.get("tnt") else "sc1"
        if self.opt.get("t6"):
            self.touch_addr(h, 46)
            h(f"v_and_b32 {v(vLa)}, 1, {v(vLane)}\nv_mul_u32_u24 {v(vLa)}, 260, {v(vLa)}\nv_add_u32 {v(vLa)}, {L_LW}, {v(vLa)}")
            self.lds_spin(h, vLa, 0, self.opt["t6"], 13, sleep=2)
            if not self.opt.get("nofl"): h(f"buffer_load_dword v50, v52, {s(sWS,4)}, s74 offen sc1")
            for buf in (BUFA, BUFB)[:self.opt.get("t6n", 2)]:
                h(f"s_mul_i32 {s(sB)}, {s(sJ)}, 2560\ns_add_u32 {s(sB)}, {s(sB)}, s74\ns_add_u32 {s(sB)}, {s(sB)}, {buf}")
                h(f"buffer_load_dword v50, v46, {s(sWS,4)}, {s(sB)} offen {TF}\nbuffer_load_dword v50, v47, {s(sWS,4)}, {s(sB)} offen offset:2048 {TF}")
            if self.opt.get("g6"):
                if self.opt["g6"] > 1:
                    h(f"v_and_b32 v12, 3, {v(vLane)}\nv_mul_u32_u24 v12, 260, v12\nv_add_u32 v12, {L_CW}, v12")
                    self.lds_spin(h, 12, 0, self.opt["g6"], 13, sleep=8)
                h(f"s_lshl_b32 {s(sB)}, {s(sJ)}, 11\ns_add_u32 {s(sB)}, {s(sB)}, s74\ns_add_u32 {s(sB)}, {s(sB)}, {BUFG}\nbuffer_load_dword v50, v46, {s(sWS,4)}, {s(sB)} offen {TF}")
        self.finish(h)
        self.a = sa

    def service(self):
        h = self.h; c = self.PC
        h.label("L_service"); h.reset_hist(); h.reset_cnt()
        self.a, sa = h, self.a; self.nst = 1; self.inhelper = True
        h.vm = [("raw", 0)] * 4
        h(f"buffer_load_dword {v(c+10)}, {v(c+7)}, {s(sWS,4)}, 0 offen sc1", tag="ep")
        self.touch_addr(h, 44); h(f"s_mov_b32 {s(sTile)}, s74")
        h(f"v_and_b32 {v(vLa)}, 1, {v(vLane)}\nv_mul_u32_u24 {v(vLa)}, 260, {v(vLa)}\nv_add_u32 {v(vLa)}, {L_LW}, {v(vLa)}")
        h(f"s_mul_i32 {s(sA)}, {s(sJ)}, 5\ns_lshr_b32 {s(sA)}, {s(sA)}, 2\ns_mul_i32 {s(sTJ)}, {s(sA)}, 640\ns_add_u32 {s(sTJ)}, {s(sTJ)}, {WS_PF}")
        h(f"s_mul_i32 {s(sT)}, {s(sJ)}, 1920\ns_add_u32 {s(sT)}, {s(sT)}, {WS_PF + 32*PF_BASE[6]}\ns_mul_i32 {s(sE)}, {s(sA)}, 1536\ns_add_u32 {s(sE)}, {s(sE)}, {WS_PF + 32*PF_BASE[7]}")
        h(f"v_min_u32 v58, 39, {v(vLane)}\nv_lshlrev_b32 v58, 5, v58")
        for k in range(1, 6): h(f"v_add_u32 v{58+k}, {6400*k}, v58")
        h(f"v_min_u32 v53, 59, {v(vLane)}\nv_lshlrev_b32 v53, 5, v53\nv_min_u32 v54, 47, {v(vLane)}\nv_lshlrev_b32 v54, 5, v54")
        h.wait(vm="ep")
        h(f"v_add_u32 {v(c+10)}, 1, {v(c+10)}\nv_mov_b32 {v(c+11)}, 1\nds_write_b64 {v(vZ)}, {v(c+10,2)} offset:{L_TAG-L_CNT}")
        h(f"v_readfirstlane_b32 {s(sTag)}, {v(c+10)}")
        h(f"s_mul_i32 {s(sTag+1)}, {s(sTag)}, 0x9E3779B1\ns_xor_b32 {s(sTag+1)}, {s(sTag+1)}, 0x7F4A7C15\ns_waitcnt lgkmcnt(0)\nv_mov_b32 {v(c+11)}, {s(sTag+1)}")
        def xt_pub():
            h(f"s_getreg_b32 {s(sPI)}, hwreg(HW_REG_XCC_ID)\ns_and_b32 {s(sPI)}, {s(sPI)}, 15\nv_mov_b32 {v(c+12)}, {s(sPI)}\nv_mov_b32 {v(c+13)}, 0")
            h(f"s_lshl_b32 {s(sA)}, {s(sC)}, 3\ns_add_u32 {s(sA)}, {s(sA)}, {s(sJ)}\ns_lshl_b32 {s(sA)}, {s(sA)}, 4\ns_add_u32 {s(sA)}, {s(sA)}, {WS_XT}")
            h(f"s_mov_b64 exec, 1\nbuffer_store_dwordx4 {v(c+10,4)}, {v(c+7)}, {s(sWS,4)}, {s(sA)} offen sc1\ns_mov_b64 exec, -1")
        def touch20(buf):
            h(f"s_mul_i32 {s(sB)}, {s(sJ)}, 2560\ns_add_u32 {s(sB)}, {s(sB)}, {s(sTile)}\ns_add_u32 {s(sB)}, {s(sB)}, {buf}")
            h(f"buffer_load_dword v47, v44, {s(sWS,4)}, {s(sB)} offen sc1\nbuffer_load_dword v47, v45, {s(sWS,4)}, {s(sB)} offen offset:2048 sc1")
        def touch16(buf):
            h(f"s_lshl_b32 {s(sB)}, {s(sJ)}, 11\ns_add_u32 {s(sB)}, {s(sB)}, {s(sTile)}\ns_add_u32 {s(sB)}, {s(sB)}, {buf}")
            h(f"buffer_load_dword v47, v44, {s(sWS,4)}, {s(sB)} offen sc1")
        self.pack_seq(h, xt_pub)
        prestore = lambda: self.prestore(h)
        swa = [f"v{58+k}, {s(sWS,4)}, {s(sTJ)} offen" for k in range(3)]
        if self.opt.get("pre") == 1: prestore()
        for k in (1, 2): self.pk_B(h, k, 64 + 16 * k, 192 + 16 * (k & 1), 224)
        self.stamp()
        if self.opt.get("pre") == 2: prestore()
        h(f"s_lshl_b32 {s(sA)}, {s(sC)}, 7\ns_add_u32 {s(sA)}, {s(sA)}, {WS_XT}\nv_and_b32 v57, 7, {v(vLane)}\nv_lshlrev_b32 v57, 4, v57")
        h.label("L_xt"); h.reset_hist()
        h(f"buffer_load_dwordx4 v[48:51], v57, {s(sWS,4)}, {s(sA)} offen sc1\ns_waitcnt vmcnt(0)\nv_cmp_ne_u64 vcc, {s(sTag,2)}, v[48:49]\ns_cbranch_vccz L_xt_ok\ns_sleep 4")
        self.spin_tail(h, "L_xt", "L_xt_ok")
        h.label("L_xt_ok"); h.reset_hist()
        h(f"v_cmp_ne_u32 vcc, {s(sPI)}, v50\ns_cmp_eq_u64 vcc, 0\ns_cselect_b32 {s(sA)}, {2 if self.force_sc1 else 1}, 2\nv_mov_b32 v57, {s(sA)}")
        self.lds_spin(h, vZ, L_PKR - L_CNT, 1, 13, sleep=2)
        h(f"s_mov_b64 exec, 1\nds_write_b32 {v(vZ)}, v57 offset:{L_MODE-L_CNT}\ns_mov_b64 exec, -1")
        self.pk_C(h, [1, 2])
        self.stamp()
        self.lds_spin(h, vZ, L_PKR - L_CNT, 3, 13, sleep=2)
        self.lds_spin(h, vLa, 0, self.opt.get("gs", 10), 13, sleep=2)
        self.sweep(h, "L_pfb", [f"v{61+k}, {s(sWS,4)}, {s(sTJ)} offen" for k in range(3)] + [f"v53, {s(sWS,4)}, {s(sT)} offen", f"v54, {s(sWS,4)}, {s(sE)} offen", f"v54, {s(sWS,4)}, {s(sE)} offen offset:1536"], 8, 8)
        self.stamp()
        self.lds_spin(h, vLa, 0, self.opt.get("gt", 14), 13, sleep=2)
        if not self.opt.get("not") and not self.opt.get("t6"): touch20(BUFA); touch20(BUFB)
        if not self.opt.get("nog") and not self.opt.get("not") and not self.opt.get("g6"):
            touch16(BUFG)
        for (wsoff, rowb, jb, nl, R) in ((WS_CS1, 2560, 320, 20, 64), (WS_CS3, 6144, 768, 48, 144)):
            h(f"s_mul_i32 {s(sA)}, {s(sJ)}, {jb}\ns_add_u32 {s(sA)}, {s(sA)}, {wsoff}")
            h(f"s_mov_b64 exec, {(1 << nl) - 1:#x}" if nl <= 32 else f"s_mov_b32 exec_lo, -1\ns_mov_b32 exec_hi, {(1 << (nl-32)) - 1:#x}")
            for k in range(20):
                if not self.opt.get("nocs"): h(f"buffer_load_dwordx4 {v(R+4*k,4)}, {v(vL16)}, {s(sWS,4)}, {s(sA)} offen sc1")
                h(f"s_add_u32 {s(sA)}, {s(sA)}, {rowb}")
        h("s_waitcnt vmcnt(0)\ns_setprio 0")
        for (nl, R, ldst) in ((48, 144, L_CS3), (20, 64, L_CS1)):
            if nl == 20: h(f"s_mov_b64 exec, {(1 << nl) - 1:#x}")
            for k in range(1, 20):
                for e in range(4): h(f"v_add_f32 {v(R+e)}, {v(R+e)}, {v(R+4*k+e)}")
            h(f"v_add_u32 {v(TT)}, {ldst}, {v(vL16)}\nds_write_b128 {v(TT)}, {v(R,4)}")
        h(f"s_mov_b64 exec, -1\nv_mov_b32 {v(TT+1)}, 2\nds_write_b32 {v(vZ)}, {v(TT+1)} offset:{L_CSRDY-L_CNT}")
        self.stamp()
        h("s_cmp_lg_u32 s2, 0\ns_cbranch_scc1 L_sv_end")
        h(f"s_mov_b32 {s(sA)}, {WS_XT}")
        h.label("L_ep"); h.reset_hist()
        for k in range(4): h(f"buffer_load_dwordx2 v[{48+2*k}:{49+2*k}], {v(vL16)}, {s(sWS,4)}, {s(sA)} offen offset:{1024*k} sc1")
        h(f"s_waitcnt vmcnt(0)\nv_cmp_ne_u64 vcc, {s(sTag,2)}, v[48:49]")
        for k in range(1, 4):
            h(f"v_cmp_ne_u64 {s(sMk,2)}, {s(sTag,2)}, v[{48+2*k}:{49+2*k}]\ns_or_b64 vcc, vcc, {s(sMk,2)}")
        h("s_cbranch_scc0 L_ep_ok\ns_sleep 4")
        self.spin_tail(h, "L_ep", "L_ep_ok")
        h.label("L_ep_ok"); h.reset_hist()
        h(f"s_mov_b64 exec, 1\nbuffer_store_dword {v(c+10)}, {v(c+7)}, {s(sWS,4)}, 0 offen sc1\ns_mov_b64 exec, -1")
        h.label("L_sv_end"); h.reset_hist()
        if self.opt.get("wb"):
            h(f"s_cmp_lg_u32 {s(sJ)}, 0\ns_cbranch_scc1 L_sv_end2")
            h(f"v_and_b32 v12, 3, {v(vLane)}\nv_mul_u32_u24 v12, 260, v12\nv_add_u32 v12, {L_CW}, v12")
            self.lds_spin(h, 12, 0, self.opt["wb"], 13, sleep=16)
            h("buffer_wbl2 sc1\ns_waitcnt vmcnt(0)")
            h.label("L_sv_end2")
        self.finish(h)
        self.a = sa

    def build(self):
        self.prologue(); n0 = self.nst
        self.compute()
        self.relay(); self.service()
        self.loader()
        hdr = open("sequential_preLN__sliding_local_dilated__mixer_s_mlp__prompt.s.ref").read().split("; Override")[0]
        out = hdr + f"; @launch grid=(256,1,1) block=(512,1,1) lds={LDS_SIZE}\n"
        out += f'.amdgcn_target "amdgcn-amd-amdhsa--gfx950"\n.text\n.globl {KNAME}\n.p2align 8\n.type {KNAME},@function\n{KNAME}:\n'
        out += self.a.text() + self.h.text() + self.t.text() + "L_end:\n    s_endpgm\nL_code_end:\n.p2align 7\n.type L_table,@object\nL_table:\n" + "".join(f".long {i}\n" for i in range(64)) + ".size L_table, 256\n"
        out += f'''.section .rodata,"a"
.p2align 6
.amdhsa_kernel {KNAME}
  .amdhsa_next_free_vgpr 256
  .amdhsa_next_free_sgpr 102
  .amdhsa_accum_offset 256
  .amdhsa_group_segment_fixed_size 0
  .amdhsa_kernarg_size 88
  .amdhsa_user_sgpr_count 2
  .amdhsa_user_sgpr_kernarg_segment_ptr 1
  .amdhsa_system_sgpr_workgroup_id_x 1
  .amdhsa_float_denorm_mode_32 3
.end_amdhsa_kernel
'''
        return out

if __name__ == "__main__":
    import argparse
    p = argparse.ArgumentParser()
    p.add_argument("-o", default="sequential_preLN__sliding_local_dilated__mixer_s_mlp__prompt.s")
    p.add_argument("--stamps", action="store_true"); p.add_argument("--sc1", action="store_true"); p.add_argument("--opt", action="append", default=[])
    args = p.parse_args()
    opt = {}
    for kv in args.opt:
        k_, _, v_ = kv.partition("="); opt[k_] = int(v_) if v_ else 1
    g = Gen(stamps=args.stamps, force_sc1=args.sc1, opt=opt)
    open(args.o, "w").write(g.build())
    print("units:", [(u, UADDR.get(u), UNEED.get(u)) for u in range(len(UNITS))])
    print("nops inserted:", g.a.nops + g.t.nops)
```
